```python
import torch

def _softmax(x, axis=-1):
    return torch.softmax(x, dim=axis)

def _gelu(x):
    return torch.nn.functional.gelu(x, approximate='tanh')

def _silu(x):
    return torch.nn.functional.silu(x)

def _sigmoid(x):
    return torch.sigmoid(x)

def _layernorm(x, axis=-1, eps=1e-05):
    m = x.mean(dim=axis, keepdim=True)
    v = x.var(dim=axis, keepdim=True, unbiased=False)
    return (x - m) / torch.sqrt(v + eps)

def _scatter_add(tgt, idx, src, axis=0):
    return tgt.clone().index_add_(axis, idx, src)

def _segment_sum(src, seg, n):
    out = torch.zeros((n,) + src.shape[1:], dtype=src.dtype)
    return out.index_add_(0, seg, src)

def _pad(x, pw):
    flat = tuple((v for pair in reversed(pw) for v in pair))
    return torch.nn.functional.pad(x, flat)
kernel_name = 'adaLN_cond__spectral_gfnet__mixer_channel_mlp__prompt'

def setup_inputs():

    _w = lambda a: (lambda t: t.to(torch.bfloat16) if t.is_floating_point() else t)(torch.as_tensor(a))

    def _A_setup():
        B, S, D = (1, 2048, 640)
        Df = D // 2 + 1
        return {'x': _w((lambda *s: torch.randn(*s, dtype=torch.bfloat16) * 0.05)(B, S, D)), 'w_r': _w((lambda *s: torch.randn(*s, dtype=torch.bfloat16) * 3.2)(S, Df) * 0.02), 'w_i': _w((lambda *s: torch.randn(*s, dtype=torch.bfloat16) * 3.2)(S, Df) * 0.02)}
    _A_in = _A_setup()

    def _B_setup():
        B, S, D, F = (1, 2048, 640, 1536)
        return {'x': _w((lambda *s: torch.randn(*s, dtype=torch.bfloat16) * 0.05)(B, S, D)), 'w1': _w((lambda *s: torch.randn(*s, dtype=torch.bfloat16) * 1.6)(D, F) * D ** (-0.5)), 'b1': _w((lambda *s: torch.randn(*s, dtype=torch.bfloat16) * 0.4)(F)), 'w2': _w((lambda *s: torch.randn(*s, dtype=torch.bfloat16) * 0.1)(F, D) * F ** (-0.5)), 'b2': _w((lambda *s: torch.randn(*s, dtype=torch.bfloat16) * 0.1)(D))}
    _B_in = _B_setup()
    return {'A_x': _A_in['x'], 'A_w_r': _A_in['w_r'], 'A_w_i': _A_in['w_i'], 'B_x': _B_in['x'], 'B_w1': _B_in['w1'], 'B_b1': _B_in['b1'], 'B_w2': _B_in['w2'], 'B_b2': _B_in['b2'], 'c': _w((lambda *s: torch.randn(*s, dtype=torch.bfloat16) * 0.1)(1, 640) * 8.0), 'w_mod': _w((lambda *s: torch.randn(*s, dtype=torch.bfloat16) * 0.1)(640, 6 * 640) * 640 ** (-0.5) * 8.0)}

def reference(A_x, A_w_r, A_w_i, B_x, B_w1, B_b1, B_w2, B_b2, c, w_mod):

    def _A_ref(x, w_r, w_i):
        B, S, D = x.shape
        X = (lambda x, axes=(-2, -1): torch.fft.rfft2(x.float(), dim=axes))(x, axes=(-2, -1))
        W = w_r + 1j * w_i
        X = X * W
        y = (lambda x, s, axes=(-2, -1): torch.fft.irfft2(x, s=s, dim=axes).to(torch.bfloat16))(X, (S, D), axes=(-2, -1))
        return y

    def _B_ref(x, w1, b1, w2, b2):
        y = _layernorm(x, axis=-1)
        h = _gelu(torch.einsum('bsd,df->bsf', y, w1) + b1)
        return torch.einsum('bsf,fd->bsd', h, w2) + b2
    x = A_x
    mod = (_silu(c) @ w_mod).reshape(c.shape[0], 6, 1, -1)
    sa, ca, ga, sb, cb, gb = (mod[:, 0].clone(), mod[:, 1].clone(), mod[:, 2].clone(), mod[:, 3].clone(), mod[:, 4].clone(), mod[:, 5].clone())
    h = _layernorm(x, axis=-1) * (1 + ca) + sa
    x = x + ga * _A_ref(h, A_w_r, A_w_i)
    h = _layernorm(x, axis=-1) * (1 + cb) + sb
    x = x + gb * _B_ref(h, B_w1, B_b1, B_w2, B_b2)
    return x
```

```python
import re

REG_RE = re.compile(r'(?<![\w.])(-|abs\()?([vas])(?:(\d+)|\[(\d+):(\d+)\])(?![\w])')
TRANS = ('v_exp_f32', 'v_log_f32', 'v_rcp_f32', 'v_rsq_f32', 'v_sqrt_f32', 'v_sin_f32', 'v_cos_f32', 'v_rcp_iflag_f32')


def regs_of(op):
    op = op.strip()
    out = []
    if op in ('vcc',):
        return [('s', 'vcc')]
    if op in ('exec',):
        return [('s', 'exec')]
    if op == 'm0':
        return [('s', 'm0')]
    for m in REG_RE.finditer(op):
        k = m.group(2)
        if m.group(3) is not None:
            out.append((k, int(m.group(3))))
        else:
            out += [(k, i) for i in range(int(m.group(4)), int(m.group(5)) + 1)]
    return out


def split_ops(s):
    ops, depth, cur = [], 0, ''
    for ch in s:
        if ch in '[(':
            depth += 1
        if ch in '])':
            depth -= 1
        if ch == ',' and depth == 0:
            ops.append(cur.strip())
            cur = ''
        else:
            cur += ch
    if cur.strip():
        ops.append(cur.strip())
    return ops


class Ins:
    __slots__ = ('text', 'mn', 'cls', 'defs', 'uses', 'passes', 'srcc', 'srcab', 'tag', 'wide', 'dpp', 'meta', 'data')

    def __init__(self, text, tag=None, meta=None):
        self.text = text
        self.tag = tag
        self.meta = meta
        self.defs, self.uses, self.srcc, self.srcab, self.data = [], [], [], [], []
        self.passes = 0
        self.wide = False
        self.dpp = False
        t = text.split(';')[0].strip()
        if t.endswith(':'):
            self.mn, self.cls = t, 'label'
            return
        if t.startswith('.') or t.startswith('@') or not t:
            self.mn, self.cls = t, ('pseudo' if t.startswith('@') else 'dir')
            return
        p = t.split(None, 1)
        mn = p[0]
        self.mn = mn
        rest = p[1] if len(p) > 1 else ''
        ops = split_ops(rest)
        mods = ''
        if ops:
            last = ops[-1]
            depth = 0
            for i, ch in enumerate(last):
                if ch in '[(':
                    depth += 1
                if ch in '])':
                    depth -= 1
                if ch == ' ' and depth == 0:
                    mods = last[i:]
                    ops[-1] = last[:i]
                    break
        R = [regs_of(o) for o in ops]
        flat = lambda l: [x for y in l for x in y]
        if mn.startswith('v_mfma'):
            self.cls = 'mfma'
            self.defs = R[0]
            self.srcab = R[1] + R[2]
            self.srcc = R[3]
            self.uses = self.srcab + self.srcc
            self.passes = 8 if '32x32' in mn else 4
        elif mn.startswith('buffer_') or mn.startswith('global_'):
            if mn.startswith('buffer_wbl2') or mn.startswith('buffer_inv'):
                self.cls = 'vstore'
            elif ' lds' in (' ' + mods) or 'load_lds' in mn:
                self.cls = 'dma'
                self.uses = flat(R) + [('s', 'm0')]
            elif 'load' in mn:
                self.cls = 'vload'
                self.defs = R[0]
                self.uses = flat(R[1:])
            else:
                self.cls = 'vstore'
                self.uses = flat(R)
                self.data = R[0] if mn.startswith('buffer_') else R[1]
                self.wide = 'x4' in mn or 'x3' in mn
        elif mn.startswith('ds_'):
            if 'read' in mn or 'permute' in mn or 'swizzle' in mn:
                self.cls = 'dsread'
                self.defs = R[0]
                self.uses = flat(R[1:])
            else:
                self.cls = 'dswrite'
                self.uses = flat(R)
        elif mn.startswith('s_load') or mn.startswith('s_memtime') or mn.startswith('s_memrealtime'):
            self.cls = 'smem'
            self.defs = R[0]
            self.uses = flat(R[1:])
        elif mn == 's_waitcnt':
            self.cls = 'wait'
        elif mn == 's_nop':
            self.cls = 'nop'
        elif mn == 's_barrier':
            self.cls = 'barrier'
        elif mn.startswith('s_cbranch') or mn == 's_branch' or mn == 's_endpgm':
            self.cls = 'branch'
            if 'vcc' in mn:
                self.uses = [('s', 'vcc')]
        elif mn.startswith('s_'):
            self.cls = 'salu'
            if mn.startswith('s_cmp') or mn.startswith('s_bitcmp') or mn in ('s_setprio', 's_sleep'):
                self.uses = flat(R)
            else:
                self.defs = list(R[0]) if R else []
                self.uses = flat(R[1:])
                if 'saveexec' in mn:
                    self.defs += [('s', 'exec')]
                if mn in ('s_addk_i32', 's_mulk_i32'):
                    self.uses += R[0]
        elif mn.startswith('v_'):
            base = mn.replace('_e32', '').replace('_e64', '').replace('_dpp', '').replace('_sdwa', '')
            self.cls = 'trans' if base in TRANS else 'valu'
            self.dpp = 'dpp' in mn or 'row_' in mods or 'quad_perm' in mods
            self.defs = list(R[0])
            self.uses = flat(R[1:])
            if base in ('v_swap_b32', 'v_permlane32_swap_b32', 'v_permlane16_swap_b32'):
                self.defs = R[0] + R[1]
                self.uses = R[0] + R[1]
            if base.startswith('v_fmac') or base.startswith('v_dot2c') or base.startswith('v_writelane') or self.dpp:
                self.uses += R[0]
            if base in ('v_add_co_u32', 'v_addc_co_u32', 'v_sub_co_u32'):
                self.defs = R[0] + R[1]
                self.uses = flat(R[2:])
            if base.startswith('v_cmpx'):
                self.defs += [('s', 'exec')]
        else:
            raise ValueError('unknown instr: ' + text)


class Asm:
    def __init__(self):
        self.l = []

    def __call__(self, text, tag=None):
        for line in text.split('\n'):
            line = line.strip()
            if line:
                self.l.append(Ins(line, tag))
        return self

    def add(self, other):
        self.l += other.l if isinstance(other, Asm) else other

    def wait_tag(self, tag):
        self.l.append(Ins('@waitvm', meta=tag))

    def wait_lds(self):
        self.l.append(Ins('@waitlds'))

    def opt_begin(self):
        self.l.append(Ins('@optbegin'))

    def opt_end(self):
        self.l.append(Ins('@optend'))

    def cold_begin(self):
        self.l.append(Ins('@coldbegin'))


def interleave(main, fill, start=0, end=None):
    main = list(main.l if isinstance(main, Asm) else main)
    fill = list(fill.l if isinstance(fill, Asm) else fill)
    if end is None:
        end = len(main)
    n = max(1, end - start)
    out = []
    k = 0
    for i, m in enumerate(main):
        out.append(m)
        if start <= i < end:
            want = ((i - start + 1) * len(fill)) // n
            while k < want:
                out.append(fill[k])
                k += 1
    out += fill[k:]
    return out


def flatten(l):
    out = []
    for x in l:
        if isinstance(x, list):
            out += flatten(x)
        else:
            out.append(x)
    return out


def parse_wait(text):
    vm = re.search(r'vmcnt\((\d+)\)', text)
    lg = re.search(r'lgkmcnt\((\d+)\)', text)
    return (int(vm.group(1)) if vm else None, int(lg.group(1)) if lg else None)


def insert_waits(ins):
    out = []
    vm = []
    lg = []
    optstack = []
    maxvm = 0

    def need(q, idx):
        return sum(1 for o in q[idx + 1:] if not o['opt'])

    def retire(q, n):
        if n == 0:
            q.clear()
            return
        cnt, keep = 0, 0
        for k in range(len(q) - 1, -1, -1):
            if not q[k]['opt']:
                cnt += 1
                if cnt == n:
                    keep = k
                    break
        del q[:keep]

    for i in ins:
        if i.cls == 'pseudo':
            if i.mn == '@waitvm':
                tags = i.meta if isinstance(i.meta, (list, tuple)) else [i.meta]
                idx = max([k for k, o in enumerate(vm) if o['tag'] in tags], default=-1)
                if idx >= 0:
                    n = need(vm, idx)
                    assert n <= 63
                    out.append(Ins('s_waitcnt vmcnt(%d)' % n))
                    del vm[:idx + 1]
                    retire(vm, n)
                continue
            if i.mn == '@waitlds':
                if lg:
                    out.append(Ins('s_waitcnt lgkmcnt(0)'))
                    lg.clear()
                continue
            if i.mn == '@optbegin':
                optstack.append((list(vm), list(lg)))
                for o in vm + lg:
                    o.setdefault('pre', 0)
                    o['pre'] += 1
                out.append(i)
                continue
            if i.mn == '@optend':
                svm, slg = optstack.pop()
                for q, s in ((vm, svm), (lg, slg)):
                    inner = [o for o in q if not any(o is x for x in s)]
                    for o in inner:
                        o['opt'] = True
                    q[:] = s + inner
                out.append(i)
                continue
            if i.mn == '@coldbegin':
                vm.clear()
                lg.clear()
                out.append(i)
                continue
        if i.cls == 'wait':
            a, b = parse_wait(i.text)
            if a is not None:
                retire(vm, a)
            if b is not None:
                if b == 0 or not any(o['smem'] for o in lg):
                    retire(lg, b)
            out.append(i)
            continue
        touched = set(i.defs) | set(i.uses)
        w = ''
        idx = max([k for k, o in enumerate(vm) if o['defs'] & touched], default=-1)
        if idx >= 0:
            n = need(vm, idx)
            assert n <= 63, i.text
            w += ' vmcnt(%d)' % n
            del vm[:idx + 1]
            retire(vm, n)
        idx = max([k for k, o in enumerate(lg) if o['defs'] & touched], default=-1)
        if idx >= 0:
            n = 0 if any(o['smem'] for o in lg) else min(15, need(lg, idx))
            w += ' lgkmcnt(%d)' % n
            del lg[:idx + 1]
            retire(lg, n)
        if w:
            out.append(Ins('s_waitcnt' + w))
        if i.cls in ('vload', 'vstore', 'dma'):
            vm.append(dict(defs=set(i.defs), tag=i.tag, opt=False))
            maxvm = max(maxvm, len(vm))
            if len(vm) > 63:
                raise ValueError('more than 63 vmem ops outstanding at ' + i.text)
        if i.cls in ('dsread', 'dswrite', 'smem'):
            lg.append(dict(defs=set(i.defs), smem=i.cls == 'smem', opt=False))
        out.append(i)
    return out


def required(p, c):
    r = 0
    pd = set(p.defs)
    cu, cd = set(c.uses), set(c.defs)
    vec = lambda s: {x for x in s if x[0] in 'va'}
    sc = lambda s: {x for x in s if x[0] == 's'}
    pvalu = p.cls in ('valu', 'trans')
    cvalu = c.cls in ('valu', 'trans')
    cmem = c.cls in ('vload', 'vstore', 'dma', 'dsread', 'dswrite')
    if p.cls == 'mfma':
        ps = p.passes
        if c.cls == 'mfma':
            if pd & set(c.srcab):
                r = max(r, ps + 4)
            if pd & set(c.srcc):
                if not (set(c.srcc) == pd and c.passes == ps):
                    r = max(r, ps + 2)
            if pd & cd and not (pd & set(c.srcc)):
                r = max(r, ps + 2)
        elif cvalu or cmem:
            if pd & (cu | cd):
                r = max(r, ps + 4)
            if cvalu and set(p.srcc) & cd:
                r = max(r, ps - 1)
            if c.cls in ('vload', 'dsread') and set(p.srcc) & cd:
                r = max(r, ps - 1)
    if pvalu:
        if c.cls == 'mfma' and vec(pd) & cu:
            r = max(r, 2)
        if c.cls == 'mfma' and ('s', 'exec') in pd:
            r = max(r, 4)
        if cvalu and c.dpp and vec(pd) & cu:
            r = max(r, 2)
        if cvalu and 'permlane' in c.mn and vec(pd) & cu:
            r = max(r, 2)
        if cvalu and (c.mn.startswith('v_readlane') or c.mn.startswith('v_readfirstlane')) and vec(pd) & cu:
            r = max(r, 1)
        if p.cls == 'trans' and (c.cls == 'valu' or cmem or c.cls == 'mfma') and pd & cu:
            r = max(r, 1)
        if sc(pd) & cu:
            if c.cls in ('vload', 'vstore', 'dma'):
                r = max(r, 5)
            elif cvalu:
                r = max(r, 4 if 'lane' in c.mn else 2)
            elif c.cls in ('salu', 'smem'):
                r = max(r, 1)
        if ('s', 'vcc') in pd and cvalu and ('cndmask' in c.mn or 'addc' in c.mn):
            r = max(r, 2)
        if 'sdwa' in p.mn and cvalu and pd & cu:
            r = max(r, 1)
        if p.mn.startswith('v_dot') and (cvalu or cmem or c.cls == 'mfma') and pd & (cu | cd):
            if not (c.mn == p.mn and not (pd & (cu - cd))):
                r = max(r, 3)
    if p.cls == 'vstore' and p.wide and set(p.data) & cd:
        r = max(r, 2)
    if p.cls == 'salu' and ('s', 'm0') in pd and c.cls == 'dma':
        r = max(r, 1)
    return r


def states(i):
    if i.cls == 'nop':
        return int(i.text.split()[1], 0) + 1
    if i.cls in ('label', 'dir', 'pseudo'):
        return 0
    return 1


def pad_hazards(ins):
    out = []
    hist = [[]]
    stack = []
    W = 20
    for i in ins:
        if i.cls == 'pseudo':
            if i.mn == '@optbegin':
                stack.append([list(h) for h in hist])
            elif i.mn == '@optend':
                hist = hist + stack.pop()
            elif i.mn == '@coldbegin':
                hist = [[]]
            continue
        if i.cls in ('label', 'dir'):
            out.append(i)
            continue
        pad = 0
        for h in hist:
            d = 0
            for p in reversed(h):
                r = required(p, i)
                if r > d:
                    pad = max(pad, r - d)
                d += states(p)
                if d >= W:
                    break
        new = []
        while pad > 0:
            n = min(pad, 16)
            new.append(Ins('s_nop %d' % (n - 1)))
            pad -= n
        new.append(i)
        out += new
        for h in hist:
            h += new
            del h[:-W]
        if len(hist) > 1 and all(len(h) == W and all(a is b for a, b in zip(h, hist[0])) for h in hist[1:]):
            hist = [hist[0]]
    return out


def finalize(a):
    ins = flatten(a.l if isinstance(a, Asm) else a)
    ins = insert_waits(ins)
    ins = pad_hazards(ins)
    lines = []
    for i in ins:
        lines.append(i.text if i.cls in ('label', 'dir') else '  ' + i.text)
    return '\n'.join(lines) + '\n', ins
```

```python
import numpy as np


def bf16_bits(x):
    x = np.ascontiguousarray(x, dtype=np.float32)
    u = x.view(np.uint32)
    return (((u + 0x7FFF + ((u >> 16) & 1)) >> 16) & 0xFFFF).astype(np.uint32)


def clean(a):
    a = np.array(a, dtype=np.float64)
    a[np.abs(a) < 1e-12] = 0.0
    return a


def frag_bf16(fn):
    v = clean([[fn(l, s) for s in range(8)] for l in range(64)])
    b = bf16_bits(v)
    return (b[:, 0::2] | (b[:, 1::2] << 16)).astype(np.uint32)


def frag_f32(fn):
    v = np.array([[fn(l, i) for i in range(4)] for l in range(64)], dtype=np.float64)
    v[np.abs(v) < 1e-18] = 0.0
    return v.astype(np.float32).view(np.uint32)


cos, sin, pi = np.cos, np.sin, np.pi


def build():
    T = {}
    T['C1c'] = frag_bf16(lambda l, s: cos(2 * pi * (4 * s + l // 16) * (l % 16) / 20) if s < 5 else 0.0)
    T['C1s'] = frag_bf16(lambda l, s: -sin(2 * pi * (4 * s + l // 16) * (l % 16) / 20) if s < 5 else 0.0)
    for t in range(2):
        T['TW1c%d' % t] = frag_f32(lambda l, i: cos(2 * pi * (2 * (4 * (l // 16) + i) + t) * (l % 16) / 640))
        T['TW1s%d' % t] = frag_f32(lambda l, i: sin(2 * pi * (2 * (4 * (l // 16) + i) + t) * (l % 16) / 640))

    def a2(mt, t):
        def f(l, s):
            m, g = l % 16, l // 16
            k2, ro = 8 * mt + (m >> 1), m & 1
            i, ri = s >> 1, s & 1
            th = 2 * pi * k2 * (2 * (4 * g + i) + t) / 32
            return [[cos(th), sin(th)], [-sin(th), cos(th)]][ro][ri]
        return f
    for mt in range(2):
        for t in range(2):
            T['A2_%d%d' % (mt, t)] = frag_bf16(a2(mt, t))
    T['Fre'] = frag_bf16(lambda l, s: [cos, sin][s & 1](2 * pi * (l % 16) * (4 * (l // 16) + (s >> 1)) / 16))
    T['Fim'] = frag_bf16(lambda l, s: [lambda x: -sin(x), cos][s & 1](2 * pi * (l % 16) * (4 * (l // 16) + (s >> 1)) / 16))
    T['TW2c'] = frag_f32(lambda l, i: cos(2 * pi * (l % 16) * (4 * (l // 16) + i) / 256))
    T['TW2s'] = frag_f32(lambda l, i: sin(2 * pi * (l % 16) * (4 * (l // 16) + i) / 256))

    def g3(u, t, ro):
        def f(l, s):
            n, g = l % 16, l // 16
            i, ri = s >> 1, s & 1
            th = 2 * pi * (16 * u + 4 * g + i) * (2 * n + t) / 32
            v = [[cos(th), -sin(th)], [sin(th), cos(th)]][ro][ri]
            if u == 1 and ri == 1:
                v = -v
            return v
        return f
    for u in range(2):
        for t in range(2):
            for ro in range(2):
                T['G%d%d%d' % (u, t, ro)] = frag_bf16(g3(u, t, ro))
    wgt = np.array([1] + [2] * 9 + [1] + [0] * 5) / (2048.0 * 640.0)
    for t in range(2):
        T['TW3c%d' % t] = frag_f32(lambda l, i: wgt[4 * (l // 16) + i] * cos(2 * pi * (4 * (l // 16) + i) * (2 * (l % 16) + t) / 640))
        T['TW3s%d' % t] = frag_f32(lambda l, i: wgt[4 * (l // 16) + i] * sin(2 * pi * (4 * (l // 16) + i) * (2 * (l % 16) + t) / 640))

    def a3(k):
        def f(l, s):
            m, g = l % 16, l // 16
            i, ri = s >> 1, s & 1
            if k == 0:
                d1 = 4 * (m & 3) + (m >> 2)
            else:
                if (m & 3) != k - 1:
                    return 0.0
                d1 = 16 + (m >> 2)
            th = 2 * pi * (4 * g + i) * d1 / 20
            return [cos(th), -sin(th)][ri]
        return f
    for k in range(3):
        T['A3_%d' % k] = frag_bf16(a3(k))
    return T


if __name__ == '__main__':
    T = build()
    print(len(T), list(T))
```

```python
import sys
sys.path.insert(0, 'work')
from asmlib import *
import tables

NAME = 'adaLN_cond__spectral_gfnet__mixer_channel_mlp__prompt'
OPT = dict(stamps=0)
for arg in sys.argv[2:]:
    k, v = arg.split('=')
    OPT[k] = int(v)

PBLK = 10496
WS_EPOCH = 0
WS_MODX = 0x1000
WS_P = 0x20000
WS_WF = WS_P + 256 * PBLK
WS_Z = WS_WF + 256 * PBLK
WS_Y2 = WS_Z + 642 * 4096
WS_X1 = WS_Y2 + 2048 * 1280
WS_H = WS_X1 + 2048 * 1280
WS_END = WS_H + 32 * 196608
WS_STAMP = 0x1800000
WS_REC = 0x2000000
OOB = 0x7ff00000
assert WS_END < WS_STAMP
L_EX = 0
L_WMS = 0
L_MOD = 12288
L_SILU = 30208
L_RED = 31232
L_BUF = [40960, 102400]
L_CONST = 102400
L_WRAW = 102400 + 32768
L_Y2 = 0
L_W2 = 81920
L_PART = [0, 21504]
SPIN = 200000

T = tables.build()
TN = list(T)

sC, sWM, sX, sWS, sWF_, sW1, sW2, sB1, sB2, sOUT = [8 + 4 * i for i in range(10)]
sWRp, sWIp = 48, 50
sL, sW, sNONCE, sJ, sG, sSPIN, sMASK = 52, 53, 54, 55, 56, 57, 58
sT = [60, 61, 62, 63, 64, 65]
sST = 66
sADD = 70
sITEM = 74
sPG = 75
sZS = 76
sPB = 77
sROW = 78
sEX = 80
sVER = 59
sSTAMP = 82


def srd(s):
    return 's[%d:%d]' % (s, s + 3)


def v(n, c=1):
    return 'v%d' % n if c == 1 else 'v[%d:%d]' % (n, n + c - 1)


def a(n, c=1):
    return 'a%d' % n if c == 1 else 'a[%d:%d]' % (n, n + c - 1)


class Pool:
    def __init__(self, lo, hi):
        self.free = set(range(lo, hi))
        self.hw = 0

    def get(self, n, al=2):
        if n == 1:
            al = 1
        for b in sorted(self.free):
            if b % al == 0 and all(b + i in self.free for i in range(n)):
                for i in range(n):
                    self.free.remove(b + i)
                self.hw = max(self.hw, b + n)
                return b
        raise RuntimeError('out of registers (%d)' % n)

    def take(self, b, n):
        for i in range(n):
            assert b + i in self.free, 'v%d busy' % (b + i)
            self.free.remove(b + i)
        return b

    def put(self, b, n=1):
        for i in range(n):
            assert b + i not in self.free
            self.free.add(b + i)


A = Asm()
COLD = Asm()
V = Pool(1, 256)
nstamp = [0]
stamp_names = []


def stamp(name, asm=None):
    if not OPT['stamps']:
        return
    asm = asm or A
    i = nstamp[0]
    nstamp[0] += 1
    stamp_names.append(name)
    asm('s_memrealtime s[%d:%d]' % (sEX, sEX + 1))
    asm('s_mov_b32 s%d, s%d' % (sSTAMP + i, sEX))
    assert sSTAMP + i < 102


MF16 = 'v_mfma_f32_16x16x32_bf16'
MF32 = 'v_mfma_f32_32x32x16_bf16'
lab = [0]


def label(p):
    lab[0] += 1
    return 'L_%s_%d' % (p, lab[0])


def barrier(asm=None):
    asm = asm or A
    asm.wait_lds()
    asm('s_barrier')


def check_sentinel(asm, regs, tmp):
    r = list(regs)
    first = True
    while r:
        if first:
            if len(r) >= 3:
                asm('v_max3_u32 %s, %s, %s, %s' % (v(tmp), v(r[0]), v(r[1]), v(r[2])))
                r = r[3:]
            else:
                asm('v_max_u32 %s, %s, %s' % (v(tmp), v(r[0]), v(r[-1])))
                r = []
            first = False
        elif len(r) >= 2:
            asm('v_max3_u32 %s, %s, %s, %s' % (v(tmp), v(tmp), v(r[0]), v(r[1])))
            r = r[2:]
        else:
            asm('v_max_u32 %s, %s, %s' % (v(tmp), v(tmp), v(r[0])))
            r = []
    asm('v_cmp_eq_u32 vcc, -1, %s' % v(tmp))


def check_tags(asm, regs, tmp):
    asm('v_xor_b32 %s, s%d, %s' % (v(tmp), sNONCE, v(regs[0])))
    for r in regs[1:]:
        asm('v_bitop3_b32 %s, %s, s%d, %s bitop3:0xbe' % (v(tmp), v(r), sNONCE, v(tmp)))
    asm('v_cmp_ne_u32 vcc, 0, %s' % v(tmp))


def verify(asm, loads, checker):
    ls, lo = label('slow'), label('ok')
    checker(asm)
    grp = Asm()
    grp('s_cbranch_vccnz %s' % ls)
    grp('%s:' % lo)
    asm.l.append(grp.l)
    c = COLD
    c.cold_begin()
    lx = label('out')
    c('%s:' % ls)
    c('s_add_u32 s%d, s%d, 1' % (sSPIN, sSPIN))
    c('s_cmp_gt_u32 s%d, %d' % (sSPIN, SPIN))
    c('s_cbranch_scc1 %s' % lx)
    c('s_mov_b64 exec, vcc')
    loads(c)
    c('s_waitcnt vmcnt(0)')
    checker(c)
    c('s_cbranch_vccnz %s' % ls)
    c('%s:' % lx)
    c('s_mov_b64 exec, -1')
    c('s_nop 4')
    c('s_branch %s' % lo)


def cmul(asm, re_, im_, c_, s_, t0, t1, sign):
    neg = ' neg_lo:[0,0,1] neg_hi:[0,0,1]'
    for p in (0, 2):
        asm('v_pk_mul_f32 %s, %s, %s' % (v(t0 + p, 2), v(im_ + p, 2), v(s_ + p, 2)))
        asm('v_pk_mul_f32 %s, %s, %s' % (v(t1 + p, 2), v(re_ + p, 2), v(s_ + p, 2)))
    for p in (0, 2):
        asm('v_pk_fma_f32 %s, %s, %s, %s%s' % (v(t0 + p, 2), v(re_ + p, 2), v(c_ + p, 2), v(t0 + p, 2), neg if sign > 0 else ''))
        asm('v_pk_fma_f32 %s, %s, %s, %s%s' % (v(t1 + p, 2), v(im_ + p, 2), v(c_ + p, 2), v(t1 + p, 2), '' if sign > 0 else neg))


def ln_stats(asm, x):
    t = V.get(8)
    for r in range(2):
        asm('v_pk_add_f32 %s, %s, %s' % (v(t + 2 * r, 2), v(x[r], 2), v(x[r] + 2, 2)))
        asm('v_pk_mul_f32 %s, %s, %s' % (v(t + 4 + 2 * r, 2), v(x[r], 2), v(x[r], 2)))
    for p in range(1, 5):
        for r in range(2):
            if p >= 2:
                asm('v_pk_add_f32 %s, %s, %s' % (v(t + 2 * r, 2), v(t + 2 * r, 2), v(x[r] + 2 * p, 2)))
            asm('v_pk_fma_f32 %s, %s, %s, %s' % (v(t + 4 + 2 * r, 2), v(x[r] + 2 * p, 2), v(x[r] + 2 * p, 2), v(t + 4 + 2 * r, 2)))
    for q in range(4):
        asm('v_add_f32 %s, %s, %s' % (v(t + 2 * q), v(t + 2 * q), v(t + 2 * q + 1)))
    asm('v_permlane32_swap_b32 %s, %s' % (v(t), v(t + 2)))
    asm('v_permlane32_swap_b32 %s, %s' % (v(t + 4), v(t + 6)))
    asm('v_add_f32 %s, %s, %s' % (v(t), v(t), v(t + 2)))
    asm('v_add_f32 %s, %s, %s' % (v(t + 4), v(t + 4), v(t + 6)))
    asm('v_permlane16_swap_b32 %s, %s' % (v(t), v(t + 4)))
    asm('v_add_f32 %s, %s, %s' % (v(t), v(t), v(t + 4)))
    for sh in (8, 4, 2, 1):
        asm('v_add_f32_dpp %s, %s, %s row_ror:%d row_mask:0xf bank_mask:0xf' % (v(t), v(t), v(t), sh))
    asm('v_mul_f32 %s, 0x3acccccd, %s' % (v(t + 1), v(t)))
    asm('v_mul_f32 %s, 0x3acccccd, %s' % (v(t), v(t)))
    asm('v_permlane16_swap_b32 %s, %s' % (v(t), v(t + 1)))
    asm('v_fma_f32 %s, -%s, %s, %s' % (v(t + 1), v(t), v(t), v(t + 1)))
    asm('v_max_f32 %s, 0, %s' % (v(t + 1), v(t + 1)))
    asm('v_add_f32 %s, 0x3727c5ac, %s' % (v(t + 1), v(t + 1)))
    asm('v_rsq_f32 %s, %s' % (v(t + 1), v(t + 1)))
    asm('v_mul_f32_e64 %s, -%s, %s' % (v(t), v(t), v(t + 1)))
    for r in range(2):
        asm('v_readlane_b32 s%d, %s, %d' % (sST + 2 * r, v(t + 1), 32 * r))
    for r in range(2):
        asm('v_readlane_b32 s%d, %s, %d' % (sST + 2 * r + 1, v(t), 32 * r))
    V.put(t, 8)


def ln_apply(asm, dst, x):
    for p in range(5):
        for r in range(2):
            s = 's[%d:%d]' % (sST + 2 * r, sST + 2 * r + 1)
            asm('v_pk_fma_f32 %s, %s, %s, %s op_sel:[0,0,1] op_sel_hi:[1,0,1]' % (v(dst[r] + 2 * p, 2), v(x[r] + 2 * p, 2), s, s))


def read_mod(asm, dst, vec, vL16, vL4):
    b = L_MOD + vec * 2560
    asm('ds_read_b128 %s, %s offset:%d' % (v(dst, 4), v(vL16), b))
    asm('ds_read_b128 %s, %s offset:%d' % (v(dst + 4, 4), v(vL16), b + 1280))
    o = (b + 1024) // 256
    assert (b + 1024) % 256 == 0
    asm('ds_read2st64_b32 %s, %s offset0:%d offset1:%d' % (v(dst + 8, 2), v(vL4), o, o + 5))


A('s_cmp_ge_u32 s2, 256')
A('s_cbranch_scc1 L_end')
for s, off in ((sC, 64), (sWM, 72), (sX, 0), (sWS, 96), (sWRp, 8), (sWIp, 16), (sW1, 32)):
    A('s_load_dwordx2 s[%d:%d], s[0:1], %d' % (s, s + 1, off))
if OPT['stamps']:
    A('s_memrealtime s[4:5]')
vLane = V.get(1)
vt = V.get(4)
A('v_lshrrev_b32 %s, 6, v0' % v(vt))
A('v_and_b32 %s, 63, v0' % v(vLane))
A('v_readfirstlane_b32 s%d, %s' % (sW, v(vt)))
A('s_and_b32 s%d, s2, 7' % sT[0])
A('s_lshl_b32 s%d, s%d, 5' % (sT[0], sT[0]))
A('s_lshr_b32 s%d, s2, 3' % sT[1])
A('s_add_u32 s%d, s%d, s%d' % (sL, sT[0], sT[1]))
vPC = V.get(2)
A('s_getpc_b64 s[6:7]')
A('L_pc:')
A('s_lshl_b32 s%d, s%d, 7' % (sT[1], sT[1]))
A('v_lshlrev_b32 %s, 12, v0' % v(vt + 1))
A('v_add_u32 %s, s%d, %s' % (v(vt + 1), sT[1], v(vt + 1)))
A('v_mov_b32 %s, s7' % v(vPC + 1))
A('v_add_co_u32 %s, vcc, s6, %s' % (v(vt + 2), v(vt + 1)))
A('v_addc_co_u32 %s, vcc, 0, %s, vcc' % (v(vt + 3), v(vPC + 1)))
A('v_cmp_gt_u32 vcc, (L_tabend-L_pc-4), %s' % v(vt + 1))
A('s_and_saveexec_b64 s[%d:%d], vcc' % (sEX, sEX + 1))
A('s_cbranch_execz L_nopf')
A.opt_begin()
vJunk = V.get(1)
A('global_load_dword %s, %s, off' % (v(vJunk), v(vt + 2, 2)), tag='junk')
A.opt_end()
A('L_nopf:')
A('s_mov_b64 exec, -1')
vL16, vL4, vL8 = V.get(1), V.get(1), V.get(1)
A('v_lshlrev_b32 %s, 4, %s' % (v(vL16), v(vLane)))
A('v_lshlrev_b32 %s, 2, %s' % (v(vL4), v(vLane)))
A('v_lshlrev_b32 %s, 3, %s' % (v(vL8), v(vLane)))
A('s_lshl_b32 s%d, s%d, 13' % (sT[0], sW))
A('s_add_u32 s%d, s%d, (L_tab-L_pc)' % (sT[0], sT[0]))
A('v_add_u32 %s, s%d, %s' % (v(vt + 1), sT[0], v(vL16)))
A('v_add_co_u32 %s, vcc, s6, %s' % (v(vPC), v(vt + 1)))
A('v_addc_co_u32 %s, vcc, 0, %s, vcc' % (v(vPC + 1), v(vPC + 1)))
for s, n in ((sC, 1280), (sWM, 640 * 7680), (sX, 2621440), (sWS, WS_REC), (sWF_, 2048 * 642), (sW1, 640 * 3072), (sW2, 1536 * 1280),
             (sB1, 3072), (sB2, 1280), (sOUT, 2621440)):
    A('s_mov_b32 s%d, %d' % (s + 2, n))
    A('s_mov_b32 s%d, 0x20000' % (s + 3))
A('s_mov_b32 s%d, 0' % sSPIN)
A('s_mov_b32 s%d, 0xffff0000' % sMASK)
A('s_and_b32 s%d, s%d, 7' % (sJ, sL))
A('s_lshr_b32 s%d, s%d, 3' % (sG, sL))
A('s_mul_i32 s%d, s%d, %d' % (sPB, sL, PBLK))
vN, vG = V.get(1), V.get(1)
vKD, vH = V.get(1), V.get(1)
A('v_and_b32 %s, 15, %s' % (v(vN), v(vLane)))
A('v_lshrrev_b32 %s, 4, %s' % (v(vG), v(vLane)))
A('v_and_b32 %s, 31, %s' % (v(vKD), v(vLane)))
A('v_lshrrev_b32 %s, 5, %s' % (v(vH), v(vLane)))
vCo = V.get(1)
A('s_and_b32 s%d, s%d, 1' % (sT[2], sL))
A('s_mul_i32 s%d, s%d, 640' % (sT[0], sT[2]))
A('s_lshl_b32 s%d, s%d, 6' % (sT[1], sW))
A('s_add_u32 s%d, s%d, s%d' % (sT[0], sT[0], sT[1]))
A('v_lshlrev_b32 %s, 8, %s' % (v(vCo), v(vG)))
A('v_lshl_add_u32 %s, %s, 2, %s' % (v(vCo), v(vN), v(vCo)))
A('v_add_u32 %s, s%d, %s' % (v(vCo), sT[0], v(vCo)))
vWM = V.get(1)
A('v_lshrrev_b32 %s, 1, %s' % (v(vWM), v(vLane)))
A('v_mul_u32_u24 %s, 7680, %s' % (v(vWM), v(vWM)))
A('v_and_b32 %s, 1, %s' % (v(vt), v(vLane)))
A('v_lshl_add_u32 %s, %s, 4, %s' % (v(vWM), v(vt), v(vWM)))
A('s_mul_i32 s%d, s%d, 3840' % (sT[0], sT[0]))
A('v_add_u32 %s, s%d, %s' % (v(vWM), sT[0], v(vWM)))
A('s_lshl_b32 s%d, s%d, 9' % (sT[0], sW))
A('s_add_u32 s%d, s%d, s%d' % (sT[0], sT[0], sL))
A('s_mul_i32 s%d, s%d, 1280' % (sROW, sT[0]))
A('s_add_u32 s%d, s%d, %d' % (sROW + 1, sROW, 256 * 1280))
vP, vP2 = V.get(1), V.get(1)
A('v_mul_u32_u24 %s, 5248, %s' % (v(vP), v(vH)))
A('v_lshl_add_u32 %s, %s, 4, %s' % (v(vP), v(vKD), v(vP)))
A('s_lshl_b32 s%d, s%d, 9' % (sT[0], sW))
A('v_add_u32 %s, s%d, %s' % (v(vP), sT[0], v(vP)))
A('s_lshl_b32 s%d, s%d, 5' % (sT[0], sW))
A('v_add_u32 %s, s%d, %s' % (v(vt), sT[0], v(vKD)))
A('v_add_u32 %s, 4096, %s' % (v(vP2), v(vP)))
A('v_mov_b32 %s, %d' % (v(vt + 1), OOB))
A('v_cmp_gt_u32 vcc, 72, %s' % v(vt))
A('v_cndmask_b32 %s, %s, %s, vcc' % (v(vP2), v(vt + 1), v(vP2)))
vZ, vZ2 = V.get(1), V.get(1)
A('v_lshl_add_u32 %s, %s, 1, %s' % (v(vZ), v(vt), v(vH)))
A('v_lshlrev_b32 %s, 12, %s' % (v(vZ), v(vZ)))
A('v_cmp_gt_u32 vcc, 65, %s' % v(vt))
A('v_cndmask_b32 %s, %s, %s, vcc' % (v(vZ2), v(vt + 1), v(vZ)))
vONES = V.get(4)
for i in range(4):
    A('v_mov_b32 %s, -1' % v(vONES + i))
A('s_waitcnt lgkmcnt(0)')
if OPT['stamps']:
    A('s_mov_b32 s%d, s4' % sSTAMP)
    nstamp[0] = 1
    stamp_names.append('start')
A('s_load_dword s%d, s[%d:%d], %d' % (sNONCE, sWS, sWS + 1, WS_EPOCH))
for s, off in ((sW2, 48), (sB1, 40), (sB2, 56), (sOUT, 80)):
    A('s_load_dwordx2 s[%d:%d], s[0:1], %d' % (s, s + 1, off))
vC = V.get(1)
A('buffer_load_dword %s, %s, %s, 0 offen' % (v(vC), v(vCo), srd(sC)))
V.put(vCo)


def wm_dma(rnd):
    A('s_lshr_b32 s%d, s%d, 1' % (sT[0], sL))
    if rnd:
        A('s_add_u32 s%d, s%d, 128' % (sT[0], sT[0]))
        A('s_min_u32 s%d, s%d, 239' % (sT[0], sT[0]))
    A('s_lshl_b32 s%d, s%d, 5' % (sT[0], sT[0]))
    A('s_lshl_b32 s%d, s%d, 10' % (sT[1], sW))
    for i in range(3):
        if i == 2:
            lb = label('wm')
            A('s_cmp_ge_u32 s%d, 2' % sW)
            A('s_cbranch_scc1 %s' % lb)
            A.opt_begin()
        A('s_add_u32 m0, s%d, %d' % (sT[1], L_WMS + 4096 * i))
        if i:
            A('s_add_u32 s%d, s%d, %d' % (sT[0], sT[0], 128 * 7680))
        A('buffer_load_dwordx4 %s, %s, s%d offen lds' % (v(vWM), srd(sWM), sT[0]), tag='wm')
    A.opt_end()
    A('%s:' % lb)


wm_dma(0)
vXR = V.get(10)
for r in range(2):
    for j in range(5):
        A('buffer_load_dword %s, %s, %s, s%d offen offset:%d' % (v(vXR + 5 * r + j), v(vL4), srd(sX), sROW + r, 256 * j))


def pstore(asm, regs, base, tag):
    asm('s_add_u32 s%d, s%d, %d' % (sT[0], sPB, base))
    for r in range(3):
        pstore1(asm, regs[r], r, tag)


def pstore1(asm, reg, r, tag):
    if r < 2:
        asm('buffer_store_dwordx4 %s, %s, %s, s%d offen offset:%d sc1' % (v(reg, 4), v(vP), srd(sWS), sT[0], 2048 * r), tag=tag)
    else:
        asm('buffer_store_dwordx4 %s, %s, %s, s%d offen sc1' % (v(reg, 4), v(vP2), srd(sWS), sT[0]), tag=tag)


pstore(A, [vONES] * 3, WS_P, 'clr0')
pstore(A, [vONES] * 3, WS_WF, 'clr0')
A('s_lshl_b32 s%d, s%d, 2' % (sT[0], sL))
A('s_add_u32 s%d, s%d, s%d' % (sT[0], sT[0], sW))
A('s_mul_i32 s%d, s%d, %d' % (sT[0], sT[0], 15 * 128))
A('v_lshlrev_b32 %s, 7, %s' % (v(vt), v(vLane)))
A('v_add_u32 %s, s%d, %s' % (v(vt), sT[0], v(vt)))
A('v_cmp_gt_u32 vcc, 15, %s' % v(vLane))
vTouch = V.get(1)
A('v_cndmask_b32 %s, %s, %s, vcc' % (v(vTouch), v(vt + 1), v(vt)))
A('s_lshl_b32 s%d, s%d, 7' % (sT[0], sL))
A('s_add_u32 s%d, s%d, %d' % (sT[0], sT[0], WS_MODX))
A('v_lshlrev_b32 %s, 15, %s' % (v(vt), v(vH)))
A('buffer_load_dword %s, %s, %s, s%d offen' % (v(vt + 2), v(vt), srd(sWS), sT[0]), tag='junk')
A('s_lshl_b32 s%d, s%d, 13' % (sT[0], sW))
for hlf in range(2):
    A('s_add_u32 m0, s%d, %d' % (sT[0], L_CONST + 4096 * hlf))
    if hlf == 1:
        A('v_add_co_u32 %s, vcc, 4096, %s' % (v(vPC), v(vPC)))
        A('v_addc_co_u32 %s, vcc, 0, %s, vcc' % (v(vPC + 1), v(vPC + 1)))
    for i in range(4):
        A('global_load_lds_dwordx4 %s, off offset:%d' % (v(vPC, 2), 1024 * i), tag='const')
V.put(vPC, 2)
A('s_cmp_ge_u32 s%d, 2' % sW)
A('s_cselect_b32 s%d, s%d, s%d' % (sWF_, sWIp, sWRp))
A('s_cselect_b32 s%d, s%d, s%d' % (sWF_ + 1, sWIp + 1, sWRp + 1))
A('s_and_b32 s%d, s%d, 1' % (sT[0], sW))
A('s_mul_i32 s%d, s%d, 3072' % (sT[0], sT[0]))
A('s_mul_i32 s%d, s%d, 5136' % (sT[1], sL))
A('s_add_u32 s%d, s%d, s%d' % (sT[1], sT[1], sT[0]))
A('v_add_u32 %s, s%d, %s' % (v(vt), sT[1], v(vL16)))
A('s_mul_i32 s%d, s%d, 3072' % (sT[0], sW))
A('s_add_u32 m0, s%d, %d' % (sT[0], L_WRAW))
for i in range(3):
    A('buffer_load_dwordx4 %s, %s, 0 offen offset:%d lds' % (v(vt), srd(sWF_), 1024 * i), tag='wraw')
A('buffer_load_dword %s, %s, %s, 0 offen' % (v(vt + 3), v(vTouch), srd(sW1)), tag='junk')
A('s_waitcnt lgkmcnt(0)')
vJ2 = V.get(1)
A('buffer_load_dword %s, %s, %s, 0 offen' % (v(vJ2), v(vTouch), srd(sW2)), tag='junk')
V.put(vTouch)
A('s_mul_i32 s%d, s%d, 0x9e3779b1' % (sNONCE, sNONCE))
A('s_add_u32 s%d, s%d, 0x7f4a7c15' % (sNONCE, sNONCE))

vA8, vA8i = V.get(4), V.get(4)
t = V.get(8)
A('v_and_b32 %s, 4, %s' % (v(t), v(vLane)))
A('v_bfe_u32 %s, %s, 3, 1' % (v(t + 1), v(vLane)))
A('v_lshl_add_u32 %s, %s, 1, %s' % (v(t), v(t + 1), v(t)))
A('v_bfe_u32 %s, %s, 1, 1' % (v(t + 1), v(vLane)))
A('v_add_u32 %s, %s, %s' % (v(t), v(t), v(t + 1)))
A('v_and_b32 %s, 1, %s' % (v(t + 1), v(vLane)))
A('v_lshlrev_b32 %s, 9, %s' % (v(t + 1), v(t + 1)))
A('v_lshlrev_b32 %s, 10, %s' % (v(t + 2), v(vH)))
A('v_add_u32 %s, s%d, %s' % (v(t + 2), sL, v(t + 2)))
A('v_mad_u32_u24 %s, %s, %s, %s' % (v(t + 2), v(t), v(t + 2), v(t + 1)))
A('v_lshlrev_b32 %s, 8, %s' % (v(t + 3), v(t)))
A('v_add_u32 %s, s%d, %s' % (v(t + 5), sL, v(t + 3)))
A('v_lshlrev_b32 %s, 2, %s' % (v(t + 4), v(vH)))
A('v_mul_u32_u24 %s, %s, %s' % (v(t + 4), v(t + 4), v(t + 5)))
A('v_sub_u32 %s, %s, %s' % (v(t + 4), v(t + 4), v(t + 1)))
for q in range(4):
    for ang, step, dst, neg in ((t + 2, t + 3, vA8, ''), (t + 4, t + 5, vA8i, '-')):
        A('v_and_b32 %s, 2047, %s' % (v(t + 6), v(ang)))
        A('v_cvt_f32_u32 %s, %s' % (v(t + 6), v(t + 6)))
        A('v_mul_f32 %s, 0x3a000000, %s' % (v(t + 6), v(t + 6)))
        A('v_sin_f32 %s, %s' % (v(t + 7), v(t + 6)))
        A('v_cos_f32 %s, %s' % (v(t + 6), v(t + 6)))
        if q < 3:
            A('v_add_u32 %s, %s, %s' % (v(ang), v(ang), v(step)))
        A('v_cvt_pk_bf16_f32 %s, %s, %s%s' % (v(dst + q), v(t + 6), neg, v(t + 7)))
V.put(t, 8)

vMG = V.get(1)
A('v_lshrrev_b32 %s, 3, %s' % (v(vMG), v(vLane)))
A('v_lshlrev_b32 %s, 8, %s' % (v(vMG), v(vMG)))
A('v_and_b32 %s, 7, %s' % (v(vt), v(vLane)))
A('v_lshl_add_u32 %s, %s, 4, %s' % (v(vMG), v(vt), v(vMG)))
A('s_lshl_b32 s%d, s%d, 11' % (sT[0], sW))
A('v_add_u32 %s, s%d, %s' % (v(vMG), sT[0], v(vMG)))
vMA = V.get(4)


def mod_addr(rnd):
    for i in range(4):
        A('s_add_u32 s%d, s%d, %d' % (sT[0], sW, 16 * rnd + 4 * i))
        A('s_mul_i32 s%d, s%d, 52' % (sT[1], sT[0]))
        A('s_lshr_b32 s%d, s%d, 8' % (sT[1], sT[1]))
        A('s_mul_i32 s%d, s%d, 5' % (sT[2], sT[1]))
        A('s_sub_u32 s%d, s%d, s%d' % (sT[2], sT[0], sT[2]))
        A('s_lshl_b32 s%d, s%d, 2' % (sT[3], sT[2]))
        A('s_cmp_lt_u32 s%d, 4' % sT[2])
        A('s_cselect_b32 s%d, s%d, 1024' % (sT[3], sT[3]))
        A('s_cselect_b32 s%d, 4, 2' % sT[2])
        A('s_mul_i32 s%d, s%d, 2560' % (sT[0], sT[1]))
        A('s_add_u32 s%d, s%d, s%d' % (sT[3], sT[3], sT[0]))
        A('v_lshlrev_b32 %s, s%d, %s' % (v(vMA + i), sT[2], v(vLane)))
        A('v_add_u32 %s, s%d, %s' % (v(vMA + i), sT[3], v(vMA + i)))
        A('s_cmp_eq_u32 s%d, %d' % (sT[1], 4 if rnd else 1))
        A('s_cselect_b32 s%d, 1.0, 0' % (sADD + i))


mod_addr(0)

t = V.get(4)
A('v_lshlrev_b32 %s, 16, %s' % (v(t), v(vC)))
A('v_and_b32 %s, s%d, %s' % (v(t + 1), sMASK, v(vC)))
for i in range(2):
    A('v_mul_f32 %s, 0xbfb8aa3b, %s' % (v(t + 2 + i), v(t + i)))
for i in range(2):
    A('v_exp_f32 %s, %s' % (v(t + 2 + i), v(t + 2 + i)))
for i in range(2):
    A('v_add_f32 %s, 1.0, %s' % (v(t + 2 + i), v(t + 2 + i)))
for i in range(2):
    A('v_rcp_f32 %s, %s' % (v(t + 2 + i), v(t + 2 + i)))
for i in range(2):
    A('v_mul_f32 %s, %s, %s' % (v(t + i), v(t + i), v(t + 2 + i)))
A('v_cvt_pk_bf16_f32 %s, %s, %s' % (v(t), v(t), v(t + 1)))
A('s_lshl_b32 s%d, s%d, 8' % (sT[0], sW))
A('v_add_u32 %s, s%d, %s' % (v(t + 1), sT[0], v(vL4)))
A('ds_write_b32 %s, %s offset:%d' % (v(t + 1), v(t), L_SILU))
A('s_add_u32 s%d, s%d, %d' % (sT[0], sT[0], L_SILU))
A('v_lshlrev_b32 %s, 3, %s' % (v(t + 2), v(vG)))
A('v_add_u32 %s, s%d, %s' % (v(t + 2), sT[0], v(t + 2)))
vSB = V.get(12)
for i in range(3):
    A('ds_read2_b64 %s, %s offset0:%d offset1:%d' % (v(vSB + 4 * i, 4), v(t + 2), 8 * i, 8 * i + 4))
V.put(t, 4)
V.put(vC)
vWMr = V.get(1)
A('s_lshl_b32 s%d, s%d, 10' % (sT[0], sW))
A('v_add_u32 %s, s%d, %s' % (v(vWMr), sT[0], v(vL8)))
vRW = V.get(1)
A('s_lshl_b32 s%d, s%d, 6' % (sT[0], sW))
A('v_lshlrev_b32 %s, 4, %s' % (v(vRW), v(vG)))
A('v_add_u32 %s, s%d, %s' % (v(vRW), sT[0], v(vRW)))


def mod_partial(rnd):
    f = V.get(12)
    d = V.get(4)
    A.wait_tag('wm')
    for i in range(2):
        for rd in range(2):
            A('ds_read_b64_tr_b16 %s, %s offset:%d' % (v(f + 4 * i + 2 * rd, 2), v(vWMr), L_WMS + 4096 * i + 512 * rd))
    A('%s %s, %s, %s, 0' % (MF16, v(d, 4), v(f, 4), v(vSB, 4)))
    A('%s %s, %s, %s, %s' % (MF16, v(d, 4), v(f + 4, 4), v(vSB + 4, 4), v(d, 4)))
    lb = label('wmc')
    A('s_cmp_ge_u32 s%d, 2' % sW)
    A('s_cbranch_scc1 %s' % lb)
    A.opt_begin()
    for rd in range(2):
        A('ds_read_b64_tr_b16 %s, %s offset:%d' % (v(f + 8 + 2 * rd, 2), v(vWMr), L_WMS + 8192 + 512 * rd))
    A('%s %s, %s, %s, %s' % (MF16, v(d, 4), v(f + 8, 4), v(vSB + 8, 4), v(d, 4)))
    A.opt_end()
    A('%s:' % lb)
    A('ds_write_b128 %s, %s offset:%d' % (v(vRW), v(d, 4), L_RED + 256 * rnd))
    V.put(f, 12)
    V.put(d, 4)


def mod_publish(rnd, wave):
    lb = label('pub')
    A('s_cmp_lg_u32 s%d, %d' % (sW, wave))
    A('s_cbranch_scc1 %s' % lb)
    A.opt_begin()
    p = V.get(8)
    o = (L_RED + 256 * rnd)
    for i in range(4):
        A('ds_read_b64 %s, %s offset:%d' % (v(p + 2 * i, 2), v(vL8), o + 64 * i))
    A('s_lshl_b32 s%d, s%d, 7' % (sT[0], sL))
    A('s_add_u32 s%d, s%d, %d' % (sT[0], sT[0], WS_MODX + 32768 * rnd))
    A('s_mov_b64 exec, 0xff')
    A('v_pk_add_f32 %s, %s, %s' % (v(p, 2), v(p, 2), v(p + 2, 2)))
    A('v_pk_add_f32 %s, %s, %s' % (v(p + 4, 2), v(p + 4, 2), v(p + 6, 2)))
    A('v_add_f32 %s, %s, %s' % (v(p + 2), v(p + 1), v(p + 5)))
    A('v_add_f32 %s, %s, %s' % (v(p), v(p), v(p + 4)))
    A('v_mov_b32 %s, s%d' % (v(p + 1), sNONCE))
    A('v_mov_b32 %s, s%d' % (v(p + 3), sNONCE))
    A('buffer_store_dwordx4 %s, %s, %s, s%d offen sc1' % (v(p, 4), v(vL16), srd(sWS), sT[0]), tag='pub')
    A('s_mov_b64 exec, -1')
    A('s_nop 1')
    V.put(p, 8)
    A.opt_end()
    A('%s:' % lb)


def mod_gather_loads(asm, d, rnd):
    for i in range(4):
        asm('s_mov_b32 s%d, %d' % (sT[5], WS_MODX + 32768 * rnd + 8192 * i))
        for kh in range(2):
            asm('buffer_load_dwordx4 %s, %s, %s, s%d offen offset:%d sc1' % (v(d + 8 * i + 4 * kh, 4), v(vMG), srd(sWS), sT[5], 128 * kh))


def mod_gather_finish(d, rnd):
    tmp = V.get(1)
    verify(A, lambda c: mod_gather_loads(c, d, rnd), lambda c: check_tags(c, [d + 2 * k + 1 for k in range(16)], tmp))
    V.put(tmp)
    for i in range(4):
        b = d + 8 * i
        A('v_add_f32 %s, %s, %s' % (v(b), v(b), v(b + 4)))
        A('v_add_f32 %s, %s, %s' % (v(b + 2), v(b + 2), v(b + 6)))
    for i in range(4):
        b = d + 8 * i
        A('v_cvt_pk_bf16_f32 %s, %s, %s' % (v(b), v(b), v(b + 2)))
    for i in range(4):
        b = d + 8 * i
        A('v_and_b32 %s, s%d, %s' % (v(b + 1), sMASK, v(b)))
        A('v_lshlrev_b32 %s, 16, %s' % (v(b), v(b)))
        A('v_add_f32 %s, s%d, %s' % (v(b + 1), sADD + i, v(b + 1)))
        A('v_add_f32 %s, s%d, %s' % (v(b), sADD + i, v(b)))
        A('ds_write2st64_b32 %s, %s, %s offset0:%d offset1:%d' % (v(vMA + i), v(b), v(b + 1), L_MOD // 256, L_MOD // 256 + 5))


stamp('pre_wm')
mod_partial(0)
stamp('wm_done')
A.wait_tag('clr0')
barrier()
mod_publish(0, 0)
stamp('pub0')

vXF = [V.get(10), V.get(10)]
for r in range(2):
    for j in range(5):
        lo, hi = (j, 4 + j) if j < 4 else (8, 9)
        A('v_lshlrev_b32 %s, 16, %s' % (v(vXF[r] + lo), v(vXR + 5 * r + j)))
        A('v_and_b32 %s, s%d, %s' % (v(vXF[r] + hi), sMASK, v(vXR + 5 * r + j)))
V.put(vXR, 10)
ln_stats(A, vXF)
vNn = [V.get(10), V.get(10)]
ln_apply(A, vNn, vXF)
A.wait_tag(['const', 'wraw', 'junk'])
barrier()
V.put(vJunk)
V.put(vJ2)
wa = V.get(1)
A('v_mul_u32_u24 %s, 2568, %s' % (v(wa), v(vH)))
A('v_lshl_add_u32 %s, %s, 1, %s' % (v(wa), v(vKD), v(wa)))
A('s_lshl_b32 s%d, s%d, 6' % (sT[0], sW))
A('s_add_u32 s%d, s%d, %d' % (sT[0], sT[0], L_WRAW))
A('v_add_u32 %s, s%d, %s' % (v(wa), sT[0], v(wa)))
wr_, wi_ = V.get(12), V.get(12)
for r in range(3):
    for q in range(4):
        A('ds_read_u16 %s, %s offset:%d' % (v(wr_ + 4 * r + q), v(wa), q * 642 + 256 * r))
        A('ds_read_u16 %s, %s offset:%d' % (v(wi_ + 4 * r + q), v(wa), q * 642 + 256 * r + 6144))
A('s_add_u32 s%d, s%d, %d' % (sT[0], sPB, WS_WF))
for r in range(3):
    for q in range(4):
        A('v_lshl_or_b32 %s, %s, 16, %s' % (v(wr_ + 4 * r + q), v(wi_ + 4 * r + q), v(wr_ + 4 * r + q)))
    pstore1(A, wr_ + 4 * r, r, 'wfst')
V.put(wa)
V.put(wi_, 12)
vMD = V.get(32)
mod_gather_loads(A, vMD, 0)
V.put(wr_, 12)
K = {}
ca_ = V.get(1)
A('v_add_u32 %s, %d, %s' % (v(ca_), L_CONST, v(vL16)))
KA = {}
for i, n in enumerate(TN):
    if n.startswith('TW'):
        K[n] = V.get(4)
        A('ds_read_b128 %s, %s offset:%d' % (v(K[n], 4), v(ca_), 1024 * i))
    else:
        KA[n] = a(120 + 4 * len(KA), 4)
        A('ds_read_b128 %s, %s offset:%d' % (KA[n], v(ca_), 1024 * i))
assert 120 + 4 * len(KA) <= 240
V.put(ca_)

A('s_and_b32 s%d, s%d, 31' % (sT[0], sL))
A('s_lshr_b32 s%d, s%d, 5' % (sT[1], sL))
A('s_lshl_b32 s%d, s%d, 5' % (sT[2], sW))
A('s_add_u32 s%d, s%d, s%d' % (sT[0], sT[0], sT[2]))
A('s_cmp_eq_u32 s%d, 7' % sT[1])
A('s_cselect_b32 s%d, 2, 0' % sT[2])
A('s_add_u32 s%d, s%d, 80' % (sT[2], sT[2]))
A('s_cmp_lt_u32 s%d, s%d' % (sT[0], sT[2]))
A('s_cselect_b32 s%d, 1, 0' % sITEM)
A('s_mul_i32 s%d, s%d, 80' % (sT[1], sT[1]))
A('s_add_u32 s%d, s%d, s%d' % (sT[0], sT[0], sT[1]))
A('s_lshl_b32 s%d, s%d, 12' % (sZS, sT[0]))
A('s_add_u32 s%d, s%d, %d' % (sZS, sZS, WS_Z))
A('s_and_b32 s%d, s%d, 1' % (sT[1], sT[0]))
A('s_mul_i32 s%d, s%d, 5248' % (sT[1], sT[1]))
A('s_lshr_b32 s%d, s%d, 1' % (sT[0], sT[0]))
A('s_lshl_b32 s%d, s%d, 4' % (sT[0], sT[0]))
A('s_add_u32 s%d, s%d, s%d' % (sPG, sT[0], sT[1]))
vPG = V.get(1)
A('v_lshl_add_u32 %s, %s, 6, %s' % (v(vPG), v(vG), v(vN)))
A('v_mul_u32_u24 %s, %d, %s' % (v(vPG), PBLK, v(vPG)))


def item_begin():
    lb = label('item')
    A('s_cmp_eq_u32 s%d, 0' % sITEM)
    A('s_cbranch_scc1 %s' % lb)
    A.opt_begin()
    return lb


def item_end(lb):
    A.opt_end()
    A('%s:' % lb)


lb = item_begin()
for i in range(4):
    A('buffer_store_dwordx4 %s, %s, %s, s%d offen offset:%d sc1' % (v(vONES, 4), v(vL16), srd(sWS), sZS, 1024 * i), tag='clrz')
item_end(lb)

vW1a, vW1b, vW1r = V.get(1), V.get(1), V.get(1)
t = V.get(4)
A('v_lshrrev_b32 %s, 3, %s' % (v(t), v(vLane)))
A('v_and_b32 %s, 6, %s' % (v(t + 1), v(t)))
A('v_and_b32 %s, 7, %s' % (v(t + 2), v(vLane)))
A('v_xor_b32 %s, %s, %s' % (v(t + 1), v(t + 1), v(t + 2)))
vSWZ = V.get(1)
A('v_lshlrev_b32 %s, 4, %s' % (v(vSWZ), v(t + 1)))
A('v_bfe_u32 %s, %s, 1, 1' % (v(t + 1), v(t)))
A('v_lshlrev_b32 %s, 7, %s' % (v(t + 1), v(t + 1)))
A('v_lshrrev_b32 %s, 2, %s' % (v(t + 2), v(t)))
A('v_lshl_add_u32 %s, %s, 1, %s' % (v(t + 1), v(t + 2), v(t + 1)))
A('v_and_b32 %s, 1, %s' % (v(t + 3), v(t)))
A('v_add_u32 %s, %s, %s' % (v(t + 1), v(t + 1), v(t + 3)))
A('s_lshr_b32 s%d, s%d, 1' % (sT[0], sW))
A('s_and_b32 s%d, s%d, 1' % (sT[1], sW))
A('s_lshl_b32 s%d, s%d, 8' % (sT[2], sT[0]))
A('s_lshl_b32 s%d, s%d, 2' % (sT[3], sT[1]))
A('s_add_u32 s%d, s%d, s%d' % (sT[2], sT[2], sT[3]))
A('v_add_u32 %s, s%d, %s' % (v(t + 1), sT[2], v(t + 1)))
A('v_mul_u32_u24 %s, 3072, %s' % (v(t + 1), v(t + 1)))
A('s_mul_i32 s%d, s%d, 384' % (sT[4], sJ))
A('v_add3_u32 %s, %s, %s, s%d' % (v(vW1a), v(t + 1), v(vSWZ), sT[4]))
A('v_and_b32 %s, 3, %s' % (v(t + 1), v(t)))
A('v_lshl_add_u32 %s, %s, 3, %s' % (v(t + 1), v(t + 2), v(t + 1)))
A('s_lshl_b32 s%d, s%d, 2' % (sT[2], sT[0]))
A('s_lshl_b32 s%d, s%d, 4' % (sT[3], sT[1]))
A('s_add_u32 s%d, s%d, s%d' % (sT[2], sT[2], sT[3]))
A('v_add_u32 %s, s%d, %s' % (v(t + 1), sT[2], v(t + 1)))
A('v_mul_u32_u24 %s, 3072, %s' % (v(t + 1), v(t + 1)))
A('v_add3_u32 %s, %s, %s, s%d' % (v(vW1b), v(t + 1), v(vSWZ), sT[4]))
vTR = V.get(1)
vTRs = V.get(1)
A('v_bfe_u32 %s, %s, 2, 3' % (v(t), v(vLane)))
A('v_and_b32 %s, 3, %s' % (v(t + 1), v(vLane)))
A('v_lshlrev_b32 %s, 3, %s' % (v(t + 1), v(t + 1)))
A('v_lshl_add_u32 %s, %s, 7, %s' % (v(vTR), v(t), v(t + 1)))
A('v_lshrrev_b32 %s, 1, %s' % (v(vTRs), v(t)))
A('v_xor_b32 %s, s%d, %s' % (v(t), sW, v(vTRs)))
A('v_lshl_add_u32 %s, %s, 5, %s' % (v(t), v(t), v(vTR)))
A('v_mul_u32_u24 %s, 3072, %s' % (v(t + 1), v(vH)))
A('v_add_u32 %s, %s, %s' % (v(vW1r), v(t), v(t + 1)))
V.put(t, 4)


def w1_dma(rnd, asm=None):
    asm = asm or A
    asm('s_mul_i32 s%d, s%d, 3072' % (sT[3], sW))
    for ql in range(5):
        q = 5 * rnd + ql
        row = 8 * q if q < 16 else 512 + 32 * (q - 16)
        for c in range(3):
            g = Asm()
            g('s_add_u32 m0, s%d, %d' % (sT[3], L_BUF[rnd & 1] + 12288 * ql + 1024 * c))
            g('s_mov_b32 s%d, %d' % (sT[4], row * 3072 + 128 * c))
            g('buffer_load_dwordx4 %s, %s, s%d offen lds' % (v(vW1a if q < 16 else vW1b), srd(sW1), sT[4]), tag='w1_%d' % rnd)
            asm.l.append(g.l)


def w1_drain(rnd, asm=None):
    asm = asm or A
    t = V.get(1)
    asm('v_add_u32 %s, %d, %s' % (v(t), L_BUF[rnd & 1], v(vW1r)))
    for ql in range(5):
        q = 5 * rnd + ql
        for c in range(3):
            for rd in range(2):
                asm('ds_read_b64_tr_b16 %s, %s offset:%d' % (a((3 * q + c) * 4 + 2 * rd, 2), v(t), 12288 * ql + 6144 * rd + 1024 * c))
    V.put(t)


w1_dma(0)
vAF = V.get(16)
for i in range(4):
    A('v_mov_b32 %s, 0' % v(vAF + 4 * i + 3))
vEXlo, vEXhi = [V.get(1), V.get(1)], [V.get(1), V.get(1)]
A('s_mul_i32 s%d, s%d, 3072' % (sT[0], sW))
A('v_mul_u32_u24 %s, 40, %s' % (v(vt), v(vG)))
A('v_add_u32 %s, %s, %s' % (v(vt), v(vt), v(vN)))
A('v_lshlrev_b32 %s, 2, %s' % (v(vt), v(vt)))
A('v_add_u32 %s, s%d, %s' % (v(vEXlo[0]), sT[0], v(vt)))
A('v_add_u32 %s, 1536, %s' % (v(vEXlo[1]), v(vEXlo[0])))
A('s_add_u32 s%d, s%d, 560' % (sT[0], sT[0]))
A('v_sub_u32 %s, s%d, %s' % (v(vEXhi[0]), sT[0], v(vt)))
A('v_add_u32 %s, 1536, %s' % (v(vEXhi[1]), v(vEXhi[0])))
vEX8 = V.get(1)
A('v_mul_u32_u24 %s, 6144, %s' % (v(vEX8), v(vH)))
A('v_lshl_add_u32 %s, %s, 2, %s' % (v(vEX8), v(vKD), v(vEX8)))
A('s_lshl_b32 s%d, s%d, 7' % (sT[0], sW))
A('v_add_u32 %s, s%d, %s' % (v(vEX8), sT[0], v(vEX8)))

stamp('s0_wait')
mod_gather_finish(vMD, 0)
V.put(vMD, 32)
barrier()
stamp('s0_done')
vM0, vM1 = V.get(10), V.get(10)
read_mod(A, vM1, 1, vL16, vL4)
read_mod(A, vM0, 0, vL16, vL4)
for r in range(2):
    for p in range(5):
        A('v_pk_fma_f32 %s, %s, %s, %s' % (v(vNn[r] + 2 * p, 2), v(vNn[r] + 2 * p, 2), v(vM1 + 2 * p, 2), v(vM0 + 2 * p, 2)))
V.put(vM0, 10)
V.put(vM1, 10)
vD = V.get(32)
for r in range(2):
    for t_ in range(2):
        f = vAF + 8 * r + 4 * t_
        h = vNn[r]
        A('v_cvt_pk_bf16_f32 %s, %s, %s' % (v(f), v(h + 4 * t_), v(h + 4 * t_ + 1)))
        A('v_cvt_pk_bf16_f32 %s, %s, %s' % (v(f + 1), v(h + 4 * t_ + 2), v(h + 4 * t_ + 3)))
        A('v_cvt_pk_bf16_f32 %s, %s, %s' % (v(f + 2), v(h + 8 + t_), v(h + 8 + t_)))
    for t_ in range(2):
        f = vAF + 8 * r + 4 * t_
        d = vD + 16 * r + 8 * t_
        A('%s %s, %s, %s, 0' % (MF16, v(d, 4), v(f, 4), KA['C1c']))
        A('%s %s, %s, %s, 0' % (MF16, v(d + 4, 4), v(f, 4), KA['C1s']))
V.put(vNn[0], 10)
V.put(vNn[1], 10)
tt = V.get(8)
vB = V.get(12)
vE = V.get(8)
for r in range(2):
    for t_ in range(2):
        d = vD + 16 * r + 8 * t_
        cmul(A, d, d + 4, K['TW1c%d' % t_], K['TW1s%d' % t_], tt, tt + 4, -1)
        for i in range(4):
            A('v_cvt_pk_bf16_f32 %s, %s, %s' % (v(vB + 4 * t_ + i), v(tt + i), v(tt + 4 + i)))
        if t_ == 0:
            for mt in range(2):
                A('%s %s, %s, %s, 0' % (MF16, v(vE + 4 * mt, 4), KA['A2_%d0' % mt], v(vB, 4)))
        else:
            for i in range(4):
                A('v_cvt_pk_bf16_f32 %s, -%s, -%s' % (v(vB + 8 + i), v(tt + i), v(tt + 4 + i)))
            d = vD + 16 * r
            for mt in range(2):
                A('%s %s, %s, %s, %s' % (MF16, v(d + 4 * mt, 4), KA['A2_%d1' % mt], v(vB + 4, 4), v(vE + 4 * mt, 4)))
            for mt in range(2):
                A('%s %s, %s, %s, %s' % (MF16, v(d + 8 + 4 * mt, 4), KA['A2_%d1' % mt], v(vB + 8, 4), v(vE + 4 * mt, 4)))
for r in range(2):
    d = vD + 16 * r
    o = vAF + 8 * r
    for mt in range(2):
        for e in range(2):
            A('v_cvt_pk_bf16_f32 %s, %s, %s' % (v(o + 2 * mt + e), v(d + 4 * mt + 2 * e), v(d + 4 * mt + 2 * e + 1)))
        A('ds_write2_b32 %s, %s, %s offset0:%d offset1:%d' % (v(vEXlo[r]), v(o + 2 * mt), v(o + 2 * mt + 1), 160 * mt, 160 * mt + 20))
    for mt in range(2):
        for e in range(2):
            A('v_cvt_pk_bf16_f32 %s, %s, -%s' % (v(o + 4 + 2 * mt + e), v(d + 8 + 4 * mt + 2 * e), v(d + 8 + 4 * mt + 2 * e + 1)))
        A('ds_write2_b32 %s, %s, %s offset0:%d offset1:%d' % (v(vEXhi[r]), v(o + 4 + 2 * mt), v(o + 4 + 2 * mt + 1), 180 - 160 * mt, 160 - 160 * mt))
V.put(tt, 8)
V.put(vE, 8)
V.put(vD, 32)
for n in TN[:10]:
    if n in K:
        V.put(K[n], 4)
for x in vEXlo + vEXhi:
    V.put(x)
A.wait_tag('clrz')
barrier()
vD8 = V.get(48)
for r in range(3):
    A('ds_read2st64_b32 %s, %s offset0:%d offset1:%d' % (v(vB + 4 * r, 2), v(vEX8), 2 * r, 2 * r + 6))
    A('ds_read2st64_b32 %s, %s offset0:%d offset1:%d' % (v(vB + 4 * r + 2, 2), v(vEX8), 2 * r + 12, 2 * r + 18))
for r in range(3):
    A('%s %s, %s, %s, 0' % (MF32, v(vD8 + 16 * r, 16), v(vA8, 4), v(vB + 4 * r, 4)))
A('s_add_u32 s%d, s%d, %d' % (sT[0], sPB, WS_P))
for r in range(3):
    for q in range(4):
        A('v_cvt_pk_bf16_f32 %s, %s, %s' % (v(vAF + 4 * r + q), v(vD8 + 16 * r + 2 * q), v(vD8 + 16 * r + 2 * q + 1)))
    pstore1(A, vAF + 4 * r, r, 'pst')
V.put(vD8, 48)
V.put(vB, 12)
V.put(vA8, 4)
stamp('p1_done')
lb = label('ep')
A('s_or_b32 s%d, s%d, s%d' % (sT[0], sL, sW))
A('s_cmp_lg_u32 s%d, 0' % sT[0])
A('s_cbranch_scc1 %s' % lb)
A.opt_begin()
A('v_mov_b32 %s, s%d' % (v(vt), sNONCE))
A('s_mov_b64 exec, 1')
A('buffer_store_dword %s, %s, %s, 0 offen offset:%d sc1' % (v(vt), v(vL4), srd(sWS), WS_EPOCH), tag='ep')
A('s_mov_b64 exec, -1')
A.opt_end()
A('%s:' % lb)


def p_gather(asm, d, base):
    for i in range(4):
        asm('s_add_u32 s%d, s%d, %d' % (sT[5], sPG, base + i * 16 * PBLK))
        asm('buffer_load_dwordx4 %s, %s, %s, s%d offen sc1' % (v(d + 4 * i, 4), v(vPG), srd(sWS), sT[5]))


vWG = V.get(16)
lb = item_begin()
p_gather(A, vWG, WS_WF)
item_end(lb)
V.put(vAF, 16)
A.wait_tag('w1_0')
barrier()
wm_dma(1)
w1_drain(0)
vPD = V.get(16)
vWr, vWi = V.get(16), V.get(16)
tmp = V.get(1)
lb = item_begin()
verify(A, lambda c: p_gather(c, vWG, WS_WF), lambda c: check_sentinel(c, range(vWG, vWG + 16), tmp))
A.wait_tag('pst')
stamp('s1_acked')
p_gather(A, vPD, WS_P)
for c in range(4):
    for i in range(4):
        A('v_lshlrev_b32 %s, 16, %s' % (v(vWr + 4 * c + i), v(vWG + 4 * i + c)))
        A('v_and_b32 %s, s%d, %s' % (v(vWi + 4 * c + i), sMASK, v(vWG + 4 * i + c)))
item_end(lb)
V.put(vWG, 16)
w1_dma(1)


def y2_store(asm, r, regs4, reg1, tag):
    asm('buffer_store_dwordx4 %s, %s, %s, s%d offen sc1' % (v(regs4, 4), v(vL16), srd(sWS), sT[r]), tag=tag)
    asm('buffer_store_dword %s, %s, %s, s%d offen offset:1024 sc1' % (v(reg1), v(vL4), srd(sWS), sT[r]), tag=tag)


def row_base(asm, base):
    asm('s_lshl_b32 s%d, s%d, 2' % (sT[0], sL))
    asm('s_add_u32 s%d, s%d, s%d' % (sT[0], sT[0], sW))
    asm('s_mul_i32 s%d, s%d, 2560' % (sT[0], sT[0]))
    asm('s_add_u32 s%d, s%d, %d' % (sT[0], sT[0], base))
    asm('s_add_u32 s%d, s%d, 1280' % (sT[1], sT[0]))


for base in (WS_Y2, WS_X1):
    row_base(A, base)
    for r in range(2):
        y2_store(A, r, vONES, vONES, 'clry')
mod_partial(1)
mod_addr(1)
vO = V.get(16)
lb = item_begin()
verify(A, lambda c: p_gather(c, vPD, WS_P), lambda c: check_sentinel(c, range(vPD, vPD + 16), tmp))
stamp('s1_done')
for i in range(4):
    for c in range(i + 1, 4):
        A('v_swap_b32 %s, %s' % (v(vPD + 4 * i + c), v(vPD + 4 * c + i)))
vD = V.get(32)
tt = V.get(8)
TWc, TWs = K['TW2c'], K['TW2s']


def st(c, stage):
    d, x = vD + 8 * c, v(vPD + 4 * c, 4)
    fr, fi = KA['Fre'], KA['Fim']
    ops = [((x, fr), (x, fi)), ((fr, x), (fi, x)), ((x, fi), (x, fr)), ((fi, x), (fr, x))][stage]
    for k in range(2):
        A('%s %s, %s, %s, 0' % (MF16, v(d + 4 * k, 4), ops[k][0], ops[k][1]))


for c in range(4):
    st(c, 0)
for stage in range(3):
    for c in range(4):
        d = vD + 8 * c
        if stage == 0:
            cmul(A, d, d + 4, TWc, TWs, tt, tt + 4, -1)
        elif stage == 1:
            cmul(A, d, d + 4, vWr + 4 * c, vWi + 4 * c, tt, tt + 4, +1)
        else:
            cmul(A, d, d + 4, TWc, TWs, tt, tt + 4, +1)
        for i in range(4):
            lo, hi = (tt + i, tt + 4 + i) if stage == 0 else (tt + 4 + i, tt + i)
            A('v_cvt_pk_bf16_f32 %s, %s, %s' % (v(vPD + 4 * c + i), v(lo), v(hi)))
        st(c, stage + 1)
for c in range(4):
    for i in range(4):
        A('v_cvt_pk_bf16_f32 %s, %s, %s' % (v(vO + 4 * i + c), v(vD + 8 * c + i), v(vD + 8 * c + 4 + i)))
item_end(lb)
V.put(vD, 32)
V.put(tt, 8)
V.put(vPD, 16)
V.put(vWr, 16)
V.put(vWi, 16)
for n in TN[10:14]:
    if n in K:
        V.put(K[n], 4)
A.wait_tag(['clry', 'w1_1'])
barrier()
lb = item_begin()
for i in range(4):
    A('buffer_store_dwordx4 %s, %s, %s, s%d offen offset:%d sc1' % (v(vO + 4 * i, 4), v(vL16), srd(sWS), sZS, 1024 * i), tag='zst')
item_end(lb)
stamp('p2_done')
mod_publish(1, 3)
V.put(vSB, 12)
V.put(vWMr)
V.put(vRW)
V.put(vWM)
w1_dma(2)
w1_drain(1)
V.put(vO, 16)
sHS = sPG
A('s_mul_i32 s%d, s%d, 196608' % (sT[0], sG))
A('s_mul_i32 s%d, s%d, 6144' % (sT[1], sJ))
A('s_add_u32 s%d, s%d, s%d' % (sHS, sT[0], sT[1]))
A('s_add_u32 s%d, s%d, %d' % (sHS, sHS, WS_H))
V.put(vPG)
vHs4, vHs2 = V.get(1), V.get(1)
A('s_lshl_b32 s%d, s%d, 10' % (sT[0], sW))
A('v_add_u32 %s, s%d, %s' % (v(vHs4), sT[0], v(vL16)))
A('s_lshl_b32 s%d, s%d, 9' % (sT[0], sW))
A('s_add_u32 s%d, s%d, 4096' % (sT[0], sT[0]))
A('v_add_u32 %s, s%d, %s' % (v(vHs2), sT[0], v(vL8)))


def h_store(asm, rt, r4, r2, tag):
    g = Asm()
    g('s_add_u32 s%d, s%d, %d' % (sT[2], sHS, 49152 * rt))
    g('buffer_store_dwordx4 %s, %s, %s, s%d offen sc1' % (v(r4, 4), v(vHs4), srd(sWS), sT[2]), tag=tag)
    g('buffer_store_dwordx2 %s, %s, %s, s%d offen sc1' % (v(r2, 2), v(vHs2), srd(sWS), sT[2]), tag=tag)
    asm.l.append(g.l)


A('s_lshr_b32 s%d, s%d, 4' % (sT[0], sL))
A('s_and_b32 s%d, s%d, 3' % (sT[0], sT[0]))
A('s_lshl_b32 s%d, s%d, 6' % (sT[0], sT[0]))
A('s_lshr_b32 s%d, s%d, 6' % (sT[1], sL))
A('s_lshl_b32 s%d, s%d, 4' % (sT[1], sT[1]))
A('s_and_b32 s%d, s%d, 15' % (sT[2], sL))
A('s_add_u32 s%d, s%d, s%d' % (sT[0], sT[0], sT[1]))
A('s_add_u32 s%d, s%d, s%d' % (sT[0], sT[0], sT[2]))
A('s_lshl_b32 s%d, s%d, 4' % (sZS, sT[0]))


def z_gather(asm, d):
    for r in range(3):
        asm('s_add_u32 s%d, s%d, %d' % (sT[5], sZS, WS_Z + r * 128 * 8192))
        asm('buffer_load_dwordx4 %s, %s, %s, s%d offen sc1' % (v(d + 4 * r, 4), v(vZ if r < 2 else vZ2), srd(sWS), sT[5]))


vZD = V.get(12)
A.wait_tag(['zst', 'pub'])
barrier()
stamp('s2_acked')
z_gather(A, vZD)
vMD = V.get(32)
mod_gather_loads(A, vMD, 1)
for rt in range(4):
    h_store(A, rt, vONES, vONES, 'clrh')
w1_dma(3)
vU0, vU1 = [V.get(1), V.get(1)], [V.get(1), V.get(1)]
A('s_mul_i32 s%d, s%d, 3072' % (sT[0], sW))
A('v_mul_u32_u24 %s, 80, %s' % (v(vt), v(vG)))
A('v_add_u32 %s, %s, %s' % (v(vt), v(vt), v(vN)))
A('v_lshlrev_b32 %s, 2, %s' % (v(vt), v(vt)))
A('v_add_u32 %s, s%d, %s' % (v(vU0[0]), sT[0], v(vt)))
A('v_add_u32 %s, 1536, %s' % (v(vU0[1]), v(vU0[0])))
A('s_add_u32 s%d, s%d, 1040' % (sT[0], sT[0]))
A('v_sub_u32 %s, s%d, %s' % (v(vU1[0]), sT[0], v(vt)))
A('v_add_u32 %s, 1536, %s' % (v(vU1[1]), v(vU1[0])))
verify(A, lambda c: z_gather(c, vZD), lambda c: check_sentinel(c, range(vZD, vZD + 12), tmp))
stamp('s2_done')
vD8 = V.get(48)
for r in range(3):
    A('%s %s, %s, %s, 0' % (MF32, v(vD8 + 16 * r, 16), v(vA8i, 4), v(vZD + 4 * r, 4)))
mod_gather_finish(vMD, 1)
V.put(vMD, 32)
for r in range(3):
    for q in range(4):
        A('v_cvt_pk_bf16_f32 %s, %s, %s' % (v(vZD + 4 * r + q), v(vD8 + 16 * r + 2 * q), v(vD8 + 16 * r + 2 * q + 1)))
    A('ds_write2st64_b32 %s, %s, %s offset0:%d offset1:%d' % (v(vEX8), v(vZD + 4 * r), v(vZD + 4 * r + 1), 2 * r, 2 * r + 6))
    A('ds_write2st64_b32 %s, %s, %s offset0:%d offset1:%d' % (v(vEX8), v(vZD + 4 * r + 2), v(vZD + 4 * r + 3), 2 * r + 12, 2 * r + 18))
V.put(vD8, 48)
V.put(vA8i, 4)
V.put(vMA, 4)
V.put(vMG)
V.put(vZ)
V.put(vZ2)
V.put(vP)
V.put(vP2)
A.wait_tag('clrh')
barrier()
V.put(vZD, 12)
V.put(vEX8)
vUF = V.get(16)
for r in range(2):
    A('ds_read2_b32 %s, %s offset0:0 offset1:20' % (v(vUF + 8 * r, 2), v(vU0[r])))
    A('ds_read2_b32 %s, %s offset0:40 offset1:60' % (v(vUF + 8 * r + 2, 2), v(vU0[r])))
    A('ds_read2_b32 %s, %s offset0:60 offset1:40' % (v(vUF + 8 * r + 4, 2), v(vU1[r])))
    A('ds_read2_b32 %s, %s offset0:20 offset1:0' % (v(vUF + 8 * r + 6, 2), v(vU1[r])))
vGA, vG2, vSb = V.get(10), V.get(10), V.get(10)
read_mod(A, vGA, 2, vL16, vL4)
read_mod(A, vG2, 4, vL16, vL4)
read_mod(A, vSb, 3, vL16, vL4)
for x in vU0 + vU1:
    V.put(x)
vD = V.get(32)
for r in range(2):
    for u in range(2):
        for t_ in range(2):
            for ro in range(2):
                d = v(vD + 16 * r + 8 * t_ + 4 * ro, 4)
                A('%s %s, %s, %s, %s' % (MF16, d, v(vUF + 8 * r + 4 * u, 4), KA['G%d%d%d' % (u, t_, ro)], d if u else '0'))
tt = V.get(8)
vY = [V.get(12), V.get(12)]
for r in range(2):
    for t_ in range(2):
        d = vD + 16 * r + 8 * t_
        b = vUF + 8 * r + 4 * t_
        cmul(A, d, d + 4, K['TW3c%d' % t_], K['TW3s%d' % t_], tt, tt + 4, +1)
        for i in range(4):
            A('v_cvt_pk_bf16_f32 %s, %s, %s' % (v(b + i), v(tt + i), v(tt + 4 + i)))
        A('%s %s, %s, %s, 0' % (MF16, v(vY[r] + 4 * t_, 4), KA['A3_0'], v(b, 4)))
        A('%s %s, %s, %s, %s' % (MF16, v(vY[r] + 8, 4), KA['A3_%d' % (1 + t_)], v(b, 4), v(vY[r] + 8, 4) if t_ else '0'))
V.put(tt, 8)
V.put(vD, 32)
for n in TN[14:]:
    if n in K:
        V.put(K[n], 4)
for r in range(2):
    for p in range(5):
        A('v_pk_fma_f32 %s, %s, %s, %s' % (v(vXF[r] + 2 * p, 2), v(vY[r] + 2 * p, 2), v(vGA + 2 * p, 2), v(vXF[r] + 2 * p, 2)))
ln_stats(A, vXF)
ln_apply(A, vY, vXF)
for r in range(2):
    for p in range(5):
        A('v_pk_fma_f32 %s, %s, %s, %s' % (v(vY[r] + 2 * p, 2), v(vY[r] + 2 * p, 2), v(vG2 + 2 * p, 2), v(vSb + 2 * p, 2)))
ln_stats(A, vY)
ln_apply(A, vY, vY)
row_base(A, WS_Y2)
for r in range(2):
    o = vUF + 8 * r
    for j in range(5):
        lo, hi = (j, 4 + j) if j < 4 else (8, 9)
        A('v_cvt_pk_bf16_f32 %s, %s, %s' % (v(o + j), v(vY[r] + lo), v(vY[r] + hi)))
    y2_store(A, r, o, o + 4, 'yst')
stamp('p3_done')
row_base(A, WS_X1)
for r in range(2):
    for j in range(5):
        lo, hi = (j, 4 + j) if j < 4 else (8, 9)
        A('v_cvt_pk_bf16_f32 %s, %s, %s' % (v(vY[r] + j), v(vXF[r] + lo), v(vXF[r] + hi)))
        A('buffer_store_dword %s, %s, %s, s%d offen offset:%d sc1' % (v(vY[r] + j), v(vL4), srd(sWS), sT[r], 256 * j), tag='xst')
V.put(vGA, 10)
V.put(vG2, 10)
V.put(vSb, 10)
for r in range(2):
    V.put(vXF[r], 10)
vCol = V.get(1)
A('s_lshl_b32 s%d, s%d, 6' % (sT[2], sJ))
A('s_lshl_b32 s%d, s%d, 4' % (sT[3], sJ))
A('s_add_u32 s%d, s%d, 448' % (sT[3], sT[3]))
A('v_mov_b32 %s, s%d' % (v(vt), sT[2]))
A('v_mov_b32 %s, s%d' % (v(vt + 1), sT[3]))
A('v_cmp_gt_u32 vcc, 8, %s' % v(vN))
A('v_cndmask_b32 %s, %s, %s, vcc' % (v(vt), v(vt + 1), v(vt)))
A('v_min_u32 %s, 9, %s' % (v(vt + 1), v(vN)))
A('v_lshl_add_u32 %s, %s, 3, %s' % (v(vCol), v(vt + 1), v(vt)))
vb2 = V.get(4)
A('v_lshlrev_b32 %s, 1, %s' % (v(vt), v(vCol)))
A('buffer_load_dwordx4 %s, %s, %s, 0 offen' % (v(vb2, 4), v(vt), srd(sB2)))
vb1 = V.get(6)
A('s_mul_i32 s%d, s%d, 384' % (sT[2], sJ))
A('s_lshl_b32 s%d, s%d, 5' % (sT[3], sW))
A('s_add_u32 s%d, s%d, s%d' % (sT[2], sT[2], sT[3]))
A('v_lshlrev_b32 %s, 3, %s' % (v(vt + 1), v(vG)))
for c in range(3):
    A('buffer_load_dwordx2 %s, %s, %s, s%d offen offset:%d' % (v(vb1 + 2 * c, 2), v(vt + 1), srd(sB1), sT[2], 128 * c))
A('v_lshrrev_b32 %s, 7, %s' % (v(vt), v(vCol)))
A('v_bfe_u32 %s, %s, 1, 6' % (v(vt + 1), v(vCol)))
A('v_lshlrev_b32 %s, 2, %s' % (v(vt + 2), v(vt)))
A('v_lshl_add_u32 %s, %s, 4, %s' % (v(vt + 2), v(vt + 1), v(vt + 2)))
A('v_lshlrev_b32 %s, 2, %s' % (v(vt + 3), v(vt + 1)))
A('v_add_u32 %s, 1024, %s' % (v(vt + 3), v(vt + 3)))
A('v_cndmask_b32 %s, %s, %s, vcc' % (v(vt + 2), v(vt + 3), v(vt + 2)))
A('v_cndmask_b32_e64 %s, 4, 16, vcc' % v(vt + 3))
o = (L_MOD + 5 * 2560) // 256
for q in range(4):
    A('ds_read2st64_b32 %s, %s offset0:%d offset1:%d' % (a(240 + 2 * q, 2), v(vt + 2), o, o + 5))
    if q < 3:
        A('v_add_u32 %s, %s, %s' % (v(vt + 2), v(vt + 2), v(vt + 3)))
w1_drain(2)
A.wait_tag('w1_3')
barrier()
w1_drain(3)
V.put(vUF, 16)
for r in range(2):
    V.put(vY[r], 12)
for x in (vW1a, vW1b, vW1r):
    V.put(x)
V.put(vONES, 4)

vYG, vYW = V.get(1), V.get(1)
A('v_lshrrev_b32 %s, 3, %s' % (v(vt), v(vLane)))
A('v_and_b32 %s, 7, %s' % (v(vt + 1), v(vLane)))
A('v_mul_u32_u24 %s, 1280, %s' % (v(vYG), v(vt)))
A('v_lshl_add_u32 %s, %s, 4, %s' % (v(vYG), v(vt + 1), v(vYG)))
A('s_and_b32 s%d, s%d, 1' % (sT[2], sW))
A('s_lshr_b32 s%d, s%d, 1' % (sT[3], sW))
A('s_mul_i32 s%d, s%d, 10240' % (sT[4], sT[2]))
A('s_mul_i32 s%d, s%d, 640' % (sT[5], sT[3]))
A('s_add_u32 s%d, s%d, s%d' % (sT[4], sT[4], sT[5]))
A('s_mul_i32 s%d, s%d, 81920' % (sT[5], sG))
A('s_add_u32 s%d, s%d, s%d' % (sT[4], sT[4], sT[5]))
A('v_add_u32 %s, s%d, %s' % (v(vYG), sT[4], v(vYG)))
A('v_lshrrev_b32 %s, 1, %s' % (v(vt + 2), v(vt)))
A('s_lshl_b32 s%d, s%d, 2' % (sT[4], sT[2]))
A('v_add_u32 %s, s%d, %s' % (v(vt + 2), sT[4], v(vt + 2)))
A('v_xor_b32 %s, %s, %s' % (v(vt + 2), v(vt + 2), v(vt + 1)))
A('v_lshlrev_b32 %s, 4, %s' % (v(vt + 2), v(vt + 2)))
A('v_lshl_add_u32 %s, %s, 7, %s' % (v(vYW), v(vt), v(vt + 2)))
A('s_mul_i32 s%d, s%d, 10240' % (sT[3], sT[3]))
A('s_lshl_b32 s%d, s%d, 10' % (sT[2], sT[2]))
A('s_add_u32 s%d, s%d, s%d' % (sT[2], sT[2], sT[3]))
A('v_add_u32 %s, s%d, %s' % (v(vYW), sT[2], v(vYW)))
vYR = [V.get(1), V.get(1)]
A('v_lshrrev_b32 %s, 1, %s' % (v(vt + 2), v(vN)))
A('v_xor_b32 %s, %s, %s' % (v(vt + 2), v(vt + 2), v(vG)))
A('v_lshlrev_b32 %s, 4, %s' % (v(vt + 2), v(vt + 2)))
A('v_lshl_add_u32 %s, %s, 7, %s' % (v(vYR[0]), v(vN), v(vt + 2)))
A('v_xor_b32 %s, 64, %s' % (v(vYR[1]), v(vYR[0])))
vW2m, vW2e = V.get(1), [V.get(1), V.get(1)]
A('s_mul_i32 s%d, s%d, %d' % (sT[2], sW, 384 * 1280))
A('s_lshl_b32 s%d, s%d, 7' % (sT[3], sJ))
A('s_add_u32 s%d, s%d, s%d' % (sT[3], sT[3], sT[2]))
A('v_mul_u32_u24 %s, 1280, %s' % (v(vt + 2), v(vt)))
A('v_add3_u32 %s, %s, %s, s%d' % (v(vW2m), v(vt + 2), v(vSWZ), sT[3]))
A('s_lshl_b32 s%d, s%d, 5' % (sT[3], sJ))
A('s_add_u32 s%d, s%d, s%d' % (sT[3], sT[3], sT[2]))
A('s_add_u32 s%d, s%d, 1024' % (sT[3], sT[3]))
A('v_lshrrev_b32 %s, 1, %s' % (v(vt + 2), v(vLane)))
A('v_mul_u32_u24 %s, 1280, %s' % (v(vt + 2), v(vt + 2)))
A('v_and_b32 %s, 1, %s' % (v(vt + 3), v(vLane)))
A('v_lshlrev_b32 %s, 4, %s' % (v(vt + 3), v(vt + 3)))
A('v_add3_u32 %s, %s, %s, s%d' % (v(vW2e[1]), v(vt + 2), v(vt + 3), sT[3]))
A('v_mul_u32_u24 %s, %d, %s' % (v(vt + 2), 48 * 1280, v(vH)))
A('v_add_u32 %s, %s, %s' % (v(vW2e[0]), v(vt + 2), v(vW2e[1])))
V.put(vSWZ)
vW2r = V.get(5, 1)
sW2L = sZS
A('s_mul_i32 s%d, s%d, 20480' % (sW2L, sW))
A('s_add_u32 s%d, s%d, %d' % (sW2L, sW2L, L_W2))
A('v_lshl_add_u32 %s, %s, 10, %s' % (v(vt + 2), v(vH), v(vTR)))
A('v_add_u32 %s, s%d, %s' % (v(vt + 2), sW2L, v(vt + 2)))
for t_ in range(4):
    A('v_xor_b32 %s, %d, %s' % (v(vt + 3), t_, v(vTRs)))
    A('v_lshl_add_u32 %s, %s, 5, %s' % (v(vW2r + t_), v(vt + 3), v(vt + 2)))
A('v_add_u32 %s, s%d, %s' % (v(vW2r + 4), sW2L, v(vL8)))
V.put(vTR)
V.put(vTRs)


def w2_rows(k):
    m = k % 6
    f0 = 192 * (k // 6) + (16 * m if m < 4 else 128 + 32 * (m - 4))
    return f0, f0 + (64 if m < 4 else 16), (0 if m < 4 else 1)


def w2_dma(rnd, asm):
    for kk in range(4):
        f0, f1, ty = w2_rows(4 * rnd + kk)
        for b in range(5):
            row = [f0, f0 + 8, f1, f1 + 8, f0][b]
            g = Asm()
            g('s_add_u32 m0, s%d, %d' % (sW2L, 5120 * kk + 1024 * b))
            g('s_mov_b32 s%d, %d' % (sT[4], row * 1280))
            g('buffer_load_dwordx4 %s, %s, s%d offen lds' % (v(vW2m if b < 4 else vW2e[ty]), srd(sW2), sT[4]), tag='w2_%d' % rnd)
            asm.l.append(g.l)


W2V = 96
W2A = 48


def w2frag(k, t_, c=4, o=0):
    if k < 8:
        return v(W2V + 20 * k + 4 * t_ + o, c)
    return a(W2A + 20 * (k - 8) + 4 * t_ + o, c)


def w2_drain(rnd, asm):
    for kk in range(4):
        for t_ in range(5):
            for rd in range(2):
                off = 5120 * kk + (2048 * rd if t_ < 4 else 4096 + 512 * rd)
                asm('ds_read_b64_tr_b16 %s, %s offset:%d' % (w2frag(4 * rnd + kk, t_, 2, 2 * rd), v(vW2r + t_), off))


vBI = V.get(12)
for c in range(3):
    for p in range(2):
        A('v_lshlrev_b32 %s, 16, %s' % (v(vBI + 4 * c + 2 * p), v(vb1 + 2 * c + p)))
        A('v_and_b32 %s, s%d, %s' % (v(vBI + 4 * c + 2 * p + 1), sMASK, v(vb1 + 2 * c + p)))
for p in range(4):
    A('v_lshlrev_b32 %s, 16, %s' % (v(vt), v(vb2 + p)))
    A('v_and_b32 %s, s%d, %s' % (v(vt + 1), sMASK, v(vb2 + p)))
    A('v_accvgpr_write_b32 %s, %s' % (a(248 + 2 * p), v(vt)))
    A('v_accvgpr_write_b32 %s, %s' % (a(249 + 2 * p), v(vt + 1)))
V.put(vb1, 6)
V.put(vb2, 4)
V.take(W2V, 160)
YL = 176


def y_gather(asm, rt):
    asm('s_mov_b32 s%d, %d' % (sT[5], WS_Y2 + 20480 * rt))
    for u in range(5):
        asm('buffer_load_dwordx4 %s, %s, %s, s%d offen offset:%d sc1' % (v(YL + 20 * rt + 4 * u, 4), v(vYG), srd(sWS), sT[5], 128 * u))


def y_commit(asm, rt):
    verify(asm, lambda c: y_gather(c, rt), lambda c: check_sentinel(c, range(YL + 20 * rt, YL + 20 * rt + 20), tmp))
    if rt == 3:
        asm('v_add_u32 %s, %d, %s' % (v(vYW), 20480, v(vYW)))
    for u in range(5):
        asm('ds_write_b128 %s, %s offset:%d' % (v(vYW), v(YL + 20 * rt + 4 * u, 4), 20480 * min(rt, 2) + 2048 * u))


A.wait_tag('yst')
barrier()
stamp('s3_acked')
for rt in range(4):
    y_gather(A, rt)
w2_dma(0, A)
y_commit(A, 0)
barrier()
stamp('s3_done')
vAC = [V.get(12), V.get(12)]
NB = 3
vBF = V.get(4 * NB)
vGT = V.get(8)
vHP = V.get(6)
GC0 = -2.302208198
GC1 = GC0 * 0.044715
import struct
fhex = lambda x: '0x%08x' % struct.unpack('<I', struct.pack('<f', x))[0]
sGC0, sGC1 = sADD, sADD + 1
A('s_mov_b32 s%d, %s' % (sGC0, fhex(GC0)))
A('s_mov_b32 s%d, %s' % (sGC1, fhex(GC1)))
vGC0 = V.get(1)
A('v_mov_b32 %s, s%d' % (v(vGC0), sGC0))


def gelu(rt):
    g = Asm()
    ac = vAC[rt & 1]
    for c in range(3):
        x = ac + 4 * c
        tb = vGT + 4 * (c & 1)
        for i in range(4):
            g('v_mul_f32 %s, %s, %s' % (v(tb + i), v(x + i), v(x + i)))
        for i in range(4):
            g('v_fma_f32 %s, %s, s%d, %s' % (v(tb + i), v(tb + i), sGC1, v(vGC0)))
        for i in range(4):
            g('v_mul_f32 %s, %s, %s' % (v(tb + i), v(tb + i), v(x + i)))
        for i in range(4):
            g('v_exp_f32 %s, %s' % (v(tb + i), v(tb + i)))
        for i in range(4):
            g('v_add_f32 %s, 1.0, %s' % (v(tb + i), v(tb + i)))
        for i in range(4):
            g('v_rcp_f32 %s, %s' % (v(tb + i), v(tb + i)))
        for i in range(4):
            g('v_mul_f32 %s, %s, %s' % (v(tb + i), v(tb + i), v(x + i)))
        for p in range(2):
            g('v_cvt_pk_bf16_f32 %s, %s, %s' % (v(vHP + 2 * c + p), v(tb + 2 * p), v(tb + 2 * p + 1)))
    h_store(g, rt, vHP, vHP + 4, 'hst%d' % rt)
    return g


def yread(rt, q):
    base = 20480 * (rt & 1)
    return Ins('ds_read_b128 %s, %s offset:%d' % (v(vBF + 4 * ((20 * rt + q) % NB), 4), v(vYR[q & 1]), base + 2048 * (q >> 1)))


def g1_main(rt):
    out = []
    for q in range(20):
        for c in range(3):
            d = v(vAC[rt & 1] + 4 * c, 4)
            grp = [Ins('%s %s, %s, %s, %s' % (MF16, d, a((3 * q + c) * 4, 4), v(vBF + 4 * ((20 * rt + q) % NB), 4), d if q else v(vBI + 4 * c, 4)))]
            if c == 0:
                nq = q + NB - 1
                if nq < 20:
                    grp.append(yread(rt, nq))
                elif rt in (1, 2):
                    if rt == 1 :
                        grp.append(Ins('v_add_u32 %s, 40960, %s' % (v(vYR[nq & 1]), v(vYR[nq & 1]))))
                    grp.append(yread(rt + 1, nq - 20))
            out.append(grp)
    return out


HB = [0, 128, 176, 0]
sHL = sPB
A('s_mul_i32 s%d, s%d, 196608' % (sT[0], sG))
A('s_mul_i32 s%d, s%d, 12288' % (sT[1], sW))
A('s_add_u32 s%d, s%d, s%d' % (sHL, sT[0], sT[1]))
A('s_add_u32 s%d, s%d, %d' % (sHL, sHL, WS_H))


def h_loads(asm, rt):
    for m in range(2):
        g = Asm()
        g('s_add_u32 s%d, s%d, %d' % (sT[5], sHL, 49152 * rt + 6144 * m))
        for k in range(4):
            g('buffer_load_dwordx4 %s, %s, %s, s%d offen offset:%d sc1' % (a(HB[rt] + 24 * m + 4 * k, 4), v(vL16), srd(sWS), sT[5], 1024 * k), tag='hld')
        asm.l.append(g.l)
        g = Asm()
        g('s_add_u32 s%d, s%d, %d' % (sT[5], sHL, 49152 * rt + 6144 * m + 4096))
        for k in range(4):
            g('buffer_load_dwordx2 %s, %s, %s, s%d offen offset:%d sc1' % (a(HB[rt] + 24 * m + 16 + 2 * k, 2), v(vL8), srd(sWS), sT[5], 512 * k), tag='hld')
        asm.l.append(g.l)


for q in range(NB - 1):
    A.l.append(yread(0, q))
f = Asm()
for rt in (1, 2, 3):
    y_commit(f, rt)
A.l += interleave(g1_main(0), f, 2, 58)
barrier()
for q in range(NB - 1):
    A.l.append(yread(1, q))
f = Asm()
f.wait_tag('w2_0')
w2_drain(0, f)
f.wait_lds()
w2_dma(1, f)
m = interleave(g1_main(1), gelu(0), 3, 60)
A.l += interleave(m, f, 0, len(m))
m = interleave(g1_main(2), gelu(1), 3, 60)
A.l += m
f = Asm()
f.wait_tag('w2_1')
w2_drain(1, f)
f.wait_lds()
w2_dma(2, f)
g3 = g1_main(3)
hl = Asm()
hl.wait_tag('hst0')
h_loads(hl, 0)
g3 = interleave(g3, hl, 24, 34)
m = interleave(g3, gelu(2), 3, len(g3))
A.l += interleave(m, f, 0, len(m))
stamp('g1_done')
A.wait_tag('hst1')
h_loads(A, 1)
A.add(gelu(3))
A.wait_tag('w2_2')
w2_drain(2, A)
V.put(vAC[0], 12)
V.put(vAC[1], 12)
V.put(vBF, 4 * NB)
V.put(vGT, 8)
V.put(vBI, 12)
V.put(vGC0)
for x in [vYG, vYW, vW2m] + vYR + vW2e:
    V.put(x)
vA2 = [V.get(20), V.get(20)]
vPW, vPR, vXO, vOO = V.get(1), V.get(1), V.get(1), V.get(1)
A('v_mul_u32_u24 %s, 336, %s' % (v(vPW), v(vN)))
A('v_lshl_add_u32 %s, %s, 4, %s' % (v(vPW), v(vG), v(vPW)))
A('s_mul_i32 s%d, s%d, 5376' % (sT[0], sW))
A('v_add_u32 %s, s%d, %s' % (v(vPW), sT[0], v(vPW)))
A('s_lshl_b32 s%d, s%d, 2' % (sT[0], sW))
A('v_add_u32 %s, s%d, %s' % (v(vt), sT[0], v(vG)))
A('v_mul_u32_u24 %s, 336, %s' % (v(vPR), v(vt)))
A('v_min_u32 %s, 9, %s' % (v(vt + 1), v(vN)))
A('v_lshl_add_u32 %s, %s, 5, %s' % (v(vPR), v(vt + 1), v(vPR)))
A('v_mul_u32_u24 %s, 1280, %s' % (v(vXO), v(vt)))
A('v_lshl_add_u32 %s, %s, 1, %s' % (v(vXO), v(vCol), v(vXO)))
A('s_mul_i32 s%d, s%d, 81920' % (sT[0], sG))
A('v_add_u32 %s, s%d, %s' % (v(vXO), sT[0], v(vXO)))
A('v_and_b32 %s, 7, %s' % (v(vt + 1), v(vt)))
A('v_lshrrev_b32 %s, 3, %s' % (v(vt), v(vt)))
A('v_lshl_add_u32 %s, %s, 8, %s' % (v(vt), v(vt + 1), v(vt)))
A('v_mul_u32_u24 %s, 1280, %s' % (v(vOO), v(vt)))
A('v_lshl_add_u32 %s, %s, 1, %s' % (v(vOO), v(vCol), v(vOO)))
A('s_mul_i32 s%d, s%d, 10240' % (sT[0], sG))
A('v_add_u32 %s, s%d, %s' % (v(vOO), sT[0], v(vOO)))
A('v_mov_b32 %s, %d' % (v(vt + 1), OOB))
A('v_cmp_gt_u32 vcc, 10, %s' % v(vN))
A('v_cndmask_b32 %s, %s, %s, vcc' % (v(vOO), v(vt + 1), v(vOO)))
V.put(vCol)
V.put(vW2r, 5)
V.put(vHP, 6)
V.put(vHs4)
V.put(vHs2)
for x in (vN, vG, vKD, vH, vL4):
    V.put(x)
vX1 = V.get(4)
vER = V.get(16)


def x1_load(asm, rt):
    g = Asm()
    g('s_mov_b32 s%d, %d' % (sT[3], WS_X1 + 20480 * rt))
    g('buffer_load_dwordx4 %s, %s, %s, s%d offen sc1' % (v(vX1, 4), v(vXO), srd(sWS), sT[3]))
    asm.l.append(g.l)


def part_write(asm, rt):
    for t_ in range(5):
        asm('ds_write_b128 %s, %s offset:%d' % (v(vPW), v(vA2[rt & 1] + 4 * t_, 4), L_PART[rt & 1] + 64 * t_))


def epilogue(asm, rt):
    s = vA2[rt & 1]
    for p in range(4):
        for hf in range(2):
            d = (vER + 8 * p + 4 * hf) if p < 2 else (s + 8 * (p - 2) + 4 * hf)
            asm('ds_read_b128 %s, %s offset:%d' % (v(d, 4), v(vPR), L_PART[rt & 1] + 5376 * p + 16 * hf))
    verify(asm, lambda c: x1_load(c, rt), lambda c: check_sentinel(c, range(vX1, vX1 + 4), tmp))
    for i in range(8):
        asm('v_add_f32 %s, %s, %s' % (v(vER + i), v(vER + i), v(vER + 8 + i)))
    for i in range(8):
        asm('v_accvgpr_read_b32 %s, %s' % (v(vER + 8 + i), a(248 + i)))
    for i in range(8):
        asm('v_add_f32 %s, %s, %s' % (v(s + i), v(s + i), v(s + 8 + i)))
    for i in range(8):
        asm('v_add_f32 %s, %s, %s' % (v(vER + i), v(vER + i), v(vER + 8 + i)))
    for i in range(8):
        asm('v_accvgpr_read_b32 %s, %s' % (v(vER + 8 + i), a(240 + i)))
    for i in range(8):
        asm('v_add_f32 %s, %s, %s' % (v(vER + i), v(vER + i), v(s + i)))
    for p in range(4):
        asm('v_lshlrev_b32 %s, 16, %s' % (v(s + 2 * p), v(vX1 + p)))
        asm('v_and_b32 %s, s%d, %s' % (v(s + 2 * p + 1), sMASK, v(vX1 + p)))
    for i in range(8):
        asm('v_fmac_f32 %s, %s, %s' % (v(s + i), v(vER + i), v(vER + 8 + i)))
    for p in range(4):
        asm('v_cvt_pk_bf16_f32 %s, %s, %s' % (v(vER + p), v(s + 2 * p), v(s + 2 * p + 1)))
    g = Asm()
    g('s_mov_b32 s%d, %d' % (sT[3], 2560 * rt))
    g('buffer_store_dwordx4 %s, %s, %s, s%d offen' % (v(vER, 4), v(vOO), srd(sOUT), sT[3]), tag='out')
    asm.l.append(g.l)
    if rt < 3:
        x1_load(asm, rt + 1)


def g2_mfma(rt, k, t_):
    d = v(vA2[rt & 1] + 4 * t_, 4)
    return Ins('%s %s, %s, %s, %s' % (MF16, d, w2frag(k, t_), a(HB[rt] + 4 * k, 4), d if k else '0'))


def g2_tile(rt, fill):
    ls, lr = label('hslow'), label('hredo')
    A('s_mov_b32 s%d, 0' % sVER)
    A('%s:' % lr)
    for k in range(12):
        A.l.append(g2_mfma(rt, k, 0))
    rest = [g2_mfma(rt, k, t_) for k in range(12) for t_ in range(1, 5)]
    A.l += rest[:8]
    A('v_cmp_u_f32 vcc, %s, %s' % (v(vA2[rt & 1]), v(vA2[rt & 1])))
    lo = label('hok')
    A('s_cbranch_vccnz %s' % ls)
    A('%s:' % lo)
    A.l += interleave(rest[8:], fill, 0, 38)
    c = COLD
    c.cold_begin()
    ll = label('hl')
    c('%s:' % ls)
    c('s_cmp_lg_u32 s%d, 0' % sVER)
    c('s_cbranch_scc1 %s' % lo)
    c('s_mov_b32 s%d, 1' % sVER)
    c('s_nop 7')
    c('%s:' % ll)
    c('s_add_u32 s%d, s%d, 1' % (sSPIN, sSPIN))
    c('s_cmp_gt_u32 s%d, %d' % (sSPIN, SPIN))
    c('s_cbranch_scc1 %s' % lr)
    h_loads(c, rt)
    c('s_waitcnt vmcnt(0)')
    c('v_mov_b32 %s, 0' % v(tmp))
    for i in range(0, 48, 2):
        c('v_accvgpr_read_b32 %s, %s' % (v(vt), a(HB[rt] + i)))
        c('v_accvgpr_read_b32 %s, %s' % (v(vt + 1), a(HB[rt] + i + 1)))
        c('v_max3_u32 %s, %s, %s, %s' % (v(tmp), v(tmp), v(vt), v(vt + 1)))
    c('v_cmp_eq_u32 vcc, -1, %s' % v(tmp))
    c('s_cbranch_vccnz %s' % ll)
    c('s_branch %s' % lr)


x1_load(A, 0)
A.wait_lds()
A('s_barrier')
stamp('g2_start')
f = Asm()
f.wait_tag('hst2')
h_loads(f, 2)
g2_tile(0, f)
for rt in range(1, 4):
    f = Asm()
    if rt == 1:
        f.wait_tag('hst3')
        h_loads(f, 3)
    part_write(f, rt - 1)
    barrier(f)
    epilogue(f, rt - 1)
    g2_tile(rt, f)
stamp('g2_done')
part_write(A, 3)
barrier()
epilogue(A, 3)
if OPT['stamps']:
    A('s_waitcnt vmcnt(0)')
    stamp('end')
    A('s_lshl_b32 s%d, s2, 2' % sT[0])
    A('s_add_u32 s%d, s%d, s%d' % (sT[0], sT[0], sW))
    A('s_lshl_b32 s%d, s%d, 7' % (sT[0], sT[0]))
    A('s_add_u32 s%d, s%d, %d' % (sT[0], sT[0], WS_STAMP))
    A('s_mov_b64 exec, 1')
    for i in range(nstamp[0]):
        A('v_mov_b32 %s, s%d' % (v(vt), sSTAMP + i))
        A('buffer_store_dword %s, %s, %s, s%d offen offset:%d' % (v(vt), v(vL16), srd(sWS), sT[0], 4 * i))
        A('s_waitcnt vmcnt(0)')
    A('v_mov_b32 %s, s%d' % (v(vt), sSPIN))
    A('buffer_store_dword %s, %s, %s, s%d offen offset:%d' % (v(vt), v(vL16), srd(sWS), sT[0], 124))
A('L_end:')
A('s_endpgm')
A.add(COLD)

body, ins = finalize(A)
ref = open('cdna_kernels/%s.s.ref' % NAME).read()
hdr = ref[:ref.index('; Override launch')]
src = hdr + '; @launch grid=(256,1,1) block=(256,1,1) lds=163840\n'
src += '.amdgcn_target "amdgcn-amd-amdhsa--gfx950"\n.text\n.globl %s_kernel\n.p2align 8\n.type %s_kernel,@function\n%s_kernel:\n' % (NAME, NAME, NAME)
src += body
src += '.p2align 7\n.type L_tab,@object\nL_tab:\n'
for n in TN:
    for row in T[n].reshape(-1, 8):
        src += '.long ' + ','.join('0x%x' % x for x in row) + '\n'
src += '.fill %d, 4, 0\nL_tabend:\n.size L_tab, L_tabend-L_tab\n' % ((32 - len(TN)) * 256)
src += '''.section .rodata,"a"
.p2align 6
.amdhsa_kernel %s_kernel
  .amdhsa_next_free_vgpr 512
  .amdhsa_next_free_sgpr 102
  .amdhsa_accum_offset 256
  .amdhsa_group_segment_fixed_size 0
  .amdhsa_kernarg_size 104
  .amdhsa_user_sgpr_count 2
  .amdhsa_user_sgpr_kernarg_segment_ptr 1
  .amdhsa_system_sgpr_workgroup_id_x 1
  .amdhsa_float_denorm_mode_32 3
.end_amdhsa_kernel
''' % NAME
open(sys.argv[1], 'w').write(src)
open(sys.argv[1] + '.stamps', 'w').write('\n'.join(stamp_names))
from collections import Counter
cnt = Counter(i.cls for i in ins)
print('instr', dict(cnt), 'nop states', sum(states(i) for i in ins if i.cls == 'nop'), 'src bytes', len(src))
```

```python
import sys
sys.path.insert(0, 'work')
from asmlib import *
import tables

NAME = 'adaLN_cond__spectral_gfnet__mixer_channel_mlp__prompt'
OPT = dict(stamps=0)
for arg in sys.argv[2:]:
    k, v = arg.split('=')
    OPT[k] = int(v)

PBLK = 11264
WS_EPOCH = 0
WS_MODX = 0x1000
WS_MOD2 = 0x9000
WS_FLAG = 0x10000
WS_P = 0x20000
WS_X1 = WS_P + 256 * PBLK
WS_H = WS_X1 + 256 * 10240
WS_W2F = WS_H + 32 * 196608
WS_END = WS_W2F + 1920 * 1024
WS_STAMP = 0x1800000
WS_REC = 0x2000000
OOB = 0x7ff00000
assert WS_END < WS_STAMP
L_MOD = 0
L_SILU = 17920
L_RED = 19200
L_EX = 20480
L_GP = 32768
L_GW = 49152
L_RING = 65536
L_CONST = L_RING + 5 * 12288
L_WRAW = L_RING + 7 * 12288
L_W2 = 81920
L_PART = [0, 21504]
SPIN = 200000

T = tables.build()
TN = list(T)

sC, sWM, sX, sWS, sWF_, sW1, sW2, sB1, sB2, sOUT = [8 + 4 * i for i in range(10)]
sWRp, sWIp = 48, 50
sL, sW, sNONCE, sJ, sG, sSPIN, sMASK, sVER = 52, 53, 54, 55, 56, 57, 58, 59
sT = [60, 61, 62, 63, 64, 65]
sST = 66
sADD = 70
sIDX = 73
sITEM = 74
sPG = 75
sZS = 76
sPB = 77
sRING = 78
sTAU = 79
sEX = 80
sBG = [48, 49]
sCOL = 50
sYX = 51
sJ1, sG1, sTM, sTAGZ = 4, 5, 0, 1
sSTAMP = 82


def srd(s):
    return 's[%d:%d]' % (s, s + 3)


def v(n, c=1):
    return 'v%d' % n if c == 1 else 'v[%d:%d]' % (n, n + c - 1)


def a(n, c=1):
    return 'a%d' % n if c == 1 else 'a[%d:%d]' % (n, n + c - 1)


class Pool:
    def __init__(self, lo, hi):
        self.free = set(range(lo, hi))
        self.hw = 0

    def get(self, n, z='mhxl', al=2):
        if n == 1:
            al = 1
        Z = dict(l=(1, 96), m=(96, 176), h=(176, 256), x=(96, 256))
        for b, hi in [(b, Z[c][1]) for c in z for b in range(*Z[c])]:
            if b % al == 0 and b + n <= hi and all(b + i in self.free for i in range(n)):
                for i in range(n):
                    self.free.remove(b + i)
                self.hw = max(self.hw, b + n)
                return b
        raise RuntimeError('out of registers (%d)' % n)

    def take(self, b, n):
        for i in range(n):
            assert b + i in self.free, 'v%d busy' % (b + i)
            self.free.remove(b + i)
        return b

    def put(self, b, n=1):
        for i in range(n):
            assert b + i not in self.free
            self.free.add(b + i)


A = Asm()
COLD = Asm()
V = Pool(1, 256)
nstamp = [0]
stamp_names = []


def stamp(name, asm=None, lvl=1):
    if not (OPT['stamps'] & lvl) and not (OPT['stamps'] and name in ('end',)):
        return
    asm = asm or A
    i = nstamp[0]
    nstamp[0] += 1
    stamp_names.append(name)
    asm('s_memrealtime s[%d:%d]' % (sEX, sEX + 1))
    asm('s_mov_b32 s%d, s%d' % (sSTAMP + i, sEX))
    assert sSTAMP + i < 100


MF16 = 'v_mfma_f32_16x16x32_bf16'
MF32 = 'v_mfma_f32_32x32x16_bf16'
lab = [0]


def label(p):
    lab[0] += 1
    return 'L_%s_%d' % (p, lab[0])


def barrier(asm=None):
    asm = asm or A
    asm.wait_lds()
    asm('s_barrier')


def check_sentinel(asm, regs, tmp):
    r = list(regs)
    first = True
    while r:
        if first:
            if len(r) >= 3:
                asm('v_max3_u32 %s, %s, %s, %s' % (v(tmp), v(r[0]), v(r[1]), v(r[2])))
                r = r[3:]
            else:
                asm('v_max_u32 %s, %s, %s' % (v(tmp), v(r[0]), v(r[-1])))
                r = []
            first = False
        elif len(r) >= 2:
            asm('v_max3_u32 %s, %s, %s, %s' % (v(tmp), v(tmp), v(r[0]), v(r[1])))
            r = r[2:]
        else:
            asm('v_max_u32 %s, %s, %s' % (v(tmp), v(tmp), v(r[0])))
            r = []
    asm('v_cmp_eq_u32 vcc, -1, %s' % v(tmp))


def check_bits(asm, regs, masks, tmp):
    r = list(regs)
    for k, x in enumerate(r if masks is not None else []):
        asm('v_xor_b32 %s, %s, %s' % (v(x), v(masks + k % 4), v(x)))
    asm('v_or3_b32 %s, %s, %s, %s' % (v(tmp), v(r[0]), v(r[1]), v(r[2])))
    for k in range(3, len(r) - 1, 2):
        asm('v_or3_b32 %s, %s, %s, %s' % (v(tmp), v(tmp), v(r[k]), v(r[k + 1])))
    asm('v_bitop3_b32 %s, %s, %s, s%d bitop3:0xa8' % (v(tmp), v(tmp), v(r[-1]), sTM))
    asm('v_cmp_ne_u32 vcc, 0, %s' % v(tmp))


def check_tags(asm, regs, tmp):
    asm('v_xor_b32 %s, s%d, %s' % (v(tmp), sNONCE, v(regs[0])))
    for r in regs[1:]:
        asm('v_bitop3_b32 %s, %s, s%d, %s bitop3:0xbe' % (v(tmp), v(r), sNONCE, v(tmp)))
    asm('v_cmp_ne_u32 vcc, 0, %s' % v(tmp))


def verify(asm, loads, checker, masked=True):
    ls, lo = label('slow'), label('ok')
    checker(asm)
    grp = Asm()
    grp('s_cbranch_vccnz %s' % ls)
    grp('%s:' % lo)
    asm.l.append(grp.l)
    c = COLD
    c.cold_begin()
    lx = label('out')
    c('%s:' % ls)
    c('s_add_u32 s%d, s%d, 1' % (sSPIN, sSPIN))
    c('s_cmp_gt_u32 s%d, %d' % (sSPIN, SPIN))
    c('s_cbranch_scc1 %s' % lx)
    c('s_mov_b64 exec, vcc' if masked else 's_wqm_b64 exec, vcc')
    loads(c)
    c('s_waitcnt vmcnt(0)')
    checker(c)
    c('s_cbranch_vccnz %s' % ls)
    c('%s:' % lx)
    c('s_mov_b64 exec, -1')
    c('s_nop 4')
    c('s_branch %s' % lo)


def cmul(asm, re_, im_, c_, s_, t0, t1, sign):
    neg = ' neg_lo:[0,0,1] neg_hi:[0,0,1]'
    for p in (0, 2):
        asm('v_pk_mul_f32 %s, %s, %s' % (v(t0 + p, 2), v(im_ + p, 2), v(s_ + p, 2)))
        asm('v_pk_mul_f32 %s, %s, %s' % (v(t1 + p, 2), v(re_ + p, 2), v(s_ + p, 2)))
    for p in (0, 2):
        asm('v_pk_fma_f32 %s, %s, %s, %s%s' % (v(t0 + p, 2), v(re_ + p, 2), v(c_ + p, 2), v(t0 + p, 2), neg if sign > 0 else ''))
        asm('v_pk_fma_f32 %s, %s, %s, %s%s' % (v(t1 + p, 2), v(im_ + p, 2), v(c_ + p, 2), v(t1 + p, 2), '' if sign > 0 else neg))


def ln_stats(asm, x, scale=None):
    t = V.get(8, 'hl')
    for r in range(2):
        asm('v_pk_add_f32 %s, %s, %s' % (v(t + 2 * r, 2), v(x[r], 2), v(x[r] + 2, 2)))
        asm('v_pk_mul_f32 %s, %s, %s' % (v(t + 4 + 2 * r, 2), v(x[r], 2), v(x[r], 2)))
    for p in range(1, 5):
        for r in range(2):
            if p >= 2:
                asm('v_pk_add_f32 %s, %s, %s' % (v(t + 2 * r, 2), v(t + 2 * r, 2), v(x[r] + 2 * p, 2)))
            asm('v_pk_fma_f32 %s, %s, %s, %s' % (v(t + 4 + 2 * r, 2), v(x[r] + 2 * p, 2), v(x[r] + 2 * p, 2), v(t + 4 + 2 * r, 2)))
    for q in range(4):
        asm('v_add_f32 %s, %s, %s' % (v(t + 2 * q), v(t + 2 * q), v(t + 2 * q + 1)))
    asm('v_permlane32_swap_b32 %s, %s' % (v(t), v(t + 2)))
    asm('v_permlane32_swap_b32 %s, %s' % (v(t + 4), v(t + 6)))
    asm('v_add_f32 %s, %s, %s' % (v(t), v(t), v(t + 2)))
    asm('v_add_f32 %s, %s, %s' % (v(t + 4), v(t + 4), v(t + 6)))
    asm('v_permlane16_swap_b32 %s, %s' % (v(t), v(t + 4)))
    asm('v_add_f32 %s, %s, %s' % (v(t), v(t), v(t + 4)))
    for sh in (8, 4, 2, 1):
        asm('v_add_f32_dpp %s, %s, %s row_ror:%d row_mask:0xf bank_mask:0xf' % (v(t), v(t), v(t), sh))
    asm('v_mul_f32 %s, 0x3acccccd, %s' % (v(t + 1), v(t)))
    asm('v_mul_f32 %s, 0x3acccccd, %s' % (v(t), v(t)))
    asm('v_permlane16_swap_b32 %s, %s' % (v(t), v(t + 1)))
    asm('v_fma_f32 %s, -%s, %s, %s' % (v(t + 1), v(t), v(t), v(t + 1)))
    asm('v_max_f32 %s, 0, %s' % (v(t + 1), v(t + 1)))
    asm('v_add_f32 %s, 0x3727c5ac, %s' % (v(t + 1), v(t + 1)))
    asm('v_rsq_f32 %s, %s' % (v(t + 1), v(t + 1)))
    if scale:
        asm('v_mul_f32 %s, %s, %s' % (v(t + 1), scale, v(t + 1)))
    asm('v_mul_f32_e64 %s, -%s, %s' % (v(t), v(t), v(t + 1)))
    for r in range(2):
        asm('v_readlane_b32 s%d, %s, %d' % (sST + 2 * r, v(t + 1), 32 * r))
    for r in range(2):
        asm('v_readlane_b32 s%d, %s, %d' % (sST + 2 * r + 1, v(t), 32 * r))
    V.put(t, 8)


def ln_apply(asm, dst, x):
    for p in range(5):
        for r in range(2):
            s = 's[%d:%d]' % (sST + 2 * r, sST + 2 * r + 1)
            asm('v_pk_fma_f32 %s, %s, %s, %s op_sel:[0,0,1] op_sel_hi:[1,0,1]' % (v(dst[r] + 2 * p, 2), v(x[r] + 2 * p, 2), s, s))


def read_mod(asm, dst, vec, vL16, vL4):
    b = L_MOD + vec * 2560
    asm('ds_read_b128 %s, %s offset:%d' % (v(dst, 4), v(vL16), b))
    asm('ds_read_b128 %s, %s offset:%d' % (v(dst + 4, 4), v(vL16), b + 1280))
    o = (b + 1024) // 256
    assert (b + 1024) % 256 == 0
    asm('ds_read2st64_b32 %s, %s offset0:%d offset1:%d' % (v(dst + 8, 2), v(vL4), o, o + 5))


def S(asm, fmt, *args):
    asm(fmt % args)


def opt(cond, asm=None):
    asm = asm or A
    lb = label('skip')
    asm(cond)
    asm('s_cbranch_scc1 %s' % lb)
    asm.opt_begin()
    return lb


def opt_end(lb, asm=None):
    asm = asm or A
    asm.opt_end()
    asm('%s:' % lb)


def grp(asm, g):
    asm.l.append(g.l)


A('s_cmp_ge_u32 s2, 256')
A('s_cbranch_scc1 L_end')
for s, off in ((sC, 64), (sWM, 72), (sX, 0), (sWS, 96), (sWRp, 8), (sWIp, 16), (sW1, 32)):
    A('s_load_dwordx2 s[%d:%d], s[0:1], %d' % (s, s + 1, off))
if OPT['stamps']:
    A('s_memrealtime s[%d:%d]' % (sSTAMP, sSTAMP + 1))
    A('s_memtime s[100:101]')
vLane = V.get(1, 'l')
vt = V.get(4, 'l')
tmp = V.get(1, 'l')
A('v_lshrrev_b32 %s, 6, v0' % v(vt))
A('v_and_b32 %s, 63, v0' % v(vLane))
A('v_readfirstlane_b32 s%d, %s' % (sW, v(vt)))
A('s_lshr_b32 s%d, s2, 3' % sIDX)
vPC = V.get(2)
A('s_getpc_b64 s[6:7]')
A('L_pc:')
A('s_lshl_b32 s%d, s%d, 7' % (sT[1], sIDX))
A('v_lshl_add_u32 %s, v0, 12, s%d' % (v(vt + 1), sT[1]))
A('v_mov_b32 %s, s7' % v(vPC + 1))
A('v_add_co_u32 %s, vcc, s6, %s' % (v(vt + 2), v(vt + 1)))
A('s_and_b32 s%d, s2, 7' % sT[0])
A('s_mul_i32 s%d, s%d, 20' % (sTAU, sT[0]))
A('v_addc_co_u32 %s, vcc, 0, %s, vcc' % (v(vt + 3), v(vPC + 1)))
A('v_cmp_gt_u32 vcc, (L_tabend-L_pc-4), %s' % v(vt + 1))
A('s_add_u32 s%d, s%d, s%d' % (sTAU, sTAU, sIDX))
A('s_and_saveexec_b64 s[%d:%d], vcc' % (sEX, sEX + 1))
A('s_cbranch_execz L_nopf')
A.opt_begin()
vJunk = V.get(3, 'h', 1)
A('global_load_dword %s, %s, off' % (v(vJunk), v(vt + 2, 2)), tag='junk')
A.opt_end()
A('L_nopf:')
A('s_mov_b64 exec, -1')
A('s_lshl_b32 s%d, s%d, 5' % (sL, sT[0]))
A('s_add_u32 s%d, s%d, s%d' % (sL, sL, sIDX))
vL16, vL4, vL8 = V.get(1, 'l'), V.get(1, 'l'), V.get(1, 'l')
vN, vG, vKD, vH = V.get(1, 'l'), V.get(1, 'l'), V.get(1, 'l'), V.get(1, 'l')
A('v_and_b32 %s, 15, %s' % (v(vN), v(vLane)))
A('v_lshrrev_b32 %s, 4, %s' % (v(vG), v(vLane)))
vCo = V.get(1)
A('s_and_b32 s%d, s%d, 1' % (sT[2], sTAU))
A('s_mul_i32 s%d, s%d, 640' % (sT[0], sT[2]))
A('s_lshl_b32 s%d, s%d, 6' % (sT[1], sW))
A('s_add_u32 s%d, s%d, s%d' % (sT[0], sT[0], sT[1]))
A('v_lshl_add_u32 %s, %s, 8, s%d' % (v(vCo), v(vG), sT[0]))
A('v_lshl_add_u32 %s, %s, 2, %s' % (v(vCo), v(vN), v(vCo)))
vWM = V.get(1)
A('v_lshrrev_b32 %s, 1, %s' % (v(vWM), v(vLane)))
A('v_mul_u32_u24 %s, 7680, %s' % (v(vWM), v(vWM)))
A('v_and_b32 %s, 1, %s' % (v(vt), v(vLane)))
A('v_lshl_add_u32 %s, %s, 4, %s' % (v(vWM), v(vt), v(vWM)))
A('s_mul_i32 s%d, s%d, 3840' % (sT[0], sT[0]))
A('s_lshr_b32 s%d, s%d, 1' % (sT[1], sTAU))
A('s_lshl_b32 s%d, s%d, 5' % (sT[1], sT[1]))
A('s_add_u32 s%d, s%d, s%d' % (sT[0], sT[0], sT[1]))
A('s_lshl_b32 s%d, s%d, 10' % (sT[1], sW))
for s, n in ((sC, 1280), (sWM, 640 * 7680), (sX, 2621440), (sWS, WS_REC)):
    A('s_mov_b32 s%d, %d' % (s + 2, n))
    A('s_mov_b32 s%d, 0x20000' % (s + 3))
A('v_lshlrev_b32 %s, 2, %s' % (v(vL4), v(vLane)))
A('s_lshl_b32 s%d, s%d, 9' % (sT[2], sW))
A('s_add_u32 s%d, s%d, s%d' % (sT[2], sT[2], sL))
A('s_mul_i32 s%d, s%d, 1280' % (sT[2], sT[2]))
A('s_add_u32 s%d, s%d, %d' % (sT[3], sT[2], 256 * 1280))
A('s_add_u32 m0, s%d, %d' % (sT[1], L_EX))
A('s_waitcnt lgkmcnt(0)')
vC = V.get(1)
lb = opt('s_cmp_ge_u32 s%d, 20' % sIDX)
A('buffer_load_dword %s, %s, %s, 0 offen' % (v(vC), v(vCo), srd(sC)))
for i in range(3):
    if i == 2:
        lb2 = opt('s_cmp_ge_u32 s%d, 2' % sW)
    if i:
        A('s_add_u32 m0, s%d, %d' % (sT[1], L_EX + 4096 * i))
        A('s_add_u32 s%d, s%d, %d' % (sT[0], sT[0], 128 * 7680))
    A('buffer_load_dwordx4 %s, %s, s%d offen lds' % (v(vWM), srd(sWM), sT[0]), tag='wm')
opt_end(lb2)
opt_end(lb)
V.put(vCo)
V.put(vWM)
if OPT['stamps']:
    nstamp[0] = 1
    stamp_names.append('start')
A('s_load_dword s%d, s[%d:%d], %d' % (sNONCE, sWS, sWS + 1, WS_EPOCH))
for s, off in ((sW2, 48), (sB1, 40), (sB2, 56), (sOUT, 80)):
    A('s_load_dwordx2 s[%d:%d], s[0:1], %d' % (s, s + 1, off))
if OPT.get('probe'):
    sPRB = 84
    A('s_load_dwordx2 s[84:85], s[0:1], 24')
    A('s_mov_b32 s86, 2621440')
    A('s_mov_b32 s87, 0x20000')
vXR = V.get(10)
XL = Asm()
for r in range(2):
    for j in range(5):
        XL('buffer_load_dword %s, %s, %s, s%d offen offset:%d' % (v(vXR + 5 * r + j), v(vL4), srd(sX), sT[2 + r], 256 * j))
B = Asm()
for s, n in ((sWF_, 2048 * 642), (sW1, 640 * 3072), (sW2, 1536 * 1280), (sB1, 3072), (sB2, 1280), (sOUT, 2621440)):
    B('s_mov_b32 s%d, %d' % (s + 2, n))
    B('s_mov_b32 s%d, 0x20000' % (s + 3))
B('v_lshlrev_b32 %s, 4, %s' % (v(vL16), v(vLane)))
B('v_lshlrev_b32 %s, 3, %s' % (v(vL8), v(vLane)))
B('v_and_b32 %s, 31, %s' % (v(vKD), v(vLane)))
B('v_lshrrev_b32 %s, 5, %s' % (v(vH), v(vLane)))
B('s_mov_b32 s%d, 0' % sSPIN)
B('s_mov_b32 s%d, 0xffff0000' % sMASK)
B('s_and_b32 s%d, s%d, 7' % (sJ, sL))
B('s_lshr_b32 s%d, s%d, 3' % (sG, sL))
B('s_mul_i32 s%d, s%d, %d' % (sPB, sL, PBLK))
vOOB = V.get(1, 'l')
vKW = V.get(1)
vQ = V.get(1, 'l')
vC8 = V.get(1, 'l')
B('v_lshrrev_b32 %s, 2, %s' % (v(vQ), v(vLane)))
B('v_and_b32 %s, 3, %s' % (v(vC8), v(vLane)))
B('s_lshl_b32 s%d, s%d, 5' % (sT[0], sW))
B('v_add_u32 %s, s%d, %s' % (v(vKW), sT[0], v(vKD)))
B('v_mov_b32 %s, %d' % (v(vOOB), OOB))
B('s_cmp_lt_u32 s%d, 21' % sIDX)
B('s_cselect_b32 s%d, 1, 0' % sITEM)
B('s_mul_i32 s%d, s%d, 3072' % (sRING, sW))
B('s_lshr_b32 s%d, s%d, 6' % (sT[0], sL))
B('s_lshl_b32 s%d, s%d, 3' % (sT[0], sT[0]))
B('s_lshr_b32 s%d, s%d, 2' % (sT[1], sIDX))
B('s_add_u32 s%d, s%d, s%d' % (sG1, sT[0], sT[1]))
B('s_lshr_b32 s%d, s%d, 3' % (sT[0], sL))
B('s_and_b32 s%d, s%d, 4' % (sT[0], sT[0]))
B('s_and_b32 s%d, s%d, 3' % (sT[1], sIDX))
B('s_add_u32 s%d, s%d, s%d' % (sJ1, sT[0], sT[1]))
if not OPT.get('pair', 1):
    B('s_mov_b32 s%d, s%d' % (sG1, sG))
    B('s_mov_b32 s%d, s%d' % (sJ1, sJ))
sLINE = sPG
B('s_lshl_b32 s%d, s%d, 7' % (sT[0], sTAU))
B('s_add_u32 s%d, s%d, %d' % (sLINE, sT[0], WS_MODX))
vONES = V.get(4, 'l')
for i in range(4):
    B('v_mov_b32 %s, 0' % v(vONES + i))
stamp('crit_iss', lvl=2)
A.l += interleave(B, XL)
stamp('x_iss', lvl=2)
if OPT.get('warmmod', 1):
    A('s_lshl_b32 s%d, s%d, 5' % (sT[0], sW))
    A('s_add_u32 s%d, s%d, s%d' % (sT[0], sT[0], sIDX))
    lb = opt('s_cmp_ge_u32 s%d, 20' % sT[0])
    A('s_mov_b64 exec, 0xff')
    A('buffer_store_dwordx4 %s, %s, %s, s%d offen sc1' % (v(vONES, 4), v(vL16), srd(sWS), sLINE), tag='wmod')
    A('s_mov_b64 exec, -1')
    opt_end(lb)

vA8, vA8i = V.get(4), V.get(4)
B = Asm()
t = V.get(8)
B('v_and_b32 %s, 4, %s' % (v(t), v(vLane)))
B('v_bfe_u32 %s, %s, 3, 1' % (v(t + 1), v(vLane)))
B('v_lshl_add_u32 %s, %s, 1, %s' % (v(t), v(t + 1), v(t)))
B('v_bfe_u32 %s, %s, 1, 1' % (v(t + 1), v(vLane)))
B('v_add_u32 %s, %s, %s' % (v(t), v(t), v(t + 1)))
B('v_and_b32 %s, 1, %s' % (v(t + 1), v(vLane)))
B('v_lshlrev_b32 %s, 9, %s' % (v(t + 1), v(t + 1)))
B('v_lshl_add_u32 %s, %s, 10, s%d' % (v(t + 2), v(vH), sL))
B('v_mad_u32_u24 %s, %s, %s, %s' % (v(t + 2), v(t), v(t + 2), v(t + 1)))
B('v_lshlrev_b32 %s, 8, %s' % (v(t + 3), v(t)))
B('v_add_u32 %s, s%d, %s' % (v(t + 5), sL, v(t + 3)))
B('v_lshlrev_b32 %s, 2, %s' % (v(t + 4), v(vH)))
B('v_mul_u32_u24 %s, %s, %s' % (v(t + 4), v(t + 4), v(t + 5)))
B('v_sub_u32 %s, %s, %s' % (v(t + 4), v(t + 4), v(t + 1)))
for q in range(4):
    for ang, step, dst, neg in ((t + 2, t + 3, vA8, ''), (t + 4, t + 5, vA8i, '-')):
        B('v_and_b32 %s, 2047, %s' % (v(t + 6), v(ang)))
        B('v_cvt_f32_u32 %s, %s' % (v(t + 6), v(t + 6)))
        B('v_mul_f32 %s, 0x3a000000, %s' % (v(t + 6), v(t + 6)))
        B('v_sin_f32 %s, %s' % (v(t + 7), v(t + 6)))
        B('v_cos_f32 %s, %s' % (v(t + 6), v(t + 6)))
        if q < 3:
            B('v_add_u32 %s, %s, %s' % (v(ang), v(ang), v(step)))
        sc = '0x5f800000' if neg else '0x1f800000'
        B('v_mul_f32 %s, %s, %s' % (v(t + 7), sc, v(t + 7)))
        B('v_mul_f32 %s, %s, %s' % (v(t + 6), sc, v(t + 6)))
        B('v_cvt_pk_bf16_f32 %s, %s, %s%s' % (v(dst + q), v(t + 6), neg, v(t + 7)))
tTRIG = t
TRIG = B
B = Asm()
B('s_cmp_ge_u32 s%d, 2' % sW)
B('s_cselect_b32 s%d, s%d, s%d' % (sWF_, sWIp, sWRp))
B('s_cselect_b32 s%d, s%d, s%d' % (sWF_ + 1, sWIp + 1, sWRp + 1))
B('s_lshl_b32 s%d, s%d, 13' % (sT[0], sW))
B('s_add_u32 s%d, s%d, (L_tab-L_pc)' % (sT[1], sT[0]))
B('v_add_u32 %s, s%d, %s' % (v(vt + 2), sT[1], v(vL16)))
B('v_add_co_u32 %s, vcc, s6, %s' % (v(vPC), v(vt + 2)))
B('v_addc_co_u32 %s, vcc, 0, %s, vcc' % (v(vPC + 1), v(vPC + 1)))
vTch = V.get(2, 'mh', 1)
B('s_lshr_b32 s%d, s%d, 5' % (sT[0], sL))
B('s_mul_i32 s%d, s%d, 642' % (sT[0], sT[0]))
B('s_and_b32 s%d, s%d, 1' % (sT[1], sW))
B('s_lshl_b32 s%d, s%d, 1' % (sT[2], sIDX))
B('s_add_u32 s%d, s%d, s%d' % (sT[1], sT[1], sT[2]))
B('s_mul_i32 s%d, s%d, %d' % (sT[1], sT[1], 4 * 5136))
B('s_add_u32 s%d, s%d, s%d' % (sT[0], sT[0], sT[1]))
B('s_and_b32 s%d, s%d, -4' % (sT[0], sT[0]))
B('v_bfe_u32 %s, %s, 3, 2' % (v(vt), v(vLane)))
B('v_and_b32 %s, 7, %s' % (v(vt + 1), v(vLane)))
B('v_min_u32 %s, 5, %s' % (v(vt + 1), v(vt + 1)))
B('v_mul_u32_u24 %s, 5136, %s' % (v(vt), v(vt)))
B('v_lshl_add_u32 %s, %s, 7, s%d' % (v(vt + 1), v(vt + 1), sT[0]))
B('v_add_u32 %s, %s, %s' % (v(vTch), v(vt), v(vt + 1)))
B('s_lshr_b32 s%d, s%d, 6' % (sT[0], sL))
B('s_lshl_b32 s%d, s%d, 5' % (sT[0], sT[0]))
B('s_add_u32 s%d, s%d, s%d' % (sT[0], sT[0], sIDX))
B('s_lshl_b32 s%d, s%d, 2' % (sT[0], sT[0]))
B('s_add_u32 s%d, s%d, s%d' % (sT[0], sT[0], sW))
B('s_mul_i32 s%d, s%d, 15' % (sT[0], sT[0]))
B('v_min_u32 %s, 14, %s' % (v(vt), v(vLane)))
B('v_add_u32 %s, s%d, %s' % (v(vt), sT[0], v(vt)))
B('v_mul_u32_u24 %s, 43691, %s' % (v(vt + 1), v(vt)))
B('v_lshrrev_b32 %s, 19, %s' % (v(vt + 1), v(vt + 1)))
B('v_mul_u32_u24 %s, 12, %s' % (v(vt + 1), v(vt + 1)))
B('s_bfe_u32 s%d, s%d, 0x10005' % (sT[0], sL))
B('s_mul_i32 s%d, s%d, 12' % (sT[0], sT[0]))
B('v_add3_u32 %s, %s, %s, s%d' % (v(vt), v(vt), v(vt + 1), sT[0]))
B('v_lshlrev_b32 %s, 7, %s' % (v(vTch + 1), v(vt)))
A.add(B)
CD = Asm()
for hlf in range(2):
    g = Asm()
    if hlf == 1:
        g('v_add_co_u32 %s, vcc, 4096, %s' % (v(vPC), v(vPC)))
    g('s_lshl_b32 s%d, s%d, 13' % (sBG[0], sW))
    g('s_add_u32 m0, s%d, %d' % (sBG[0], L_CONST + 4096 * hlf))
    if hlf == 1:
        g('v_addc_co_u32 %s, vcc, 0, %s, vcc' % (v(vPC + 1), v(vPC + 1)))
    grp(CD, g)
    for i in range(4):
        CD('global_load_lds_dwordx4 %s, off offset:%d' % (v(vPC, 2), 1024 * i), tag='const')

CD0 = CD
LATE = Asm()
if OPT.get('late', 0):
    CD = LATE
if OPT.get('warmp', 1):
    g = Asm()
    g('s_mul_i32 s%d, s%d, 2816' % (sBG[1], sW))
    g('s_add_u32 s%d, s%d, s%d' % (sBG[1], sBG[1], sPB))
    g('s_add_u32 s%d, s%d, %d' % (sBG[1], sBG[1], WS_P))
    grp(CD, g)
    for i in range(3):
        g = Asm()
        if i == 2:
            g('s_mov_b32 exec_hi, 0xffff')
        g('buffer_store_dwordx4 %s, %s, %s, s%d offen offset:%d sc1' % (v(vONES, 4), v(vL16), srd(sWS), sBG[1], 1024 * i), tag='warmp')
        if i == 2:
            g('s_mov_b64 exec, -1')
        grp(CD, g)
CD('buffer_load_dword %s, %s, %s, 0 offen' % (v(vJunk + 1), v(vTch), srd(sWF_)), tag='junk')
if not OPT.get('now1'):
    CD('buffer_load_dword %s, %s, %s, 0 offen' % (v(vJunk + 2), v(vTch + 1), srd(sW1)), tag='junk')
CD = CD0
B = Asm()
vMG = V.get(1)
B('v_lshrrev_b32 %s, 3, %s' % (v(vMG), v(vLane)))
B('s_lshl_b32 s%d, s%d, 11' % (sT[0], sW))
B('v_lshl_add_u32 %s, %s, 8, s%d' % (v(vMG), v(vMG), sT[0]))
B('v_and_b32 %s, 7, %s' % (v(vt), v(vLane)))
B('v_lshl_add_u32 %s, %s, 4, %s' % (v(vMG), v(vt), v(vMG)))
vMA = V.get(6, 'mh', 1)
for i in range(3):
    g = Asm()
    g('s_add_u32 s%d, s%d, %d' % (sT[0], sW, 4 * i))
    g('s_mul_i32 s%d, s%d, 52' % (sT[1], sT[0]))
    g('s_lshr_b32 s%d, s%d, 8' % (sT[1], sT[1]))
    g('s_mul_i32 s%d, s%d, 5' % (sT[2], sT[1]))
    g('s_sub_u32 s%d, s%d, s%d' % (sT[2], sT[0], sT[2]))
    g('s_lshl_b32 s%d, s%d, 2' % (sT[3], sT[2]))
    g('s_cmp_lt_u32 s%d, 4' % sT[2])
    g('s_cselect_b32 s%d, s%d, 1024' % (sT[3], sT[3]))
    g('s_cselect_b32 s%d, 4, 2' % sT[2])
    g('s_mul_i32 s%d, s%d, 2560' % (sT[0], sT[1]))
    g('s_add_u32 s%d, s%d, s%d' % (sT[3], sT[3], sT[0]))
    g('v_lshlrev_b32 %s, s%d, %s' % (v(vMA + i), sT[2], v(vLane)))
    g('v_add_u32 %s, s%d, %s' % (v(vMA + i), sT[3], v(vMA + i)))
    g('s_cmp_eq_u32 s%d, 1' % sT[1])
    g('s_cselect_b32 s%d, 1.0, 0' % (sADD + i))
    grp(B, g)
A.add(B)
A('s_mul_i32 s%d, s%d, 0x9e3779b1' % (sT[0], sNONCE))
A('s_add_u32 s%d, s%d, 0x7f4a7c15' % (sT[0], sT[0]))
A('s_lshr_b32 s%d, s%d, 15' % (sT[1], sT[0]))
A('s_xor_b32 s%d, s%d, s%d' % (sT[0], sT[0], sT[1]))
A('s_mul_i32 s%d, s%d, 0x85ebca6b' % (sT[0], sT[0]))
A('s_lshr_b32 s%d, s%d, 13' % (sT[1], sT[0]))
A('s_xor_b32 s%d, s%d, s%d' % (sT[0], sT[0], sT[1]))
A('s_mov_b32 s%d, 0x55555555' % sT[5])
A('s_or_b32 s%d, s%d, 16' % (sT[0], sT[0]))
A('s_lshr_b32 s%d, s%d, 1' % (sT[1], sNONCE))
A('s_and_b32 s%d, s%d, s%d' % (sT[1], sT[1], sT[5]))
A('s_orn2_b32 s%d, s%d, s%d' % (sT[2], sNONCE, sT[1]))
A('s_and_b32 s%d, s%d, s%d' % (sT[2], sT[2], sT[5]))
A('s_and_b32 s%d, s%d, s%d' % (sT[3], sT[0], sT[1]))
A('s_xor_b32 s%d, s%d, s%d' % (sT[3], sT[3], sT[2]))
A('s_andn2_b32 s%d, s%d, s%d' % (sT[4], sT[2], sT[0]))
A('s_xor_b32 s%d, s%d, s%d' % (sT[4], sT[4], sT[1]))
A('s_lshl1_add_u32 s%d, s%d, s%d' % (sNONCE, sT[3], sT[4]))
A('s_lshl1_add_u32 s%d, s%d, s%d' % (sT[1], sT[1], sT[2]))
A('s_and_b32 s%d, s%d, 3' % (sT[1], sT[1]))
A('s_lshr_b32 s%d, s%d, 2' % (sT[2], sNONCE))
A('s_xor_b32 s%d, s%d, s%d' % (sT[2], sT[2], sNONCE))
A('s_lshl_b32 s%d, s%d, 2' % (sT[2], sT[2]))
A('s_cselect_b32 s%d, 0, s%d' % (sT[1], sT[1]))
A('s_xor_b32 s%d, s%d, s%d' % (sNONCE, sNONCE, sT[1]))
A('s_lshr_b32 s%d, s%d, 1' % (sT[1], sNONCE))
A('s_xor_b32 s%d, s%d, s%d' % (sT[2], sT[1], sNONCE))
A('s_and_b32 s%d, s%d, s%d' % (sT[1], sT[1], sT[5]))
A('s_and_b32 s%d, s%d, s%d' % (sT[2], sT[2], sT[5]))
A('s_lshl1_add_u32 s%d, s%d, s%d' % (sTAGZ, sT[2], sT[1]))
A('s_mov_b32 s%d, 0x40004000' % sTM)
stamp('pre_wm', lvl=3)


def silu(asm, x, t, n):
    for i in range(n):
        asm('v_mul_f32 %s, 0xbfb8aa3b, %s' % (v(t + i), v(x + i)))
    for i in range(n):
        asm('v_exp_f32 %s, %s' % (v(t + i), v(t + i)))
    for i in range(n):
        asm('v_add_f32 %s, 1.0, %s' % (v(t + i), v(t + i)))
    for i in range(n):
        asm('v_rcp_f32 %s, %s' % (v(t + i), v(t + i)))
    for i in range(n):
        asm('v_mul_f32 %s, %s, %s' % (v(x + i), v(x + i), v(t + i)))


lb = opt('s_cmp_ge_u32 s%d, 20' % sIDX)
t = V.get(8)
A('s_lshl_b32 s%d, s%d, 8' % (sT[0], sW))
A('v_add_u32 %s, s%d, %s' % (v(t + 4), sT[0], v(vL4)))
A('s_add_u32 s%d, s%d, %d' % (sT[0], sT[0], L_SILU))
A('v_lshl_add_u32 %s, %s, 3, s%d' % (v(t + 5), v(vG), sT[0]))
A('s_lshl_b32 s%d, s%d, 10' % (sT[0], sW))
A('v_add_u32 %s, s%d, %s' % (v(t + 6), sT[0], v(vL8)))
A('s_lshl_b32 s%d, s%d, 6' % (sT[0], sW))
A('v_lshl_add_u32 %s, %s, 4, s%d' % (v(t + 7), v(vG), sT[0]))
A('v_lshlrev_b32 %s, 16, %s' % (v(t), v(vC)))
A('v_and_b32 %s, s%d, %s' % (v(t + 1), sMASK, v(vC)))
silu(A, t, t + 2, 2)
A('v_cvt_pk_bf16_f32 %s, %s, %s' % (v(t), v(t), v(t + 1)))
A('ds_write_b32 %s, %s offset:%d' % (v(t + 4), v(t), L_SILU))
vSB, f, d = V.get(12), V.get(12), V.get(4)
for i in range(3):
    A('ds_read2_b64 %s, %s offset0:%d offset1:%d' % (v(vSB + 4 * i, 4), v(t + 5), 8 * i, 8 * i + 4))
stamp('silu', lvl=2)
A.wait_tag('wm')
stamp('wm_land', lvl=2)
for i in range(3):
    for rd in range(2):
        A('ds_read_b64_tr_b16 %s, %s offset:%d' % (v(f + 4 * i + 2 * rd, 2), v(t + 6), L_EX + 4096 * i + 512 * rd))
A('%s %s, %s, %s, 0' % (MF16, v(d, 4), v(f, 4), v(vSB, 4)))
A('%s %s, %s, %s, %s' % (MF16, v(d, 4), v(f + 4, 4), v(vSB + 4, 4), v(d, 4)))
lb2 = opt('s_cmp_ge_u32 s%d, 2' % sW)
A('%s %s, %s, %s, %s' % (MF16, v(d, 4), v(f + 8, 4), v(vSB + 8, 4), v(d, 4)))
opt_end(lb2)
A('ds_write_b128 %s, %s offset:%d' % (v(t + 7), v(d, 4), L_RED))
V.put(t, 8)
V.put(vSB, 12)
V.put(f, 12)
V.put(d, 4)
V.put(vC)
barrier()
lb0 = lb
lb = opt('s_cmp_lg_u32 s%d, 0' % sW)
p = V.get(8)
for i in range(4):
    A('ds_read_b64 %s, %s offset:%d' % (v(p + 2 * i, 2), v(vL8), L_RED + 64 * i))
A.wait_tag('wmod')
A('s_mov_b64 exec, 0xff')
A('v_pk_add_f32 %s, %s, %s' % (v(p, 2), v(p, 2), v(p + 2, 2)))
A('v_pk_add_f32 %s, %s, %s' % (v(p + 4, 2), v(p + 4, 2), v(p + 6, 2)))
A('v_add_f32 %s, %s, %s' % (v(p + 2), v(p + 1), v(p + 5)))
A('v_add_f32 %s, %s, %s' % (v(p), v(p), v(p + 4)))
A('v_mov_b32 %s, s%d' % (v(p + 1), sNONCE))
A('v_mov_b32 %s, s%d' % (v(p + 3), sNONCE))
A('buffer_store_dwordx4 %s, %s, %s, s%d offen sc1' % (v(p, 4), v(vL16), srd(sWS), sLINE), tag='pub')
A('s_mov_b64 exec, -1')
A('s_nop 1')
V.put(p, 8)
opt_end(lb)
opt_end(lb0)
stamp('pub0', lvl=3)
A.l += interleave(TRIG, CD)
stamp('trig', lvl=2)
V.put(tTRIG, 8)


B = Asm()
vXF = [V.get(10, 'l'), V.get(10, 'l')]
for r in range(2):
    for j in range(5):
        lo, hi = (j, 4 + j) if j < 4 else (8, 9)
        B('v_lshlrev_b32 %s, 16, %s' % (v(vXF[r] + lo), v(vXR + 5 * r + j)))
        B('v_and_b32 %s, s%d, %s' % (v(vXF[r] + hi), sMASK, v(vXR + 5 * r + j)))
V.put(vXR, 10)
ln_stats(B, vXF)
vNn = [V.get(10), V.get(10)]
ln_apply(B, vNn, vXF)
A.add(B)
V.put(vPC, 2)

vW1 = V.get(3, 'l', 1)
vW1r = V.get(1, 'l')


def w1_addr(asm, late):
    asm('s_mul_i32 s%d, s%d, 384' % (sT[0], sJ1))
    asm('s_mul_i32 s%d, s%d, 96' % (sT[1], sW))
    asm('s_add_u32 s%d, s%d, s%d' % (sT[0], sT[0], sT[1]))
    for i in range(3):
        asm('v_add_u32 %s, %d, %s' % (v(vt), 64 * i, v(vLane)))
        asm('v_mul_u32_u24 %s, 10923, %s' % (v(vt + 1), v(vt)))
        asm('v_lshrrev_b32 %s, 16, %s' % (v(vt + 1), v(vt + 1)))
        asm('v_mul_u32_u24 %s, 6, %s' % (v(vt + 2), v(vt + 1)))
        asm('v_sub_u32 %s, %s, %s' % (v(vt), v(vt), v(vt + 2)))
        asm('v_lshl_add_u32 %s, %s, 4, s%d' % (v(vt), v(vt), sT[0]))
        if not late:
            asm('v_lshrrev_b32 %s, 4, %s' % (v(vt + 2), v(vt + 1)))
            asm('v_bfe_u32 %s, %s, 1, 1' % (v(vt + 3), v(vt + 1)))
            asm('v_lshl_add_u32 %s, %s, 1, %s' % (v(vt + 2), v(vt + 2), v(vt + 3)))
            asm('v_bfe_u32 %s, %s, 2, 2' % (v(vt + 3), v(vt + 1)))
            asm('v_lshl_add_u32 %s, %s, 6, %s' % (v(vt + 2), v(vt + 2), v(vt + 3)))
            asm('v_and_b32 %s, 1, %s' % (v(vt + 3), v(vt + 1)))
            asm('v_lshl_add_u32 %s, %s, 1, %s' % (v(vt + 2), v(vt + 2), v(vt + 3)))
        else:
            asm('v_bfe_u32 %s, %s, 2, 2' % (v(vt + 2), v(vt + 1)))
            asm('v_lshrrev_b32 %s, 4, %s' % (v(vt + 3), v(vt + 1)))
            asm('v_lshl_add_u32 %s, %s, 1, %s' % (v(vt + 2), v(vt + 2), v(vt + 3)))
            asm('v_and_b32 %s, 3, %s' % (v(vt + 3), v(vt + 1)))
            asm('v_lshl_add_u32 %s, %s, 2, %s' % (v(vt + 2), v(vt + 2), v(vt + 3)))
        asm('v_mul_u32_u24 %s, 3072, %s' % (v(vt + 2), v(vt + 2)))
        if i:
            asm('v_subrev_u32 %s, %d, %s' % (v(vt + 2), 1024 * i, v(vt + 2)))
        asm('v_add_u32 %s, %s, %s' % (v(vW1 + i), v(vt), v(vt + 2)))


def slot(q):
    return q % 8 if q < 16 else q - 12


def w1_dma(asm, q0, q1):
    if OPT.get('now1'):
        return
    for q in range(q0, q1):
        row = 8 * q if q < 16 else 512 + 32 * (q - 16)
        for i in range(3):
            g = Asm()
            g('s_add_u32 m0, s%d, %d' % (sRING, L_RING + 12288 * slot(q)))
            if i == 0:
                g('s_mov_b32 s%d, %d' % (sBG[0], row * 3072))
            g('buffer_load_dwordx4 %s, %s, s%d offen offset:%d lds' % (v(vW1 + i), srd(sW1), sBG[0], 1024 * i), tag='w1_%d' % q)
            if i and OPT.get('m0once', 1):
                g.l.pop(0)
            grp(asm, g)


def w1_drain(asm, q0, q1):
    asm.wait_tag(['w1_%d' % q for q in range(q0, q1)])
    hi = None
    for q in range(q0, q1):
        s = slot(q)
        if hi != s // 4:
            hi = s // 4
            asm('v_add_u32 %s, %d, %s' % (v(vt), L_RING + 49152 * hi, v(vW1r)))
        for c in range(3):
            for rd in range(2):
                asm('ds_read_b64_tr_b16 %s, %s offset:%d' % (a((3 * q + c) * 4 + 2 * rd, 2), v(vt), 12288 * (s % 4) + 1536 * rd + 32 * c))
    asm.wait_lds()


w1_addr(A, False)
A('v_mul_u32_u24 %s, 96, %s' % (v(vW1r), v(vQ)))
A('v_lshl_add_u32 %s, %s, 3, %s' % (v(vW1r), v(vC8), v(vW1r)))
A('v_add_u32 %s, s%d, %s' % (v(vW1r), sRING, v(vW1r)))
vW2s = V.get(1)
A('s_min_u32 s%d, s%d, 239' % (sT[0], sL))
A('s_mul_i32 s%d, s%d, 205' % (sT[1], sT[0]))
A('s_lshr_b32 s%d, s%d, 10' % (sT[1], sT[1]))
A('s_mul_i32 s%d, s%d, 5' % (sT[2], sT[1]))
A('s_sub_u32 s%d, s%d, s%d' % (sT[0], sT[0], sT[2]))
A('s_lshl_b32 s%d, s%d, 2' % (sT[0], sT[0]))
A('s_add_u32 s%d, s%d, s%d' % (sT[0], sT[0], sW))
A('s_mul_i32 s%d, s%d, 43' % (sT[2], sT[1]))
A('s_lshr_b32 s%d, s%d, 8' % (sT[2], sT[2]))
A('s_mul_i32 s%d, s%d, 6' % (sT[3], sT[2]))
A('s_sub_u32 s%d, s%d, s%d' % (sT[3], sT[1], sT[3]))
A('s_mul_i32 s%d, s%d, 192' % (sT[2], sT[2]))
A('s_mul_i32 s%d, s%d, 48' % (sT[4], sT[3]))
A('s_mul_i32 s%d, s%d, 96' % (sT[5], sT[3]))
A('s_sub_u32 s%d, s%d, 352' % (sT[5], sT[5]))
A('s_cmp_lt_u32 s%d, 4' % sT[3])
A('s_cselect_b32 s%d, s%d, s%d' % (sT[4], sT[4], sT[5]))
A('s_cselect_b32 s%d, 16, 8' % sT[5])
A('s_cselect_b32 s%d, 0, 40' % sT[3])
A('s_add_u32 s%d, s%d, s%d' % (sT[2], sT[2], sT[4]))
A('v_mul_u32_u24 %s, s%d, %s' % (v(vW2s), sT[3], v(vH)))
A('v_add3_u32 %s, %s, %s, s%d' % (v(vW2s), v(vW2s), v(vQ), sT[2]))
A('v_mul_u32_u24 %s, 1280, %s' % (v(vW2s), v(vW2s)))
A('v_lshl_add_u32 %s, %s, 4, %s' % (v(vW2s), v(vC8), v(vW2s)))
sW2S = [3, sVER]
A('s_lshl_b32 s%d, s%d, 6' % (sW2S[0], sT[0]))
A('s_mul_i32 s%d, s%d, 1280' % (sT[5], sT[5]))
A('s_add_u32 s%d, s%d, s%d' % (sW2S[1], sT[5], sW2S[0]))
sW2D = [6, 7]
A('s_lshr_b32 s%d, s%d, 1' % (sT[2], sT[0]))
A('s_mul_i32 s%d, s%d, 240' % (sT[2], sT[2]))
A('s_and_b32 s%d, s%d, 1' % (sT[3], sT[0]))
A('s_lshl_b32 s%d, s%d, 1' % (sT[3], sT[3]))
A('s_add_u32 s%d, s%d, s%d' % (sT[2], sT[2], sT[3]))
A('s_mul_i32 s%d, s%d, 480' % (sT[3], sT[0]))
A('s_sub_u32 s%d, s%d, %d' % (sT[3], sT[3], 480 * 16 - 4))
A('s_cmp_lt_u32 s%d, 16' % sT[0])
A('s_cselect_b32 s%d, s%d, s%d' % (sT[2], sT[2], sT[3]))
A('s_cselect_b32 s%d, 1, 240' % sT[3])
A('s_mul_i32 s%d, s%d, 5' % (sT[1], sT[1]))
A('s_add_u32 s%d, s%d, s%d' % (sT[2], sT[2], sT[1]))
A('s_add_u32 s%d, s%d, s%d' % (sT[3], sT[3], sT[2]))
for k in range(2):
    A('s_lshl_b32 s%d, s%d, 10' % (sT[2 + k], sT[2 + k]))
    A('s_add_u32 s%d, s%d, %d' % (sW2D[k], sT[2 + k], WS_W2F))
vT64 = V.get(1)
A('v_lshlrev_b32 %s, 6, %s' % (v(vT64), v(vQ)))
A('v_lshl_add_u32 %s, %s, 3, %s' % (v(vT64), v(vC8), v(vT64)))


stamp('ln1', lvl=2)
A.wait_tag('pub')
stamp('pub_ack', lvl=2)
A.wait_tag('const')
stamp('const', lvl=2)
if OPT.get('sleep2'):
    lb = opt('s_cmp_lt_u32 s%d, 20' % sIDX)
    A('s_sleep %d' % OPT['sleep2'])
    opt_end(lb)
barrier()
stamp('b0b', lvl=3)


def mod_gather_loads(asm, d, i0, i1):
    for i in range(i0, i1):
        asm('s_mov_b32 s%d, %d' % (sT[5], WS_MODX + 8192 * i))
        for kh in range(2):
            asm('buffer_load_dwordx4 %s, %s, %s, s%d offen offset:%d sc1' % (v(d + 8 * i + 4 * kh, 4), v(vMG), srd(sWS), sT[5], 128 * kh))


vMD = V.get(24)
mod_gather_loads(A, vMD, 0, 2)
lb = opt('s_cmp_ge_u32 s%d, 2' % sW)
mod_gather_loads(A, vMD, 2, 3)
opt_end(lb)
K, KA = {}, {}
B = Asm()
na, nb = 0, 0
ca_ = V.get(1)
B('v_add_u32 %s, %d, %s' % (v(ca_), L_CONST, v(vL16)))
for i, n in enumerate(TN):
    if n.startswith('TW'):
        K[n] = V.get(4, 'l' if n.startswith('TW3') else 'mh')
        B('ds_read_b128 %s, %s offset:%d' % (v(K[n], 4), v(ca_), 1024 * i))
    else:
        if i < 10:
            KA[n] = a(96 + 4 * na, 4)
            na += 1
        else:
            KA[n] = a(192 + 4 * nb, 4)
            nb += 1
        B('ds_read_b128 %s, %s offset:%d' % (KA[n], v(ca_), 1024 * i))
assert 192 + 4 * nb <= 256
vAF = V.get(16)
for i in range(4):
    B('v_mov_b32 %s, 0' % v(vAF + 4 * i + 3))
vEXlo, vEXhi = [V.get(1), V.get(1)], [V.get(1), V.get(1)]
vEXa, vEXb = V.get(1, 'l'), V.get(1, 'l')
B('v_mul_u32_u24 %s, 84, %s' % (v(vEXa), v(vC8)))
B('v_lshrrev_b32 %s, 2, %s' % (v(vt), v(vN)))
B('v_add_u32 %s, %s, %s' % (v(vEXa), v(vEXa), v(vt)))
B('v_sub_u32 %s, 0, %s' % (v(vt), v(vN)))
B('v_and_b32 %s, 3, %s' % (v(vt), v(vt)))
B('v_mul_u32_u24 %s, 84, %s' % (v(vEXb), v(vt)))
B('v_add_u32 %s, 3, %s' % (v(vt), v(vN)))
B('v_lshrrev_b32 %s, 2, %s' % (v(vt), v(vt)))
B('v_sub_u32 %s, %s, %s' % (v(vEXb), v(vEXb), v(vt)))


def ex_addr(asm, lo, hi, gs, hb):
    asm('v_mul_u32_u24 %s, %d, %s' % (v(vt), gs, v(vG)))
    asm('s_add_u32 s%d, s%d, %d' % (sT[0], sRING, L_EX))
    asm('v_add_u32 %s, %s, %s' % (v(vt + 1), v(vEXa), v(vt)))
    asm('v_lshl_add_u32 %s, %s, 2, s%d' % (v(lo[0]), v(vt + 1), sT[0]))
    asm('v_add_u32 %s, 1536, %s' % (v(lo[1]), v(lo[0])))
    asm('s_add_u32 s%d, s%d, %d' % (sT[0], sT[0], 4 * hb))
    asm('v_sub_u32 %s, %s, %s' % (v(vt + 1), v(vEXb), v(vt)))
    asm('v_lshl_add_u32 %s, %s, 2, s%d' % (v(hi[0]), v(vt + 1), sT[0]))
    asm('v_add_u32 %s, 1536, %s' % (v(hi[1]), v(hi[0])))


ex_addr(B, vEXlo, vEXhi, 10, 35)
vEX8 = V.get(4, 'mh', 1)
B('v_mul_u32_u24 %s, 6144, %s' % (v(vt), v(vH)))
B('v_cmp_gt_u32 vcc, 84, %s' % v(vKW))
B('v_add_u32 %s, %d, %s' % (v(vt + 1), 336 - 84, v(vKW)))
for c in range(4):
    B('v_add_u32 %s, %d, %s' % (v(vt + 2), 84 * c, v(vKW)))
    B('v_cndmask_b32 %s, %s, %s, vcc' % (v(vt + 2), v(vt + 1), v(vt + 2)))
    B('v_lshl_add_u32 %s, %s, 2, %s' % (v(vEX8 + c), v(vt + 2), v(vt)))
EXO = L_EX // 256
vP = V.get(1)
B('v_mul_u32_u24 %s, 5632, %s' % (v(vP), v(vH)))
B('v_cmp_gt_u32 vcc, 88, %s' % v(vKW))
B('v_lshl_add_u32 %s, %s, 4, %s' % (v(vP), v(vKW), v(vP)))
B('v_cndmask_b32 %s, %s, %s, vcc' % (v(vP), v(vOOB), v(vP)))
vTG, vTZ = V.get(4, 'mh', 1), V.get(4, 'mh', 1)


def tag_masks(asm, dst, sreg):
    asm('v_lshlrev_b32 %s, 3, %s' % (v(vt), v(vC8)))
    asm('v_lshrrev_b32_e64 %s, %s, s%d' % (v(vt), v(vt), sreg))
    for d in range(4):
        asm('v_bfe_u32 %s, %s, %d, 1' % (v(vt + 1), v(vt), 2 * d))
        asm('v_bfe_u32 %s, %s, %d, 1' % (v(vt + 2), v(vt), 2 * d + 1))
        asm('v_lshl_or_b32 %s, %s, 16, %s' % (v(vt + 1), v(vt + 2), v(vt + 1)))
        asm('v_lshlrev_b32 %s, 14, %s' % (v(dst + d), v(vt + 1)))


tag_masks(B, vTG, sNONCE)
vWD = V.get(1)
g = Asm()
g('s_lshr_b32 s%d, s%d, 5' % (sT[0], sL))
g('s_mul_i32 s%d, s%d, 642' % (sT[0], sT[0]))
g('s_lshl_b32 s%d, s%d, 5' % (sT[1], sIDX))
g('s_min_u32 s%d, s%d, 610' % (sT[1], sT[1]))
g('s_add_u32 s%d, s%d, s%d' % (sT[0], sT[0], sT[1]))
g('s_and_b32 s%d, s%d, 1' % (sT[1], sW))
g('s_mul_i32 s%d, s%d, %d' % (sT[1], sT[1], 128 * 5136))
g('s_add_u32 s%d, s%d, s%d' % (sT[0], sT[0], sT[1]))
g('v_lshrrev_b32 %s, 1, %s' % (v(vWD), v(vLane)))
g('v_mul_u32_u24 %s, 5136, %s' % (v(vWD), v(vWD)))
g('v_and_b32 %s, 1, %s' % (v(vt), v(vLane)))
g('v_lshl_add_u32 %s, %s, 4, s%d' % (v(vt), v(vt), sT[0]))
g('v_add_u32 %s, %s, %s' % (v(vWD), v(vWD), v(vt)))
B.add(g)
M = LATE
NQ0 = OPT.get('nq0', 1)
w1_dma(M, 0, NQ0)
A.l += interleave(B, M)
stamp('s0_wait', lvl=3)
V.put(ca_)
V.put(vTch, 2)


def mod_finish(i0, i1):
    verify(A, lambda c: mod_gather_loads(c, vMD, i0, i1), lambda c: check_tags(c, [vMD + 2 * k + 1 for k in range(4 * i0, 4 * i1)], tmp))
    for i in range(i0, i1):
        b = vMD + 8 * i
        A('v_add_f32 %s, %s, %s' % (v(b), v(b), v(b + 4)))
        A('v_add_f32 %s, %s, %s' % (v(b + 2), v(b + 2), v(b + 6)))
    for i in range(i0, i1):
        b = vMD + 8 * i
        A('v_cvt_pk_bf16_f32 %s, %s, %s' % (v(b), v(b), v(b + 2)))
    for i in range(i0, i1):
        b = vMD + 8 * i
        A('v_and_b32 %s, s%d, %s' % (v(b + 1), sMASK, v(b)))
        A('v_lshlrev_b32 %s, 16, %s' % (v(b), v(b)))
        A('v_add_f32 %s, s%d, %s' % (v(b + 1), sADD + i, v(b + 1)))
        A('v_add_f32 %s, s%d, %s' % (v(b), sADD + i, v(b)))
        A('ds_write2st64_b32 %s, %s, %s offset0:%d offset1:%d' % (v(vMA + i), v(b), v(b + 1), L_MOD // 256, L_MOD // 256 + 5))


mod_finish(0, 2)
lb = opt('s_cmp_ge_u32 s%d, 2' % sW)
mod_finish(2, 3)
opt_end(lb)
V.put(vMD, 24)
V.put(vMG)
barrier()
stamp('s0_done', lvl=3)
P = Asm()
vM0, vM1 = V.get(10), V.get(10)
read_mod(P, vM1, 1, vL16, vL4)
read_mod(P, vM0, 0, vL16, vL4)
for r in range(2):
    for p in range(5):
        P('v_pk_fma_f32 %s, %s, %s, %s' % (v(vNn[r] + 2 * p, 2), v(vNn[r] + 2 * p, 2), v(vM1 + 2 * p, 2), v(vM0 + 2 * p, 2)))
V.put(vM0, 10)
V.put(vM1, 10)
vD = V.get(32)
for r in range(2):
    for t_ in range(2):
        f = vAF + 8 * r + 4 * t_
        h = vNn[r]
        P('v_cvt_pk_bf16_f32 %s, %s, %s' % (v(f), v(h + 4 * t_), v(h + 4 * t_ + 1)))
        P('v_cvt_pk_bf16_f32 %s, %s, %s' % (v(f + 1), v(h + 4 * t_ + 2), v(h + 4 * t_ + 3)))
        P('v_cvt_pk_bf16_f32 %s, %s, %s' % (v(f + 2), v(h + 8 + t_), v(h + 8 + t_)))
    for t_ in range(2):
        f = vAF + 8 * r + 4 * t_
        d = vD + 16 * r + 8 * t_
        P('%s %s, %s, %s, 0' % (MF16, v(d, 4), v(f, 4), KA['C1c']))
        P('%s %s, %s, %s, 0' % (MF16, v(d + 4, 4), v(f, 4), KA['C1s']))
V.put(vNn[0], 10)
V.put(vNn[1], 10)
tt = V.get(8)
vB = V.get(16)
vE = V.get(8)
for r in range(2):
    for t_ in range(2):
        d = vD + 16 * r + 8 * t_
        cmul(P, d, d + 4, K['TW1c%d' % t_], K['TW1s%d' % t_], tt, tt + 4, -1)
        for i in range(4):
            P('v_cvt_pk_bf16_f32 %s, %s, %s' % (v(vB + 4 * t_ + i), v(tt + i), v(tt + 4 + i)))
        if t_ == 0:
            for mt in range(2):
                P('%s %s, %s, %s, 0' % (MF16, v(vE + 4 * mt, 4), KA['A2_%d0' % mt], v(vB, 4)))
        else:
            for i in range(4):
                P('v_cvt_pk_bf16_f32 %s, -%s, -%s' % (v(vB + 8 + i), v(tt + i), v(tt + 4 + i)))
            d = vD + 16 * r
            for mt in range(2):
                P('%s %s, %s, %s, %s' % (MF16, v(d + 4 * mt, 4), KA['A2_%d1' % mt], v(vB + 4, 4), v(vE + 4 * mt, 4)))
            for mt in range(2):
                P('%s %s, %s, %s, %s' % (MF16, v(d + 8 + 4 * mt, 4), KA['A2_%d1' % mt], v(vB + 8, 4), v(vE + 4 * mt, 4)))
for r in range(2):
    d = vD + 16 * r
    o = vAF + 8 * r
    for mt in range(2):
        for e in range(2):
            P('v_cvt_pk_bf16_f32 %s, %s, %s' % (v(o + 2 * mt + e), v(d + 4 * mt + 2 * e), v(d + 4 * mt + 2 * e + 1)))
        P('ds_write2_b32 %s, %s, %s offset0:%d offset1:%d' % (v(vEXlo[r]), v(o + 2 * mt), v(o + 2 * mt + 1), 40 * mt, 40 * mt + 5))
    for mt in range(2):
        for e in range(2):
            P('v_cvt_pk_bf16_f32 %s, %s, -%s' % (v(o + 4 + 2 * mt + e), v(d + 8 + 4 * mt + 2 * e), v(d + 8 + 4 * mt + 2 * e + 1)))
        P('ds_write2_b32 %s, %s, %s offset0:%d offset1:%d' % (v(vEXhi[r]), v(o + 4 + 2 * mt), v(o + 4 + 2 * mt + 1), 45 - 40 * mt, 40 - 40 * mt))
V.put(tt, 8)
V.put(vE, 8)
V.put(vD, 32)
for n in TN[:10]:
    if n in K:
        V.put(K[n], 4)
for x in vEXlo + vEXhi:
    V.put(x)
NQ1 = OPT.get('nq1', 2)


def wf_dma(asm):
    for i in range(4):
        g = Asm()
        g('s_lshl_b32 s%d, s%d, 12' % (sBG[1], sW))
        g('s_add_u32 m0, s%d, %d' % (sBG[1], L_GW + 1024 * i))
        g('s_mov_b32 s%d, %d' % (sBG[1], 32 * 5136 * i))
        g('buffer_load_dwordx4 %s, %s, s%d offen lds' % (v(vWD), srd(sWF_), sBG[1]), tag='wf')
        grp(asm, g)


M = Asm()
for k in range(2):
    g = Asm()
    g('s_add_u32 m0, s%d, %d' % (sRING, L_WRAW + 1024 * k))
    g('buffer_load_dwordx4 %s, %s, s%d offen lds' % (v(vW2s), srd(sW2), sW2S[k]), tag='w2raw')
    grp(M, g)
w1_dma(M, NQ0, NQ1)
A.l += interleave(P, M)
A.wait_tag('warmp')
barrier()
lb = opt('s_cmp_eq_u32 s%d, 3' % sW)
vD8 = [V.get(16) for _ in range(4)]
for c in range(4):
    A('ds_read2st64_b32 %s, %s offset0:%d offset1:%d' % (v(vB + 4 * c, 2), v(vEX8 + c), EXO, EXO + 6))
    A('ds_read2st64_b32 %s, %s offset0:%d offset1:%d' % (v(vB + 4 * c + 2, 2), v(vEX8 + c), EXO + 12, EXO + 18))
for c in range(4):
    A('%s %s, %s, %s, 0' % (MF32, v(vD8[c], 16), v(vA8, 4), v(vB + 4 * c, 4)))
A('s_add_u32 s%d, s%d, %d' % (sT[0], sPB, WS_P))
A('s_add_u32 s%d, s%d, %d' % (sT[1], sPB, WS_P + 2816))
for c in range(4):
    for q in range(4):
        A('v_cvt_pk_bf16_f32 %s, %s, %s' % (v(vAF + 4 * q + c), v(vD8[c] + 2 * q), v(vD8[c] + 2 * q + 1)))
    for q in range(4):
        A('v_bfi_b32 %s, s%d, %s, %s' % (v(vAF + 4 * q + c), sTM, v(vTG + c), v(vAF + 4 * q + c)))
        if c == 3:
            A('buffer_store_dwordx4 %s, %s, %s, s%d offen offset:%d sc1' % (v(vAF + 4 * q, 4), v(vP), srd(sWS), sT[q >> 1], 1408 * (q & 1)), tag='pst')
A('s_nop 1')
opt_end(lb)
for x in vD8:
    V.put(x, 16)
V.put(vB, 16)
V.put(vA8, 4)
stamp('p1_done')
tag_masks(A, vTZ, sTAGZ)
A.wait_tag('junk')
V.put(vJunk, 3)
V.put(vAF, 16)


def w2_format(asm):
    f = V.get(8)
    asm('s_add_u32 s%d, s%d, %d' % (sT[0], sRING, L_WRAW))
    asm('v_add_u32 %s, s%d, %s' % (v(vW2s), sT[0], v(vT64)))
    asm.wait_tag('w2raw')
    for tt_ in range(2):
        for rd in range(2):
            asm('ds_read_b64_tr_b16 %s, %s offset:%d' % (v(f + 4 * tt_ + 2 * rd, 2), v(vW2s), 1024 * rd + 32 * tt_))
    for tt_ in range(2):
        asm('buffer_store_dwordx4 %s, %s, %s, s%d offen sc1' % (v(f + 4 * tt_, 4), v(vL16), srd(sWS), sW2D[tt_]), tag='w2st')
    asm('s_nop 1')
    V.put(f, 8)


NQ2, NQ3, NQ4 = OPT.get('nq2', 4), OPT.get('nq3', 8), OPT.get('nq4', 12)
assert NQ0 <= 5 and NQ2 <= 7 and NQ3 <= 8 and NQ4 <= NQ2 + 8
lbI = opt('s_cmp_eq_u32 s%d, 0' % sITEM)
wf_dma(A)
vPG, vGR, vZB, vWR = V.get(1), V.get(1), V.get(1), V.get(1)
B = Asm()
B('s_lshr_b32 s%d, s%d, 5' % (sT[2], sL))
B('s_mul_i32 s%d, s%d, 1408' % (sT[1], sT[2]))
B('s_lshl_b32 s%d, s%d, 6' % (sT[0], sIDX))
B('s_add_u32 s%d, s%d, s%d' % (sPG, sT[0], sT[1]))
B('s_lshl_b32 s%d, s%d, 6' % (sT[0], sW))
B('v_add_u32 %s, s%d, %s' % (v(vPG), sT[0], v(vQ)))
B('v_mul_u32_u24 %s, %d, %s' % (v(vPG), PBLK, v(vPG)))
B('v_lshl_add_u32 %s, %s, 4, %s' % (v(vPG), v(vC8), v(vPG)))
B('v_xor_b32 %s, %s, %s' % (v(vt), v(vC8), v(vG)))
B('s_lshl_b32 s%d, s%d, 12' % (sT[0], sW))
B('v_lshl_add_u32 %s, %s, 4, s%d' % (v(vZB), v(vt), sT[0]))
B('v_lshl_add_u32 %s, %s, 6, %s' % (v(vZB), v(vQ), v(vZB)))
B('v_lshrrev_b32 %s, 2, %s' % (v(vt), v(vN)))
B('v_xor_b32 %s, s%d, %s' % (v(vt), sW, v(vt)))
B('v_lshlrev_b32 %s, 4, %s' % (v(vt), v(vt)))
B('v_lshl_add_u32 %s, %s, 6, %s' % (v(vt), v(vN), v(vt)))
B('v_lshl_add_u32 %s, %s, 12, %s' % (v(vGR), v(vG), v(vt)))
g = Asm()
g('s_lshl_b32 s%d, s%d, 3' % (sT[0], sW))
g('s_cmp_eq_u32 s%d, 20' % sIDX)
g('s_cselect_b32 s%d, 30, s%d' % (sT[0], sT[0]))
grp(B, g)
B('v_lshl_add_u32 %s, %s, 6, %s' % (v(vWR), v(vG), v(vN)))
B('v_lshl_add_u32 %s, %s, 5, s%d' % (v(vWR), v(vWR), sT[0]))
M = Asm()
w1_dma(M, NQ1, NQ2)
A.l += interleave(B, M)


def p_gather(asm, d):
    for i in range(4):
        asm('s_add_u32 s%d, s%d, %d' % (sT[5], sPG, WS_P + i * 16 * PBLK))
        asm('buffer_load_dwordx4 %s, %s, %s, s%d offen sc1' % (v(d + 4 * i, 4), v(vPG), srd(sWS), sT[5]))


vPD, vWG, vWr, vWi = V.get(16), V.get(16), V.get(16), V.get(16)
A.wait_tag('pst')
A('s_barrier')
stamp('s1_acked')
p_gather(A, vPD)
w2_format(A)
A.wait_tag('wf')
barrier()
for k in range(2):
    for i in range(4):
        A('ds_read_b64 %s, %s offset:%d' % (v(vWG + 8 * k + 2 * i, 2), v(vWR), L_GW + 8192 * k + 512 * i))
B = Asm()
for k, dst in enumerate((vWr, vWi)):
    for i in range(4):
        for p in range(2):
            B('v_lshlrev_b32 %s, 16, %s' % (v(dst + 8 * p + i), v(vWG + 8 * k + 2 * i + p)))
            B('v_and_b32 %s, s%d, %s' % (v(dst + 8 * p + 4 + i), sMASK, v(vWG + 8 * k + 2 * i + p)))
w1_drain(B, 0, NQ2)
M = Asm()
w1_dma(M, NQ2, NQ3)
A.l += interleave(B, M)
verify(A, lambda c: p_gather(c, vPD), lambda c: check_bits(c, range(vPD, vPD + 16), vTG, tmp), False)
for i in range(4):
    A('ds_write_b128 %s, %s offset:%d' % (v(vZB), v(vPD + 4 * i, 4), L_GP + 1024 * i))
barrier()
for i in range(4):
    A('ds_read_b128 %s, %s offset:%d' % (v(vPD + 4 * i, 4), v(vGR), L_GP + 1024 * i))
stamp('s1_done')
P = Asm()
for i in range(4):
    for c in range(i + 1, 4):
        P('v_swap_b32 %s, %s' % (v(vPD + 4 * i + c), v(vPD + 4 * c + i)))
vD = V.get(32)
tt = V.get(8)
TWc, TWs = K['TW2c'], K['TW2s']


def st(c, stage):
    d, x = vD + 8 * c, v(vPD + 4 * c, 4)
    fr, fi = KA['Fre'], KA['Fim']
    ops = [((x, fr), (x, fi)), ((fr, x), (fi, x)), ((x, fi), (x, fr)), ((fi, x), (fr, x))][stage]
    for k in range(2):
        P('%s %s, %s, %s, 0' % (MF16, v(d + 4 * k, 4), ops[k][0], ops[k][1]))


for c in range(4):
    st(c, 0)
for stage in range(3):
    for c in range(4):
        d = vD + 8 * c
        if stage == 0:
            cmul(P, d, d + 4, TWc, TWs, tt, tt + 4, -1)
        elif stage == 1:
            cmul(P, d, d + 4, vWr + 4 * c, vWi + 4 * c, tt, tt + 4, +1)
        else:
            cmul(P, d, d + 4, TWc, TWs, tt, tt + 4, +1)
        for i in range(4):
            lo, hi = (tt + i, tt + 4 + i) if stage == 0 else (tt + 4 + i, tt + i)
            P('v_cvt_pk_bf16_f32 %s, %s, %s' % (v(vPD + 4 * c + i), v(lo), v(hi)))
        st(c, stage + 1)
vO = vWr
for c in range(3):
    for i in range(4):
        P('v_cvt_pk_bf16_f32 %s, %s, %s' % (v(vO + 4 * i + c), v(vD + 8 * c + i), v(vD + 8 * c + 4 + i)))
M = Asm()
w1_dma(M, NQ3, NQ4)
A.l += interleave(P, M, 0, int(len(P.l) * 0.85))
for i in range(4):
    A('v_cvt_pk_bf16_f32 %s, %s, %s' % (v(vO + 4 * i + 3), v(vD + 24 + i), v(vD + 28 + i)))
    A('ds_write_b128 %s, %s offset:%d' % (v(vGR), v(vO + 4 * i, 4), L_GW + 1024 * i))
A.wait_tag('w2st')
barrier()
for i in range(4):
    A('ds_read_b128 %s, %s offset:%d' % (v(vPD + 4 * i, 4), v(vZB), L_GW + 1024 * i))
for i in range(4):
    for d in range(4):
        A('v_bfi_b32 %s, s%d, %s, %s' % (v(vPD + 4 * i + d), sTM, v(vTZ + d), v(vPD + 4 * i + d)))
    A('s_add_u32 s%d, s%d, %d' % (sT[5], sPG, WS_P + i * 16 * PBLK))
    A('buffer_store_dwordx4 %s, %s, %s, s%d offen sc1' % (v(vPD + 4 * i, 4), v(vPG), srd(sWS), sT[5]), tag='zst')
stamp('p2_done')
w1_drain(A, NQ2, NQ4)
V.put(vD, 32)
V.put(tt, 8)
V.put(vWG, 16)
V.put(vPD, 16)
V.put(vWr, 16)
V.put(vWi, 16)
for x in (vPG, vWR, vGR, vZB):
    V.put(x)
opt_end(lbI)
for n in TN[10:14]:
    if n in K:
        V.put(K[n], 4)
lbII = opt('s_cmp_lg_u32 s%d, 0' % sITEM)
barrier()
x_, t, ad = V.get(4), V.get(4), V.get(4)
A('s_mul_i32 s%d, s%d, 320' % (sT[0], sW))
A('v_add_u32 %s, s%d, %s' % (v(ad + 1), sT[0], v(vL8)))
A('buffer_load_dwordx2 %s, %s, %s, 0 offen' % (v(t, 2), v(ad + 1), srd(sC)))
A('s_lshr_b32 s%d, s%d, 5' % (sT[1], sL))
A('s_mul_i32 s%d, s%d, 10' % (sT[2], sT[1]))
A('s_max_u32 s%d, s%d, 22' % (sT[3], sIDX))
A('s_add_u32 s%d, s%d, s%d' % (sT[2], sT[2], sT[3]))
A('s_sub_u32 s%d, s%d, 22' % (sT[2], sT[2]))
A('s_add_u32 s%d, s%d, 80' % (sT[1], sT[1]))
A('s_cmp_ge_u32 s%d, 22' % sIDX)
A('s_cselect_b32 s%d, s%d, s%d' % (sT[1], sT[2], sT[1]))
A('s_lshl_b32 s%d, s%d, 7' % (sT[1], sT[1]))
A('s_add_u32 s%d, s%d, %d' % (sPG, sT[1], WS_MOD2))
A('s_sub_u32 s%d, s%d, 40' % (sT[1], sT[2]))
A('s_cmp_lt_u32 s%d, 20' % sT[1])
A('s_cselect_b32 s%d, 1.0, 0' % sCOL)
A('s_lshl_b32 s%d, s%d, 6' % (sT[2], sT[2]))
A('s_mul_i32 s%d, s%d, %d' % (sT[3], sW, 160 * 7680))
A('s_add_u32 s%d, s%d, s%d' % (sT[2], sT[2], sT[3]))
A('s_add_u32 s%d, s%d, 2560' % (sT[2], sT[2]))
A('v_mul_u32_u24 %s, 7680, %s' % (v(ad), v(vQ)))
A('v_lshl_add_u32 %s, %s, 4, %s' % (v(ad), v(vC8), v(ad)))
A('s_mul_i32 s%d, s%d, 10240' % (sT[3], sW))
for b in range(10):
    A('s_add_u32 m0, s%d, %d' % (sT[3], L_EX + 1024 * b))
    A('s_add_u32 s%d, s%d, %d' % (sT[4], sT[2], b * 16 * 7680))
    A('buffer_load_dwordx4 %s, %s, s%d offen lds' % (v(ad), srd(sWM), sT[4]), tag='wm2')
A('v_add_u32 %s, s%d, %s' % (v(ad), sT[3], v(vT64)))
A('s_add_u32 s%d, s%d, %d' % (sT[0], sT[0], L_SILU))
A('v_lshl_add_u32 %s, %s, 3, s%d' % (v(ad + 2), v(vG), sT[0]))
A('s_lshl_b32 s%d, s%d, 7' % (sT[0], sW))
A('v_lshl_add_u32 %s, %s, 4, s%d' % (v(ad + 3), v(vG), sT[0]))
w1_drain(A, 0, NQ1)
w2_format(A)
A.wait_lds()
w1_dma(A, NQ1, min(NQ1 + 8, NQ4))
for p in range(2):
    A('v_lshlrev_b32 %s, 16, %s' % (v(x_ + 2 * p), v(t + p)))
    A('v_and_b32 %s, s%d, %s' % (v(x_ + 2 * p + 1), sMASK, v(t + p)))
silu(A, x_, t, 4)
for p in range(2):
    A('v_cvt_pk_bf16_f32 %s, %s, %s' % (v(x_ + p), v(x_ + 2 * p), v(x_ + 2 * p + 1)))
A('s_mov_b32 exec_hi, 0xff')
A('ds_write_b64 %s, %s offset:%d' % (v(ad + 1), v(x_, 2), L_SILU))
A('s_mov_b64 exec, -1')
f, sb, d = V.get(40), V.get(20), V.get(8)
for k in range(5):
    A('ds_read2_b64 %s, %s offset0:%d offset1:%d' % (v(sb + 4 * k, 4), v(ad + 2), 8 * k, 8 * k + 4))
A.wait_tag('wm2')
for k in range(5):
    for tt_ in range(2):
        for rd in range(2):
            A('ds_read_b64_tr_b16 %s, %s offset:%d' % (v(f + 8 * k + 4 * tt_ + 2 * rd, 2), v(ad), L_EX + 2048 * k + 1024 * rd + 32 * tt_))
for k in range(5):
    for tt_ in range(2):
        A('%s %s, %s, %s, %s' % (MF16, v(d + 4 * tt_, 4), v(f + 8 * k + 4 * tt_, 4), v(sb + 4 * k, 4), v(d + 4 * tt_, 4) if k else '0'))
for tt_ in range(2):
    A('ds_write_b128 %s, %s offset:%d' % (v(ad + 3), v(d + 4 * tt_, 4), L_RED + 64 * tt_))
A.wait_tag('w2st')
barrier()
lb = opt('s_cmp_lg_u32 s%d, 0' % sW)
for i in range(4):
    A('ds_read_b128 %s, %s offset:%d' % (v(f + 4 * i, 4), v(vL16), L_RED + 128 * i))
A('s_mov_b64 exec, 0xff')
for p in (0, 2):
    A('v_pk_add_f32 %s, %s, %s' % (v(f + p, 2), v(f + p, 2), v(f + 4 + p, 2)))
    A('v_pk_add_f32 %s, %s, %s' % (v(f + 8 + p, 2), v(f + 8 + p, 2), v(f + 12 + p, 2)))
    A('v_pk_add_f32 %s, %s, %s' % (v(f + p, 2), v(f + p, 2), v(f + 8 + p, 2)))
    A('v_cvt_pk_bf16_f32 %s, %s, %s' % (v(f + p), v(f + p), v(f + p + 1)))
    A('v_and_b32 %s, s%d, %s' % (v(f + p + 1), sMASK, v(f + p)))
    A('v_lshlrev_b32 %s, 16, %s' % (v(f + p), v(f + p)))
    A('v_add_f32 %s, s%d, %s' % (v(f + p + 1), sCOL, v(f + p + 1)))
    A('v_add_f32 %s, s%d, %s' % (v(f + p), sCOL, v(f + p)))
    A('v_cvt_pk_bf16_f32 %s, %s, %s' % (v(f + p), v(f + p), v(f + p + 1)))
    A('v_mov_b32 %s, s%d' % (v(f + p + 1), sNONCE))
A('buffer_store_dwordx4 %s, %s, %s, s%d offen sc1' % (v(f, 4), v(vL16), srd(sWS), sPG), tag='zst')
A('s_mov_b64 exec, -1')
A('s_nop 1')
opt_end(lb)
w1_drain(A, NQ1, 8)
w1_dma(A, NQ1 + 8, NQ4)
w1_drain(A, 8, NQ4)
for x, n in ((x_, 4), (t, 4), (ad, 4), (sb, 20), (f, 40), (d, 8)):
    V.put(x, n)
opt_end(lbII)
V.put(vW2s)
V.put(vT64)
V.put(vWD)
w1_dma(A, NQ4, 16)
vZ = vP
A('v_cmp_gt_u32 vcc, 84, %s' % v(vKW))
for i in range(4):
    A('v_mov_b32 %s, -1' % v(vONES + i))
A('v_cndmask_b32 %s, %s, %s, vcc' % (v(vZ), v(vOOB), v(vZ)))
for d in range(4):
    A('v_cndmask_b32 %s, 0, %s, vcc' % (v(vTZ + d), v(vTZ + d)))
A('s_add_u32 s%d, s%d, %d' % (sZS, sPB, WS_P))
A('s_mul_i32 s%d, s%d, 2560' % (sT[0], sW))
A('s_add_u32 s%d, s%d, s%d' % (sYX, sZS, sT[0]))
V.put(vKW)
V.put(vTG, 4)
vM2 = V.get(2, 'mh', 1)
A('s_mul_i32 s%d, s%d, 3072' % (sT[0], sW))
A('v_add_u32 %s, s%d, %s' % (v(vM2), sT[0], v(vL16)))
A('v_min_u32 %s, %d, %s' % (v(vM2 + 1), 88 * 128 - 16 - 2048, v(vM2)))
A('s_mul_i32 s%d, s%d, 6' % (sT[0], sW))
A('v_lshlrev_b32 %s, 1, %s' % (v(vt + 3), v(vKD)))
for i in range(3):
    A('s_add_u32 s%d, s%d, %d' % (sT[1], sT[0], 2 * i + 10))
    A('v_add_u32 %s, s%d, %s' % (v(vt), sT[1], v(vH)))
    A('v_mul_u32_u24 %s, 52, %s' % (v(vt + 1), v(vt)))
    A('v_lshrrev_b32 %s, 8, %s' % (v(vt + 1), v(vt + 1)))
    A('v_mul_u32_u24 %s, 5, %s' % (v(vt + 2), v(vt + 1)))
    A('v_sub_u32 %s, %s, %s' % (v(vt), v(vt), v(vt + 2)))
    A('v_cmp_gt_u32 vcc, 4, %s' % v(vt))
    A('v_lshl_add_u32 %s, %s, 2, %s' % (v(vt), v(vt + 3), v(vt)))
    A('v_add_u32 %s, 256, %s' % (v(vt + 2), v(vt + 3)))
    A('v_cndmask_b32 %s, %s, %s, vcc' % (v(vt), v(vt + 2), v(vt)))
    A('v_mul_u32_u24 %s, 2560, %s' % (v(vt + 1), v(vt + 1)))
    A('v_lshl_add_u32 %s, %s, 2, %s' % (v(vMA + 2 * i), v(vt), v(vt + 1)))
    A('v_cndmask_b32_e64 %s, 4, 16, vcc' % v(vt))
    A('v_add_u32 %s, %s, %s' % (v(vMA + 2 * i + 1), v(vt), v(vMA + 2 * i)))
w1_addr(A, True)


def z_gather(asm, d):
    asm('s_add_u32 s%d, s%d, 2816' % (sT[5], sZS))
    for q in range(4):
        asm('buffer_load_dwordx4 %s, %s, %s, s%d offen offset:%d sc1' % (v(d + 4 * q, 4), v(vZ), srd(sWS), sT[5] if q > 1 else sZS, 1408 * (q & 1)))


def mod2_gather(asm, d):
    asm('s_mov_b32 s%d, %d' % (sT[5], WS_MOD2))
    for i in range(3):
        asm('buffer_load_dwordx4 %s, %s, %s, s%d offen offset:%d sc1' % (v(d + 4 * i, 4), v(vM2 + (i == 2)), srd(sWS), sT[5], 1024 * i))


vZD, vMD = V.get(16), V.get(12)
A.wait_tag('zst')
if OPT.get('b2b', 1):
    barrier()
stamp('s2_acked')
lb = opt('s_cmp_eq_u32 s%d, 3' % sW)
z_gather(A, vZD)
opt_end(lb)
mod2_gather(A, vMD)
w1_drain(A, NQ4, 16)
sHS = sPG
A('s_mul_i32 s%d, s%d, 196608' % (sT[0], sG1))
A('s_mul_i32 s%d, s%d, 6144' % (sT[1], sJ1))
A('s_add_u32 s%d, s%d, s%d' % (sHS, sT[0], sT[1]))
A('s_add_u32 s%d, s%d, %d' % (sHS, sHS, WS_H))
A('s_lshl_b32 s%d, s%d, 2' % (sT[0], sL))
A('s_add_u32 s%d, s%d, s%d' % (sT[0], sT[0], sW))
A('s_mul_i32 s%d, s%d, 6144' % (sT[0], sT[0]))
A('s_add_u32 s%d, s%d, %d' % (sT[0], sT[0], WS_H))
A('s_add_u32 s%d, s%d, 3072' % (sT[1], sT[0]))
for i in range(6):
    A('buffer_store_dwordx4 %s, %s, %s, s%d offen offset:%d sc1' % (v(vONES, 4), v(vL16), srd(sWS), sT[i // 3], 1024 * (i % 3)), tag='clrh')
NQ5 = OPT.get('nq5', 17)
w1_dma(A, 16, NQ5)
vU0, vU1 = [V.get(1, 'h'), V.get(1, 'h')], [V.get(1, 'h'), V.get(1, 'h')]
ex_addr(A, vU0, vU1, 20, 65)
V.put(vEXa)
V.put(vEXb)
sW2F = sPB
A('s_lshl_b32 s%d, s%d, 2' % (sT[0], sJ))
A('s_add_u32 s%d, s%d, s%d' % (sT[0], sT[0], sW))
A('s_mul_i32 s%d, s%d, 61440' % (sW2F, sT[0]))
A('s_add_u32 s%d, s%d, %d' % (sW2F, sW2F, WS_W2F))
lb = opt('s_cmp_eq_u32 s%d, 3' % sW)
verify(A, lambda c: z_gather(c, vZD), lambda c: check_bits(c, range(vZD, vZD + 16), vTZ, tmp), False)
stamp('s2_done')
for i in range(4):
    for c in range(i + 1, 4):
        A('v_swap_b32 %s, %s' % (v(vZD + 4 * i + c), v(vZD + 4 * c + i)))
vD8 = [V.get(16) for _ in range(4)]
for c in range(4):
    A('%s %s, %s, %s, 0' % (MF32, v(vD8[c], 16), v(vA8i, 4), v(vZD + 4 * c, 4)))
for c in range(4):
    for q in range(4):
        A('v_cvt_pk_bf16_f32 %s, %s, %s' % (v(vZD + 4 * c + q), v(vD8[c] + 2 * q), v(vD8[c] + 2 * q + 1)))
    A('ds_write2st64_b32 %s, %s, %s offset0:%d offset1:%d' % (v(vEX8 + c), v(vZD + 4 * c), v(vZD + 4 * c + 1), EXO, EXO + 6))
    A('ds_write2st64_b32 %s, %s, %s offset0:%d offset1:%d' % (v(vEX8 + c), v(vZD + 4 * c + 2), v(vZD + 4 * c + 3), EXO + 12, EXO + 18))
opt_end(lb)
verify(A, lambda c: mod2_gather(c, vMD), lambda c: check_tags(c, [vMD + 2 * k + 1 for k in range(6)], tmp))
for k in range(6):
    b = vMD + 2 * k
    A('v_and_b32 %s, s%d, %s' % (v(b + 1), sMASK, v(b)))
    A('v_lshlrev_b32 %s, 16, %s' % (v(b), v(b)))
    A('ds_write2st64_b32 %s, %s, %s offset0:%d offset1:%d' % (v(vMA + k), v(b), v(b + 1), L_MOD // 256, L_MOD // 256 + 5))
barrier()
for x, n in ((vD8[0], 16), (vD8[1], 16), (vD8[2], 16), (vD8[3], 16), (vA8i, 4), (vMA, 6), (vMD, 12), (vM2, 2), (vZ, 1), (vTZ, 4), (vZD, 16), (vEX8, 4)):
    V.put(x, n)
W2V = 96
W2A = 48
V.take(W2V, 80)


def w2frag(k, t_, c=4, o=0):
    if k < 8:
        return v(W2V + 20 * k + 4 * t_ + o, c)
    return a(W2A + 20 * (k - 8) + 4 * t_ + o, c)


def w2_loads(asm, n0, n1):
    if OPT.get('now2'):
        return
    for n in range(n0, n1):
        g = Asm()
        if n % 4 == 0 or n == n0:
            g('s_add_u32 s%d, s%d, %d' % (sBG[1], sW2F, 4096 * (n // 4)))
        g('buffer_load_dwordx4 %s, %s, %s, s%d offen offset:%d sc1' % (w2frag(n // 5, n % 5), v(vL16), srd(sWS), sBG[1], 1024 * (n % 4)), tag='w2l')
        grp(asm, g)


P = Asm()
vUF = V.get(16, 'hl')
for r in range(2):
    P('ds_read2_b32 %s, %s offset0:0 offset1:5' % (v(vUF + 8 * r, 2), v(vU0[r])))
    P('ds_read2_b32 %s, %s offset0:10 offset1:15' % (v(vUF + 8 * r + 2, 2), v(vU0[r])))
    P('ds_read2_b32 %s, %s offset0:15 offset1:10' % (v(vUF + 8 * r + 4, 2), v(vU1[r])))
    P('ds_read2_b32 %s, %s offset0:5 offset1:0' % (v(vUF + 8 * r + 6, 2), v(vU1[r])))
vGA = V.get(10, 'lh')
read_mod(P, vGA, 2, vL16, vL4)
vD = V.get(32, 'hl')
for r in range(2):
    for u in range(2):
        for t_ in range(2):
            for ro in range(2):
                d = v(vD + 16 * r + 8 * t_ + 4 * ro, 4)
                P('%s %s, %s, %s, %s' % (MF16, d, v(vUF + 8 * r + 4 * u, 4), KA['G%d%d%d' % (u, t_, ro)], d if u else '0'))
for x in vU0 + vU1:
    V.put(x)
tt = V.get(8, 'lh')
vY = [V.get(12, 'hl'), V.get(12, 'hl')]
for r in range(2):
    for t_ in range(2):
        d = vD + 16 * r + 8 * t_
        b = vUF + 8 * r + 4 * t_
        cmul(P, d, d + 4, K['TW3c%d' % t_], K['TW3s%d' % t_], tt, tt + 4, +1)
        for i in range(4):
            P('v_cvt_pk_bf16_f32 %s, %s, %s' % (v(b + i), v(tt + i), v(tt + 4 + i)))
        P('%s %s, %s, %s, 0' % (MF16, v(vY[r] + 4 * t_, 4), KA['A3_0'], v(b, 4)))
        P('%s %s, %s, %s, %s' % (MF16, v(vY[r] + 8, 4), KA['A3_%d' % (1 + t_)], v(b, 4), v(vY[r] + 8, 4) if t_ else '0'))
V.put(tt, 8)
V.put(vD, 32)
for n in TN[14:]:
    if n in K:
        V.put(K[n], 4)
vG2, vSb = V.get(10, 'hl'), V.get(10, 'hl')
read_mod(P, vG2, 4, vL16, vL4)
read_mod(P, vSb, 3, vL16, vL4)
for r in range(2):
    for p in range(5):
        P('v_pk_fma_f32 %s, %s, %s, %s' % (v(vXF[r] + 2 * p, 2), v(vY[r] + 2 * p, 2), v(vGA + 2 * p, 2), v(vXF[r] + 2 * p, 2)))
ln_stats(P, vXF)
ln_apply(P, vY, vXF)
for r in range(2):
    for p in range(5):
        P('v_pk_fma_f32 %s, %s, %s, %s' % (v(vY[r] + 2 * p, 2), v(vY[r] + 2 * p, 2), v(vG2 + 2 * p, 2), v(vSb + 2 * p, 2)))
ln_stats(P, vY, '0x37800000')
ln_apply(P, vY, vY)
M = Asm()
w1_dma(M, NQ5, 20)
NW0 = OPT.get('nw0', 8)
w2_loads(M, 0, NW0)
A.l += interleave(P, M, 0, int(len(P.l) * 0.9))
A.wait_tag('clrh')
for r in range(2):
    o = vUF + 8 * r
    for j in range(5):
        lo, hi = (j, 4 + j) if j < 4 else (8, 9)
        A('v_cvt_pk_bf16_f32 %s, %s, %s' % (v(o + j), v(vY[r] + lo), v(vY[r] + hi)))
    A('buffer_store_dwordx4 %s, %s, %s, s%d offen offset:%d sc1' % (v(o, 4), v(vL16), srd(sWS), sYX, 1280 * r), tag='yst')
    A('buffer_store_dword %s, %s, %s, s%d offen offset:%d sc1' % (v(o + 4), v(vL4), srd(sWS), sYX, 1280 * r + 1024), tag='yst')
stamp('p3_done')
A('s_lshl_b32 s%d, s%d, 2' % (sT[0], sL))
A('s_add_u32 s%d, s%d, s%d' % (sT[0], sT[0], sW))
A('s_mul_i32 s%d, s%d, 2560' % (sT[0], sT[0]))
A('s_add_u32 s%d, s%d, %d' % (sT[0], sT[0], WS_X1))
for r in range(2):
    for j in range(5):
        lo, hi = (j, 4 + j) if j < 4 else (8, 9)
        A('v_cvt_pk_bf16_f32 %s, %s, %s' % (v(vGA + 5 * r + j), v(vXF[r] + lo), v(vXF[r] + hi)))
        A('buffer_store_dword %s, %s, %s, s%d offen offset:%d sc1' % (v(vGA + 5 * r + j), v(vL4), srd(sWS), sT[0], 1280 * r + 256 * j), tag='xst')
for x, n in ((vG2, 10), (vSb, 10), (vXF[0], 10), (vXF[1], 10), (vY[0], 12), (vY[1], 12), (vUF, 16), (vONES, 4)):
    V.put(x, n)
V.take(W2V + 80, 80)
A('s_or_b32 s%d, s%d, s%d' % (sT[0], sL, sW))
lb = opt('s_cmp_lg_u32 s%d, 0' % sT[0])
A('v_mov_b32 %s, s%d' % (v(vt), sTAGZ))
A('s_mov_b64 exec, 1')
A('buffer_store_dword %s, %s, %s, 0 offen offset:%d sc1' % (v(vt), v(vL4), srd(sWS), WS_EPOCH), tag='ep')
A('s_mov_b64 exec, -1')
opt_end(lb)

B = Asm()
vCol = V.get(1, 'l')
B('s_lshl_b32 s%d, s%d, 6' % (sT[2], sJ))
B('s_lshl_b32 s%d, s%d, 4' % (sT[3], sJ))
B('s_add_u32 s%d, s%d, 448' % (sT[3], sT[3]))
B('v_mov_b32 %s, s%d' % (v(vt), sT[2]))
B('v_mov_b32 %s, s%d' % (v(vt + 1), sT[3]))
B('v_cmp_gt_u32 vcc, 8, %s' % v(vN))
B('v_min_u32 %s, 9, %s' % (v(vt + 2), v(vN)))
B('v_cndmask_b32 %s, %s, %s, vcc' % (v(vt), v(vt + 1), v(vt)))
B('v_lshl_add_u32 %s, %s, 3, %s' % (v(vCol), v(vt + 2), v(vt)))
vb2, vb1 = V.get(4, 'l'), V.get(6, 'l')
B('v_lshlrev_b32 %s, 1, %s' % (v(vt), v(vCol)))
B('buffer_load_dwordx4 %s, %s, %s, 0 offen' % (v(vb2, 4), v(vt), srd(sB2)))
B('s_mul_i32 s%d, s%d, 384' % (sT[2], sJ1))
B('s_mul_i32 s%d, s%d, 96' % (sT[3], sW))
B('s_add_u32 s%d, s%d, s%d' % (sT[2], sT[2], sT[3]))
B('v_lshlrev_b32 %s, 3, %s' % (v(vt + 1), v(vG)))
for c in range(3):
    B('buffer_load_dwordx2 %s, %s, %s, s%d offen offset:%d' % (v(vb1 + 2 * c, 2), v(vt + 1), srd(sB1), sT[2], 32 * c))
A.add(B)
B = Asm()
B('v_lshrrev_b32 %s, 7, %s' % (v(vt), v(vCol)))
B('v_bfe_u32 %s, %s, 1, 6' % (v(vt + 1), v(vCol)))
B('v_lshlrev_b32 %s, 2, %s' % (v(vt + 2), v(vt)))
B('v_lshl_add_u32 %s, %s, 4, %s' % (v(vt + 2), v(vt + 1), v(vt + 2)))
B('v_lshlrev_b32 %s, 2, %s' % (v(vt + 3), v(vt + 1)))
B('v_add_u32 %s, 1024, %s' % (v(vt + 3), v(vt + 3)))
B('v_cndmask_b32 %s, %s, %s, vcc' % (v(vt + 2), v(vt + 3), v(vt + 2)))
B('v_cndmask_b32_e64 %s, 4, 16, vcc' % v(vt + 3))
o = (L_MOD + 5 * 2560) // 256
for q in range(4):
    B('ds_read2st64_b32 %s, %s offset0:%d offset1:%d' % (a(240 + 2 * q, 2), v(vt + 2), o, o + 5))
    if q < 3:
        B('v_add_u32 %s, %s, %s' % (v(vt + 2), v(vt + 2), v(vt + 3)))
w1_drain(B, 16, 20)
V.put(vW1, 3)
V.put(vW1r)
V.put(vGA, 10)
vYG, vYW = V.get(1, 'l'), V.get(1, 'l')
sYL = sZS
B('v_lshrrev_b32 %s, 3, %s' % (v(vt), v(vLane)))
B('v_and_b32 %s, 7, %s' % (v(vt + 1), v(vLane)))
B('s_and_b32 s%d, s%d, 1' % (sT[2], sW))
B('s_lshr_b32 s%d, s%d, 1' % (sT[3], sW))
B('s_lshl_b32 s%d, s%d, 2' % (sT[4], sT[2]))
B('v_add_u32 %s, s%d, %s' % (v(vt + 2), sT[4], v(vG)))
B('v_xor_b32 %s, %s, %s' % (v(vt + 1), v(vt + 2), v(vt + 1)))
B('v_mul_u32_u24 %s, 1280, %s' % (v(vYG), v(vt)))
B('v_lshl_add_u32 %s, %s, 4, %s' % (v(vYG), v(vt + 1), v(vYG)))
B('s_mul_i32 s%d, s%d, %d' % (sT[4], sT[2], PBLK))
B('s_mul_i32 s%d, s%d, 640' % (sT[5], sT[3]))
B('s_add_u32 s%d, s%d, s%d' % (sT[4], sT[4], sT[5]))
B('s_mul_i32 s%d, s%d, %d' % (sT[5], sG1, 8 * PBLK))
B('s_add_u32 s%d, s%d, s%d' % (sT[4], sT[4], sT[5]))
B('v_add_u32 %s, s%d, %s' % (v(vYG), sT[4], v(vYG)))
B('s_mul_i32 s%d, s%d, 10240' % (sT[3], sT[3]))
B('s_lshl_b32 s%d, s%d, 10' % (sT[2], sT[2]))
B('s_add_u32 s%d, s%d, s%d' % (sYL, sT[2], sT[3]))
B('v_add_u32 %s, s%d, %s' % (v(vYW), sYL, v(vL16)))
vYR = [V.get(1, 'l'), V.get(1, 'l')]
B('v_lshrrev_b32 %s, 1, %s' % (v(vt + 2), v(vN)))
B('v_xor_b32 %s, %s, %s' % (v(vt + 2), v(vt + 2), v(vG)))
B('v_lshlrev_b32 %s, 4, %s' % (v(vt + 2), v(vt + 2)))
B('v_lshl_add_u32 %s, %s, 7, %s' % (v(vYR[0]), v(vN), v(vt + 2)))
B('v_xor_b32 %s, 64, %s' % (v(vYR[1]), v(vYR[0])))
vHs4, vHs2 = V.get(1, 'l'), V.get(1, 'l')
B('s_lshl_b32 s%d, s%d, 10' % (sT[0], sW))
B('v_add_u32 %s, s%d, %s' % (v(vHs4), sT[0], v(vL16)))
B('s_lshl_b32 s%d, s%d, 9' % (sT[0], sW))
B('s_add_u32 s%d, s%d, 4096' % (sT[0], sT[0]))
B('v_cmp_gt_u32 vcc, 32, %s' % v(vLane))
B('v_add_u32 %s, s%d, %s' % (v(vHs2), sT[0], v(vL16)))
B('v_cndmask_b32 %s, %s, %s, vcc' % (v(vHs2), v(vOOB), v(vHs2)))
sW2L = sRING
B('s_mul_i32 s%d, s%d, 20480' % (sW2L, sW))
B('s_add_u32 s%d, s%d, %d' % (sW2L, sW2L, L_W2))
sHL = sTAU
B('s_mul_i32 s%d, s%d, 196608' % (sT[0], sG))
B('s_mul_i32 s%d, s%d, 12288' % (sT[1], sW))
B('s_add_u32 s%d, s%d, s%d' % (sHL, sT[0], sT[1]))
B('s_add_u32 s%d, s%d, %d' % (sHL, sHL, WS_H))
GC0 = -2.302208198
GC1 = GC0 * 0.044715 * 2.0 ** 48
GC0 *= 2.0 ** 16
import struct
fhex = lambda x: '0x%08x' % struct.unpack('<I', struct.pack('<f', x))[0]
sGC1 = sADD
vGC0 = V.get(1, 'l')
B('s_mov_b32 s%d, %s' % (sGC1, fhex(GC1)))
B('v_mov_b32 %s, %s' % (v(vGC0), fhex(GC0)))
M = Asm()
NW1 = OPT.get('nw1', 16)
w2_loads(M, NW0, NW1)
A.l += interleave(B, M)
vCK = V.get(20, 'l')


def y_dma(asm, rt):
    for u in range(5):
        g = Asm()
        if u == 0:
            g('s_mov_b32 s%d, %d' % (sT[5], WS_P + 2 * PBLK * rt))
        g('s_add_u32 m0, s%d, %d' % (sYL, 20480 * rt + 1920 * u))
        g('buffer_load_dwordx4 %s, %s, s%d offen offset:%d sc1 lds' % (v(vYG), srd(sWS), sT[5], 128 * u), tag='yg%d' % rt)
        grp(asm, g)


def y_back(asm, rt):
    for u in range(5):
        asm('ds_read_b128 %s, %s offset:%d' % (v(vCK + 4 * u, 4), v(vYW), 20480 * min(rt, 2) + 2048 * u))


def y_check(asm, rt):
    asm.wait_tag('yg%d' % rt)
    if rt == 3:
        asm('v_add_u32 %s, %d, %s' % (v(vYW), 20480, v(vYW)))
    y_back(asm, rt)

    def again(c):
        y_dma(c, rt)
        c('s_waitcnt vmcnt(0)')
        y_back(c, rt)
    verify(asm, again, lambda c: check_bits(c, range(vCK, vCK + 20), None, tmp))


A.wait_tag('yst')
barrier()
stamp('s3_acked')
for rt in range(4):
    y_dma(A, rt)
vBI = V.get(12, 'l')
for c in range(3):
    for p in range(2):
        A('v_lshlrev_b32 %s, 16, %s' % (v(vBI + 4 * c + 2 * p), v(vb1 + 2 * c + p)))
        A('v_and_b32 %s, s%d, %s' % (v(vBI + 4 * c + 2 * p + 1), sMASK, v(vb1 + 2 * c + p)))
for i in range(12):
    A('v_mul_f32 %s, 0x37800000, %s' % (v(vBI + i), v(vBI + i)))
for p in range(4):
    A('v_lshlrev_b32 %s, 16, %s' % (v(vt), v(vb2 + p)))
    A('v_and_b32 %s, s%d, %s' % (v(vt + 1), sMASK, v(vb2 + p)))
    A('v_accvgpr_write_b32 %s, %s' % (a(248 + 2 * p), v(vt)))
    A('v_accvgpr_write_b32 %s, %s' % (a(249 + 2 * p), v(vt + 1)))
V.put(vb1, 6)
V.put(vb2, 4)
V.put(vQ)
V.put(vC8)
y_check(A, 0)
barrier()
lb = opt('s_cmp_lg_u32 s%d, 3' % sW)
A('s_lshl_b32 s%d, s%d, 7' % (sT[0], sL))
A('s_add_u32 s%d, s%d, %d' % (sT[0], sT[0], WS_FLAG))
A('v_mov_b32 %s, s%d' % (v(vt), sNONCE))
A('s_mov_b32 exec_hi, 0')
A('buffer_store_dword %s, %s, %s, s%d offen sc1' % (v(vt), v(vL4), srd(sWS), sT[0]), tag='flag')
A('s_mov_b64 exec, -1')
opt_end(lb)
stamp('s3_done')
NB = 3
vAC = [V.get(12, 'l'), vCK]
vBF = V.get(4 * NB, 'l')
vGT = vCK + 12
vHP = V.get(8, 'l')


def h_store(asm, rt):
    g = Asm()
    g('s_add_u32 s%d, s%d, %d' % (sT[2], sHS, 49152 * rt))
    g('buffer_store_dwordx4 %s, %s, %s, s%d offen sc1' % (v(vHP, 4), v(vHs4), srd(sWS), sT[2]), tag='hst%d' % rt)
    grp(asm, g)


def gelu(rt):
    g = Asm()
    ac = vAC[rt & 1]
    for c in range(3):
        x = ac + 4 * c
        tb = vGT + 4 * (c & 1)
        for i in range(4):
            g('v_mul_f32 %s, %s, %s' % (v(tb + i), v(x + i), v(x + i)))
        for i in range(4):
            g('v_fma_f32 %s, %s, s%d, %s' % (v(tb + i), v(tb + i), sGC1, v(vGC0)))
        for i in range(4):
            g('v_mul_f32 %s, %s, %s' % (v(tb + i), v(tb + i), v(x + i)))
        for i in range(4):
            g('v_exp_f32 %s, %s' % (v(tb + i), v(tb + i)))
        for i in range(4):
            g('v_add_f32 %s, 1.0, %s' % (v(tb + i), v(tb + i)))
        for i in range(4):
            g('v_rcp_f32 %s, %s' % (v(tb + i), v(tb + i)))
        for i in range(4):
            g('v_mul_f32 %s, %s, %s' % (v(tb + i), v(tb + i), v(x + i)))
        for p in range(2):
            g('v_cvt_pk_bf16_f32 %s, %s, %s' % (v(vHP + 2 * c + p), v(tb + 2 * p), v(tb + 2 * p + 1)))
        if c == 1:
            h_store(g, rt)
    for p in range(2):
        g('v_permlane32_swap_b32 %s, %s' % (v(vHP + 4 + p), v(vHP + 6 + p)))
    g('buffer_store_dwordx4 %s, %s, %s, s%d offen sc1' % (v(vHP + 4, 4), v(vHs2), srd(sWS), sT[2]), tag='hst%d' % rt)
    return g


def yread(rt, q):
    base = 20480 * (rt & 1)
    return Ins('ds_read_b128 %s, %s offset:%d' % (v(vBF + 4 * ((20 * rt + q) % NB), 4), v(vYR[q & 1]), base + 2048 * (q >> 1)))


def g1_main(rt):
    out = []
    for q in range(20):
        for c in range(3):
            d = v(vAC[rt & 1] + 4 * c, 4)
            gr = [Ins('%s %s, %s, %s, %s' % (MF16, d, a((3 * q + c) * 4, 4), v(vBF + 4 * ((20 * rt + q) % NB), 4), d if q else v(vBI + 4 * c, 4)))]
            if c == 0:
                nq = q + NB - 1
                if nq < 20:
                    gr.append(yread(rt, nq))
                elif rt < 3:
                    if rt == 0 and nq == 20:
                        gr.append(Ins('s_barrier'))
                    if rt == 1:
                        gr.append(Ins('v_add_u32 %s, 40960, %s' % (v(vYR[nq & 1]), v(vYR[nq & 1]))))
                    gr.append(yread(rt + 1, nq - 20))
            out.append(gr)
    return out


HB = [0, 128, 176, 0]


def h_loads(asm, rt, so=sBG[0]):
    for k in range(12):
        g = Asm()
        if k % 4 == 0:
            g('s_add_u32 s%d, s%d, %d' % (so, sHL, 49152 * rt + 1024 * k))
        g('buffer_load_dwordx4 %s, %s, %s, s%d offen offset:%d sc1' % (a(HB[rt] + 4 * k, 4), v(vL16), srd(sWS), so, 1024 * (k % 4)), tag='hld')
        grp(asm, g)


def w2_dma(asm, n0, n1):
    if OPT.get('now2'):
        return
    for n in range(n0, n1):
        g = Asm()
        if n % 4 == 0 or n == n0:
            g('s_add_u32 s%d, s%d, %d' % (sBG[1], sW2F, 4096 * (n // 4)))
            g('s_add_u32 m0, s%d, %d' % (sW2L, 4096 * (n // 4 - 10)))
        g('buffer_load_dwordx4 %s, %s, s%d offen offset:%d sc1 lds' % (v(vL16), srd(sWS), sBG[1], 1024 * (n % 4)), tag='w2d')
        grp(asm, g)


for q in range(NB - 1):
    A.l.append(yread(0, q))
NW2, NW3, NW4 = OPT.get('nw2', 28), OPT.get('nw3', 40), OPT.get('nw4', 52)
f = Asm()
for rt in (1, 2, 3):
    y_check(f, rt)
M = Asm()
w2_loads(M, NW1, NW2)
m = interleave(g1_main(0), M, 10, 60)
A.l += interleave(m, f, 2, 52)
M = Asm()
w2_loads(M, NW2, min(NW3, 40))
w2_dma(M, 40, NW3)
m = interleave(g1_main(1), M, 0, 60)
A.l += interleave(m, gelu(0), 3, len(m))
M = Asm()
w2_loads(M, NW3, 40)
w2_dma(M, max(NW3, 40), NW4)


def flag_load(asm):
    g = Asm()
    g('s_lshl_b32 s%d, s%d, 10' % (sT[5], sG))
    g('s_add_u32 s%d, s%d, %d' % (sT[5], sT[5], WS_FLAG))
    g('buffer_load_dword %s, %s, %s, s%d offen sc1' % (v(vt), v(vL16), srd(sWS), sT[5]))
    grp(asm, g)


M0 = Asm()
flag_load(M0)
M.l = M0.l + M.l
verify(M, flag_load, lambda c: c('v_cmp_ne_u32 vcc, s%d, %s' % (sNONCE, v(vt))))
m = interleave(g1_main(2), M, 0, 60)
A.l += interleave(m, gelu(1), 3, len(m))
M = Asm()
w2_dma(M, NW4, 60)
M.wait_tag('hst0')
h_loads(M, 0)
m = interleave(g1_main(3), M, 0 if NW4 <= 54 else 14, 60)
A.l += interleave(m, gelu(2), 3, len(m))
stamp('g1_done')
V.put(vAC[0], 12)
V.put(vBF, 4 * NB)
V.put(vBI, 12)
for x in [vYG, vYW] + vYR:
    V.put(x)
vA2 = [V.get(20, 'l'), vCK]
vPW, vPR, vXO, vOO = [V.get(1, 'l') for _ in range(4)]
vX1 = V.get(4, 'l')
E = Asm()
E('v_mul_u32_u24 %s, 336, %s' % (v(vPW), v(vN)))
E('v_lshl_add_u32 %s, %s, 4, %s' % (v(vPW), v(vG), v(vPW)))
E('s_mul_i32 s%d, s%d, 5376' % (sT[0], sW))
E('v_add_u32 %s, s%d, %s' % (v(vPW), sT[0], v(vPW)))
E('s_lshl_b32 s%d, s%d, 2' % (sT[0], sW))
E('v_add_u32 %s, s%d, %s' % (v(vt + 2), sT[0], v(vG)))
E('v_mul_u32_u24 %s, 336, %s' % (v(vPR), v(vt + 2)))
E('v_min_u32 %s, 9, %s' % (v(vt + 3), v(vN)))
E('v_lshl_add_u32 %s, %s, 5, %s' % (v(vPR), v(vt + 3), v(vPR)))
E('v_and_b32 %s, 7, %s' % (v(vt + 3), v(vt + 2)))
E('v_lshrrev_b32 %s, 3, %s' % (v(vt + 2), v(vt + 2)))
E('v_lshl_add_u32 %s, %s, 3, %s' % (v(vXO), v(vt + 2), v(vt + 3)))
E('v_mul_u32_u24 %s, 1280, %s' % (v(vXO), v(vXO)))
E('v_lshl_add_u32 %s, %s, 1, %s' % (v(vXO), v(vCol), v(vXO)))
E('s_mul_i32 s%d, s%d, 81920' % (sT[0], sG))
E('v_add_u32 %s, s%d, %s' % (v(vXO), sT[0], v(vXO)))
E('v_lshl_add_u32 %s, %s, 8, %s' % (v(vt + 2), v(vt + 3), v(vt + 2)))
E('v_mul_u32_u24 %s, 1280, %s' % (v(vOO), v(vt + 2)))
E('v_lshl_add_u32 %s, %s, 1, %s' % (v(vOO), v(vCol), v(vOO)))
E('s_mul_i32 s%d, s%d, 10240' % (sT[0], sG))
E('v_cmp_gt_u32 vcc, 10, %s' % v(vN))
E('v_add_u32 %s, s%d, %s' % (v(vOO), sT[0], v(vOO)))
E('v_cndmask_b32 %s, %s, %s, vcc' % (v(vOO), v(vOOB), v(vOO)))
OUTF = ['', ' sc1', ' nt'][OPT.get('outf', 0)]


def x1_load(asm, rt):
    g = Asm()
    g('s_mov_b32 s%d, %d' % (sT[3], WS_X1 + 20480 * rt))
    g('buffer_load_dwordx4 %s, %s, %s, s%d offen sc1' % (v(vX1, 4), v(vXO), srd(sWS), sT[3]))
    grp(asm, g)


def part_write(asm, rt):
    for t_ in range(5):
        asm('ds_write_b128 %s, %s offset:%d' % (v(vPW), v(vA2[rt & 1] + 4 * t_, 4), L_PART[rt & 1] + 64 * t_))


def epilogue(asm, rt):
    s = vA2[rt & 1]
    e0, e1 = vER
    for p in range(4):
        for hf in range(2):
            d = [e0, e1, s, s + 8][p] + 4 * hf
            asm('ds_read_b128 %s, %s offset:%d' % (v(d, 4), v(vPR), L_PART[rt & 1] + 5376 * p + 16 * hf))
    if rt == 0:
        for i in range(8):
            asm('v_accvgpr_read_b32 %s, %s' % (v(vGB[i]), a(240 + i)))
            asm('v_accvgpr_read_b32 %s, %s' % (v(vB2[i]), a(248 + i)))
        for i in range(8):
            asm('v_mul_f32 %s, 0x47800000, %s' % (v(vGB[i]), v(vGB[i])))
            asm('v_mul_f32 %s, 0x37800000, %s' % (v(vB2[i]), v(vB2[i])))
    for i in range(8):
        asm('v_add_f32 %s, %s, %s' % (v(e0 + i), v(e0 + i), v(vB2[i])))
    for i in range(8):
        asm('v_add_f32 %s, %s, %s' % (v(e0 + i), v(e0 + i), v(e1 + i)))
    for p in range(4):
        asm('v_lshlrev_b32 %s, 16, %s' % (v(e1 + 2 * p), v(vX1 + p)))
        asm('v_and_b32 %s, s%d, %s' % (v(e1 + 2 * p + 1), sMASK, v(vX1 + p)))
    if rt < 3:
        x1_load(asm, rt + 1)
    for i in range(8):
        asm('v_add_f32 %s, %s, %s' % (v(s + i), v(s + i), v(s + 8 + i)))
    for i in range(8):
        asm('v_add_f32 %s, %s, %s' % (v(e0 + i), v(e0 + i), v(s + i)))
    for i in range(8):
        asm('v_fmac_f32 %s, %s, %s' % (v(e1 + i), v(e0 + i), v(vGB[i])))
    for p in range(4):
        asm('v_cvt_pk_bf16_f32 %s, %s, %s' % (v(s + p), v(e1 + 2 * p), v(e1 + 2 * p + 1)))
    g = Asm()
    g('s_mov_b32 s%d, %d' % (sT[3], 2560 * rt))
    g('buffer_store_dwordx4 %s, %s, %s, s%d offen%s' % (v(s, 4), v(vOO), srd(sOUT), sT[3], OUTF), tag='out')
    grp(asm, g)


def g2_mfma(rt, k, t_):
    d = v(vA2[rt & 1] + 4 * t_, 4)
    return Ins('%s %s, %s, %s, %s' % (MF16, d, w2frag(k, t_), a(HB[rt] + 4 * k, 4), d if k else '0'))


def g2_main(rt):
    return [g2_mfma(rt, k, t_) for k in range(12) for t_ in range(5)]


def h_check(asm, rt):
    if OPT.get('now1') or OPT.get('now2'):
        return
    ls, lo, ll, lr = label('hslow'), label('hok'), label('hl'), label('hredo')
    g = Asm()
    g('v_cmp_u_f32 vcc, %s, %s' % (v(vA2[rt & 1]), v(vA2[rt & 1])))
    g('s_cbranch_vccnz %s' % ls)
    g('%s:' % lo)
    grp(asm, g)
    c = COLD
    c.cold_begin()
    c('%s:' % ls)
    c('s_add_u32 s%d, s%d, 1' % (sSPIN, sSPIN))
    c('s_cmp_gt_u32 s%d, %d' % (sSPIN, SPIN))
    c('s_cbranch_scc1 %s' % lr)
    h_loads(c, rt, sT[5])
    c('s_waitcnt vmcnt(0)')
    c('v_mov_b32 %s, 0' % v(tmp))
    for i in range(0, 48, 2):
        c('v_accvgpr_read_b32 %s, %s' % (v(vt), a(HB[rt] + i)))
        c('v_accvgpr_read_b32 %s, %s' % (v(vt + 1), a(HB[rt] + i + 1)))
        c('v_max3_u32 %s, %s, %s, %s' % (v(tmp), v(tmp), v(vt), v(vt + 1)))
    c('v_cmp_eq_u32 vcc, -1, %s' % v(tmp))
    c('s_cbranch_vccnz %s' % ls)
    c('%s:' % lr)
    c.l += g2_main(rt)
    c('s_nop 7')
    c('s_branch %s' % lo)


A('v_add_u32 %s, s%d, %s' % (v(vt + 2), sW2L, v(vL16)))
A.wait_tag('w2d')
R = Asm()
for n in range(40, 60):
    R('ds_read_b128 %s, %s offset:%d' % (w2frag(n // 5, n % 5), v(vt + 2), 1024 * (n - 40)))
g3 = gelu(3).l
M = Asm()
M.wait_tag('hst1')
h_loads(M, 1)
NG = OPT.get('ng', 30)
A.l += interleave(g3[:NG], R.l, 0, NG) if NG else R.l

x1_load(E, 0)
m = interleave(g2_main(0), M, OPT.get('h0', 4), 56)
A.l += interleave(m, g3[NG:] + E.l, 0, len(m))
V.put(vHP, 8)
V.put(vGC0)
for x in (vHs4, vHs2, vCol, vN, vG, vKD, vH, vL4, vL8, vOOB, vLane):
    V.put(x)
vER = [V.get(8, 'l'), V.get(8, 'l')]
vGB = [V.get(1, 'l') for _ in range(8)]
vB2 = [V.get(1, 'l') for _ in range(8)]
for rt in range(1, 4):
    M = Asm()
    if rt < 3:
        M.wait_tag('hst%d' % (rt + 1))
        h_loads(M, rt + 1)
    f = Asm()
    if rt == 1:
        f('s_barrier')
    h_check(f, rt - 1)
    part_write(f, rt - 1)
    barrier(f)
    epilogue(f, rt - 1)
    m = interleave(g2_main(rt), M, OPT.get('h0', 4), 56)
    A.l += interleave(m, f, 4, len(m))
stamp('g2_done')
h_check(A, 3)
part_write(A, 3)
barrier()
epilogue(A, 3)
if OPT['stamps']:
    A('s_waitcnt vmcnt(0)')
    stamp('end')
    A('s_memtime s[4:5]')
    A('s_sub_u32 s4, s4, s100')
    A('s_lshl_b32 s%d, s2, 2' % sT[0])
    A('s_add_u32 s%d, s%d, s%d' % (sT[0], sT[0], sW))
    A('s_lshl_b32 s%d, s%d, 7' % (sT[0], sT[0]))
    A('s_add_u32 s%d, s%d, %d' % (sT[0], sT[0], WS_STAMP))
    A('s_mov_b64 exec, 1')
    for i, s in [(i, sSTAMP + i) for i in range(nstamp[0])] + [(30, 4), (31, sSPIN)]:
        A('v_mov_b32 %s, s%d' % (v(vt), s))
        A('buffer_store_dword %s, %s, %s, s%d offen offset:%d' % (v(vt), v(vL16), srd(sWS), sT[0], 4 * i))
        A('s_waitcnt vmcnt(0)')
if OPT.get('probe'):
    pr = OPT['probe']
    A('s_or_b32 s%d, s%d, s%d' % (sT[0], sL, sW))
    A('s_cmp_lg_u32 s%d, 0' % sT[0])
    A('s_cbranch_scc1 L_end')
    A('s_waitcnt vmcnt(0)')
    sr = sWS if pr >= 2 else sPRB
    if pr >= 2:
        A('s_mov_b32 s%d, 0x10000000' % (sWS + 2))
    base = {1: 0, 2: 0x1a00000, 3: 0x8000000, 4: 0xfc00000}[pr]
    for i in range(40):
        A('s_mov_b32 s%d, %d' % (sT[0], base + i * (40960 + 128)))
        A('buffer_load_dword %s, off, %s, s%d' % (v(vt), srd(sr), sT[0]))
        A('s_waitcnt vmcnt(0)')
A('L_end:')
A('s_endpgm')
A.add(COLD)

body, ins = finalize(A)
ref = open('cdna_kernels/%s.s.ref' % NAME).read()
hdr = ref[:ref.index('; Override launch')]
src = hdr + '; @launch grid=(256,1,1) block=(256,1,1) lds=163840\n'
src += '.amdgcn_target "amdgcn-amd-amdhsa--gfx950"\n.text\n.globl %s_kernel\n.p2align 8\n.type %s_kernel,@function\n%s_kernel:\n' % (NAME, NAME, NAME)
src += body
src += '.p2align 7\n.type L_tab,@object\nL_tab:\n'
for n in TN:
    for row in T[n].reshape(-1, 8):
        src += '.long ' + ','.join('0x%x' % x for x in row) + '\n'
src += '.fill %d, 4, 0\nL_tabend:\n.size L_tab, L_tabend-L_tab\n' % ((32 - len(TN)) * 256)
src += '''.section .rodata,"a"
.p2align 6
.amdhsa_kernel %s_kernel
  .amdhsa_next_free_vgpr 512
  .amdhsa_next_free_sgpr 102
  .amdhsa_accum_offset 256
  .amdhsa_group_segment_fixed_size 0
  .amdhsa_kernarg_size 104
  .amdhsa_user_sgpr_count 2
  .amdhsa_user_sgpr_kernarg_segment_ptr 1
  .amdhsa_system_sgpr_workgroup_id_x 1
  .amdhsa_float_denorm_mode_32 3
.end_amdhsa_kernel
''' % NAME
open(sys.argv[1], 'w').write(src)
open(sys.argv[1] + '.stamps', 'w').write('\n'.join(stamp_names))
from collections import Counter
cnt = Counter(i.cls for i in ins)
print('instr', dict(cnt), 'nop states', sum(states(i) for i in ins if i.cls == 'nop'), 'src bytes', len(src))
```

```python
import sys
sys.path.insert(0, 'work')
from asmlib import *
import tables

NAME = 'adaLN_cond__spectral_gfnet__mixer_channel_mlp__prompt'
OPT = dict(stamps=0)
for arg in sys.argv[2:]:
    k, v = arg.split('=')
    OPT[k] = int(v)

PBLK = 11264
WS_EPOCH = 0
WS_MODX = 0x1000
WS_MOD2 = 0x9000
WS_FLAG = 0x10000
WS_P = 0x20000
WS_X1 = WS_P + 256 * PBLK
WS_H = WS_X1 + 256 * 10240
WS_W2F = WS_H + 32 * 196608
WS_END = WS_W2F + 1920 * 1024
WS_STAMP = 0x1800000
WS_REC = 0x2000000
OOB = 0x7ff00000
assert WS_END < WS_STAMP
L_MOD = 0
L_SILU = 17920
L_RED = 19200
L_EX = 20480
L_GP = 32768
L_GW = 49152
L_RING = 65536
L_CONST = L_RING + 5 * 12288
L_WRAW = L_RING + 7 * 12288
L_W2 = 81920
L_PART = [0, 21504]
SPIN = 200000

T = tables.build()
TN = list(T)

sC, sWM, sX, sWS, sWF_, sW1, sW2, sB1, sB2, sOUT = [8 + 4 * i for i in range(10)]
sWRp, sWIp = 48, 50
sL, sW, sNONCE, sJ, sG, sSPIN, sMASK, sVER = 52, 53, 54, 55, 56, 57, 58, 59
sT = [60, 61, 62, 63, 64, 65]
sST = 66
sADD = 70
sIDX = 73
sITEM = 74
sPG = 75
sZS = 76
sPB = 77
sRING = 78
sTAU = 79
sEX = 80
sBG = [48, 49]
sCOL = 50
sYX = 51
sJ1, sG1, sTM, sTAGZ = 4, 5, 0, 1
sSTAMP = 82


def srd(s):
    return 's[%d:%d]' % (s, s + 3)


def v(n, c=1):
    return 'v%d' % n if c == 1 else 'v[%d:%d]' % (n, n + c - 1)


def a(n, c=1):
    return 'a%d' % n if c == 1 else 'a[%d:%d]' % (n, n + c - 1)


class Pool:
    def __init__(self, lo, hi):
        self.free = set(range(lo, hi))
        self.hw = 0

    def get(self, n, z='mhxl', al=2):
        if n == 1:
            al = 1
        Z = dict(l=(1, 96), m=(96, 176), h=(176, 256), x=(96, 256))
        for b, hi in [(b, Z[c][1]) for c in z for b in range(*Z[c])]:
            if b % al == 0 and b + n <= hi and all(b + i in self.free for i in range(n)):
                for i in range(n):
                    self.free.remove(b + i)
                self.hw = max(self.hw, b + n)
                return b
        raise RuntimeError('out of registers (%d)' % n)

    def take(self, b, n):
        for i in range(n):
            assert b + i in self.free, 'v%d busy' % (b + i)
            self.free.remove(b + i)
        return b

    def put(self, b, n=1):
        for i in range(n):
            assert b + i not in self.free
            self.free.add(b + i)


A = Asm()
COLD = Asm()
V = Pool(1, 256)
nstamp = [0]
stamp_names = []


ECHO = {2: 's0_done', 3: 's2_done', 4: 's3_done', 5: 'pub0'}


def stamp(name, asm=None, lvl=1):
    if ECHO.get(OPT.get('echo')) == name:
        (asm or A)('s_memrealtime s[90:91]')
        (asm or A)('s_waitcnt lgkmcnt(0)')
    if not (OPT['stamps'] & lvl) and not (OPT['stamps'] and name in ('end',)):
        return
    asm = asm or A
    i = nstamp[0]
    nstamp[0] += 1
    stamp_names.append(name)
    asm('s_memrealtime s[%d:%d]' % (sEX, sEX + 1))
    asm('s_mov_b32 s%d, s%d' % (sSTAMP + i, sEX))
    assert sSTAMP + i < 100


MF16 = 'v_mfma_f32_16x16x32_bf16'
MF32 = 'v_mfma_f32_32x32x16_bf16'
lab = [0]


def label(p):
    lab[0] += 1
    return 'L_%s_%d' % (p, lab[0])


def barrier(asm=None):
    asm = asm or A
    asm.wait_lds()
    asm('s_barrier')


def check_sentinel(asm, regs, tmp):
    r = list(regs)
    first = True
    while r:
        if first:
            if len(r) >= 3:
                asm('v_max3_u32 %s, %s, %s, %s' % (v(tmp), v(r[0]), v(r[1]), v(r[2])))
                r = r[3:]
            else:
                asm('v_max_u32 %s, %s, %s' % (v(tmp), v(r[0]), v(r[-1])))
                r = []
            first = False
        elif len(r) >= 2:
            asm('v_max3_u32 %s, %s, %s, %s' % (v(tmp), v(tmp), v(r[0]), v(r[1])))
            r = r[2:]
        else:
            asm('v_max_u32 %s, %s, %s' % (v(tmp), v(tmp), v(r[0])))
            r = []
    asm('v_cmp_eq_u32 vcc, -1, %s' % v(tmp))


def check_bits(asm, regs, masks, tmp):
    r = list(regs)
    for k, x in enumerate(r if masks is not None else []):
        asm('v_xor_b32 %s, %s, %s' % (v(x), v(masks + k % 4), v(x)))
    asm('v_or3_b32 %s, %s, %s, %s' % (v(tmp), v(r[0]), v(r[1]), v(r[2])))
    for k in range(3, len(r) - 1, 2):
        asm('v_or3_b32 %s, %s, %s, %s' % (v(tmp), v(tmp), v(r[k]), v(r[k + 1])))
    asm('v_bitop3_b32 %s, %s, %s, s%d bitop3:0xa8' % (v(tmp), v(tmp), v(r[-1]), sTM))
    asm('v_cmp_ne_u32 vcc, 0, %s' % v(tmp))


def check_tags(asm, regs, tmp):
    asm('v_xor_b32 %s, s%d, %s' % (v(tmp), sNONCE, v(regs[0])))
    for r in regs[1:]:
        asm('v_bitop3_b32 %s, %s, s%d, %s bitop3:0xbe' % (v(tmp), v(r), sNONCE, v(tmp)))
    asm('v_cmp_ne_u32 vcc, 0, %s' % v(tmp))


def verify(asm, loads, checker, masked=True):
    ls, lo = label('slow'), label('ok')
    checker(asm)
    grp = Asm()
    grp('s_cbranch_vccnz %s' % ls)
    grp('%s:' % lo)
    asm.l.append(grp.l)
    c = COLD
    c.cold_begin()
    lx = label('out')
    c('%s:' % ls)
    c('s_add_u32 s%d, s%d, 1' % (sSPIN, sSPIN))
    c('s_cmp_gt_u32 s%d, %d' % (sSPIN, SPIN))
    c('s_cbranch_scc1 %s' % lx)
    c('s_mov_b64 exec, vcc' if masked else 's_wqm_b64 exec, vcc')
    loads(c)
    c('s_waitcnt vmcnt(0)')
    checker(c)
    c('s_cbranch_vccnz %s' % ls)
    c('%s:' % lx)
    c('s_mov_b64 exec, -1')
    c('s_nop 4')
    c('s_branch %s' % lo)


def cmul(asm, re_, im_, c_, s_, t0, t1, sign):
    neg = ' neg_lo:[0,0,1] neg_hi:[0,0,1]'
    for p in (0, 2):
        asm('v_pk_mul_f32 %s, %s, %s' % (v(t0 + p, 2), v(im_ + p, 2), v(s_ + p, 2)))
        asm('v_pk_mul_f32 %s, %s, %s' % (v(t1 + p, 2), v(re_ + p, 2), v(s_ + p, 2)))
    for p in (0, 2):
        asm('v_pk_fma_f32 %s, %s, %s, %s%s' % (v(t0 + p, 2), v(re_ + p, 2), v(c_ + p, 2), v(t0 + p, 2), neg if sign > 0 else ''))
        asm('v_pk_fma_f32 %s, %s, %s, %s%s' % (v(t1 + p, 2), v(im_ + p, 2), v(c_ + p, 2), v(t1 + p, 2), '' if sign > 0 else neg))


def ln_stats(asm, x, scale=None):
    t = V.get(8, 'hl')
    for r in range(2):
        asm('v_pk_add_f32 %s, %s, %s' % (v(t + 2 * r, 2), v(x[r], 2), v(x[r] + 2, 2)))
        asm('v_pk_mul_f32 %s, %s, %s' % (v(t + 4 + 2 * r, 2), v(x[r], 2), v(x[r], 2)))
    for p in range(1, 5):
        for r in range(2):
            if p >= 2:
                asm('v_pk_add_f32 %s, %s, %s' % (v(t + 2 * r, 2), v(t + 2 * r, 2), v(x[r] + 2 * p, 2)))
            asm('v_pk_fma_f32 %s, %s, %s, %s' % (v(t + 4 + 2 * r, 2), v(x[r] + 2 * p, 2), v(x[r] + 2 * p, 2), v(t + 4 + 2 * r, 2)))
    for q in range(4):
        asm('v_add_f32 %s, %s, %s' % (v(t + 2 * q), v(t + 2 * q), v(t + 2 * q + 1)))
    asm('v_permlane32_swap_b32 %s, %s' % (v(t), v(t + 2)))
    asm('v_permlane32_swap_b32 %s, %s' % (v(t + 4), v(t + 6)))
    asm('v_add_f32 %s, %s, %s' % (v(t), v(t), v(t + 2)))
    asm('v_add_f32 %s, %s, %s' % (v(t + 4), v(t + 4), v(t + 6)))
    asm('v_permlane16_swap_b32 %s, %s' % (v(t), v(t + 4)))
    asm('v_add_f32 %s, %s, %s' % (v(t), v(t), v(t + 4)))
    for sh in (8, 4, 2, 1):
        asm('v_add_f32_dpp %s, %s, %s row_ror:%d row_mask:0xf bank_mask:0xf' % (v(t), v(t), v(t), sh))
    asm('v_mul_f32 %s, 0x3acccccd, %s' % (v(t + 1), v(t)))
    asm('v_mul_f32 %s, 0x3acccccd, %s' % (v(t), v(t)))
    asm('v_permlane16_swap_b32 %s, %s' % (v(t), v(t + 1)))
    asm('v_fma_f32 %s, -%s, %s, %s' % (v(t + 1), v(t), v(t), v(t + 1)))
    asm('v_max_f32 %s, 0, %s' % (v(t + 1), v(t + 1)))
    asm('v_add_f32 %s, 0x3727c5ac, %s' % (v(t + 1), v(t + 1)))
    asm('v_rsq_f32 %s, %s' % (v(t + 1), v(t + 1)))
    if scale:
        asm('v_mul_f32 %s, %s, %s' % (v(t + 1), scale, v(t + 1)))
    asm('v_mul_f32_e64 %s, -%s, %s' % (v(t), v(t), v(t + 1)))
    for r in range(2):
        asm('v_readlane_b32 s%d, %s, %d' % (sST + 2 * r, v(t + 1), 32 * r))
    for r in range(2):
        asm('v_readlane_b32 s%d, %s, %d' % (sST + 2 * r + 1, v(t), 32 * r))
    V.put(t, 8)


def ln_apply(asm, dst, x):
    for p in range(5):
        for r in range(2):
            s = 's[%d:%d]' % (sST + 2 * r, sST + 2 * r + 1)
            asm('v_pk_fma_f32 %s, %s, %s, %s op_sel:[0,0,1] op_sel_hi:[1,0,1]' % (v(dst[r] + 2 * p, 2), v(x[r] + 2 * p, 2), s, s))


def read_mod(asm, dst, vec, vL16, vL4):
    b = L_MOD + vec * 2560
    asm('ds_read_b128 %s, %s offset:%d' % (v(dst, 4), v(vL16), b))
    asm('ds_read_b128 %s, %s offset:%d' % (v(dst + 4, 4), v(vL16), b + 1280))
    o = (b + 1024) // 256
    assert (b + 1024) % 256 == 0
    asm('ds_read2st64_b32 %s, %s offset0:%d offset1:%d' % (v(dst + 8, 2), v(vL4), o, o + 5))


def S(asm, fmt, *args):
    asm(fmt % args)


def opt(cond, asm=None):
    asm = asm or A
    lb = label('skip')
    asm(cond)
    asm('s_cbranch_scc1 %s' % lb)
    asm.opt_begin()
    return lb


def opt_end(lb, asm=None):
    asm = asm or A
    asm.opt_end()
    asm('%s:' % lb)


def grp(asm, g):
    asm.l.append(g.l)


A('s_cmp_ge_u32 s2, 256')
A('s_cbranch_scc1 L_end')
for s, off in ((sC, 64), (sWM, 72), (sX, 0), (sWS, 96), (sWRp, 8), (sWIp, 16), (sW1, 32)):
    A('s_load_dwordx2 s[%d:%d], s[0:1], %d' % (s, s + 1, off))
if OPT['stamps']:
    A('s_memrealtime s[%d:%d]' % (sSTAMP, sSTAMP + 1))
    A('s_memtime s[100:101]')
if OPT.get('echo'):
    A('s_memrealtime s[88:89]')
vLane = V.get(1, 'l')
vt = V.get(4, 'l')
tmp = V.get(1, 'l')
A('v_lshrrev_b32 %s, 6, v0' % v(vt))
A('v_and_b32 %s, 63, v0' % v(vLane))
A('v_readfirstlane_b32 s%d, %s' % (sW, v(vt)))
A('s_lshr_b32 s%d, s2, 3' % sIDX)
vPC = V.get(2)
A('s_getpc_b64 s[6:7]')
A('L_pc:')
A('s_lshl_b32 s%d, s%d, 7' % (sT[1], sIDX))
A('v_lshl_add_u32 %s, v0, 12, s%d' % (v(vt + 1), sT[1]))
A('v_mov_b32 %s, s7' % v(vPC + 1))
A('v_add_co_u32 %s, vcc, s6, %s' % (v(vt + 2), v(vt + 1)))
A('s_and_b32 s%d, s2, 7' % sT[0])
A('s_mul_i32 s%d, s%d, 20' % (sTAU, sT[0]))
A('v_addc_co_u32 %s, vcc, 0, %s, vcc' % (v(vt + 3), v(vPC + 1)))
A('v_cmp_gt_u32 vcc, (L_tabend-L_pc-4), %s' % v(vt + 1))
A('s_add_u32 s%d, s%d, s%d' % (sTAU, sTAU, sIDX))
A('s_and_saveexec_b64 s[%d:%d], vcc' % (sEX, sEX + 1))
A('s_cbranch_execz L_nopf')
A.opt_begin()
vJunk = V.get(3, 'h', 1)
A('global_load_dword %s, %s, off' % (v(vJunk), v(vt + 2, 2)), tag='junk')
A.opt_end()
A('L_nopf:')
A('s_mov_b64 exec, -1')
A('s_lshl_b32 s%d, s%d, 5' % (sL, sT[0]))
A('s_add_u32 s%d, s%d, s%d' % (sL, sL, sIDX))
vL16, vL4, vL8 = V.get(1, 'l'), V.get(1, 'l'), V.get(1, 'l')
vN, vG, vKD, vH = V.get(1, 'l'), V.get(1, 'l'), V.get(1, 'l'), V.get(1, 'l')
A('v_and_b32 %s, 15, %s' % (v(vN), v(vLane)))
A('v_lshrrev_b32 %s, 4, %s' % (v(vG), v(vLane)))
vCo = V.get(1)
A('s_and_b32 s%d, s%d, 1' % (sT[2], sTAU))
A('s_mul_i32 s%d, s%d, 640' % (sT[0], sT[2]))
A('s_lshl_b32 s%d, s%d, 6' % (sT[1], sW))
A('s_add_u32 s%d, s%d, s%d' % (sT[0], sT[0], sT[1]))
A('v_lshl_add_u32 %s, %s, 8, s%d' % (v(vCo), v(vG), sT[0]))
A('v_lshl_add_u32 %s, %s, 2, %s' % (v(vCo), v(vN), v(vCo)))
vWM = V.get(1)
A('v_lshrrev_b32 %s, 1, %s' % (v(vWM), v(vLane)))
A('v_mul_u32_u24 %s, 7680, %s' % (v(vWM), v(vWM)))
A('v_and_b32 %s, 1, %s' % (v(vt), v(vLane)))
A('v_lshl_add_u32 %s, %s, 4, %s' % (v(vWM), v(vt), v(vWM)))
A('s_mul_i32 s%d, s%d, 3840' % (sT[0], sT[0]))
A('s_lshr_b32 s%d, s%d, 1' % (sT[1], sTAU))
A('s_lshl_b32 s%d, s%d, 5' % (sT[1], sT[1]))
A('s_add_u32 s%d, s%d, s%d' % (sT[0], sT[0], sT[1]))
A('s_lshl_b32 s%d, s%d, 10' % (sT[1], sW))
for s, n in ((sC, 1280), (sWM, 640 * 7680), (sX, 2621440), (sWS, WS_REC)):
    A('s_mov_b32 s%d, %d' % (s + 2, n))
    A('s_mov_b32 s%d, 0x20000' % (s + 3))
A('v_lshlrev_b32 %s, 2, %s' % (v(vL4), v(vLane)))
A('s_lshl_b32 s%d, s%d, 9' % (sT[2], sW))
A('s_add_u32 s%d, s%d, s%d' % (sT[2], sT[2], sL))
A('s_mul_i32 s%d, s%d, 1280' % (sT[2], sT[2]))
A('s_add_u32 s%d, s%d, %d' % (sT[3], sT[2], 256 * 1280))
A('s_add_u32 m0, s%d, %d' % (sT[1], L_EX))
A('s_waitcnt lgkmcnt(0)')
vC = V.get(1)
lb = opt('s_cmp_ge_u32 s%d, 20' % sIDX)
A('buffer_load_dword %s, %s, %s, 0 offen' % (v(vC), v(vCo), srd(sC)))
for i in range(3):
    if i == 2:
        lb2 = opt('s_cmp_ge_u32 s%d, 2' % sW)
    if i:
        A('s_add_u32 m0, s%d, %d' % (sT[1], L_EX + 4096 * i))
        A('s_add_u32 s%d, s%d, %d' % (sT[0], sT[0], 128 * 7680))
    A('buffer_load_dwordx4 %s, %s, s%d offen lds' % (v(vWM), srd(sWM), sT[0]), tag='wm')
opt_end(lb2)
opt_end(lb)
V.put(vCo)
V.put(vWM)
if OPT['stamps']:
    nstamp[0] = 1
    stamp_names.append('start')
A('s_load_dword s%d, s[%d:%d], %d' % (sNONCE, sWS, sWS + 1, WS_EPOCH))
for s, off in ((sW2, 48), (sB1, 40), (sB2, 56), (sOUT, 80)):
    A('s_load_dwordx2 s[%d:%d], s[0:1], %d' % (s, s + 1, off))
if OPT.get('probe'):
    sPRB = 84
    A('s_load_dwordx2 s[84:85], s[0:1], 24')
    A('s_mov_b32 s86, 2621440')
    A('s_mov_b32 s87, 0x20000')
vXR = V.get(10)
XL = Asm()
for r in range(2):
    for j in range(5):
        XL('buffer_load_dword %s, %s, %s, s%d offen offset:%d' % (v(vXR + 5 * r + j), v(vL4), srd(sX), sT[2 + r], 256 * j))
B = Asm()
for s, n in ((sWF_, 2048 * 642), (sW1, 640 * 3072), (sW2, 1536 * 1280), (sB1, 3072), (sB2, 1280), (sOUT, 2621440)):
    B('s_mov_b32 s%d, %d' % (s + 2, n))
    B('s_mov_b32 s%d, 0x20000' % (s + 3))
B('v_lshlrev_b32 %s, 4, %s' % (v(vL16), v(vLane)))
B('v_lshlrev_b32 %s, 3, %s' % (v(vL8), v(vLane)))
B('v_and_b32 %s, 31, %s' % (v(vKD), v(vLane)))
B('v_lshrrev_b32 %s, 5, %s' % (v(vH), v(vLane)))
B('s_mov_b32 s%d, 0' % sSPIN)
B('s_mov_b32 s%d, 0xffff0000' % sMASK)
B('s_and_b32 s%d, s%d, 7' % (sJ, sL))
B('s_lshr_b32 s%d, s%d, 3' % (sG, sL))
B('s_mul_i32 s%d, s%d, %d' % (sPB, sL, PBLK))
vOOB = V.get(1, 'l')
vKW = V.get(1)
vQ = V.get(1, 'l')
vC8 = V.get(1, 'l')
B('v_lshrrev_b32 %s, 2, %s' % (v(vQ), v(vLane)))
B('v_and_b32 %s, 3, %s' % (v(vC8), v(vLane)))
B('s_lshl_b32 s%d, s%d, 5' % (sT[0], sW))
B('v_add_u32 %s, s%d, %s' % (v(vKW), sT[0], v(vKD)))
B('v_mov_b32 %s, %d' % (v(vOOB), OOB))
B('s_cmp_lt_u32 s%d, 21' % sIDX)
B('s_cselect_b32 s%d, 1, 0' % sITEM)
B('s_mul_i32 s%d, s%d, 3072' % (sRING, sW))
B('s_lshr_b32 s%d, s%d, 6' % (sT[0], sL))
B('s_lshl_b32 s%d, s%d, 3' % (sT[0], sT[0]))
B('s_lshr_b32 s%d, s%d, 2' % (sT[1], sIDX))
B('s_add_u32 s%d, s%d, s%d' % (sG1, sT[0], sT[1]))
B('s_lshr_b32 s%d, s%d, 3' % (sT[0], sL))
B('s_and_b32 s%d, s%d, 4' % (sT[0], sT[0]))
B('s_and_b32 s%d, s%d, 3' % (sT[1], sIDX))
B('s_add_u32 s%d, s%d, s%d' % (sJ1, sT[0], sT[1]))
if not OPT.get('pair', 1):
    B('s_mov_b32 s%d, s%d' % (sG1, sG))
    B('s_mov_b32 s%d, s%d' % (sJ1, sJ))
sLINE = sPG
B('s_lshl_b32 s%d, s%d, 7' % (sT[0], sTAU))
B('s_add_u32 s%d, s%d, %d' % (sLINE, sT[0], WS_MODX))
vONES = V.get(4, 'l')
for i in range(4):
    B('v_mov_b32 %s, 0' % v(vONES + i))
stamp('crit_iss', lvl=2)
A.l += interleave(B, XL)
stamp('x_iss', lvl=2)
if OPT.get('warmmod', 1):
    A('s_lshl_b32 s%d, s%d, 5' % (sT[0], sW))
    A('s_add_u32 s%d, s%d, s%d' % (sT[0], sT[0], sIDX))
    lb = opt('s_cmp_ge_u32 s%d, 20' % sT[0])
    A('s_mov_b64 exec, 0xff')
    A('buffer_store_dwordx4 %s, %s, %s, s%d offen sc1' % (v(vONES, 4), v(vL16), srd(sWS), sLINE), tag='wmod')
    A('s_mov_b64 exec, -1')
    opt_end(lb)

vA8, vA8i = V.get(4), V.get(4)
B = Asm()
t = V.get(8)
B('v_and_b32 %s, 4, %s' % (v(t), v(vLane)))
B('v_bfe_u32 %s, %s, 3, 1' % (v(t + 1), v(vLane)))
B('v_lshl_add_u32 %s, %s, 1, %s' % (v(t), v(t + 1), v(t)))
B('v_bfe_u32 %s, %s, 1, 1' % (v(t + 1), v(vLane)))
B('v_add_u32 %s, %s, %s' % (v(t), v(t), v(t + 1)))
B('v_and_b32 %s, 1, %s' % (v(t + 1), v(vLane)))
B('v_lshlrev_b32 %s, 9, %s' % (v(t + 1), v(t + 1)))
B('v_lshl_add_u32 %s, %s, 10, s%d' % (v(t + 2), v(vH), sL))
B('v_mad_u32_u24 %s, %s, %s, %s' % (v(t + 2), v(t), v(t + 2), v(t + 1)))
B('v_lshlrev_b32 %s, 8, %s' % (v(t + 3), v(t)))
B('v_add_u32 %s, s%d, %s' % (v(t + 5), sL, v(t + 3)))
B('v_lshlrev_b32 %s, 2, %s' % (v(t + 4), v(vH)))
B('v_mul_u32_u24 %s, %s, %s' % (v(t + 4), v(t + 4), v(t + 5)))
B('v_sub_u32 %s, %s, %s' % (v(t + 4), v(t + 4), v(t + 1)))
for q in range(4):
    for ang, step, dst, neg in ((t + 2, t + 3, vA8, ''), (t + 4, t + 5, vA8i, '-')):
        B('v_and_b32 %s, 2047, %s' % (v(t + 6), v(ang)))
        B('v_cvt_f32_u32 %s, %s' % (v(t + 6), v(t + 6)))
        B('v_mul_f32 %s, 0x3a000000, %s' % (v(t + 6), v(t + 6)))
        B('v_sin_f32 %s, %s' % (v(t + 7), v(t + 6)))
        B('v_cos_f32 %s, %s' % (v(t + 6), v(t + 6)))
        if q < 3:
            B('v_add_u32 %s, %s, %s' % (v(ang), v(ang), v(step)))
        sc = '0x5f800000' if neg else '0x1f800000'
        B('v_mul_f32 %s, %s, %s' % (v(t + 7), sc, v(t + 7)))
        B('v_mul_f32 %s, %s, %s' % (v(t + 6), sc, v(t + 6)))
        B('v_cvt_pk_bf16_f32 %s, %s, %s%s' % (v(dst + q), v(t + 6), neg, v(t + 7)))
tTRIG = t
TRIG = B
B = Asm()
B('s_cmp_ge_u32 s%d, 2' % sW)
B('s_cselect_b32 s%d, s%d, s%d' % (sWF_, sWIp, sWRp))
B('s_cselect_b32 s%d, s%d, s%d' % (sWF_ + 1, sWIp + 1, sWRp + 1))
B('s_lshl_b32 s%d, s%d, 13' % (sT[0], sW))
B('s_add_u32 s%d, s%d, (L_tab-L_pc)' % (sT[1], sT[0]))
B('v_add_u32 %s, s%d, %s' % (v(vt + 2), sT[1], v(vL16)))
B('v_add_co_u32 %s, vcc, s6, %s' % (v(vPC), v(vt + 2)))
B('v_addc_co_u32 %s, vcc, 0, %s, vcc' % (v(vPC + 1), v(vPC + 1)))
vTch = V.get(2, 'mh', 1)
B('s_lshr_b32 s%d, s%d, 5' % (sT[0], sL))
B('s_mul_i32 s%d, s%d, 642' % (sT[0], sT[0]))
B('s_and_b32 s%d, s%d, 1' % (sT[1], sW))
B('s_lshl_b32 s%d, s%d, 1' % (sT[2], sIDX))
B('s_add_u32 s%d, s%d, s%d' % (sT[1], sT[1], sT[2]))
B('s_mul_i32 s%d, s%d, %d' % (sT[1], sT[1], 4 * 5136))
B('s_add_u32 s%d, s%d, s%d' % (sT[0], sT[0], sT[1]))
B('s_and_b32 s%d, s%d, -4' % (sT[0], sT[0]))
B('v_bfe_u32 %s, %s, 3, 2' % (v(vt), v(vLane)))
B('v_and_b32 %s, 7, %s' % (v(vt + 1), v(vLane)))
B('v_min_u32 %s, 5, %s' % (v(vt + 1), v(vt + 1)))
B('v_mul_u32_u24 %s, 5136, %s' % (v(vt), v(vt)))
B('v_lshl_add_u32 %s, %s, 7, s%d' % (v(vt + 1), v(vt + 1), sT[0]))
B('v_add_u32 %s, %s, %s' % (v(vTch), v(vt), v(vt + 1)))
B('s_lshr_b32 s%d, s%d, 6' % (sT[0], sL))
B('s_lshl_b32 s%d, s%d, 5' % (sT[0], sT[0]))
B('s_add_u32 s%d, s%d, s%d' % (sT[0], sT[0], sIDX))
B('s_lshl_b32 s%d, s%d, 2' % (sT[0], sT[0]))
B('s_add_u32 s%d, s%d, s%d' % (sT[0], sT[0], sW))
B('s_mul_i32 s%d, s%d, 15' % (sT[0], sT[0]))
B('v_min_u32 %s, 14, %s' % (v(vt), v(vLane)))
B('v_add_u32 %s, s%d, %s' % (v(vt), sT[0], v(vt)))
B('v_mul_u32_u24 %s, 43691, %s' % (v(vt + 1), v(vt)))
B('v_lshrrev_b32 %s, 19, %s' % (v(vt + 1), v(vt + 1)))
B('v_mul_u32_u24 %s, 12, %s' % (v(vt + 1), v(vt + 1)))
B('s_bfe_u32 s%d, s%d, 0x10005' % (sT[0], sL))
B('s_mul_i32 s%d, s%d, 12' % (sT[0], sT[0]))
B('v_add3_u32 %s, %s, %s, s%d' % (v(vt), v(vt), v(vt + 1), sT[0]))
B('v_lshlrev_b32 %s, 7, %s' % (v(vTch + 1), v(vt)))
A.add(B)
CD = Asm()
for hlf in range(2):
    g = Asm()
    if hlf == 1:
        g('v_add_co_u32 %s, vcc, 4096, %s' % (v(vPC), v(vPC)))
    g('s_lshl_b32 s%d, s%d, 13' % (sBG[0], sW))
    g('s_add_u32 m0, s%d, %d' % (sBG[0], L_CONST + 4096 * hlf))
    if hlf == 1:
        g('v_addc_co_u32 %s, vcc, 0, %s, vcc' % (v(vPC + 1), v(vPC + 1)))
    grp(CD, g)
    for i in range(4):
        CD('global_load_lds_dwordx4 %s, off offset:%d' % (v(vPC, 2), 1024 * i), tag='const')

CD0 = CD
LATE = Asm()
if OPT.get('late', 0):
    CD = LATE
if OPT.get('warmp', 1):
    g = Asm()
    g('s_mul_i32 s%d, s%d, 2816' % (sBG[1], sW))
    g('s_add_u32 s%d, s%d, s%d' % (sBG[1], sBG[1], sPB))
    g('s_add_u32 s%d, s%d, %d' % (sBG[1], sBG[1], WS_P))
    grp(CD, g)
    for i in range(3):
        g = Asm()
        if i == 2:
            g('s_mov_b32 exec_hi, 0xffff')
        g('buffer_store_dwordx4 %s, %s, %s, s%d offen offset:%d sc1' % (v(vONES, 4), v(vL16), srd(sWS), sBG[1], 1024 * i), tag='warmp')
        if i == 2:
            g('s_mov_b64 exec, -1')
        grp(CD, g)
CD('buffer_load_dword %s, %s, %s, 0 offen' % (v(vJunk + 1), v(vTch), srd(sWF_)), tag='junk')
if not OPT.get('now1'):
    CD('buffer_load_dword %s, %s, %s, 0 offen' % (v(vJunk + 2), v(vTch + 1), srd(sW1)), tag='junk')
CD = CD0
B = Asm()
vMG = V.get(1)
B('v_lshrrev_b32 %s, 3, %s' % (v(vMG), v(vLane)))
B('s_lshl_b32 s%d, s%d, 11' % (sT[0], sW))
B('v_lshl_add_u32 %s, %s, 8, s%d' % (v(vMG), v(vMG), sT[0]))
B('v_and_b32 %s, 7, %s' % (v(vt), v(vLane)))
B('v_lshl_add_u32 %s, %s, 4, %s' % (v(vMG), v(vt), v(vMG)))
vMA = V.get(6, 'mh', 1)
for i in range(3):
    g = Asm()
    g('s_add_u32 s%d, s%d, %d' % (sT[0], sW, 4 * i))
    g('s_mul_i32 s%d, s%d, 52' % (sT[1], sT[0]))
    g('s_lshr_b32 s%d, s%d, 8' % (sT[1], sT[1]))
    g('s_mul_i32 s%d, s%d, 5' % (sT[2], sT[1]))
    g('s_sub_u32 s%d, s%d, s%d' % (sT[2], sT[0], sT[2]))
    g('s_lshl_b32 s%d, s%d, 2' % (sT[3], sT[2]))
    g('s_cmp_lt_u32 s%d, 4' % sT[2])
    g('s_cselect_b32 s%d, s%d, 1024' % (sT[3], sT[3]))
    g('s_cselect_b32 s%d, 4, 2' % sT[2])
    g('s_mul_i32 s%d, s%d, 2560' % (sT[0], sT[1]))
    g('s_add_u32 s%d, s%d, s%d' % (sT[3], sT[3], sT[0]))
    g('v_lshlrev_b32 %s, s%d, %s' % (v(vMA + i), sT[2], v(vLane)))
    g('v_add_u32 %s, s%d, %s' % (v(vMA + i), sT[3], v(vMA + i)))
    g('s_cmp_eq_u32 s%d, 1' % sT[1])
    g('s_cselect_b32 s%d, 1.0, 0' % (sADD + i))
    grp(B, g)
A.add(B)
A('s_mul_i32 s%d, s%d, 0x9e3779b1' % (sT[0], sNONCE))
A('s_add_u32 s%d, s%d, 0x7f4a7c15' % (sT[0], sT[0]))
A('s_lshr_b32 s%d, s%d, 15' % (sT[1], sT[0]))
A('s_xor_b32 s%d, s%d, s%d' % (sT[0], sT[0], sT[1]))
A('s_mul_i32 s%d, s%d, 0x85ebca6b' % (sT[0], sT[0]))
A('s_lshr_b32 s%d, s%d, 13' % (sT[1], sT[0]))
A('s_xor_b32 s%d, s%d, s%d' % (sT[0], sT[0], sT[1]))
A('s_mov_b32 s%d, 0x55555555' % sT[5])
A('s_or_b32 s%d, s%d, 16' % (sT[0], sT[0]))
A('s_lshr_b32 s%d, s%d, 1' % (sT[1], sNONCE))
A('s_and_b32 s%d, s%d, s%d' % (sT[1], sT[1], sT[5]))
A('s_orn2_b32 s%d, s%d, s%d' % (sT[2], sNONCE, sT[1]))
A('s_and_b32 s%d, s%d, s%d' % (sT[2], sT[2], sT[5]))
A('s_and_b32 s%d, s%d, s%d' % (sT[3], sT[0], sT[1]))
A('s_xor_b32 s%d, s%d, s%d' % (sT[3], sT[3], sT[2]))
A('s_andn2_b32 s%d, s%d, s%d' % (sT[4], sT[2], sT[0]))
A('s_xor_b32 s%d, s%d, s%d' % (sT[4], sT[4], sT[1]))
A('s_lshl1_add_u32 s%d, s%d, s%d' % (sNONCE, sT[3], sT[4]))
A('s_lshl1_add_u32 s%d, s%d, s%d' % (sT[1], sT[1], sT[2]))
A('s_and_b32 s%d, s%d, 3' % (sT[1], sT[1]))
A('s_lshr_b32 s%d, s%d, 2' % (sT[2], sNONCE))
A('s_xor_b32 s%d, s%d, s%d' % (sT[2], sT[2], sNONCE))
A('s_lshl_b32 s%d, s%d, 2' % (sT[2], sT[2]))
A('s_cselect_b32 s%d, 0, s%d' % (sT[1], sT[1]))
A('s_xor_b32 s%d, s%d, s%d' % (sNONCE, sNONCE, sT[1]))
A('s_lshr_b32 s%d, s%d, 1' % (sT[1], sNONCE))
A('s_xor_b32 s%d, s%d, s%d' % (sT[2], sT[1], sNONCE))
A('s_and_b32 s%d, s%d, s%d' % (sT[1], sT[1], sT[5]))
A('s_and_b32 s%d, s%d, s%d' % (sT[2], sT[2], sT[5]))
A('s_lshl1_add_u32 s%d, s%d, s%d' % (sTAGZ, sT[2], sT[1]))
A('s_mov_b32 s%d, 0x40004000' % sTM)
stamp('pre_wm', lvl=3)


def silu(asm, x, t, n):
    for i in range(n):
        asm('v_mul_f32 %s, 0xbfb8aa3b, %s' % (v(t + i), v(x + i)))
    for i in range(n):
        asm('v_exp_f32 %s, %s' % (v(t + i), v(t + i)))
    for i in range(n):
        asm('v_add_f32 %s, 1.0, %s' % (v(t + i), v(t + i)))
    for i in range(n):
        asm('v_rcp_f32 %s, %s' % (v(t + i), v(t + i)))
    for i in range(n):
        asm('v_mul_f32 %s, %s, %s' % (v(x + i), v(x + i), v(t + i)))


lb = opt('s_cmp_ge_u32 s%d, 20' % sIDX)
t = V.get(8)
A('s_lshl_b32 s%d, s%d, 8' % (sT[0], sW))
A('v_add_u32 %s, s%d, %s' % (v(t + 4), sT[0], v(vL4)))
A('s_add_u32 s%d, s%d, %d' % (sT[0], sT[0], L_SILU))
A('v_lshl_add_u32 %s, %s, 3, s%d' % (v(t + 5), v(vG), sT[0]))
A('s_lshl_b32 s%d, s%d, 10' % (sT[0], sW))
A('v_add_u32 %s, s%d, %s' % (v(t + 6), sT[0], v(vL8)))
A('s_lshl_b32 s%d, s%d, 6' % (sT[0], sW))
A('v_lshl_add_u32 %s, %s, 4, s%d' % (v(t + 7), v(vG), sT[0]))
A('v_lshlrev_b32 %s, 16, %s' % (v(t), v(vC)))
A('v_and_b32 %s, s%d, %s' % (v(t + 1), sMASK, v(vC)))
silu(A, t, t + 2, 2)
A('v_cvt_pk_bf16_f32 %s, %s, %s' % (v(t), v(t), v(t + 1)))
A('ds_write_b32 %s, %s offset:%d' % (v(t + 4), v(t), L_SILU))
vSB, f, d = V.get(12), V.get(12), V.get(4)
for i in range(3):
    A('ds_read2_b64 %s, %s offset0:%d offset1:%d' % (v(vSB + 4 * i, 4), v(t + 5), 8 * i, 8 * i + 4))
stamp('silu', lvl=2)
A.wait_tag('wm')
stamp('wm_land', lvl=2)
for i in range(3):
    for rd in range(2):
        A('ds_read_b64_tr_b16 %s, %s offset:%d' % (v(f + 4 * i + 2 * rd, 2), v(t + 6), L_EX + 4096 * i + 512 * rd))
A('%s %s, %s, %s, 0' % (MF16, v(d, 4), v(f, 4), v(vSB, 4)))
A('%s %s, %s, %s, %s' % (MF16, v(d, 4), v(f + 4, 4), v(vSB + 4, 4), v(d, 4)))
lb2 = opt('s_cmp_ge_u32 s%d, 2' % sW)
A('%s %s, %s, %s, %s' % (MF16, v(d, 4), v(f + 8, 4), v(vSB + 8, 4), v(d, 4)))
opt_end(lb2)
A('ds_write_b128 %s, %s offset:%d' % (v(t + 7), v(d, 4), L_RED))
V.put(t, 8)
V.put(vSB, 12)
V.put(f, 12)
V.put(d, 4)
V.put(vC)
barrier()
lb0 = lb
lb = opt('s_cmp_lg_u32 s%d, 0' % sW)
p = V.get(8)
for i in range(4):
    A('ds_read_b64 %s, %s offset:%d' % (v(p + 2 * i, 2), v(vL8), L_RED + 64 * i))
A.wait_tag('wmod')
A('s_mov_b64 exec, 0xff')
A('v_pk_add_f32 %s, %s, %s' % (v(p, 2), v(p, 2), v(p + 2, 2)))
A('v_pk_add_f32 %s, %s, %s' % (v(p + 4, 2), v(p + 4, 2), v(p + 6, 2)))
A('v_add_f32 %s, %s, %s' % (v(p + 2), v(p + 1), v(p + 5)))
A('v_add_f32 %s, %s, %s' % (v(p), v(p), v(p + 4)))
A('v_mov_b32 %s, s%d' % (v(p + 1), sNONCE))
A('v_mov_b32 %s, s%d' % (v(p + 3), sNONCE))
A('buffer_store_dwordx4 %s, %s, %s, s%d offen sc1' % (v(p, 4), v(vL16), srd(sWS), sLINE), tag='pub')
A('s_mov_b64 exec, -1')
A('s_nop 1')
V.put(p, 8)
opt_end(lb)
opt_end(lb0)
stamp('pub0', lvl=3)
A.l += interleave(TRIG, CD)
stamp('trig', lvl=2)
V.put(tTRIG, 8)


B = Asm()
vXF = [V.get(10, 'l'), V.get(10, 'l')]
for r in range(2):
    for j in range(5):
        lo, hi = (j, 4 + j) if j < 4 else (8, 9)
        B('v_lshlrev_b32 %s, 16, %s' % (v(vXF[r] + lo), v(vXR + 5 * r + j)))
        B('v_and_b32 %s, s%d, %s' % (v(vXF[r] + hi), sMASK, v(vXR + 5 * r + j)))
V.put(vXR, 10)
ln_stats(B, vXF)
vNn = [V.get(10), V.get(10)]
ln_apply(B, vNn, vXF)
A.add(B)
V.put(vPC, 2)

vW1 = V.get(3, 'l', 1)
vW1r = V.get(1, 'l')


def w1_addr(asm, late):
    asm('s_mul_i32 s%d, s%d, 384' % (sT[0], sJ1))
    asm('s_mul_i32 s%d, s%d, 96' % (sT[1], sW))
    asm('s_add_u32 s%d, s%d, s%d' % (sT[0], sT[0], sT[1]))
    for i in range(3):
        asm('v_add_u32 %s, %d, %s' % (v(vt), 64 * i, v(vLane)))
        asm('v_mul_u32_u24 %s, 10923, %s' % (v(vt + 1), v(vt)))
        asm('v_lshrrev_b32 %s, 16, %s' % (v(vt + 1), v(vt + 1)))
        asm('v_mul_u32_u24 %s, 6, %s' % (v(vt + 2), v(vt + 1)))
        asm('v_sub_u32 %s, %s, %s' % (v(vt), v(vt), v(vt + 2)))
        asm('v_lshl_add_u32 %s, %s, 4, s%d' % (v(vt), v(vt), sT[0]))
        if not late:
            asm('v_lshrrev_b32 %s, 4, %s' % (v(vt + 2), v(vt + 1)))
            asm('v_bfe_u32 %s, %s, 1, 1' % (v(vt + 3), v(vt + 1)))
            asm('v_lshl_add_u32 %s, %s, 1, %s' % (v(vt + 2), v(vt + 2), v(vt + 3)))
            asm('v_bfe_u32 %s, %s, 2, 2' % (v(vt + 3), v(vt + 1)))
            asm('v_lshl_add_u32 %s, %s, 6, %s' % (v(vt + 2), v(vt + 2), v(vt + 3)))
            asm('v_and_b32 %s, 1, %s' % (v(vt + 3), v(vt + 1)))
            asm('v_lshl_add_u32 %s, %s, 1, %s' % (v(vt + 2), v(vt + 2), v(vt + 3)))
        else:
            asm('v_bfe_u32 %s, %s, 2, 2' % (v(vt + 2), v(vt + 1)))
            asm('v_lshrrev_b32 %s, 4, %s' % (v(vt + 3), v(vt + 1)))
            asm('v_lshl_add_u32 %s, %s, 1, %s' % (v(vt + 2), v(vt + 2), v(vt + 3)))
            asm('v_and_b32 %s, 3, %s' % (v(vt + 3), v(vt + 1)))
            asm('v_lshl_add_u32 %s, %s, 2, %s' % (v(vt + 2), v(vt + 2), v(vt + 3)))
        asm('v_mul_u32_u24 %s, 3072, %s' % (v(vt + 2), v(vt + 2)))
        if i:
            asm('v_subrev_u32 %s, %d, %s' % (v(vt + 2), 1024 * i, v(vt + 2)))
        asm('v_add_u32 %s, %s, %s' % (v(vW1 + i), v(vt), v(vt + 2)))


def slot(q):
    return q % 8 if q < 16 else q - 12


def w1_dma(asm, q0, q1):
    if OPT.get('now1'):
        return
    for q in range(q0, q1):
        row = 8 * q if q < 16 else 512 + 32 * (q - 16)
        for i in range(3):
            g = Asm()
            g('s_add_u32 m0, s%d, %d' % (sRING, L_RING + 12288 * slot(q)))
            if i == 0:
                g('s_mov_b32 s%d, %d' % (sBG[0], row * 3072))
            g('buffer_load_dwordx4 %s, %s, s%d offen offset:%d lds' % (v(vW1 + i), srd(sW1), sBG[0], 1024 * i), tag='w1_%d' % q)
            if i and OPT.get('m0once', 1):
                g.l.pop(0)
            grp(asm, g)


def w1_drain(asm, q0, q1):
    asm.wait_tag(['w1_%d' % q for q in range(q0, q1)])
    hi = None
    for q in range(q0, q1):
        s = slot(q)
        if hi != s // 4:
            hi = s // 4
            asm('v_add_u32 %s, %d, %s' % (v(vt), L_RING + 49152 * hi, v(vW1r)))
        for c in range(3):
            for rd in range(2):
                asm('ds_read_b64_tr_b16 %s, %s offset:%d' % (a((3 * q + c) * 4 + 2 * rd, 2), v(vt), 12288 * (s % 4) + 1536 * rd + 32 * c))
    asm.wait_lds()


w1_addr(A, False)
A('v_mul_u32_u24 %s, 96, %s' % (v(vW1r), v(vQ)))
A('v_lshl_add_u32 %s, %s, 3, %s' % (v(vW1r), v(vC8), v(vW1r)))
A('v_add_u32 %s, s%d, %s' % (v(vW1r), sRING, v(vW1r)))
vW2s = V.get(1)
A('s_min_u32 s%d, s%d, 239' % (sT[0], sL))
A('s_mul_i32 s%d, s%d, 205' % (sT[1], sT[0]))
A('s_lshr_b32 s%d, s%d, 10' % (sT[1], sT[1]))
A('s_mul_i32 s%d, s%d, 5' % (sT[2], sT[1]))
A('s_sub_u32 s%d, s%d, s%d' % (sT[0], sT[0], sT[2]))
A('s_lshl_b32 s%d, s%d, 2' % (sT[0], sT[0]))
A('s_add_u32 s%d, s%d, s%d' % (sT[0], sT[0], sW))
A('s_mul_i32 s%d, s%d, 43' % (sT[2], sT[1]))
A('s_lshr_b32 s%d, s%d, 8' % (sT[2], sT[2]))
A('s_mul_i32 s%d, s%d, 6' % (sT[3], sT[2]))
A('s_sub_u32 s%d, s%d, s%d' % (sT[3], sT[1], sT[3]))
A('s_mul_i32 s%d, s%d, 192' % (sT[2], sT[2]))
A('s_mul_i32 s%d, s%d, 48' % (sT[4], sT[3]))
A('s_mul_i32 s%d, s%d, 96' % (sT[5], sT[3]))
A('s_sub_u32 s%d, s%d, 352' % (sT[5], sT[5]))
A('s_cmp_lt_u32 s%d, 4' % sT[3])
A('s_cselect_b32 s%d, s%d, s%d' % (sT[4], sT[4], sT[5]))
A('s_cselect_b32 s%d, 16, 8' % sT[5])
A('s_cselect_b32 s%d, 0, 40' % sT[3])
A('s_add_u32 s%d, s%d, s%d' % (sT[2], sT[2], sT[4]))
A('v_mul_u32_u24 %s, s%d, %s' % (v(vW2s), sT[3], v(vH)))
A('v_add3_u32 %s, %s, %s, s%d' % (v(vW2s), v(vW2s), v(vQ), sT[2]))
A('v_mul_u32_u24 %s, 1280, %s' % (v(vW2s), v(vW2s)))
A('v_lshl_add_u32 %s, %s, 4, %s' % (v(vW2s), v(vC8), v(vW2s)))
sW2S = [3, sVER]
A('s_lshl_b32 s%d, s%d, 6' % (sW2S[0], sT[0]))
A('s_mul_i32 s%d, s%d, 1280' % (sT[5], sT[5]))
A('s_add_u32 s%d, s%d, s%d' % (sW2S[1], sT[5], sW2S[0]))
sW2D = [6, 7]
A('s_lshr_b32 s%d, s%d, 1' % (sT[2], sT[0]))
A('s_mul_i32 s%d, s%d, 240' % (sT[2], sT[2]))
A('s_and_b32 s%d, s%d, 1' % (sT[3], sT[0]))
A('s_lshl_b32 s%d, s%d, 1' % (sT[3], sT[3]))
A('s_add_u32 s%d, s%d, s%d' % (sT[2], sT[2], sT[3]))
A('s_mul_i32 s%d, s%d, 480' % (sT[3], sT[0]))
A('s_sub_u32 s%d, s%d, %d' % (sT[3], sT[3], 480 * 16 - 4))
A('s_cmp_lt_u32 s%d, 16' % sT[0])
A('s_cselect_b32 s%d, s%d, s%d' % (sT[2], sT[2], sT[3]))
A('s_cselect_b32 s%d, 1, 240' % sT[3])
A('s_mul_i32 s%d, s%d, 5' % (sT[1], sT[1]))
A('s_add_u32 s%d, s%d, s%d' % (sT[2], sT[2], sT[1]))
A('s_add_u32 s%d, s%d, s%d' % (sT[3], sT[3], sT[2]))
for k in range(2):
    A('s_lshl_b32 s%d, s%d, 10' % (sT[2 + k], sT[2 + k]))
    A('s_add_u32 s%d, s%d, %d' % (sW2D[k], sT[2 + k], WS_W2F))
vT64 = V.get(1)
A('v_lshlrev_b32 %s, 6, %s' % (v(vT64), v(vQ)))
A('v_lshl_add_u32 %s, %s, 3, %s' % (v(vT64), v(vC8), v(vT64)))


stamp('ln1', lvl=2)
A.wait_tag('pub')
stamp('pub_ack', lvl=2)
A.wait_tag('const')
stamp('const', lvl=2)
if OPT.get('sleep2'):
    lb = opt('s_cmp_lt_u32 s%d, 20' % sIDX)
    A('s_sleep %d' % OPT['sleep2'])
    opt_end(lb)
barrier()
stamp('b0b', lvl=3)


def mod_gather_loads(asm, d, i0, i1):
    for i in range(i0, i1):
        asm('s_mov_b32 s%d, %d' % (sT[5], WS_MODX + 8192 * i))
        for kh in range(2):
            asm('buffer_load_dwordx4 %s, %s, %s, s%d offen offset:%d sc1' % (v(d + 8 * i + 4 * kh, 4), v(vMG), srd(sWS), sT[5], 128 * kh))


vMD = V.get(24)
mod_gather_loads(A, vMD, 0, 2)
lb = opt('s_cmp_ge_u32 s%d, 2' % sW)
mod_gather_loads(A, vMD, 2, 3)
opt_end(lb)
K, KA = {}, {}
B = Asm()
na, nb = 0, 0
ca_ = V.get(1)
B('v_add_u32 %s, %d, %s' % (v(ca_), L_CONST, v(vL16)))
for i, n in enumerate(TN):
    if n.startswith('TW'):
        K[n] = V.get(4, 'l' if n.startswith('TW3') else 'mh')
        B('ds_read_b128 %s, %s offset:%d' % (v(K[n], 4), v(ca_), 1024 * i))
    else:
        if i < 10:
            KA[n] = a(96 + 4 * na, 4)
            na += 1
        else:
            KA[n] = a(192 + 4 * nb, 4)
            nb += 1
        B('ds_read_b128 %s, %s offset:%d' % (KA[n], v(ca_), 1024 * i))
assert 192 + 4 * nb <= 256
vAF = V.get(16)
for i in range(4):
    B('v_mov_b32 %s, 0' % v(vAF + 4 * i + 3))
vEXlo, vEXhi = [V.get(1), V.get(1)], [V.get(1), V.get(1)]
vEXa, vEXb = V.get(1, 'l'), V.get(1, 'l')
B('v_mul_u32_u24 %s, 84, %s' % (v(vEXa), v(vC8)))
B('v_lshrrev_b32 %s, 2, %s' % (v(vt), v(vN)))
B('v_add_u32 %s, %s, %s' % (v(vEXa), v(vEXa), v(vt)))
B('v_sub_u32 %s, 0, %s' % (v(vt), v(vN)))
B('v_and_b32 %s, 3, %s' % (v(vt), v(vt)))
B('v_mul_u32_u24 %s, 84, %s' % (v(vEXb), v(vt)))
B('v_add_u32 %s, 3, %s' % (v(vt), v(vN)))
B('v_lshrrev_b32 %s, 2, %s' % (v(vt), v(vt)))
B('v_sub_u32 %s, %s, %s' % (v(vEXb), v(vEXb), v(vt)))


def ex_addr(asm, lo, hi, gs, hb):
    asm('v_mul_u32_u24 %s, %d, %s' % (v(vt), gs, v(vG)))
    asm('s_add_u32 s%d, s%d, %d' % (sT[0], sRING, L_EX))
    asm('v_add_u32 %s, %s, %s' % (v(vt + 1), v(vEXa), v(vt)))
    asm('v_lshl_add_u32 %s, %s, 2, s%d' % (v(lo[0]), v(vt + 1), sT[0]))
    asm('v_add_u32 %s, 1536, %s' % (v(lo[1]), v(lo[0])))
    asm('s_add_u32 s%d, s%d, %d' % (sT[0], sT[0], 4 * hb))
    asm('v_sub_u32 %s, %s, %s' % (v(vt + 1), v(vEXb), v(vt)))
    asm('v_lshl_add_u32 %s, %s, 2, s%d' % (v(hi[0]), v(vt + 1), sT[0]))
    asm('v_add_u32 %s, 1536, %s' % (v(hi[1]), v(hi[0])))


ex_addr(B, vEXlo, vEXhi, 10, 35)
vEX8 = V.get(4, 'mh', 1)
B('v_mul_u32_u24 %s, 6144, %s' % (v(vt), v(vH)))
B('v_cmp_gt_u32 vcc, 84, %s' % v(vKW))
B('v_add_u32 %s, %d, %s' % (v(vt + 1), 336 - 84, v(vKW)))
for c in range(4):
    B('v_add_u32 %s, %d, %s' % (v(vt + 2), 84 * c, v(vKW)))
    B('v_cndmask_b32 %s, %s, %s, vcc' % (v(vt + 2), v(vt + 1), v(vt + 2)))
    B('v_lshl_add_u32 %s, %s, 2, %s' % (v(vEX8 + c), v(vt + 2), v(vt)))
EXO = L_EX // 256
vP = V.get(1)
B('v_mul_u32_u24 %s, 5632, %s' % (v(vP), v(vH)))
B('v_cmp_gt_u32 vcc, 88, %s' % v(vKW))
B('v_lshl_add_u32 %s, %s, 4, %s' % (v(vP), v(vKW), v(vP)))
B('v_cndmask_b32 %s, %s, %s, vcc' % (v(vP), v(vOOB), v(vP)))
vTG, vTZ = V.get(4, 'mh', 1), V.get(4, 'mh', 1)


def tag_masks(asm, dst, sreg):
    asm('v_lshlrev_b32 %s, 3, %s' % (v(vt), v(vC8)))
    asm('v_lshrrev_b32_e64 %s, %s, s%d' % (v(vt), v(vt), sreg))
    for d in range(4):
        asm('v_bfe_u32 %s, %s, %d, 1' % (v(vt + 1), v(vt), 2 * d))
        asm('v_bfe_u32 %s, %s, %d, 1' % (v(vt + 2), v(vt), 2 * d + 1))
        asm('v_lshl_or_b32 %s, %s, 16, %s' % (v(vt + 1), v(vt + 2), v(vt + 1)))
        asm('v_lshlrev_b32 %s, 14, %s' % (v(dst + d), v(vt + 1)))


tag_masks(B, vTG, sNONCE)
vWD = V.get(1)
g = Asm()
g('s_lshr_b32 s%d, s%d, 5' % (sT[0], sL))
g('s_mul_i32 s%d, s%d, 642' % (sT[0], sT[0]))
g('s_lshl_b32 s%d, s%d, 5' % (sT[1], sIDX))
g('s_min_u32 s%d, s%d, 610' % (sT[1], sT[1]))
g('s_add_u32 s%d, s%d, s%d' % (sT[0], sT[0], sT[1]))
g('s_and_b32 s%d, s%d, 1' % (sT[1], sW))
g('s_mul_i32 s%d, s%d, %d' % (sT[1], sT[1], 128 * 5136))
g('s_add_u32 s%d, s%d, s%d' % (sT[0], sT[0], sT[1]))
g('v_lshrrev_b32 %s, 1, %s' % (v(vWD), v(vLane)))
g('v_mul_u32_u24 %s, 5136, %s' % (v(vWD), v(vWD)))
g('v_and_b32 %s, 1, %s' % (v(vt), v(vLane)))
g('v_lshl_add_u32 %s, %s, 4, s%d' % (v(vt), v(vt), sT[0]))
g('v_add_u32 %s, %s, %s' % (v(vWD), v(vWD), v(vt)))
B.add(g)
M = LATE
NQ0 = OPT.get('nq0', 1)
w1_dma(M, 0, NQ0)
A.l += interleave(B, M)
stamp('s0_wait', lvl=3)
V.put(ca_)
V.put(vTch, 2)


def mod_finish(i0, i1):
    verify(A, lambda c: mod_gather_loads(c, vMD, i0, i1), lambda c: check_tags(c, [vMD + 2 * k + 1 for k in range(4 * i0, 4 * i1)], tmp))
    for i in range(i0, i1):
        b = vMD + 8 * i
        A('v_add_f32 %s, %s, %s' % (v(b), v(b), v(b + 4)))
        A('v_add_f32 %s, %s, %s' % (v(b + 2), v(b + 2), v(b + 6)))
    for i in range(i0, i1):
        b = vMD + 8 * i
        A('v_cvt_pk_bf16_f32 %s, %s, %s' % (v(b), v(b), v(b + 2)))
    for i in range(i0, i1):
        b = vMD + 8 * i
        A('v_and_b32 %s, s%d, %s' % (v(b + 1), sMASK, v(b)))
        A('v_lshlrev_b32 %s, 16, %s' % (v(b), v(b)))
        A('v_add_f32 %s, s%d, %s' % (v(b + 1), sADD + i, v(b + 1)))
        A('v_add_f32 %s, s%d, %s' % (v(b), sADD + i, v(b)))
        A('ds_write2st64_b32 %s, %s, %s offset0:%d offset1:%d' % (v(vMA + i), v(b), v(b + 1), L_MOD // 256, L_MOD // 256 + 5))


mod_finish(0, 2)
lb = opt('s_cmp_ge_u32 s%d, 2' % sW)
mod_finish(2, 3)
opt_end(lb)
V.put(vMD, 24)
V.put(vMG)
barrier()
stamp('s0_done', lvl=3)
P = Asm()
vM0, vM1 = V.get(10), V.get(10)
read_mod(P, vM1, 1, vL16, vL4)
read_mod(P, vM0, 0, vL16, vL4)
for r in range(2):
    for p in range(5):
        P('v_pk_fma_f32 %s, %s, %s, %s' % (v(vNn[r] + 2 * p, 2), v(vNn[r] + 2 * p, 2), v(vM1 + 2 * p, 2), v(vM0 + 2 * p, 2)))
V.put(vM0, 10)
V.put(vM1, 10)
vD = V.get(32)
for r in range(2):
    for t_ in range(2):
        f = vAF + 8 * r + 4 * t_
        h = vNn[r]
        P('v_cvt_pk_bf16_f32 %s, %s, %s' % (v(f), v(h + 4 * t_), v(h + 4 * t_ + 1)))
        P('v_cvt_pk_bf16_f32 %s, %s, %s' % (v(f + 1), v(h + 4 * t_ + 2), v(h + 4 * t_ + 3)))
        P('v_cvt_pk_bf16_f32 %s, %s, %s' % (v(f + 2), v(h + 8 + t_), v(h + 8 + t_)))
    for t_ in range(2):
        f = vAF + 8 * r + 4 * t_
        d = vD + 16 * r + 8 * t_
        P('%s %s, %s, %s, 0' % (MF16, v(d, 4), v(f, 4), KA['C1c']))
        P('%s %s, %s, %s, 0' % (MF16, v(d + 4, 4), v(f, 4), KA['C1s']))
V.put(vNn[0], 10)
V.put(vNn[1], 10)
tt = V.get(8)
vB = V.get(16)
vE = V.get(8)
for r in range(2):
    for t_ in range(2):
        d = vD + 16 * r + 8 * t_
        cmul(P, d, d + 4, K['TW1c%d' % t_], K['TW1s%d' % t_], tt, tt + 4, -1)
        for i in range(4):
            P('v_cvt_pk_bf16_f32 %s, %s, %s' % (v(vB + 4 * t_ + i), v(tt + i), v(tt + 4 + i)))
        if t_ == 0:
            for mt in range(2):
                P('%s %s, %s, %s, 0' % (MF16, v(vE + 4 * mt, 4), KA['A2_%d0' % mt], v(vB, 4)))
        else:
            for i in range(4):
                P('v_cvt_pk_bf16_f32 %s, -%s, -%s' % (v(vB + 8 + i), v(tt + i), v(tt + 4 + i)))
            d = vD + 16 * r
            for mt in range(2):
                P('%s %s, %s, %s, %s' % (MF16, v(d + 4 * mt, 4), KA['A2_%d1' % mt], v(vB + 4, 4), v(vE + 4 * mt, 4)))
            for mt in range(2):
                P('%s %s, %s, %s, %s' % (MF16, v(d + 8 + 4 * mt, 4), KA['A2_%d1' % mt], v(vB + 8, 4), v(vE + 4 * mt, 4)))
for r in range(2):
    d = vD + 16 * r
    o = vAF + 8 * r
    for mt in range(2):
        for e in range(2):
            P('v_cvt_pk_bf16_f32 %s, %s, %s' % (v(o + 2 * mt + e), v(d + 4 * mt + 2 * e), v(d + 4 * mt + 2 * e + 1)))
        P('ds_write2_b32 %s, %s, %s offset0:%d offset1:%d' % (v(vEXlo[r]), v(o + 2 * mt), v(o + 2 * mt + 1), 40 * mt, 40 * mt + 5))
    for mt in range(2):
        for e in range(2):
            P('v_cvt_pk_bf16_f32 %s, %s, -%s' % (v(o + 4 + 2 * mt + e), v(d + 8 + 4 * mt + 2 * e), v(d + 8 + 4 * mt + 2 * e + 1)))
        P('ds_write2_b32 %s, %s, %s offset0:%d offset1:%d' % (v(vEXhi[r]), v(o + 4 + 2 * mt), v(o + 4 + 2 * mt + 1), 45 - 40 * mt, 40 - 40 * mt))
V.put(tt, 8)
V.put(vE, 8)
V.put(vD, 32)
for n in TN[:10]:
    if n in K:
        V.put(K[n], 4)
for x in vEXlo + vEXhi:
    V.put(x)
NQ1 = OPT.get('nq1', 2)


def wf_dma(asm):
    for i in range(4):
        g = Asm()
        g('s_lshl_b32 s%d, s%d, 12' % (sBG[1], sW))
        g('s_add_u32 m0, s%d, %d' % (sBG[1], L_GW + 1024 * i))
        g('s_mov_b32 s%d, %d' % (sBG[1], 32 * 5136 * i))
        g('buffer_load_dwordx4 %s, %s, s%d offen lds' % (v(vWD), srd(sWF_), sBG[1]), tag='wf')
        grp(asm, g)


M = Asm()
for k in range(2):
    g = Asm()
    g('s_add_u32 m0, s%d, %d' % (sRING, L_WRAW + 1024 * k))
    g('buffer_load_dwordx4 %s, %s, s%d offen lds' % (v(vW2s), srd(sW2), sW2S[k]), tag='w2raw')
    grp(M, g)
w1_dma(M, NQ0, NQ1)
A.l += interleave(P, M)
A.wait_tag('warmp')
barrier()
lb = opt('s_cmp_eq_u32 s%d, 3' % sW)
vD8 = [V.get(16) for _ in range(4)]
for c in range(4):
    A('ds_read2st64_b32 %s, %s offset0:%d offset1:%d' % (v(vB + 4 * c, 2), v(vEX8 + c), EXO, EXO + 6))
    A('ds_read2st64_b32 %s, %s offset0:%d offset1:%d' % (v(vB + 4 * c + 2, 2), v(vEX8 + c), EXO + 12, EXO + 18))
for c in range(4):
    A('%s %s, %s, %s, 0' % (MF32, v(vD8[c], 16), v(vA8, 4), v(vB + 4 * c, 4)))
A('s_add_u32 s%d, s%d, %d' % (sT[0], sPB, WS_P))
A('s_add_u32 s%d, s%d, %d' % (sT[1], sPB, WS_P + 2816))
for c in range(4):
    for q in range(4):
        A('v_cvt_pk_bf16_f32 %s, %s, %s' % (v(vAF + 4 * q + c), v(vD8[c] + 2 * q), v(vD8[c] + 2 * q + 1)))
    for q in range(4):
        A('v_bfi_b32 %s, s%d, %s, %s' % (v(vAF + 4 * q + c), sTM, v(vTG + c), v(vAF + 4 * q + c)))
        if c == 3:
            A('buffer_store_dwordx4 %s, %s, %s, s%d offen offset:%d sc1' % (v(vAF + 4 * q, 4), v(vP), srd(sWS), sT[q >> 1], 1408 * (q & 1)), tag='pst')
A('s_nop 1')
opt_end(lb)
for x in vD8:
    V.put(x, 16)
V.put(vB, 16)
V.put(vA8, 4)
stamp('p1_done')
tag_masks(A, vTZ, sTAGZ)
A.wait_tag('junk')
V.put(vJunk, 3)
V.put(vAF, 16)


def w2_format(asm):
    f = V.get(8)
    asm('s_add_u32 s%d, s%d, %d' % (sT[0], sRING, L_WRAW))
    asm('v_add_u32 %s, s%d, %s' % (v(vW2s), sT[0], v(vT64)))
    asm.wait_tag('w2raw')
    for tt_ in range(2):
        for rd in range(2):
            asm('ds_read_b64_tr_b16 %s, %s offset:%d' % (v(f + 4 * tt_ + 2 * rd, 2), v(vW2s), 1024 * rd + 32 * tt_))
    for tt_ in range(2):
        asm('buffer_store_dwordx4 %s, %s, %s, s%d offen sc1' % (v(f + 4 * tt_, 4), v(vL16), srd(sWS), sW2D[tt_]), tag='w2st')
    asm('s_nop 1')
    V.put(f, 8)


NQ2, NQ3, NQ4 = OPT.get('nq2', 4), OPT.get('nq3', 8), OPT.get('nq4', 12)
assert NQ0 <= 5 and NQ2 <= 7 and NQ3 <= 8 and NQ4 <= NQ2 + 8
lbI = opt('s_cmp_eq_u32 s%d, 0' % sITEM)
wf_dma(A)
vPG, vGR, vZB, vWR = V.get(1), V.get(1), V.get(1), V.get(1)
B = Asm()
B('s_lshr_b32 s%d, s%d, 5' % (sT[2], sL))
B('s_mul_i32 s%d, s%d, 1408' % (sT[1], sT[2]))
B('s_lshl_b32 s%d, s%d, 6' % (sT[0], sIDX))
B('s_add_u32 s%d, s%d, s%d' % (sPG, sT[0], sT[1]))
B('s_lshl_b32 s%d, s%d, 6' % (sT[0], sW))
B('v_add_u32 %s, s%d, %s' % (v(vPG), sT[0], v(vQ)))
B('v_mul_u32_u24 %s, %d, %s' % (v(vPG), PBLK, v(vPG)))
B('v_lshl_add_u32 %s, %s, 4, %s' % (v(vPG), v(vC8), v(vPG)))
B('v_xor_b32 %s, %s, %s' % (v(vt), v(vC8), v(vG)))
B('s_lshl_b32 s%d, s%d, 12' % (sT[0], sW))
B('v_lshl_add_u32 %s, %s, 4, s%d' % (v(vZB), v(vt), sT[0]))
B('v_lshl_add_u32 %s, %s, 6, %s' % (v(vZB), v(vQ), v(vZB)))
B('v_lshrrev_b32 %s, 2, %s' % (v(vt), v(vN)))
B('v_xor_b32 %s, s%d, %s' % (v(vt), sW, v(vt)))
B('v_lshlrev_b32 %s, 4, %s' % (v(vt), v(vt)))
B('v_lshl_add_u32 %s, %s, 6, %s' % (v(vt), v(vN), v(vt)))
B('v_lshl_add_u32 %s, %s, 12, %s' % (v(vGR), v(vG), v(vt)))
g = Asm()
g('s_lshl_b32 s%d, s%d, 3' % (sT[0], sW))
g('s_cmp_eq_u32 s%d, 20' % sIDX)
g('s_cselect_b32 s%d, 30, s%d' % (sT[0], sT[0]))
grp(B, g)
B('v_lshl_add_u32 %s, %s, 6, %s' % (v(vWR), v(vG), v(vN)))
B('v_lshl_add_u32 %s, %s, 5, s%d' % (v(vWR), v(vWR), sT[0]))
M = Asm()
w1_dma(M, NQ1, NQ2)
A.l += interleave(B, M)


def p_gather(asm, d):
    for i in range(4):
        asm('s_add_u32 s%d, s%d, %d' % (sT[5], sPG, WS_P + i * 16 * PBLK))
        asm('buffer_load_dwordx4 %s, %s, %s, s%d offen sc1' % (v(d + 4 * i, 4), v(vPG), srd(sWS), sT[5]))


vPD, vWG, vWr, vWi = V.get(16), V.get(16), V.get(16), V.get(16)
A.wait_tag('pst')
A('s_barrier')
stamp('s1_acked')
p_gather(A, vPD)
w2_format(A)
A.wait_tag('wf')
barrier()
for k in range(2):
    for i in range(4):
        A('ds_read_b64 %s, %s offset:%d' % (v(vWG + 8 * k + 2 * i, 2), v(vWR), L_GW + 8192 * k + 512 * i))
B = Asm()
for k, dst in enumerate((vWr, vWi)):
    for i in range(4):
        for p in range(2):
            B('v_lshlrev_b32 %s, 16, %s' % (v(dst + 8 * p + i), v(vWG + 8 * k + 2 * i + p)))
            B('v_and_b32 %s, s%d, %s' % (v(dst + 8 * p + 4 + i), sMASK, v(vWG + 8 * k + 2 * i + p)))
w1_drain(B, 0, NQ2)
M = Asm()
w1_dma(M, NQ2, NQ3)
A.l += interleave(B, M)
verify(A, lambda c: p_gather(c, vPD), lambda c: check_bits(c, range(vPD, vPD + 16), vTG, tmp), False)
for i in range(4):
    A('ds_write_b128 %s, %s offset:%d' % (v(vZB), v(vPD + 4 * i, 4), L_GP + 1024 * i))
barrier()
for i in range(4):
    A('ds_read_b128 %s, %s offset:%d' % (v(vPD + 4 * i, 4), v(vGR), L_GP + 1024 * i))
stamp('s1_done')
P = Asm()
for i in range(4):
    for c in range(i + 1, 4):
        P('v_swap_b32 %s, %s' % (v(vPD + 4 * i + c), v(vPD + 4 * c + i)))
vD = V.get(32)
tt = V.get(8)
TWc, TWs = K['TW2c'], K['TW2s']


def st(c, stage):
    d, x = vD + 8 * c, v(vPD + 4 * c, 4)
    fr, fi = KA['Fre'], KA['Fim']
    ops = [((x, fr), (x, fi)), ((fr, x), (fi, x)), ((x, fi), (x, fr)), ((fi, x), (fr, x))][stage]
    for k in range(2):
        P('%s %s, %s, %s, 0' % (MF16, v(d + 4 * k, 4), ops[k][0], ops[k][1]))


for c in range(4):
    st(c, 0)
for stage in range(3):
    for c in range(4):
        d = vD + 8 * c
        if stage == 0:
            cmul(P, d, d + 4, TWc, TWs, tt, tt + 4, -1)
        elif stage == 1:
            cmul(P, d, d + 4, vWr + 4 * c, vWi + 4 * c, tt, tt + 4, +1)
        else:
            cmul(P, d, d + 4, TWc, TWs, tt, tt + 4, +1)
        for i in range(4):
            lo, hi = (tt + i, tt + 4 + i) if stage == 0 else (tt + 4 + i, tt + i)
            P('v_cvt_pk_bf16_f32 %s, %s, %s' % (v(vPD + 4 * c + i), v(lo), v(hi)))
        st(c, stage + 1)
vO = vWr
for c in range(3):
    for i in range(4):
        P('v_cvt_pk_bf16_f32 %s, %s, %s' % (v(vO + 4 * i + c), v(vD + 8 * c + i), v(vD + 8 * c + 4 + i)))
M = Asm()
w1_dma(M, NQ3, NQ4)
A.l += interleave(P, M, 0, int(len(P.l) * 0.85))
for i in range(4):
    A('v_cvt_pk_bf16_f32 %s, %s, %s' % (v(vO + 4 * i + 3), v(vD + 24 + i), v(vD + 28 + i)))
    A('ds_write_b128 %s, %s offset:%d' % (v(vGR), v(vO + 4 * i, 4), L_GW + 1024 * i))
A.wait_tag('w2st')
barrier()
for i in range(4):
    A('ds_read_b128 %s, %s offset:%d' % (v(vPD + 4 * i, 4), v(vZB), L_GW + 1024 * i))
for i in range(4):
    for d in range(4):
        A('v_bfi_b32 %s, s%d, %s, %s' % (v(vPD + 4 * i + d), sTM, v(vTZ + d), v(vPD + 4 * i + d)))
    A('s_add_u32 s%d, s%d, %d' % (sT[5], sPG, WS_P + i * 16 * PBLK))
    A('buffer_store_dwordx4 %s, %s, %s, s%d offen sc1' % (v(vPD + 4 * i, 4), v(vPG), srd(sWS), sT[5]), tag='zst')
stamp('p2_done')
w1_drain(A, NQ2, NQ4)
V.put(vD, 32)
V.put(tt, 8)
V.put(vWG, 16)
V.put(vPD, 16)
V.put(vWr, 16)
V.put(vWi, 16)
for x in (vPG, vWR, vGR, vZB):
    V.put(x)
opt_end(lbI)
for n in TN[10:14]:
    if n in K:
        V.put(K[n], 4)
lbII = opt('s_cmp_lg_u32 s%d, 0' % sITEM)
barrier()
x_, t, ad = V.get(4), V.get(4), V.get(4)
A('s_mul_i32 s%d, s%d, 320' % (sT[0], sW))
A('v_add_u32 %s, s%d, %s' % (v(ad + 1), sT[0], v(vL8)))
A('buffer_load_dwordx2 %s, %s, %s, 0 offen' % (v(t, 2), v(ad + 1), srd(sC)))
A('s_lshr_b32 s%d, s%d, 5' % (sT[1], sL))
A('s_mul_i32 s%d, s%d, 10' % (sT[2], sT[1]))
A('s_max_u32 s%d, s%d, 22' % (sT[3], sIDX))
A('s_add_u32 s%d, s%d, s%d' % (sT[2], sT[2], sT[3]))
A('s_sub_u32 s%d, s%d, 22' % (sT[2], sT[2]))
A('s_add_u32 s%d, s%d, 80' % (sT[1], sT[1]))
A('s_cmp_ge_u32 s%d, 22' % sIDX)
A('s_cselect_b32 s%d, s%d, s%d' % (sT[1], sT[2], sT[1]))
A('s_lshl_b32 s%d, s%d, 7' % (sT[1], sT[1]))
A('s_add_u32 s%d, s%d, %d' % (sPG, sT[1], WS_MOD2))
A('s_sub_u32 s%d, s%d, 40' % (sT[1], sT[2]))
A('s_cmp_lt_u32 s%d, 20' % sT[1])
A('s_cselect_b32 s%d, 1.0, 0' % sCOL)
A('s_lshl_b32 s%d, s%d, 6' % (sT[2], sT[2]))
A('s_mul_i32 s%d, s%d, %d' % (sT[3], sW, 160 * 7680))
A('s_add_u32 s%d, s%d, s%d' % (sT[2], sT[2], sT[3]))
A('s_add_u32 s%d, s%d, 2560' % (sT[2], sT[2]))
A('v_mul_u32_u24 %s, 7680, %s' % (v(ad), v(vQ)))
A('v_lshl_add_u32 %s, %s, 4, %s' % (v(ad), v(vC8), v(ad)))
A('s_mul_i32 s%d, s%d, 10240' % (sT[3], sW))
for b in range(10):
    A('s_add_u32 m0, s%d, %d' % (sT[3], L_EX + 1024 * b))
    A('s_add_u32 s%d, s%d, %d' % (sT[4], sT[2], b * 16 * 7680))
    A('buffer_load_dwordx4 %s, %s, s%d offen lds' % (v(ad), srd(sWM), sT[4]), tag='wm2')
A('v_add_u32 %s, s%d, %s' % (v(ad), sT[3], v(vT64)))
A('s_add_u32 s%d, s%d, %d' % (sT[0], sT[0], L_SILU))
A('v_lshl_add_u32 %s, %s, 3, s%d' % (v(ad + 2), v(vG), sT[0]))
A('s_lshl_b32 s%d, s%d, 7' % (sT[0], sW))
A('v_lshl_add_u32 %s, %s, 4, s%d' % (v(ad + 3), v(vG), sT[0]))
w1_drain(A, 0, NQ1)
w2_format(A)
A.wait_lds()
w1_dma(A, NQ1, min(NQ1 + 8, NQ4))
for p in range(2):
    A('v_lshlrev_b32 %s, 16, %s' % (v(x_ + 2 * p), v(t + p)))
    A('v_and_b32 %s, s%d, %s' % (v(x_ + 2 * p + 1), sMASK, v(t + p)))
silu(A, x_, t, 4)
for p in range(2):
    A('v_cvt_pk_bf16_f32 %s, %s, %s' % (v(x_ + p), v(x_ + 2 * p), v(x_ + 2 * p + 1)))
A('s_mov_b32 exec_hi, 0xff')
A('ds_write_b64 %s, %s offset:%d' % (v(ad + 1), v(x_, 2), L_SILU))
A('s_mov_b64 exec, -1')
f, sb, d = V.get(40), V.get(20), V.get(8)
for k in range(5):
    A('ds_read2_b64 %s, %s offset0:%d offset1:%d' % (v(sb + 4 * k, 4), v(ad + 2), 8 * k, 8 * k + 4))
A.wait_tag('wm2')
for k in range(5):
    for tt_ in range(2):
        for rd in range(2):
            A('ds_read_b64_tr_b16 %s, %s offset:%d' % (v(f + 8 * k + 4 * tt_ + 2 * rd, 2), v(ad), L_EX + 2048 * k + 1024 * rd + 32 * tt_))
for k in range(5):
    for tt_ in range(2):
        A('%s %s, %s, %s, %s' % (MF16, v(d + 4 * tt_, 4), v(f + 8 * k + 4 * tt_, 4), v(sb + 4 * k, 4), v(d + 4 * tt_, 4) if k else '0'))
for tt_ in range(2):
    A('ds_write_b128 %s, %s offset:%d' % (v(ad + 3), v(d + 4 * tt_, 4), L_RED + 64 * tt_))
A.wait_tag('w2st')
barrier()
lb = opt('s_cmp_lg_u32 s%d, 0' % sW)
for i in range(4):
    A('ds_read_b128 %s, %s offset:%d' % (v(f + 4 * i, 4), v(vL16), L_RED + 128 * i))
A('s_mov_b64 exec, 0xff')
for p in (0, 2):
    A('v_pk_add_f32 %s, %s, %s' % (v(f + p, 2), v(f + p, 2), v(f + 4 + p, 2)))
    A('v_pk_add_f32 %s, %s, %s' % (v(f + 8 + p, 2), v(f + 8 + p, 2), v(f + 12 + p, 2)))
    A('v_pk_add_f32 %s, %s, %s' % (v(f + p, 2), v(f + p, 2), v(f + 8 + p, 2)))
    A('v_cvt_pk_bf16_f32 %s, %s, %s' % (v(f + p), v(f + p), v(f + p + 1)))
    A('v_and_b32 %s, s%d, %s' % (v(f + p + 1), sMASK, v(f + p)))
    A('v_lshlrev_b32 %s, 16, %s' % (v(f + p), v(f + p)))
    A('v_add_f32 %s, s%d, %s' % (v(f + p + 1), sCOL, v(f + p + 1)))
    A('v_add_f32 %s, s%d, %s' % (v(f + p), sCOL, v(f + p)))
    A('v_cvt_pk_bf16_f32 %s, %s, %s' % (v(f + p), v(f + p), v(f + p + 1)))
    A('v_mov_b32 %s, s%d' % (v(f + p + 1), sNONCE))
A('buffer_store_dwordx4 %s, %s, %s, s%d offen sc1' % (v(f, 4), v(vL16), srd(sWS), sPG), tag='zst')
A('s_mov_b64 exec, -1')
A('s_nop 1')
opt_end(lb)
w1_drain(A, NQ1, 8)
w1_dma(A, NQ1 + 8, NQ4)
w1_drain(A, 8, NQ4)
for x, n in ((x_, 4), (t, 4), (ad, 4), (sb, 20), (f, 40), (d, 8)):
    V.put(x, n)
opt_end(lbII)
V.put(vW2s)
V.put(vT64)
V.put(vWD)
w1_dma(A, NQ4, 16)
vZ = vP
A('v_cmp_gt_u32 vcc, 84, %s' % v(vKW))
for i in range(4):
    A('v_mov_b32 %s, -1' % v(vONES + i))
A('v_cndmask_b32 %s, %s, %s, vcc' % (v(vZ), v(vOOB), v(vZ)))
for d in range(4):
    A('v_cndmask_b32 %s, 0, %s, vcc' % (v(vTZ + d), v(vTZ + d)))
A('s_add_u32 s%d, s%d, %d' % (sZS, sPB, WS_P))
A('s_mul_i32 s%d, s%d, 2560' % (sT[0], sW))
A('s_add_u32 s%d, s%d, s%d' % (sYX, sZS, sT[0]))
V.put(vKW)
V.put(vTG, 4)
vM2 = V.get(2, 'mh', 1)
A('s_mul_i32 s%d, s%d, 3072' % (sT[0], sW))
A('v_add_u32 %s, s%d, %s' % (v(vM2), sT[0], v(vL16)))
A('v_min_u32 %s, %d, %s' % (v(vM2 + 1), 88 * 128 - 16 - 2048, v(vM2)))
A('s_mul_i32 s%d, s%d, 6' % (sT[0], sW))
A('v_lshlrev_b32 %s, 1, %s' % (v(vt + 3), v(vKD)))
for i in range(3):
    A('s_add_u32 s%d, s%d, %d' % (sT[1], sT[0], 2 * i + 10))
    A('v_add_u32 %s, s%d, %s' % (v(vt), sT[1], v(vH)))
    A('v_mul_u32_u24 %s, 52, %s' % (v(vt + 1), v(vt)))
    A('v_lshrrev_b32 %s, 8, %s' % (v(vt + 1), v(vt + 1)))
    A('v_mul_u32_u24 %s, 5, %s' % (v(vt + 2), v(vt + 1)))
    A('v_sub_u32 %s, %s, %s' % (v(vt), v(vt), v(vt + 2)))
    A('v_cmp_gt_u32 vcc, 4, %s' % v(vt))
    A('v_lshl_add_u32 %s, %s, 2, %s' % (v(vt), v(vt + 3), v(vt)))
    A('v_add_u32 %s, 256, %s' % (v(vt + 2), v(vt + 3)))
    A('v_cndmask_b32 %s, %s, %s, vcc' % (v(vt), v(vt + 2), v(vt)))
    A('v_mul_u32_u24 %s, 2560, %s' % (v(vt + 1), v(vt + 1)))
    A('v_lshl_add_u32 %s, %s, 2, %s' % (v(vMA + 2 * i), v(vt), v(vt + 1)))
    A('v_cndmask_b32_e64 %s, 4, 16, vcc' % v(vt))
    A('v_add_u32 %s, %s, %s' % (v(vMA + 2 * i + 1), v(vt), v(vMA + 2 * i)))
w1_addr(A, True)


def z_gather(asm, d):
    asm('s_add_u32 s%d, s%d, 2816' % (sT[5], sZS))
    for q in range(4):
        asm('buffer_load_dwordx4 %s, %s, %s, s%d offen offset:%d sc1' % (v(d + 4 * q, 4), v(vZ), srd(sWS), sT[5] if q > 1 else sZS, 1408 * (q & 1)))


def mod2_gather(asm, d):
    asm('s_mov_b32 s%d, %d' % (sT[5], WS_MOD2))
    for i in range(3):
        asm('buffer_load_dwordx4 %s, %s, %s, s%d offen offset:%d sc1' % (v(d + 4 * i, 4), v(vM2 + (i == 2)), srd(sWS), sT[5], 1024 * i))


vZD, vMD = V.get(16), V.get(12)
A.wait_tag('zst')
if OPT.get('b2b', 1):
    barrier()
stamp('s2_acked')
lb = opt('s_cmp_eq_u32 s%d, 3' % sW)
z_gather(A, vZD)
opt_end(lb)
mod2_gather(A, vMD)
w1_drain(A, NQ4, 16)
sHS = sPG
A('s_mul_i32 s%d, s%d, 196608' % (sT[0], sG1))
A('s_mul_i32 s%d, s%d, 6144' % (sT[1], sJ1))
A('s_add_u32 s%d, s%d, s%d' % (sHS, sT[0], sT[1]))
A('s_add_u32 s%d, s%d, %d' % (sHS, sHS, WS_H))
A('s_lshl_b32 s%d, s%d, 2' % (sT[0], sL))
A('s_add_u32 s%d, s%d, s%d' % (sT[0], sT[0], sW))
A('s_mul_i32 s%d, s%d, 6144' % (sT[0], sT[0]))
A('s_add_u32 s%d, s%d, %d' % (sT[0], sT[0], WS_H))
A('s_add_u32 s%d, s%d, 3072' % (sT[1], sT[0]))
for i in range(6):
    A('buffer_store_dwordx4 %s, %s, %s, s%d offen offset:%d sc1' % (v(vONES, 4), v(vL16), srd(sWS), sT[i // 3], 1024 * (i % 3)), tag='clrh')
NQ5 = OPT.get('nq5', 17)
w1_dma(A, 16, NQ5)
vU0, vU1 = [V.get(1, 'h'), V.get(1, 'h')], [V.get(1, 'h'), V.get(1, 'h')]
ex_addr(A, vU0, vU1, 20, 65)
V.put(vEXa)
V.put(vEXb)
sW2F = sPB
A('s_lshl_b32 s%d, s%d, 2' % (sT[0], sJ))
A('s_add_u32 s%d, s%d, s%d' % (sT[0], sT[0], sW))
A('s_mul_i32 s%d, s%d, 61440' % (sW2F, sT[0]))
A('s_add_u32 s%d, s%d, %d' % (sW2F, sW2F, WS_W2F))
lb = opt('s_cmp_eq_u32 s%d, 3' % sW)
verify(A, lambda c: z_gather(c, vZD), lambda c: check_bits(c, range(vZD, vZD + 16), vTZ, tmp), False)
stamp('s2_done')
for i in range(4):
    for c in range(i + 1, 4):
        A('v_swap_b32 %s, %s' % (v(vZD + 4 * i + c), v(vZD + 4 * c + i)))
vD8 = [V.get(16) for _ in range(4)]
for c in range(4):
    A('%s %s, %s, %s, 0' % (MF32, v(vD8[c], 16), v(vA8i, 4), v(vZD + 4 * c, 4)))
for c in range(4):
    for q in range(4):
        A('v_cvt_pk_bf16_f32 %s, %s, %s' % (v(vZD + 4 * c + q), v(vD8[c] + 2 * q), v(vD8[c] + 2 * q + 1)))
    A('ds_write2st64_b32 %s, %s, %s offset0:%d offset1:%d' % (v(vEX8 + c), v(vZD + 4 * c), v(vZD + 4 * c + 1), EXO, EXO + 6))
    A('ds_write2st64_b32 %s, %s, %s offset0:%d offset1:%d' % (v(vEX8 + c), v(vZD + 4 * c + 2), v(vZD + 4 * c + 3), EXO + 12, EXO + 18))
opt_end(lb)
verify(A, lambda c: mod2_gather(c, vMD), lambda c: check_tags(c, [vMD + 2 * k + 1 for k in range(6)], tmp))
for k in range(6):
    b = vMD + 2 * k
    A('v_and_b32 %s, s%d, %s' % (v(b + 1), sMASK, v(b)))
    A('v_lshlrev_b32 %s, 16, %s' % (v(b), v(b)))
    A('ds_write2st64_b32 %s, %s, %s offset0:%d offset1:%d' % (v(vMA + k), v(b), v(b + 1), L_MOD // 256, L_MOD // 256 + 5))
barrier()
for x, n in ((vD8[0], 16), (vD8[1], 16), (vD8[2], 16), (vD8[3], 16), (vA8i, 4), (vMA, 6), (vMD, 12), (vM2, 2), (vZ, 1), (vTZ, 4), (vZD, 16), (vEX8, 4)):
    V.put(x, n)
W2V = 96
W2A = 48
V.take(W2V, 80)


def w2frag(k, t_, c=4, o=0):
    if k < 8:
        return v(W2V + 20 * k + 4 * t_ + o, c)
    return a(W2A + 20 * (k - 8) + 4 * t_ + o, c)


def w2_loads(asm, n0, n1):
    if OPT.get('now2'):
        return
    for n in range(n0, n1):
        g = Asm()
        if n % 4 == 0 or n == n0:
            g('s_add_u32 s%d, s%d, %d' % (sBG[1], sW2F, 4096 * (n // 4)))
        g('buffer_load_dwordx4 %s, %s, %s, s%d offen offset:%d sc1' % (w2frag(n // 5, n % 5), v(vL16), srd(sWS), sBG[1], 1024 * (n % 4)), tag='w2l')
        grp(asm, g)


P = Asm()
vUF = V.get(16, 'hl')
for r in range(2):
    P('ds_read2_b32 %s, %s offset0:0 offset1:5' % (v(vUF + 8 * r, 2), v(vU0[r])))
    P('ds_read2_b32 %s, %s offset0:10 offset1:15' % (v(vUF + 8 * r + 2, 2), v(vU0[r])))
    P('ds_read2_b32 %s, %s offset0:15 offset1:10' % (v(vUF + 8 * r + 4, 2), v(vU1[r])))
    P('ds_read2_b32 %s, %s offset0:5 offset1:0' % (v(vUF + 8 * r + 6, 2), v(vU1[r])))
vGA = V.get(10, 'lh')
read_mod(P, vGA, 2, vL16, vL4)
vD = V.get(32, 'hl')
for r in range(2):
    for u in range(2):
        for t_ in range(2):
            for ro in range(2):
                d = v(vD + 16 * r + 8 * t_ + 4 * ro, 4)
                P('%s %s, %s, %s, %s' % (MF16, d, v(vUF + 8 * r + 4 * u, 4), KA['G%d%d%d' % (u, t_, ro)], d if u else '0'))
for x in vU0 + vU1:
    V.put(x)
tt = V.get(8, 'lh')
vY = [V.get(12, 'hl'), V.get(12, 'hl')]
for r in range(2):
    for t_ in range(2):
        d = vD + 16 * r + 8 * t_
        b = vUF + 8 * r + 4 * t_
        cmul(P, d, d + 4, K['TW3c%d' % t_], K['TW3s%d' % t_], tt, tt + 4, +1)
        for i in range(4):
            P('v_cvt_pk_bf16_f32 %s, %s, %s' % (v(b + i), v(tt + i), v(tt + 4 + i)))
        P('%s %s, %s, %s, 0' % (MF16, v(vY[r] + 4 * t_, 4), KA['A3_0'], v(b, 4)))
        P('%s %s, %s, %s, %s' % (MF16, v(vY[r] + 8, 4), KA['A3_%d' % (1 + t_)], v(b, 4), v(vY[r] + 8, 4) if t_ else '0'))
V.put(tt, 8)
V.put(vD, 32)
for n in TN[14:]:
    if n in K:
        V.put(K[n], 4)
vG2, vSb = V.get(10, 'hl'), V.get(10, 'hl')
read_mod(P, vG2, 4, vL16, vL4)
read_mod(P, vSb, 3, vL16, vL4)
for r in range(2):
    for p in range(5):
        P('v_pk_fma_f32 %s, %s, %s, %s' % (v(vXF[r] + 2 * p, 2), v(vY[r] + 2 * p, 2), v(vGA + 2 * p, 2), v(vXF[r] + 2 * p, 2)))
ln_stats(P, vXF)
ln_apply(P, vY, vXF)
for r in range(2):
    for p in range(5):
        P('v_pk_fma_f32 %s, %s, %s, %s' % (v(vY[r] + 2 * p, 2), v(vY[r] + 2 * p, 2), v(vG2 + 2 * p, 2), v(vSb + 2 * p, 2)))
ln_stats(P, vY, '0x37800000')
ln_apply(P, vY, vY)
M = Asm()
w1_dma(M, NQ5, 20)
NW0 = OPT.get('nw0', 8)
w2_loads(M, 0, NW0)
A.l += interleave(P, M, 0, int(len(P.l) * 0.9))
A.wait_tag('clrh')
for r in range(2):
    o = vUF + 8 * r
    for j in range(5):
        lo, hi = (j, 4 + j) if j < 4 else (8, 9)
        A('v_cvt_pk_bf16_f32 %s, %s, %s' % (v(o + j), v(vY[r] + lo), v(vY[r] + hi)))
    A('buffer_store_dwordx4 %s, %s, %s, s%d offen offset:%d sc1' % (v(o, 4), v(vL16), srd(sWS), sYX, 1280 * r), tag='yst')
    A('buffer_store_dword %s, %s, %s, s%d offen offset:%d sc1' % (v(o + 4), v(vL4), srd(sWS), sYX, 1280 * r + 1024), tag='yst')
stamp('p3_done')
A('s_lshl_b32 s%d, s%d, 2' % (sT[0], sL))
A('s_add_u32 s%d, s%d, s%d' % (sT[0], sT[0], sW))
A('s_mul_i32 s%d, s%d, 2560' % (sT[0], sT[0]))
A('s_add_u32 s%d, s%d, %d' % (sT[0], sT[0], WS_X1))
for r in range(2):
    for j in range(5):
        lo, hi = (j, 4 + j) if j < 4 else (8, 9)
        A('v_cvt_pk_bf16_f32 %s, %s, %s' % (v(vGA + 5 * r + j), v(vXF[r] + lo), v(vXF[r] + hi)))
        A('buffer_store_dword %s, %s, %s, s%d offen offset:%d sc1' % (v(vGA + 5 * r + j), v(vL4), srd(sWS), sT[0], 1280 * r + 256 * j), tag='xst')
for x, n in ((vG2, 10), (vSb, 10), (vXF[0], 10), (vXF[1], 10), (vY[0], 12), (vY[1], 12), (vUF, 16), (vONES, 4)):
    V.put(x, n)
V.take(W2V + 80, 80)
A('s_or_b32 s%d, s%d, s%d' % (sT[0], sL, sW))
lb = opt('s_cmp_lg_u32 s%d, 0' % sT[0])
A('v_mov_b32 %s, s%d' % (v(vt), sTAGZ))
A('s_mov_b64 exec, 1')
A('buffer_store_dword %s, %s, %s, 0 offen offset:%d sc1' % (v(vt), v(vL4), srd(sWS), WS_EPOCH), tag='ep')
A('s_mov_b64 exec, -1')
opt_end(lb)

B = Asm()
vCol = V.get(1, 'l')
B('s_lshl_b32 s%d, s%d, 6' % (sT[2], sJ))
B('s_lshl_b32 s%d, s%d, 4' % (sT[3], sJ))
B('s_add_u32 s%d, s%d, 448' % (sT[3], sT[3]))
B('v_mov_b32 %s, s%d' % (v(vt), sT[2]))
B('v_mov_b32 %s, s%d' % (v(vt + 1), sT[3]))
B('v_cmp_gt_u32 vcc, 8, %s' % v(vN))
B('v_min_u32 %s, 9, %s' % (v(vt + 2), v(vN)))
B('v_cndmask_b32 %s, %s, %s, vcc' % (v(vt), v(vt + 1), v(vt)))
B('v_lshl_add_u32 %s, %s, 3, %s' % (v(vCol), v(vt + 2), v(vt)))
vb2, vb1 = V.get(4, 'l'), V.get(6, 'l')
B('v_lshlrev_b32 %s, 1, %s' % (v(vt), v(vCol)))
B('buffer_load_dwordx4 %s, %s, %s, 0 offen' % (v(vb2, 4), v(vt), srd(sB2)))
B('s_mul_i32 s%d, s%d, 384' % (sT[2], sJ1))
B('s_mul_i32 s%d, s%d, 96' % (sT[3], sW))
B('s_add_u32 s%d, s%d, s%d' % (sT[2], sT[2], sT[3]))
B('v_lshlrev_b32 %s, 3, %s' % (v(vt + 1), v(vG)))
for c in range(3):
    B('buffer_load_dwordx2 %s, %s, %s, s%d offen offset:%d' % (v(vb1 + 2 * c, 2), v(vt + 1), srd(sB1), sT[2], 32 * c))
A.add(B)
B = Asm()
B('v_lshrrev_b32 %s, 7, %s' % (v(vt), v(vCol)))
B('v_bfe_u32 %s, %s, 1, 6' % (v(vt + 1), v(vCol)))
B('v_lshlrev_b32 %s, 2, %s' % (v(vt + 2), v(vt)))
B('v_lshl_add_u32 %s, %s, 4, %s' % (v(vt + 2), v(vt + 1), v(vt + 2)))
B('v_lshlrev_b32 %s, 2, %s' % (v(vt + 3), v(vt + 1)))
B('v_add_u32 %s, 1024, %s' % (v(vt + 3), v(vt + 3)))
B('v_cndmask_b32 %s, %s, %s, vcc' % (v(vt + 2), v(vt + 3), v(vt + 2)))
B('v_cndmask_b32_e64 %s, 4, 16, vcc' % v(vt + 3))
o = (L_MOD + 5 * 2560) // 256
for q in range(4):
    B('ds_read2st64_b32 %s, %s offset0:%d offset1:%d' % (a(240 + 2 * q, 2), v(vt + 2), o, o + 5))
    if q < 3:
        B('v_add_u32 %s, %s, %s' % (v(vt + 2), v(vt + 2), v(vt + 3)))
w1_drain(B, 16, 20)
V.put(vW1, 3)
V.put(vW1r)
V.put(vGA, 10)
vYG, vYW = V.get(1, 'l'), V.get(1, 'l')
sYL = sZS
B('v_lshrrev_b32 %s, 3, %s' % (v(vt), v(vLane)))
B('v_and_b32 %s, 7, %s' % (v(vt + 1), v(vLane)))
B('s_and_b32 s%d, s%d, 1' % (sT[2], sW))
B('s_lshr_b32 s%d, s%d, 1' % (sT[3], sW))
B('s_lshl_b32 s%d, s%d, 2' % (sT[4], sT[2]))
B('v_add_u32 %s, s%d, %s' % (v(vt + 2), sT[4], v(vG)))
B('v_xor_b32 %s, %s, %s' % (v(vt + 1), v(vt + 2), v(vt + 1)))
B('v_mul_u32_u24 %s, 1280, %s' % (v(vYG), v(vt)))
B('v_lshl_add_u32 %s, %s, 4, %s' % (v(vYG), v(vt + 1), v(vYG)))
B('s_mul_i32 s%d, s%d, %d' % (sT[4], sT[2], PBLK))
B('s_mul_i32 s%d, s%d, 640' % (sT[5], sT[3]))
B('s_add_u32 s%d, s%d, s%d' % (sT[4], sT[4], sT[5]))
B('s_mul_i32 s%d, s%d, %d' % (sT[5], sG1, 8 * PBLK))
B('s_add_u32 s%d, s%d, s%d' % (sT[4], sT[4], sT[5]))
B('v_add_u32 %s, s%d, %s' % (v(vYG), sT[4], v(vYG)))
B('s_mul_i32 s%d, s%d, 10240' % (sT[3], sT[3]))
B('s_lshl_b32 s%d, s%d, 10' % (sT[2], sT[2]))
B('s_add_u32 s%d, s%d, s%d' % (sYL, sT[2], sT[3]))
B('v_add_u32 %s, s%d, %s' % (v(vYW), sYL, v(vL16)))
vYR = [V.get(1, 'l'), V.get(1, 'l')]
B('v_lshrrev_b32 %s, 1, %s' % (v(vt + 2), v(vN)))
B('v_xor_b32 %s, %s, %s' % (v(vt + 2), v(vt + 2), v(vG)))
B('v_lshlrev_b32 %s, 4, %s' % (v(vt + 2), v(vt + 2)))
B('v_lshl_add_u32 %s, %s, 7, %s' % (v(vYR[0]), v(vN), v(vt + 2)))
B('v_xor_b32 %s, 64, %s' % (v(vYR[1]), v(vYR[0])))
vHs4, vHs2 = V.get(1, 'l'), V.get(1, 'l')
B('s_lshl_b32 s%d, s%d, 10' % (sT[0], sW))
B('v_add_u32 %s, s%d, %s' % (v(vHs4), sT[0], v(vL16)))
B('s_lshl_b32 s%d, s%d, 9' % (sT[0], sW))
B('s_add_u32 s%d, s%d, 4096' % (sT[0], sT[0]))
B('v_cmp_gt_u32 vcc, 32, %s' % v(vLane))
B('v_add_u32 %s, s%d, %s' % (v(vHs2), sT[0], v(vL16)))
B('v_cndmask_b32 %s, %s, %s, vcc' % (v(vHs2), v(vOOB), v(vHs2)))
sW2L = sRING
B('s_mul_i32 s%d, s%d, 20480' % (sW2L, sW))
B('s_add_u32 s%d, s%d, %d' % (sW2L, sW2L, L_W2))
sHL = sTAU
B('s_mul_i32 s%d, s%d, 196608' % (sT[0], sG))
B('s_mul_i32 s%d, s%d, 12288' % (sT[1], sW))
B('s_add_u32 s%d, s%d, s%d' % (sHL, sT[0], sT[1]))
B('s_add_u32 s%d, s%d, %d' % (sHL, sHL, WS_H))
GC0 = -2.302208198
GC1 = GC0 * 0.044715 * 2.0 ** 48
GC0 *= 2.0 ** 16
import struct
fhex = lambda x: '0x%08x' % struct.unpack('<I', struct.pack('<f', x))[0]
sGC1 = sADD
vGC0 = V.get(1, 'l')
B('s_mov_b32 s%d, %s' % (sGC1, fhex(GC1)))
B('v_mov_b32 %s, %s' % (v(vGC0), fhex(GC0)))
M = Asm()
NW1 = OPT.get('nw1', 16)
w2_loads(M, NW0, NW1)
A.l += interleave(B, M)
vCK = V.get(20, 'l')


def y_dma(asm, rt):
    for u in range(5):
        g = Asm()
        if u == 0:
            g('s_mov_b32 s%d, %d' % (sT[5], WS_P + 2 * PBLK * rt))
        g('s_add_u32 m0, s%d, %d' % (sYL, 20480 * rt + 1920 * u))
        g('buffer_load_dwordx4 %s, %s, s%d offen offset:%d sc1 lds' % (v(vYG), srd(sWS), sT[5], 128 * u), tag='yg%d' % rt)
        grp(asm, g)


def y_back(asm, rt):
    for u in range(5):
        asm('ds_read_b128 %s, %s offset:%d' % (v(vCK + 4 * u, 4), v(vYW), 20480 * min(rt, 2) + 2048 * u))


def y_check(asm, rt):
    asm.wait_tag('yg%d' % rt)
    if rt == 3:
        asm('v_add_u32 %s, %d, %s' % (v(vYW), 20480, v(vYW)))
    y_back(asm, rt)

    def again(c):
        y_dma(c, rt)
        c('s_waitcnt vmcnt(0)')
        y_back(c, rt)
    verify(asm, again, lambda c: check_bits(c, range(vCK, vCK + 20), None, tmp))


A.wait_tag('yst')
barrier()
stamp('s3_acked')
for rt in range(4):
    y_dma(A, rt)
vBI = V.get(12, 'l')
for c in range(3):
    for p in range(2):
        A('v_lshlrev_b32 %s, 16, %s' % (v(vBI + 4 * c + 2 * p), v(vb1 + 2 * c + p)))
        A('v_and_b32 %s, s%d, %s' % (v(vBI + 4 * c + 2 * p + 1), sMASK, v(vb1 + 2 * c + p)))
for i in range(12):
    A('v_mul_f32 %s, 0x37800000, %s' % (v(vBI + i), v(vBI + i)))
for p in range(4):
    A('v_lshlrev_b32 %s, 16, %s' % (v(vt), v(vb2 + p)))
    A('v_and_b32 %s, s%d, %s' % (v(vt + 1), sMASK, v(vb2 + p)))
    A('v_accvgpr_write_b32 %s, %s' % (a(248 + 2 * p), v(vt)))
    A('v_accvgpr_write_b32 %s, %s' % (a(249 + 2 * p), v(vt + 1)))
V.put(vb1, 6)
V.put(vb2, 4)
V.put(vQ)
V.put(vC8)
y_check(A, 0)
barrier()
lb = opt('s_cmp_lg_u32 s%d, 3' % sW)
A('s_lshl_b32 s%d, s%d, 7' % (sT[0], sL))
A('s_add_u32 s%d, s%d, %d' % (sT[0], sT[0], WS_FLAG))
A('v_mov_b32 %s, s%d' % (v(vt), sNONCE))
A('s_mov_b32 exec_hi, 0')
A('buffer_store_dword %s, %s, %s, s%d offen sc1' % (v(vt), v(vL4), srd(sWS), sT[0]), tag='flag')
A('s_mov_b64 exec, -1')
opt_end(lb)
stamp('s3_done')
NB = 3
vAC = [V.get(12, 'l'), vCK]
vBF = V.get(4 * NB, 'l')
vGT = vCK + 12
vHP = V.get(8, 'l')


def h_store(asm, rt):
    g = Asm()
    g('s_add_u32 s%d, s%d, %d' % (sT[2], sHS, 49152 * rt))
    g('buffer_store_dwordx4 %s, %s, %s, s%d offen sc1' % (v(vHP, 4), v(vHs4), srd(sWS), sT[2]), tag='hst%d' % rt)
    grp(asm, g)


def gelu(rt):
    g = Asm()
    ac = vAC[rt & 1]
    for c in range(3):
        x = ac + 4 * c
        tb = vGT + 4 * (c & 1)
        for i in range(4):
            g('v_mul_f32 %s, %s, %s' % (v(tb + i), v(x + i), v(x + i)))
        for i in range(4):
            g('v_fma_f32 %s, %s, s%d, %s' % (v(tb + i), v(tb + i), sGC1, v(vGC0)))
        for i in range(4):
            g('v_mul_f32 %s, %s, %s' % (v(tb + i), v(tb + i), v(x + i)))
        for i in range(4):
            g('v_exp_f32 %s, %s' % (v(tb + i), v(tb + i)))
        for i in range(4):
            g('v_add_f32 %s, 1.0, %s' % (v(tb + i), v(tb + i)))
        for i in range(4):
            g('v_rcp_f32 %s, %s' % (v(tb + i), v(tb + i)))
        for i in range(4):
            g('v_mul_f32 %s, %s, %s' % (v(tb + i), v(tb + i), v(x + i)))
        for p in range(2):
            g('v_cvt_pk_bf16_f32 %s, %s, %s' % (v(vHP + 2 * c + p), v(tb + 2 * p), v(tb + 2 * p + 1)))
        if c == 1:
            h_store(g, rt)
    for p in range(2):
        g('v_permlane32_swap_b32 %s, %s' % (v(vHP + 4 + p), v(vHP + 6 + p)))
    g('buffer_store_dwordx4 %s, %s, %s, s%d offen sc1' % (v(vHP + 4, 4), v(vHs2), srd(sWS), sT[2]), tag='hst%d' % rt)
    return g


def yread(rt, q):
    base = 20480 * (rt & 1)
    return Ins('ds_read_b128 %s, %s offset:%d' % (v(vBF + 4 * ((20 * rt + q) % NB), 4), v(vYR[q & 1]), base + 2048 * (q >> 1)))


def g1_main(rt):
    out = []
    for q in range(20):
        for c in range(3):
            d = v(vAC[rt & 1] + 4 * c, 4)
            gr = [Ins('%s %s, %s, %s, %s' % (MF16, d, a((3 * q + c) * 4, 4), v(vBF + 4 * ((20 * rt + q) % NB), 4), d if q else v(vBI + 4 * c, 4)))]
            if c == 0:
                nq = q + NB - 1
                if nq < 20:
                    gr.append(yread(rt, nq))
                elif rt < 3:
                    if rt == 0 and nq == 20:
                        gr.append(Ins('s_barrier'))
                    if rt == 1:
                        gr.append(Ins('v_add_u32 %s, 40960, %s' % (v(vYR[nq & 1]), v(vYR[nq & 1]))))
                    gr.append(yread(rt + 1, nq - 20))
            out.append(gr)
    return out


HB = [0, 128, 176, 0]


def h_loads(asm, rt, so=sBG[0]):
    for k in range(12):
        g = Asm()
        if k % 4 == 0:
            g('s_add_u32 s%d, s%d, %d' % (so, sHL, 49152 * rt + 1024 * k))
        g('buffer_load_dwordx4 %s, %s, %s, s%d offen offset:%d sc1' % (a(HB[rt] + 4 * k, 4), v(vL16), srd(sWS), so, 1024 * (k % 4)), tag='hld')
        grp(asm, g)


def w2_dma(asm, n0, n1):
    if OPT.get('now2'):
        return
    for n in range(n0, n1):
        g = Asm()
        if n % 4 == 0 or n == n0:
            g('s_add_u32 s%d, s%d, %d' % (sBG[1], sW2F, 4096 * (n // 4)))
            g('s_add_u32 m0, s%d, %d' % (sW2L, 4096 * (n // 4 - 10)))
        g('buffer_load_dwordx4 %s, %s, s%d offen offset:%d sc1 lds' % (v(vL16), srd(sWS), sBG[1], 1024 * (n % 4)), tag='w2d')
        grp(asm, g)


for q in range(NB - 1):
    A.l.append(yread(0, q))
NW2, NW3, NW4 = OPT.get('nw2', 28), OPT.get('nw3', 40), OPT.get('nw4', 52)
f = Asm()
for rt in (1, 2, 3):
    y_check(f, rt)
M = Asm()
w2_loads(M, NW1, NW2)
m = interleave(g1_main(0), M, 10, 60)
A.l += interleave(m, f, 2, 52)
M = Asm()
w2_loads(M, NW2, min(NW3, 40))
w2_dma(M, 40, NW3)
m = interleave(g1_main(1), M, 0, 60)
A.l += interleave(m, gelu(0), 3, len(m))
M = Asm()
w2_loads(M, NW3, 40)
w2_dma(M, max(NW3, 40), NW4)


def flag_load(asm):
    g = Asm()
    g('s_lshl_b32 s%d, s%d, 10' % (sT[5], sG))
    g('s_add_u32 s%d, s%d, %d' % (sT[5], sT[5], WS_FLAG))
    g('buffer_load_dword %s, %s, %s, s%d offen sc1' % (v(vt), v(vL16), srd(sWS), sT[5]))
    grp(asm, g)


M0 = Asm()
flag_load(M0)
M.l = M0.l + M.l
verify(M, flag_load, lambda c: c('v_cmp_ne_u32 vcc, s%d, %s' % (sNONCE, v(vt))))
m = interleave(g1_main(2), M, 0, 60)
A.l += interleave(m, gelu(1), 3, len(m))
M = Asm()
w2_dma(M, NW4, 60)
M.wait_tag('hst0')
h_loads(M, 0)
m = interleave(g1_main(3), M, 0 if NW4 <= 54 else 14, 60)
A.l += interleave(m, gelu(2), 3, len(m))
stamp('g1_done')
V.put(vAC[0], 12)
V.put(vBF, 4 * NB)
V.put(vBI, 12)
for x in [vYG, vYW] + vYR:
    V.put(x)
vA2 = [V.get(20, 'l'), vCK]
vPW, vPR, vXO, vOO = [V.get(1, 'l') for _ in range(4)]
vX1 = V.get(4, 'l')
E = Asm()
E('v_mul_u32_u24 %s, 336, %s' % (v(vPW), v(vN)))
E('v_lshl_add_u32 %s, %s, 4, %s' % (v(vPW), v(vG), v(vPW)))
E('s_mul_i32 s%d, s%d, 5376' % (sT[0], sW))
E('v_add_u32 %s, s%d, %s' % (v(vPW), sT[0], v(vPW)))
E('s_lshl_b32 s%d, s%d, 2' % (sT[0], sW))
E('v_add_u32 %s, s%d, %s' % (v(vt + 2), sT[0], v(vG)))
E('v_mul_u32_u24 %s, 336, %s' % (v(vPR), v(vt + 2)))
E('v_min_u32 %s, 9, %s' % (v(vt + 3), v(vN)))
E('v_lshl_add_u32 %s, %s, 5, %s' % (v(vPR), v(vt + 3), v(vPR)))
E('v_and_b32 %s, 7, %s' % (v(vt + 3), v(vt + 2)))
E('v_lshrrev_b32 %s, 3, %s' % (v(vt + 2), v(vt + 2)))
E('v_lshl_add_u32 %s, %s, 3, %s' % (v(vXO), v(vt + 2), v(vt + 3)))
E('v_mul_u32_u24 %s, 1280, %s' % (v(vXO), v(vXO)))
E('v_lshl_add_u32 %s, %s, 1, %s' % (v(vXO), v(vCol), v(vXO)))
E('s_mul_i32 s%d, s%d, 81920' % (sT[0], sG))
E('v_add_u32 %s, s%d, %s' % (v(vXO), sT[0], v(vXO)))
E('v_lshl_add_u32 %s, %s, 8, %s' % (v(vt + 2), v(vt + 3), v(vt + 2)))
E('v_mul_u32_u24 %s, 1280, %s' % (v(vOO), v(vt + 2)))
E('v_lshl_add_u32 %s, %s, 1, %s' % (v(vOO), v(vCol), v(vOO)))
E('s_mul_i32 s%d, s%d, 10240' % (sT[0], sG))
E('v_cmp_gt_u32 vcc, 10, %s' % v(vN))
E('v_add_u32 %s, s%d, %s' % (v(vOO), sT[0], v(vOO)))
E('v_cndmask_b32 %s, %s, %s, vcc' % (v(vOO), v(vOOB), v(vOO)))
OUTF = ['', ' sc1', ' nt'][OPT.get('outf', 0)]


def x1_load(asm, rt):
    g = Asm()
    g('s_mov_b32 s%d, %d' % (sT[3], WS_X1 + 20480 * rt))
    g('buffer_load_dwordx4 %s, %s, %s, s%d offen sc1' % (v(vX1, 4), v(vXO), srd(sWS), sT[3]))
    grp(asm, g)


def part_write(asm, rt):
    for t_ in range(5):
        asm('ds_write_b128 %s, %s offset:%d' % (v(vPW), v(vA2[rt & 1] + 4 * t_, 4), L_PART[rt & 1] + 64 * t_))


def epilogue(asm, rt):
    s = vA2[rt & 1]
    e0, e1 = vER
    for p in range(4):
        for hf in range(2):
            d = [e0, e1, s, s + 8][p] + 4 * hf
            asm('ds_read_b128 %s, %s offset:%d' % (v(d, 4), v(vPR), L_PART[rt & 1] + 5376 * p + 16 * hf))
    if rt == 0:
        for i in range(8):
            asm('v_accvgpr_read_b32 %s, %s' % (v(vGB[i]), a(240 + i)))
            asm('v_accvgpr_read_b32 %s, %s' % (v(vB2[i]), a(248 + i)))
        for i in range(8):
            asm('v_mul_f32 %s, 0x47800000, %s' % (v(vGB[i]), v(vGB[i])))
            asm('v_mul_f32 %s, 0x37800000, %s' % (v(vB2[i]), v(vB2[i])))
    for i in range(8):
        asm('v_add_f32 %s, %s, %s' % (v(e0 + i), v(e0 + i), v(vB2[i])))
    for i in range(8):
        asm('v_add_f32 %s, %s, %s' % (v(e0 + i), v(e0 + i), v(e1 + i)))
    for p in range(4):
        asm('v_lshlrev_b32 %s, 16, %s' % (v(e1 + 2 * p), v(vX1 + p)))
        asm('v_and_b32 %s, s%d, %s' % (v(e1 + 2 * p + 1), sMASK, v(vX1 + p)))
    if rt < 3:
        x1_load(asm, rt + 1)
    for i in range(8):
        asm('v_add_f32 %s, %s, %s' % (v(s + i), v(s + i), v(s + 8 + i)))
    for i in range(8):
        asm('v_add_f32 %s, %s, %s' % (v(e0 + i), v(e0 + i), v(s + i)))
    for i in range(8):
        asm('v_fmac_f32 %s, %s, %s' % (v(e1 + i), v(e0 + i), v(vGB[i])))
    for p in range(4):
        asm('v_cvt_pk_bf16_f32 %s, %s, %s' % (v(s + p), v(e1 + 2 * p), v(e1 + 2 * p + 1)))
    g = Asm()
    g('s_mov_b32 s%d, %d' % (sT[3], 2560 * rt))
    g('buffer_store_dwordx4 %s, %s, %s, s%d offen%s' % (v(s, 4), v(vOO), srd(sOUT), sT[3], OUTF), tag='out')
    grp(asm, g)


def g2_mfma(rt, k, t_):
    d = v(vA2[rt & 1] + 4 * t_, 4)
    return Ins('%s %s, %s, %s, %s' % (MF16, d, w2frag(k, t_), a(HB[rt] + 4 * k, 4), d if k else '0'))


def g2_main(rt):
    return [g2_mfma(rt, k, t_) for k in range(12) for t_ in range(5)]


def h_check(asm, rt):
    if OPT.get('now1') or OPT.get('now2'):
        return
    ls, lo, ll, lr = label('hslow'), label('hok'), label('hl'), label('hredo')
    g = Asm()
    g('v_cmp_u_f32 vcc, %s, %s' % (v(vA2[rt & 1]), v(vA2[rt & 1])))
    g('s_cbranch_vccnz %s' % ls)
    g('%s:' % lo)
    grp(asm, g)
    c = COLD
    c.cold_begin()
    c('%s:' % ls)
    c('s_add_u32 s%d, s%d, 1' % (sSPIN, sSPIN))
    c('s_cmp_gt_u32 s%d, %d' % (sSPIN, SPIN))
    c('s_cbranch_scc1 %s' % lr)
    h_loads(c, rt, sT[5])
    c('s_waitcnt vmcnt(0)')
    c('v_mov_b32 %s, 0' % v(tmp))
    for i in range(0, 48, 2):
        c('v_accvgpr_read_b32 %s, %s' % (v(vt), a(HB[rt] + i)))
        c('v_accvgpr_read_b32 %s, %s' % (v(vt + 1), a(HB[rt] + i + 1)))
        c('v_max3_u32 %s, %s, %s, %s' % (v(tmp), v(tmp), v(vt), v(vt + 1)))
    c('v_cmp_eq_u32 vcc, -1, %s' % v(tmp))
    c('s_cbranch_vccnz %s' % ls)
    c('%s:' % lr)
    c.l += g2_main(rt)
    c('s_nop 7')
    c('s_branch %s' % lo)


A('v_add_u32 %s, s%d, %s' % (v(vt + 2), sW2L, v(vL16)))
A.wait_tag('w2d')
R = Asm()
for n in range(40, 60):
    R('ds_read_b128 %s, %s offset:%d' % (w2frag(n // 5, n % 5), v(vt + 2), 1024 * (n - 40)))
g3 = gelu(3).l
M = Asm()
M.wait_tag('hst1')
h_loads(M, 1)
NG = OPT.get('ng', 30)
A.l += interleave(g3[:NG], R.l, 0, NG) if NG else R.l

x1_load(E, 0)
m = interleave(g2_main(0), M, OPT.get('h0', 4), 56)
A.l += interleave(m, g3[NG:] + E.l, 0, len(m))
V.put(vHP, 8)
V.put(vGC0)
for x in (vHs4, vHs2, vCol, vN, vG, vKD, vH, vL4, vL8, vOOB, vLane):
    V.put(x)
vER = [V.get(8, 'l'), V.get(8, 'l')]
vGB = [V.get(1, 'l') for _ in range(8)]
vB2 = [V.get(1, 'l') for _ in range(8)]
for rt in range(1, 4):
    M = Asm()
    if rt < 3:
        M.wait_tag('hst%d' % (rt + 1))
        h_loads(M, rt + 1)
    f = Asm()
    if rt == 1:
        f('s_barrier')
    h_check(f, rt - 1)
    part_write(f, rt - 1)
    barrier(f)
    epilogue(f, rt - 1)
    m = interleave(g2_main(rt), M, OPT.get('h0', 4), 56)
    A.l += interleave(m, f, 4, len(m))
stamp('g2_done')
h_check(A, 3)
part_write(A, 3)
barrier()
epilogue(A, 3)
if OPT['stamps']:
    A('s_waitcnt vmcnt(0)')
    stamp('end')
    A('s_memtime s[4:5]')
    A('s_sub_u32 s4, s4, s100')
    A('s_lshl_b32 s%d, s2, 2' % sT[0])
    A('s_add_u32 s%d, s%d, s%d' % (sT[0], sT[0], sW))
    A('s_lshl_b32 s%d, s%d, 7' % (sT[0], sT[0]))
    A('s_add_u32 s%d, s%d, %d' % (sT[0], sT[0], WS_STAMP))
    A('s_mov_b64 exec, 1')
    for i, s in [(i, sSTAMP + i) for i in range(nstamp[0])] + [(30, 4), (31, sSPIN)]:
        A('v_mov_b32 %s, s%d' % (v(vt), s))
        A('buffer_store_dword %s, %s, %s, s%d offen offset:%d' % (v(vt), v(vL16), srd(sWS), sT[0], 4 * i))
        A('s_waitcnt vmcnt(0)')
if OPT.get('echo'):
    A('s_or_b32 s%d, s%d, s%d' % (sT[0], sL, sW))
    A('s_cmp_lg_u32 s%d, 0' % sT[0])
    A('s_cbranch_scc1 L_end')
    A('s_waitcnt vmcnt(0)')
    A('s_memrealtime s[92:93]')
    A('s_waitcnt lgkmcnt(0)')
    A('s_sub_u32 s94, s%d, s88' % (92 if OPT['echo'] == 1 else 90))
    A('s_min_u32 s94, s94, 20000')
    A('L_echo:')
    A('s_memrealtime s[96:97]')
    A('s_waitcnt lgkmcnt(0)')
    A('s_sub_u32 s95, s96, s92')
    A('s_cmp_lt_u32 s95, s94')
    A('s_cbranch_scc1 L_echo')
if OPT.get('probe'):
    pr = OPT['probe']
    A('s_or_b32 s%d, s%d, s%d' % (sT[0], sL, sW))
    A('s_cmp_lg_u32 s%d, 0' % sT[0])
    A('s_cbranch_scc1 L_end')
    A('s_waitcnt vmcnt(0)')
    sr = sWS if pr >= 2 else sPRB
    if pr >= 2:
        A('s_mov_b32 s%d, 0x10000000' % (sWS + 2))
    base = {1: 0, 2: 0x1a00000, 3: 0x8000000, 4: 0xfc00000}[pr]
    for i in range(40):
        A('s_mov_b32 s%d, %d' % (sT[0], base + i * (40960 + 128)))
        A('buffer_load_dword %s, off, %s, s%d' % (v(vt), srd(sr), sT[0]))
        A('s_waitcnt vmcnt(0)')
A('L_end:')
A('s_endpgm')
A.add(COLD)

body, ins = finalize(A)
ref = open('cdna_kernels/%s.s.ref' % NAME).read()
hdr = ref[:ref.index('; Override launch')]
src = hdr + '; @launch grid=(256,1,1) block=(256,1,1) lds=163840\n'
src += '.amdgcn_target "amdgcn-amd-amdhsa--gfx950"\n.text\n.globl %s_kernel\n.p2align 8\n.type %s_kernel,@function\n%s_kernel:\n' % (NAME, NAME, NAME)
src += body
src += '.p2align 7\n.type L_tab,@object\nL_tab:\n'
for n in TN:
    for row in T[n].reshape(-1, 8):
        src += '.long ' + ','.join('0x%x' % x for x in row) + '\n'
src += '.fill %d, 4, 0\nL_tabend:\n.size L_tab, L_tabend-L_tab\n' % ((32 - len(TN)) * 256)
src += '''.section .rodata,"a"
.p2align 6
.amdhsa_kernel %s_kernel
  .amdhsa_next_free_vgpr 512
  .amdhsa_next_free_sgpr 102
  .amdhsa_accum_offset 256
  .amdhsa_group_segment_fixed_size 0
  .amdhsa_kernarg_size 104
  .amdhsa_user_sgpr_count 2
  .amdhsa_user_sgpr_kernarg_segment_ptr 1
  .amdhsa_system_sgpr_workgroup_id_x 1
  .amdhsa_float_denorm_mode_32 3
.end_amdhsa_kernel
''' % NAME
open(sys.argv[1], 'w').write(src)
open(sys.argv[1] + '.stamps', 'w').write('\n'.join(stamp_names))
from collections import Counter
cnt = Counter(i.cls for i in ins)
print('instr', dict(cnt), 'nop states', sum(states(i) for i in ins if i.cls == 'nop'), 'src bytes', len(src))
```

```python
import re

REG_RE = re.compile(r'(?<![\w.])(-|abs\()?([vas])(?:(\d+)|\[(\d+):(\d+)\])(?![\w])')
TRANS = ('v_exp_f32', 'v_log_f32', 'v_rcp_f32', 'v_rsq_f32', 'v_sqrt_f32', 'v_sin_f32', 'v_cos_f32', 'v_rcp_iflag_f32')


def regs_of(op):
    op = op.strip()
    out = []
    if op in ('vcc',):
        return [('s', 'vcc')]
    if op in ('exec',):
        return [('s', 'exec')]
    if op == 'm0':
        return [('s', 'm0')]
    for m in REG_RE.finditer(op):
        k = m.group(2)
        if m.group(3) is not None:
            out.append((k, int(m.group(3))))
        else:
            out += [(k, i) for i in range(int(m.group(4)), int(m.group(5)) + 1)]
    return out


def split_ops(s):
    ops, depth, cur = [], 0, ''
    for ch in s:
        if ch in '[(':
            depth += 1
        if ch in '])':
            depth -= 1
        if ch == ',' and depth == 0:
            ops.append(cur.strip())
            cur = ''
        else:
            cur += ch
    if cur.strip():
        ops.append(cur.strip())
    return ops


class Ins:
    __slots__ = ('text', 'mn', 'cls', 'defs', 'uses', 'passes', 'srcc', 'srcab', 'tag', 'wide', 'dpp', 'meta', 'data')

    def __init__(self, text, tag=None, meta=None):
        self.text = text
        self.tag = tag
        self.meta = meta
        self.defs, self.uses, self.srcc, self.srcab, self.data = [], [], [], [], []
        self.passes = 0
        self.wide = False
        self.dpp = False
        t = text.split(';')[0].strip()
        if t.endswith(':'):
            self.mn, self.cls = t, 'label'
            return
        if t.startswith('.') or t.startswith('@') or not t:
            self.mn, self.cls = t, ('pseudo' if t.startswith('@') else 'dir')
            return
        p = t.split(None, 1)
        mn = p[0]
        self.mn = mn
        rest = p[1] if len(p) > 1 else ''
        ops = split_ops(rest)
        mods = ''
        if ops:
            last = ops[-1]
            depth = 0
            for i, ch in enumerate(last):
                if ch in '[(':
                    depth += 1
                if ch in '])':
                    depth -= 1
                if ch == ' ' and depth == 0:
                    mods = last[i:]
                    ops[-1] = last[:i]
                    break
        R = [regs_of(o) for o in ops]
        flat = lambda l: [x for y in l for x in y]
        if mn.startswith('v_mfma'):
            self.cls = 'mfma'
            self.defs = R[0]
            self.srcab = R[1] + R[2]
            self.srcc = R[3]
            self.uses = self.srcab + self.srcc
            self.passes = 8 if '32x32' in mn else 4
        elif mn.startswith('buffer_') or mn.startswith('global_'):
            if mn.startswith('buffer_wbl2') or mn.startswith('buffer_inv'):
                self.cls = 'vstore'
            elif ' lds' in (' ' + mods) or 'load_lds' in mn:
                self.cls = 'dma'
                self.uses = flat(R) + [('s', 'm0')]
            elif 'load' in mn:
                self.cls = 'vload'
                self.defs = R[0]
                self.uses = flat(R[1:])
            else:
                self.cls = 'vstore'
                self.uses = flat(R)
                self.data = R[0] if mn.startswith('buffer_') else R[1]
                self.wide = 'x4' in mn or 'x3' in mn
        elif mn.startswith('ds_'):
            if 'read' in mn or 'permute' in mn or 'swizzle' in mn:
                self.cls = 'dsread'
                self.defs = R[0]
                self.uses = flat(R[1:])
            else:
                self.cls = 'dswrite'
                self.uses = flat(R)
        elif mn.startswith('s_load') or mn.startswith('s_memtime') or mn.startswith('s_memrealtime'):
            self.cls = 'smem'
            self.defs = R[0]
            self.uses = flat(R[1:])
        elif mn == 's_waitcnt':
            self.cls = 'wait'
        elif mn == 's_nop':
            self.cls = 'nop'
        elif mn == 's_barrier':
            self.cls = 'barrier'
        elif mn.startswith('s_cbranch') or mn == 's_branch' or mn == 's_endpgm':
            self.cls = 'branch'
            if 'vcc' in mn:
                self.uses = [('s', 'vcc')]
        elif mn.startswith('s_'):
            self.cls = 'salu'
            if mn.startswith('s_cmp') or mn.startswith('s_bitcmp') or mn in ('s_setprio', 's_sleep'):
                self.uses = flat(R)
            else:
                self.defs = list(R[0]) if R else []
                self.uses = flat(R[1:])
                if 'saveexec' in mn:
                    self.defs += [('s', 'exec')]
                if mn in ('s_addk_i32', 's_mulk_i32'):
                    self.uses += R[0]
        elif mn.startswith('v_'):
            base = mn.replace('_e32', '').replace('_e64', '').replace('_dpp', '').replace('_sdwa', '')
            self.cls = 'trans' if base in TRANS else 'valu'
            self.dpp = 'dpp' in mn or 'row_' in mods or 'quad_perm' in mods
            self.defs = list(R[0])
            self.uses = flat(R[1:])
            if base in ('v_swap_b32', 'v_permlane32_swap_b32', 'v_permlane16_swap_b32'):
                self.defs = R[0] + R[1]
                self.uses = R[0] + R[1]
            if base.startswith('v_fmac') or base.startswith('v_dot2c') or base.startswith('v_writelane') or self.dpp:
                self.uses += R[0]
            if base in ('v_add_co_u32', 'v_addc_co_u32', 'v_sub_co_u32'):
                self.defs = R[0] + R[1]
                self.uses = flat(R[2:])
            if base.startswith('v_cmpx'):
                self.defs += [('s', 'exec')]
        else:
            raise ValueError('unknown instr: ' + text)


class Asm:
    def __init__(self):
        self.l = []

    def __call__(self, text, tag=None):
        for line in text.split('\n'):
            line = line.strip()
            if line:
                self.l.append(Ins(line, tag))
        return self

    def add(self, other):
        self.l += other.l if isinstance(other, Asm) else other

    def wait_tag(self, tag):
        self.l.append(Ins('@waitvm', meta=tag))

    def wait_lds(self):
        self.l.append(Ins('@waitlds'))

    def opt_begin(self):
        self.l.append(Ins('@optbegin'))

    def opt_end(self):
        self.l.append(Ins('@optend'))

    def far_begin(self, lb):
        self.opt_begin()
        self('; FARBEGIN')
        self('%s:' % lb)

    def far_end(self, back):
        self('s_branch %s' % back)
        self('; FAREND')
        self.opt_end()
        self('%s:' % back)

    def cold_begin(self):
        self.l.append(Ins('@coldbegin'))


def interleave(main, fill, start=0, end=None):
    main = list(main.l if isinstance(main, Asm) else main)
    fill = list(fill.l if isinstance(fill, Asm) else fill)
    if end is None:
        end = len(main)
    n = max(1, end - start)
    out = []
    k = 0
    for i, m in enumerate(main):
        out.append(m)
        if start <= i < end:
            want = ((i - start + 1) * len(fill)) // n
            while k < want:
                out.append(fill[k])
                k += 1
    out += fill[k:]
    return out


def flatten(l):
    out = []
    for x in l:
        if isinstance(x, list):
            out += flatten(x)
        else:
            out.append(x)
    return out


def parse_wait(text):
    vm = re.search(r'vmcnt\((\d+)\)', text)
    lg = re.search(r'lgkmcnt\((\d+)\)', text)
    return (int(vm.group(1)) if vm else None, int(lg.group(1)) if lg else None)


def insert_waits(ins):
    out = []
    vm = []
    lg = []
    optstack = []
    maxvm = 0

    def need(q, idx):
        return sum(1 for o in q[idx + 1:] if not o['opt'])

    def retire(q, n):
        if n == 0:
            q.clear()
            return
        cnt, keep = 0, 0
        for k in range(len(q) - 1, -1, -1):
            if not q[k]['opt']:
                cnt += 1
                if cnt == n:
                    keep = k
                    break
        del q[:keep]

    for i in ins:
        if i.cls == 'pseudo':
            if i.mn == '@waitvm':
                tags = i.meta if isinstance(i.meta, (list, tuple)) else [i.meta]
                idx = max([k for k, o in enumerate(vm) if o['tag'] in tags], default=-1)
                if idx >= 0:
                    n = need(vm, idx)
                    assert n <= 63
                    out.append(Ins('s_waitcnt vmcnt(%d)' % n))
                    del vm[:idx + 1]
                    retire(vm, n)
                continue
            if i.mn == '@waitlds':
                if lg:
                    out.append(Ins('s_waitcnt lgkmcnt(0)'))
                    lg.clear()
                continue
            if i.mn == '@optbegin':
                optstack.append((list(vm), list(lg)))
                for o in vm + lg:
                    o.setdefault('pre', 0)
                    o['pre'] += 1
                out.append(i)
                continue
            if i.mn == '@optend':
                svm, slg = optstack.pop()
                for q, s in ((vm, svm), (lg, slg)):
                    inner = [o for o in q if not any(o is x for x in s)]
                    for o in inner:
                        o['opt'] = True
                    q[:] = s + inner
                out.append(i)
                continue
            if i.mn == '@coldbegin':
                vm.clear()
                lg.clear()
                out.append(i)
                continue
        if i.cls == 'wait':
            a, b = parse_wait(i.text)
            if a is not None:
                retire(vm, a)
            if b is not None:
                if b == 0 or not any(o['smem'] for o in lg):
                    retire(lg, b)
            out.append(i)
            continue
        touched = set(i.defs) | set(i.uses)
        w = ''
        idx = max([k for k, o in enumerate(vm) if o['defs'] & touched], default=-1)
        if idx >= 0:
            n = need(vm, idx)
            assert n <= 63, i.text
            w += ' vmcnt(%d)' % n
            del vm[:idx + 1]
            retire(vm, n)
        idx = max([k for k, o in enumerate(lg) if o['defs'] & touched], default=-1)
        if idx >= 0:
            n = 0 if any(o['smem'] for o in lg) else min(15, need(lg, idx))
            w += ' lgkmcnt(%d)' % n
            del lg[:idx + 1]
            retire(lg, n)
        if w:
            out.append(Ins('s_waitcnt' + w))
        if i.cls in ('vload', 'vstore', 'dma'):
            vm.append(dict(defs=set(i.defs), tag=i.tag, opt=False))
            maxvm = max(maxvm, len(vm))
            if len(vm) > 63:
                raise ValueError('more than 63 vmem ops outstanding at ' + i.text)
        if i.cls in ('dsread', 'dswrite', 'smem'):
            lg.append(dict(defs=set(i.defs), smem=i.cls == 'smem', opt=False))
        out.append(i)
    return out


def required(p, c):
    r = 0
    pd = set(p.defs)
    cu, cd = set(c.uses), set(c.defs)
    vec = lambda s: {x for x in s if x[0] in 'va'}
    sc = lambda s: {x for x in s if x[0] == 's'}
    pvalu = p.cls in ('valu', 'trans')
    cvalu = c.cls in ('valu', 'trans')
    cmem = c.cls in ('vload', 'vstore', 'dma', 'dsread', 'dswrite')
    if p.cls == 'mfma':
        ps = p.passes
        if c.cls == 'mfma':
            if pd & set(c.srcab):
                r = max(r, ps + 4)
            if pd & set(c.srcc):
                if not (set(c.srcc) == pd and c.passes == ps):
                    r = max(r, ps + 2)
            if pd & cd and not (pd & set(c.srcc)):
                r = max(r, ps + 2)
        elif cvalu or cmem:
            if pd & (cu | cd):
                r = max(r, ps + 4)
            if cvalu and set(p.srcc) & cd:
                r = max(r, ps - 1)
            if c.cls in ('vload', 'dsread') and set(p.srcc) & cd:
                r = max(r, ps - 1)
    if pvalu:
        if c.cls == 'mfma' and vec(pd) & cu:
            r = max(r, 2)
        if c.cls == 'mfma' and ('s', 'exec') in pd:
            r = max(r, 4)
        if cvalu and c.dpp and vec(pd) & cu:
            r = max(r, 2)
        if cvalu and 'permlane' in c.mn and vec(pd) & cu:
            r = max(r, 2)
        if cvalu and (c.mn.startswith('v_readlane') or c.mn.startswith('v_readfirstlane')) and vec(pd) & cu:
            r = max(r, 1)
        if p.cls == 'trans' and (c.cls == 'valu' or cmem or c.cls == 'mfma') and pd & cu:
            r = max(r, 1)
        if sc(pd) & cu:
            if c.cls in ('vload', 'vstore', 'dma'):
                r = max(r, 5)
            elif cvalu:
                r = max(r, 4 if 'lane' in c.mn else 2)
            elif c.cls in ('salu', 'smem'):
                r = max(r, 1)
        if ('s', 'vcc') in pd and cvalu and ('cndmask' in c.mn or 'addc' in c.mn):
            r = max(r, 2)
        if 'sdwa' in p.mn and cvalu and pd & cu:
            r = max(r, 1)
        if p.mn.startswith('v_dot') and (cvalu or cmem or c.cls == 'mfma') and pd & (cu | cd):
            if not (c.mn == p.mn and not (pd & (cu - cd))):
                r = max(r, 3)
    if p.cls == 'vstore' and p.wide and set(p.data) & cd:
        r = max(r, 2)
    if p.cls == 'salu' and ('s', 'm0') in pd and c.cls == 'dma':
        r = max(r, 1)
    return r


def states(i):
    if i.cls == 'nop':
        return int(i.text.split()[1], 0) + 1
    if i.cls in ('label', 'dir', 'pseudo'):
        return 0
    return 1


def pad_hazards(ins):
    out = []
    hist = [[]]
    stack = []
    W = 20
    for i in ins:
        if i.cls == 'pseudo':
            if i.mn == '@optbegin':
                stack.append([list(h) for h in hist])
            elif i.mn == '@optend':
                hist = hist + stack.pop()
            elif i.mn == '@coldbegin':
                hist = [[]]
            continue
        if i.cls in ('label', 'dir'):
            out.append(i)
            continue
        pad = 0
        for h in hist:
            d = 0
            for p in reversed(h):
                r = required(p, i)
                if r > d:
                    pad = max(pad, r - d)
                d += states(p)
                if d >= W:
                    break
        new = []
        while pad > 0:
            n = min(pad, 16)
            new.append(Ins('s_nop %d' % (n - 1)))
            pad -= n
        new.append(i)
        out += new
        for h in hist:
            h += new
            del h[:-W]
        if len(hist) > 1 and all(len(h) == W and all(a is b for a, b in zip(h, hist[0])) for h in hist[1:]):
            hist = [hist[0]]
    return out


def finalize(a):
    ins = flatten(a.l if isinstance(a, Asm) else a)
    ins = insert_waits(ins)
    ins = hoist_waits(ins)
    ins = pad_hazards(ins)
    lines = []
    for i in ins:
        lines.append(i.text if i.cls in ('label', 'dir') else '  ' + i.text)
    return '\n'.join(lines) + '\n', ins


MEM = ('dsread', 'dswrite', 'vload', 'vstore', 'dma')


def gap_time(lst):
    t, ready, pv = 0, 1, False
    for x in flatten(lst):
        c = x.cls
        if c in ('label', 'dir') or (c == 'pseudo' and x.mn not in ('@waitvm', '@waitlds')):
            continue
        if c in ('valu', 'trans'):
            t = max(t, ready) + (2 if c == 'trans' else 1)
            pv = True
            continue
        if c in MEM:
            t += 2 if pv else 1
            b = 1
            if c in ('vload', 'dma'):
                b = 2
            if c == 'dswrite':
                b = 5 if 'b128' in x.mn else 3
            if c == 'vstore':
                b = 6 if x.wide else 3
            ready = max(ready + (b if c != 'dsread' else 0), t + b) if t > 1 else t + b
        else:
            t += 1
        pv = False
    return max(t, ready)


def has(x, classes):
    return any(i.cls in classes for i in flatten([x]))


def weave(main, fixed=(), flex=(), waits=None):
    L = lambda s: list(s.l if isinstance(s, Asm) else s)
    main = [m if isinstance(m, list) else [m] for m in L(main)]
    gaps = [list(m[1:]) for m in main]
    dummy = Ins('@waitlds_dummy')
    dummy.cls = 'salu'
    for g in (waits or []):
        gaps[g].append(dummy)
    for items, g0, g1 in fixed:
        items = L(items)
        real = sum(1 for x in items if has(x, MEM))
        k, last, pend = 0, g0, []
        for x in items:
            if not has(x, MEM):
                pend.append(x)
                continue
            g = max(last, min(g0 + (k * (g1 - g0)) // max(1, real), g1 - 1))
            while has(gaps[g], MEM) and g + 1 < g1 and not has(gaps[g + 1], MEM):
                g += 1
            x = flatten([x])
            while x[0].cls == 'salu':
                pend.append(x.pop(0))
            gaps[max(g - 1, last)] += pend
            pend = []
            pos = len(gaps[g]) if g == last or gaps[g][:1] != [dummy] else 0
            gaps[g][pos:pos] = [x]
            last = g
            k += 1
        gaps[g1 - 1] += pend
    for items, g0, g1 in flex:
        items = L(items)
        for E in range(0, 2000):
            trial = [list(g) for g in gaps]
            used, k = 0, 0
            for g in range(g0, g1):
                base = max(3, gap_time(trial[g]))
                allowed = E * (g - g0 + 1) / (g1 - g0)
                fresh = True
                while k < len(items):
                    x = items[k]
                    if has(x, MEM) and not fresh:
                        break
                    if has(x, MEM) and has(trial[g], MEM + ('valu', 'trans')) and g + 1 < g1 and not has(trial[g + 1], MEM + ('valu', 'trans')):
                        break
                    tm = max(3, gap_time(trial[g] + [x]))
                    if used + tm - base > allowed:
                        break
                    trial[g].append(x)
                    if has(x, ('valu', 'trans')):
                        fresh = False
                    k += 1
                used += max(3, gap_time(trial[g])) - base
            if k == len(items):
                gaps = trial
                break
        else:
            raise ValueError('weave failed')
    out = []
    for m, g in zip(main, gaps):
        out.append(m[0])
        out += [x for x in g if x is not dummy]
    est = sum(4 + 4 * max(3, gap_time(g)) for g in gaps)
    return out, est


def hoist_waits(ins):
    out = []
    for n, i in enumerate(ins):
        if i.cls == 'wait' and n + 1 < len(ins) and ins[n + 1].cls == 'mfma':
            k = len(out)
            while k > 0 and out[k - 1].cls in ('valu', 'trans'):
                k -= 1
            if 0 < len(out) - k <= 4 and k > 0:
                j = k
                while j > 0 and out[j - 1].cls in MEM + ('salu',) and k - j < 3:
                    j -= 1
                if j > 0 and out[j - 1].cls == 'mfma':
                    out.insert(k, i)
                    continue
        out.append(i)
    return out


NOSCC = ('s_mov_b32', 's_mov_b64', 's_mul_i32', 's_cselect_b32', 's_cselect_b64', 's_movk_i32')


class Node:
    def __init__(self, item, idx):
        self.item = item
        self.ins = [i for i in flatten([item])]
        self.idx = idx
        self.d, self.u = set(), set()
        for i in self.ins:
            u, d = set(i.uses), set(i.defs)
            if i.cls == 'salu' and i.mn not in NOSCC:
                d.add(('s', 'scc'))
            if i.mn.startswith('s_cselect') or i.mn.startswith('s_addc'):
                u.add(('s', 'scc'))
            if 'exec' in i.text:
                d.add(('s', 'exec'))
            if i.cls not in ('salu', 'pseudo', 'dir'):
                u.add(('s', 'exec'))
            self.u |= u - self.d
            self.d |= d
        if len(self.ins) > 1:
            self.d.discard(('s', 'exec'))
        self.lds = any(i.cls in ('dsread', 'dswrite') for i in self.ins)
        self.ldsw = any(i.cls == 'dswrite' for i in self.ins)
        self.vm = any(i.cls in ('vload', 'vstore', 'dma') or i.mn == '@waitvm' for i in self.ins)
        self.fence = any(i.cls in ('branch', 'label', 'barrier', 'wait', 'smem') or i.mn in ('@waitlds', '@optbegin', '@optend') for i in self.ins)
        self.pred, self.succ = [], []
        self.earliest = 0


def lat(p, c, raw):
    a, b = p.ins[-1], c.ins[0]
    if not raw:
        return 4 * (1 + required(a, b))
    if a.cls == 'mfma':
        if b.cls == 'mfma' and set(b.srcc) == set(a.defs) and not set(a.defs) & set(b.srcab):
            return a.passes * 4
        return a.passes * 4 + 20
    if a.cls == 'dsread':
        return 120
    if a.cls == 'vload':
        return 1200
    if a.cls == 'trans':
        return 12
    return 4 * (1 + required(a, b))


def schedule(block, bg=(), bg_start=0, bg_gap=64, verbose=None, keep=False):
    L = lambda s: list(s.l if isinstance(s, Asm) else s)
    items = L(block)
    nodes = [Node(x, i) for i, x in enumerate(items)]
    for j, c in enumerate(nodes):
        for p in nodes[:j]:
            raw = bool(p.d & c.u)
            dep = raw or (p.d & c.d) or (p.u & c.d) or p.fence or c.fence or (p.lds and c.lds and (p.ldsw or c.ldsw)) or (p.vm and c.vm)
            if dep:
                l = lat(p, c, raw)
                p.succ.append((c, l))
                c.pred.append((p, l))
    for n in reversed(nodes):
        n.prio = max([l + s.prio for s, l in n.succ], default=0) + (60 if n.ldsw or n.vm else 0) * (not n.succ)
    bgl = L(bg)
    out, done = [], set()
    t, pipe, vblock, bgt = 0, -12, 0, bg_start
    npend = {n: len(n.pred) for n in nodes}
    ready = [n for n in nodes if not n.pred]

    def can(n):
        i = n.ins[0]
        e = max(t, n.earliest)
        if i.cls == 'mfma':
            e = max(e, pipe, vblock)
        elif i.cls in ('valu', 'trans'):
            e = max(e, vblock)
            if i.mn.startswith('v_pk_'):
                e = max(e, pipe + 12)
        return e

    def issue(ins):
        nonlocal t, pipe, vblock
        for i in ins:
            if i.cls == 'mfma':
                t = max(t, pipe, vblock)
                pipe = t + 4 * i.passes
                vblock = t + 8
                t += 4
            elif i.cls in ('valu', 'trans'):
                t = max(t, vblock)
                if i.mn.startswith('v_pk_'):
                    t = max(t, pipe + 12)
                t += 8 if i.cls == 'trans' or 'swap' in i.mn else 4.5
            elif i.cls in MEM:
                t += 4
                b = {'dsread': 1, 'vload': 2, 'dma': 2}.get(i.cls, 5 if ('b128' in i.mn or i.wide) else 3)
                vblock = max(vblock, t + 4 * b)
            elif i.cls not in ('pseudo', 'dir', 'label'):
                t += 4

    while ready:
        if keep:
            first = min(ready, key=lambda n: n.idx)
            best = can(first)
        else:
            best = min(can(n) for n in ready)
        if bgl and (bgt + 24 <= t or (bgt - 24 <= best and best > t + 8)):
            x = bgl.pop(0)
            w = 1
            if isinstance(x, tuple):
                x, w = x
            out.append(x)
            if has(x, MEM):
                bgt = max(t - 24, bgt) + bg_gap * w
            issue(flatten([x]))
            continue
        cand = [n for n in ready if can(n) <= best + 2]
        n = first if keep else max(cand, key=lambda n: (n.prio, -n.idx))
        ready.remove(n)
        t = can(n)
        st = t
        issue(n.ins)
        out.append(n.item)
        for s, l in n.succ:
            s.earliest = max(s.earliest, st + l)
            npend[s] -= 1
            if npend[s] == 0:
                ready.append(s)
    if verbose:
        print(verbose, 'sched est clk', int(t), 'bg left', len(bgl))
    out += [x[0] if isinstance(x, tuple) else x for x in bgl]
    return out


def under(mf, fill, per=2):
    L = lambda s: list(s.l if isinstance(s, Asm) else s)
    mf, fill = L(mf), L(fill)
    out = []
    for m in mf:
        out.append(m)
        out += fill[:per]
        fill = fill[per:]
    return out + fill
```

```python
import sys
sys.path.insert(0, 'work')
from asmlib import *
import tables

NAME = 'adaLN_cond__spectral_gfnet__mixer_channel_mlp__prompt'
OPT = dict(stamps=0)
CFG = dict(PRE='', SIL='', PUB='const,tw,tw1,tm', PUB2='', G0='', P1='wf:3', A1='wf:1,w1:3,bias', G1='w1:2', G1b='', P2='w1:6', A2='w1:4', G2='w1:1', G2b='hclr:3',
           P3='hclr:3,w1:3', A3='w1:1,w2:8', G3='')
for arg in sys.argv[2:]:
    k, v = arg.split('=')
    if k in CFG:
        CFG[k] = v
    else:
        OPT[k] = int(v)

PBLK = 11264
WS_EPOCH = 0
WS_MODX = 0x1000
WS_MOD2 = 0x9000
WS_FLAG = 0x10000
WS_P = 0x50000
WS_X1 = WS_P + 256 * PBLK
WS_H = WS_X1 + 256 * 10240
WS_W2F = WS_H + 32 * 196608
WS_END = WS_W2F + 1920 * 1024
WS_STAMP = 0x1800000
WS_REC = 0x2000000
OOB = 0x7ff00000
assert WS_END < WS_STAMP
L_MOD = 0
L_SILU = 17920
L_RED = 19200
L_EX = 20480
L_GP = 32768
L_GW = 49152
L_RING = 65536
L_CONST = L_GP
L_WRAW = L_RING + 7 * 12288
L_W2 = 81920
L_PART = [0, 21504]
SPIN = 200000

T = tables.build()
TN = list(T)

sC, sWM, sX, sWS, sWF_, sW1, sW2, sB1, sB2, sOUT = [8 + 4 * i for i in range(10)]
sWRp, sWIp = 48, 50
sL, sW, sNONCE, sJ, sG, sSPIN, sMASK, sVER = 52, 53, 54, 55, 56, 57, 58, 59
sT = [60, 61, 62, 63, 64, 65]
sST = 66
sADD = 70
sIDX = 73
sXCD = 74
sPG = 75
sZS = 76
sPB = 77
sRING = 78
sTAU = 79
sEX = 80
sBG = [48, 49]
sCOL = 50
sYX = 51
sJ1, sG1, sTM, sTAGZ, sNU = 4, 5, 0, 1, 3
sSTAMP = 82


def srd(s):
    return 's[%d:%d]' % (s, s + 3)


def v(n, c=1):
    return 'v%d' % n if c == 1 else 'v[%d:%d]' % (n, n + c - 1)


def a(n, c=1):
    return 'a%d' % n if c == 1 else 'a[%d:%d]' % (n, n + c - 1)


class Pool:
    def __init__(self, lo, hi):
        self.free = set(range(lo, hi))
        self.hw = 0

    def get(self, n, z='mhxl', al=2):
        if n == 1:
            al = 1
        Z = dict(l=(1, 96), m=(96, 176), h=(176, 256), x=(96, 256))
        for b, hi in [(b, Z[c][1]) for c in z for b in range(*Z[c])]:
            if b % al == 0 and b + n <= hi and all(b + i in self.free for i in range(n)):
                for i in range(n):
                    self.free.remove(b + i)
                self.hw = max(self.hw, b + n)
                return b
        raise RuntimeError('out of registers (%d)' % n)

    def take(self, b, n):
        for i in range(n):
            assert b + i in self.free, 'v%d busy' % (b + i)
            self.free.remove(b + i)
        return b

    def put(self, b, n=1):
        for i in range(n):
            assert b + i not in self.free
            self.free.add(b + i)


A = Asm()
COLD = Asm()
V = Pool(1, 256)
nstamp = [0]
stamp_names = []


CLK = 's_memtime' if OPT.get('cyc') else 's_memrealtime'
ECHO = {2: 's0_done', 3: 's2_done', 4: 's3_done', 5: 'pub0'}


def stamp(name, asm=None, lvl=1, again=False):
    if ECHO.get(OPT.get('echo')) == name:
        (asm or A)('s_memrealtime s[90:91]')
        (asm or A)('s_waitcnt lgkmcnt(0)')
    if not (OPT['stamps'] & lvl) and not (OPT['stamps'] and name in ('end',)):
        return
    asm = asm or A
    if again:
        i = stamp_names.index(name)
    else:
        i = nstamp[0]
        nstamp[0] += 1
        stamp_names.append(name)
    asm('%s s[%d:%d]' % (CLK, sEX, sEX + 1))
    asm('s_mov_b32 s%d, s%d' % (sSTAMP + i, sEX))
    assert sSTAMP + i < 100


MF16 = 'v_mfma_f32_16x16x32_bf16'
MF32 = 'v_mfma_f32_32x32x16_bf16'
lab = [0]


def label(p):
    lab[0] += 1
    return 'L_%s_%d' % (p, lab[0])


def barrier(asm=None):
    asm = asm or A
    asm.wait_lds()
    asm('s_barrier')


PADS = {}


def pad(asm, name):
    asm('; PAD %s' % name)


def warm(asm, names):
    if not OPT.get('warm', 1):
        return
    ret = label('wret')
    g = Asm()
    g('s_mov_b64 exec, 0')
    for w, chain in enumerate(names):
        chain = chain.split('+')
        for a_, b_ in zip(chain, chain[1:] + [None]):
            PADS[a_] = 'L_pad_' + b_ if b_ else ret
        g('s_cmp_eq_u32 s%d, %d' % (sW, w))
        g('s_cbranch_scc1 L_pad_%s' % chain[0])
    g('%s:' % ret)
    g('s_mov_b64 exec, -1')
    asm.l.append(g.l)


def check_sentinel(asm, regs, tmp):
    r = list(regs)
    first = True
    while r:
        if first:
            if len(r) >= 3:
                asm('v_max3_u32 %s, %s, %s, %s' % (v(tmp), v(r[0]), v(r[1]), v(r[2])))
                r = r[3:]
            else:
                asm('v_max_u32 %s, %s, %s' % (v(tmp), v(r[0]), v(r[-1])))
                r = []
            first = False
        elif len(r) >= 2:
            asm('v_max3_u32 %s, %s, %s, %s' % (v(tmp), v(tmp), v(r[0]), v(r[1])))
            r = r[2:]
        else:
            asm('v_max_u32 %s, %s, %s' % (v(tmp), v(tmp), v(r[0])))
            r = []
    asm('v_cmp_eq_u32 vcc, -1, %s' % v(tmp))


def check_bits(asm, regs, masks, tmp):
    r = list(regs)
    for k, x in enumerate(r if masks is not None else []):
        asm('v_xor_b32 %s, %s, %s' % (v(x), v(masks + k % 4), v(x)))
    asm('v_or3_b32 %s, %s, %s, %s' % (v(tmp), v(r[0]), v(r[1]), v(r[2])))
    for k in range(3, len(r) - 1, 2):
        asm('v_or3_b32 %s, %s, %s, %s' % (v(tmp), v(tmp), v(r[k]), v(r[k + 1])))
    asm('v_bitop3_b32 %s, %s, %s, s%d bitop3:0xa8' % (v(tmp), v(tmp), v(r[-1]), sTM))
    asm('v_cmp_ne_u32 vcc, 0, %s' % v(tmp))


def check_tags(asm, regs, tmp):
    asm('v_xor_b32 %s, s%d, %s' % (v(tmp), sNONCE, v(regs[0])))
    for r in regs[1:]:
        asm('v_bitop3_b32 %s, %s, s%d, %s bitop3:0xbe' % (v(tmp), v(r), sNONCE, v(tmp)))
    asm('v_cmp_ne_u32 vcc, 0, %s' % v(tmp))


def verify(asm, loads, checker, masked=True, name=None):
    ls, lo = label('slow'), label('ok')
    checker(asm)
    grp = Asm()
    grp('s_cbranch_vccnz %s' % ls)
    grp('%s:' % lo)
    asm.l.append(grp.l)
    c = COLD
    c.cold_begin()
    lx = label('out')
    c('%s:' % ls)
    if name:
        pad(c, name)
    c('s_add_u32 s%d, s%d, 1' % (sSPIN, sSPIN))
    c('s_cmp_gt_u32 s%d, %d' % (sSPIN, SPIN))
    c('s_cbranch_scc1 %s' % lx)
    c('s_mov_b64 exec, vcc' if masked else 's_wqm_b64 exec, vcc')
    loads(c)
    c('s_waitcnt vmcnt(0)')
    checker(c)
    c('s_cbranch_vccnz %s' % ls)
    c('%s:' % lx)
    c('s_mov_b64 exec, -1')
    c('s_nop 4')
    c('s_branch %s' % lo)


def cmul(asm, re_, im_, c_, s_, t0, t1, sign, inplace=False):
    neg = ' neg_lo:[0,0,1] neg_hi:[0,0,1]'
    for p in (0, 2):
        asm('v_pk_mul_f32 %s, %s, %s' % (v(t0 + p, 2), v(im_ + p, 2), v(s_ + p, 2)))
        asm('v_pk_mul_f32 %s, %s, %s' % (v(t1 + p, 2), v(re_ + p, 2), v(s_ + p, 2)))
    for p in (0, 2):
        asm('v_pk_fma_f32 %s, %s, %s, %s%s' % (v((re_ if inplace else t0) + p, 2), v(re_ + p, 2), v(c_ + p, 2), v(t0 + p, 2), neg if sign > 0 else ''))
        asm('v_pk_fma_f32 %s, %s, %s, %s%s' % (v((im_ if inplace else t1) + p, 2), v(im_ + p, 2), v(c_ + p, 2), v(t1 + p, 2), '' if sign > 0 else neg))


def ln_stats(asm, x, scale=None):
    t = V.get(8, 'hxl')
    for r in range(2):
        asm('v_pk_add_f32 %s, %s, %s' % (v(t + 2 * r, 2), v(x[r], 2), v(x[r] + 2, 2)))
        asm('v_pk_mul_f32 %s, %s, %s' % (v(t + 4 + 2 * r, 2), v(x[r], 2), v(x[r], 2)))
    for p in range(1, 5):
        for r in range(2):
            if p >= 2:
                asm('v_pk_add_f32 %s, %s, %s' % (v(t + 2 * r, 2), v(t + 2 * r, 2), v(x[r] + 2 * p, 2)))
            asm('v_pk_fma_f32 %s, %s, %s, %s' % (v(t + 4 + 2 * r, 2), v(x[r] + 2 * p, 2), v(x[r] + 2 * p, 2), v(t + 4 + 2 * r, 2)))
    for q in range(4):
        asm('v_add_f32 %s, %s, %s' % (v(t + 2 * q), v(t + 2 * q), v(t + 2 * q + 1)))
    asm('v_permlane32_swap_b32 %s, %s' % (v(t), v(t + 2)))
    asm('v_permlane32_swap_b32 %s, %s' % (v(t + 4), v(t + 6)))
    asm('v_add_f32 %s, %s, %s' % (v(t), v(t), v(t + 2)))
    asm('v_add_f32 %s, %s, %s' % (v(t + 4), v(t + 4), v(t + 6)))
    asm('v_permlane16_swap_b32 %s, %s' % (v(t), v(t + 4)))
    asm('v_add_f32 %s, %s, %s' % (v(t), v(t), v(t + 4)))
    for sh in (8, 4, 2, 1):
        asm('v_add_f32_dpp %s, %s, %s row_ror:%d row_mask:0xf bank_mask:0xf' % (v(t), v(t), v(t), sh))
    asm('v_mul_f32 %s, 0x3acccccd, %s' % (v(t + 1), v(t)))
    asm('v_mul_f32 %s, 0x3acccccd, %s' % (v(t), v(t)))
    asm('v_permlane16_swap_b32 %s, %s' % (v(t), v(t + 1)))
    asm('v_fma_f32 %s, -%s, %s, %s' % (v(t + 1), v(t), v(t), v(t + 1)))
    asm('v_max_f32 %s, 0, %s' % (v(t + 1), v(t + 1)))
    asm('v_add_f32 %s, 0x3727c5ac, %s' % (v(t + 1), v(t + 1)))
    asm('v_rsq_f32 %s, %s' % (v(t + 1), v(t + 1)))
    if scale:
        asm('v_mul_f32 %s, %s, %s' % (v(t + 1), scale, v(t + 1)))
    asm('v_mul_f32_e64 %s, -%s, %s' % (v(t), v(t), v(t + 1)))
    for r in range(2):
        asm('v_readlane_b32 s%d, %s, %d' % (sST + 2 * r, v(t + 1), 32 * r))
    for r in range(2):
        asm('v_readlane_b32 s%d, %s, %d' % (sST + 2 * r + 1, v(t), 32 * r))
    V.put(t, 8)


def ln_apply(asm, dst, x):
    for p in range(5):
        for r in range(2):
            s = 's[%d:%d]' % (sST + 2 * r, sST + 2 * r + 1)
            asm('v_pk_fma_f32 %s, %s, %s, %s op_sel:[0,0,1] op_sel_hi:[1,0,1]' % (v(dst[r] + 2 * p, 2), v(x[r] + 2 * p, 2), s, s))


def read_mod(asm, dst, vec, vL16, vL4):
    b = L_MOD + vec * 2560
    asm('ds_read_b128 %s, %s offset:%d' % (v(dst, 4), v(vL16), b))
    asm('ds_read_b128 %s, %s offset:%d' % (v(dst + 4, 4), v(vL16), b + 1280))
    o = (b + 1024) // 256
    assert (b + 1024) % 256 == 0
    asm('ds_read2st64_b32 %s, %s offset0:%d offset1:%d' % (v(dst + 8, 2), v(vL4), o, o + 5))


def S(asm, fmt, *args):
    asm(fmt % args)


def opt(cond, asm=None):
    asm = asm or A
    lb = label('skip')
    asm(cond)
    asm('s_cbranch_scc1 %s' % lb)
    asm.opt_begin()
    return lb


def opt_end(lb, asm=None):
    asm = asm or A
    asm.opt_end()
    asm('%s:' % lb)


def grp(asm, g):
    asm.l.append(g.l)


A('s_cmp_ge_u32 s2, 256')
A('s_cbranch_scc1 L_end')
for s, off in ((sC, 64), (sWM, 72), (sX, 0), (sWS, 96), (sWRp, 8), (sWIp, 16), (sW1, 32)):
    A('s_load_dwordx2 s[%d:%d], s[0:1], %d' % (s, s + 1, off))
if OPT['stamps']:
    A('%s s[%d:%d]' % (CLK, sSTAMP, sSTAMP + 1))
    A('s_memtime s[100:101]')
if OPT.get('echo'):
    A('s_memrealtime s[88:89]')
vLane = V.get(1, 'l')
vt = V.get(4, 'l')
tmp = V.get(1, 'l')
A('v_lshrrev_b32 %s, 6, v0' % v(vt))
A('v_and_b32 %s, 63, v0' % v(vLane))
A('v_readfirstlane_b32 s%d, %s' % (sW, v(vt)))
A('s_lshr_b32 s%d, s2, 3' % sIDX)
vPC = V.get(2)
A('s_getpc_b64 s[6:7]')
A('L_pc:')
A('s_lshl_b32 s%d, s%d, 7' % (sT[1], sIDX))
A('v_lshl_add_u32 %s, v0, 12, s%d' % (v(vt + 1), sT[1]))
A('v_mov_b32 %s, s7' % v(vPC + 1))
A('v_add_co_u32 %s, vcc, s6, %s' % (v(vt + 2), v(vt + 1)))
A('s_and_b32 s%d, s2, 7' % sT[0])
A('s_mul_i32 s%d, s%d, 20' % (sTAU, sT[0]))
A('v_addc_co_u32 %s, vcc, 0, %s, vcc' % (v(vt + 3), v(vPC + 1)))
A('v_cmp_gt_u32 vcc, (L_tabend-L_pc-4), %s' % v(vt + 1))
A('s_add_u32 s%d, s%d, s%d' % (sTAU, sTAU, sIDX))
A('s_and_saveexec_b64 s[%d:%d], vcc' % (sEX, sEX + 1))
A('s_cbranch_execz L_nopf')
A.opt_begin()
vJunk = V.get(3, 'h', 1)
A('global_load_dword %s, %s, off' % (v(vJunk), v(vt + 2, 2)), tag='junk')
A.opt_end()
A('L_nopf:')
A('s_mov_b64 exec, -1')
A('s_lshl_b32 s%d, s%d, 5' % (sL, sT[0]))
A('s_add_u32 s%d, s%d, s%d' % (sL, sL, sIDX))
vL16, vL4, vL8 = V.get(1, 'l'), V.get(1, 'l'), V.get(1, 'l')
vN, vG, vKD, vH = V.get(1, 'l'), V.get(1, 'l'), V.get(1, 'l'), V.get(1, 'l')
A('v_and_b32 %s, 15, %s' % (v(vN), v(vLane)))
A('v_lshrrev_b32 %s, 4, %s' % (v(vG), v(vLane)))
vCo = V.get(1)
A('s_and_b32 s%d, s%d, 1' % (sT[2], sTAU))
A('s_mul_i32 s%d, s%d, 640' % (sT[0], sT[2]))
A('s_lshl_b32 s%d, s%d, 6' % (sT[1], sW))
A('s_add_u32 s%d, s%d, s%d' % (sT[0], sT[0], sT[1]))
A('v_lshl_add_u32 %s, %s, 8, s%d' % (v(vCo), v(vG), sT[0]))
A('v_lshl_add_u32 %s, %s, 2, %s' % (v(vCo), v(vN), v(vCo)))
vWM = V.get(1)
A('v_lshrrev_b32 %s, 1, %s' % (v(vWM), v(vLane)))
A('v_mul_u32_u24 %s, 7680, %s' % (v(vWM), v(vWM)))
A('v_and_b32 %s, 1, %s' % (v(vt), v(vLane)))
A('v_lshl_add_u32 %s, %s, 4, %s' % (v(vWM), v(vt), v(vWM)))
A('s_mul_i32 s%d, s%d, 3840' % (sT[0], sT[0]))
A('s_lshr_b32 s%d, s%d, 1' % (sT[1], sTAU))
A('s_lshl_b32 s%d, s%d, 5' % (sT[1], sT[1]))
A('s_add_u32 s%d, s%d, s%d' % (sT[0], sT[0], sT[1]))
A('s_lshl_b32 s%d, s%d, 10' % (sT[1], sW))
for s, n in ((sC, 1280), (sWM, 640 * 7680), (sX, 2621440), (sWS, WS_REC)):
    A('s_mov_b32 s%d, %d' % (s + 2, n))
    A('s_mov_b32 s%d, 0x20000' % (s + 3))
A('v_lshlrev_b32 %s, 2, %s' % (v(vL4), v(vLane)))
A('s_lshl_b32 s%d, s%d, 9' % (sT[2], sW))
A('s_add_u32 s%d, s%d, s%d' % (sT[2], sT[2], sL))
A('s_mul_i32 s%d, s%d, 1280' % (sPG, sT[2]))
A('s_add_u32 s%d, s%d, %d' % (sZS, sPG, 256 * 1280))
A('s_add_u32 m0, s%d, %d' % (sT[1], L_EX))
A('s_waitcnt lgkmcnt(0)')
XPOS = OPT.get('xpos', 2)
vXR = V.get(10)
XL, XL2 = Asm(), Asm()
for r in range(2):
    for j in range(5):
        for X in (XL, XL2):
            X('buffer_load_dword %s, %s, %s, s%d offen offset:%d' % (v(vXR + 5 * r + j), v(vL4), srd(sX), (sPG, sZS)[r], 256 * j))
if XPOS == 0:
    A.add(XL)
vC = V.get(1)
lb = opt('s_cmp_ge_u32 s%d, 20' % sIDX)
A('buffer_load_dword %s, %s, %s, 0 offen' % (v(vC), v(vCo), srd(sC)))
for i in range(3):
    if i == 2:
        lb2 = opt('s_cmp_ge_u32 s%d, 2' % sW)
    if i:
        A('s_add_u32 m0, s%d, %d' % (sT[1], L_EX + 4096 * i))
        A('s_add_u32 s%d, s%d, %d' % (sT[0], sT[0], 128 * 7680))
    A('buffer_load_dwordx4 %s, %s, s%d offen lds' % (v(vWM), srd(sWM), sT[0]), tag='wm')
opt_end(lb2)
opt_end(lb)
V.put(vCo)
V.put(vWM)
if OPT['stamps']:
    nstamp[0] = 1
    stamp_names.append('start')
A('s_load_dword s%d, s[%d:%d], %d' % (sNONCE, sWS, sWS + 1, WS_EPOCH))
for s, off in ((sW2, 48), (sB1, 40), (sB2, 56), (sOUT, 80)):
    A('s_load_dwordx2 s[%d:%d], s[0:1], %d' % (s, s + 1, off))
stamp('crit_iss', lvl=2)
if XPOS == 2:
    A.add(XL)


def mk(fn, *args):
    x = Asm()
    fn(x, *args)
    return x


def out_of_line(cond, asm=None):
    asm = asm or A
    lb, lj = label('far'), label('back')
    asm(cond)
    asm('s_cbranch_scc1 %s' % lb)
    return lb, lj


B = Asm()
for s, n in ((sWF_, 2048 * 642), (sW1, 640 * 3072), (sW2, 1536 * 1280), (sB1, 3072), (sB2, 1280), (sOUT, 2621440)):
    B('s_mov_b32 s%d, %d' % (s + 2, n))
    B('s_mov_b32 s%d, 0x20000' % (s + 3))
B('v_lshlrev_b32 %s, 4, %s' % (v(vL16), v(vLane)))
B('v_lshlrev_b32 %s, 3, %s' % (v(vL8), v(vLane)))
B('v_and_b32 %s, 31, %s' % (v(vKD), v(vLane)))
B('v_lshrrev_b32 %s, 5, %s' % (v(vH), v(vLane)))
B('s_mov_b32 s%d, 0' % sSPIN)
B('s_mov_b32 s%d, 0xffff0000' % sMASK)
B('s_and_b32 s%d, s%d, 7' % (sJ, sL))
B('s_lshr_b32 s%d, s%d, 3' % (sG, sL))
B('s_mul_i32 s%d, s%d, %d' % (sPB, sL, PBLK))
B('s_add_u32 s%d, s%d, %d' % (sPB, sPB, WS_P))
vOOB = V.get(1, 'l')
vKW = V.get(1)
vQ = V.get(1, 'l')
vC8 = V.get(1, 'l')
vT64 = V.get(1)
B('v_lshrrev_b32 %s, 2, %s' % (v(vQ), v(vLane)))
B('v_and_b32 %s, 3, %s' % (v(vC8), v(vLane)))
B('s_lshl_b32 s%d, s%d, 5' % (sT[0], sW))
B('v_add_u32 %s, s%d, %s' % (v(vKW), sT[0], v(vKD)))
B('v_mov_b32 %s, %d' % (v(vOOB), OOB))
B('s_mul_i32 s%d, s%d, 3072' % (sRING, sW))
B('s_lshr_b32 s%d, s%d, 5' % (sXCD, sL))
B('s_andn2_b32 s%d, s%d, 7' % (sT[0], sG))
B('s_lshr_b32 s%d, s%d, 2' % (sT[1], sIDX))
B('s_add_u32 s%d, s%d, s%d' % (sG1, sT[0], sT[1]))
B('s_and_b32 s%d, s%d, 4' % (sT[0], sG))
B('s_and_b32 s%d, s%d, 3' % (sT[1], sIDX))
B('s_add_u32 s%d, s%d, s%d' % (sJ1, sT[0], sT[1]))
if not OPT.get('pair', 1):
    B('s_mov_b32 s%d, s%d' % (sG1, sG))
    B('s_mov_b32 s%d, s%d' % (sJ1, sJ))
if OPT.get('pair', 2) == 2:
    B('s_mov_b32 s%d, s%d' % (sG, sG1))
    B('s_mov_b32 s%d, s%d' % (sJ, sJ1))
vFILL = V.get(4, 'l')
for i in range(4):
    B('v_mov_b32 %s, -1' % v(vFILL + i))
B('s_cmp_ge_u32 s%d, 2' % sW)
B('s_cselect_b32 s%d, s%d, s%d' % (sWF_, sWIp, sWRp))
B('s_cselect_b32 s%d, s%d, s%d' % (sWF_ + 1, sWIp + 1, sWRp + 1))
B('s_lshl_b32 s%d, s%d, 13' % (sT[0], sW))
B('s_add_u32 s%d, s%d, (L_tab-L_pc)' % (sT[1], sT[0]))
B('v_add_u32 %s, s%d, %s' % (v(vt + 2), sT[1], v(vL16)))
B('v_add_co_u32 %s, vcc, s6, %s' % (v(vPC), v(vt + 2)))
B('v_lshlrev_b32 %s, 6, %s' % (v(vT64), v(vQ)))
B('v_lshl_add_u32 %s, %s, 3, %s' % (v(vT64), v(vC8), v(vT64)))
B('v_addc_co_u32 %s, vcc, 0, %s, vcc' % (v(vPC + 1), v(vPC + 1)))
vTch = V.get(5, 'mh', 1)
B('s_mul_i32 s%d, s%d, 642' % (sT[0], sXCD))
B('s_and_b32 s%d, s%d, 1' % (sT[1], sW))
B('s_lshl1_add_u32 s%d, s%d, s%d' % (sT[1], sIDX, sT[1]))
B('s_mul_i32 s%d, s%d, %d' % (sT[1], sT[1], 4 * 5136))
B('s_add_u32 s%d, s%d, s%d' % (sT[0], sT[0], sT[1]))
B('s_and_b32 s%d, s%d, -4' % (sT[0], sT[0]))
B('v_bfe_u32 %s, %s, 3, 2' % (v(vt), v(vLane)))
B('v_and_b32 %s, 7, %s' % (v(vt + 3), v(vLane)))
B('v_min_u32 %s, 5, %s' % (v(vt + 1), v(vt + 3)))
B('v_mul_u32_u24 %s, 5136, %s' % (v(vt), v(vt)))
B('v_lshl_add_u32 %s, %s, 7, s%d' % (v(vt + 1), v(vt + 1), sT[0]))
B('v_add_u32 %s, %s, %s' % (v(vTch), v(vt), v(vt + 1)))
vMG, vMA = V.get(1), V.get(2, 'mh', 1)
B('v_lshrrev_b32 %s, 3, %s' % (v(vMG), v(vLane)))
B('s_lshl_b32 s%d, s%d, 11' % (sT[0], sW))
B('v_lshl_add_u32 %s, %s, 8, s%d' % (v(vMG), v(vMG), sT[0]))
B('v_lshl_add_u32 %s, %s, 4, %s' % (v(vMG), v(vt + 3), v(vMG)))
B('s_lshl_b32 s%d, s%d, 2' % (sT[0], sW))
B('v_add_u32 %s, s%d, %s' % (v(vMA), sT[0], v(vL16)))
B('s_mul_i32 s%d, s%d, 2560' % (sT[0], sW))
B('v_add_u32 %s, s%d, %s' % (v(vMA + 1), sT[0], v(vL4)))
B('s_mul_i32 s%d, s%d, 1.0' % (sADD, sW))
B('s_lshl_b32 s%d, s%d, 13' % (sADD + 1, sW))
B('s_add_u32 s%d, s%d, %d' % (sADD + 1, sADD + 1, WS_MODX + 8192))
B('s_lshr_b32 s%d, s%d, 6' % (sT[0], sL))
B('s_lshl_b32 s%d, s%d, 5' % (sT[0], sT[0]))
B('s_add_u32 s%d, s%d, s%d' % (sT[0], sT[0], sIDX))
B('s_lshl2_add_u32 s%d, s%d, s%d' % (sT[0], sT[0], sW))
B('s_mul_i32 s%d, s%d, 15' % (sT[0], sT[0]))
B('v_min_u32 %s, 14, %s' % (v(vt), v(vLane)))
B('v_add_u32 %s, s%d, %s' % (v(vt), sT[0], v(vt)))
B('v_mul_u32_u24 %s, 43691, %s' % (v(vt + 1), v(vt)))
B('v_lshrrev_b32 %s, 19, %s' % (v(vt + 1), v(vt + 1)))
B('s_and_b32 s%d, s%d, 1' % (sT[0], sXCD))
B('v_add_u32 %s, s%d, %s' % (v(vt + 1), sT[0], v(vt + 1)))
B('v_mul_u32_u24 %s, 12, %s' % (v(vt + 1), v(vt + 1)))
B('v_add_lshl_u32 %s, %s, %s, 7' % (v(vTch + 1), v(vt), v(vt + 1)))

TB = Asm()
TB('s_lshl2_add_u32 s%d, s%d, s%d' % (sT[0], sIDX, sW))
TB('s_mul_i32 s%d, s%d, %d' % (sT[1], sT[0], 5 * 7680))
TB('s_mul_i32 s%d, s%d, 640' % (sT[2], sXCD))
TB('s_add_u32 s%d, s%d, s%d' % (sT[1], sT[1], sT[2]))
TB('s_add_u32 s%d, s%d, 2560' % (sT[1], sT[1]))
TB('v_lshrrev_b32 %s, 3, %s' % (v(vt), v(vLane)))
TB('v_min_u32 %s, 4, %s' % (v(vt), v(vt)))
TB('v_mul_u32_u24 %s, 7680, %s' % (v(vt), v(vt)))
TB('v_and_b32 %s, 7, %s' % (v(vt + 1), v(vLane)))
TB('v_min_u32 %s, 4, %s' % (v(vt + 1), v(vt + 1)))
TB('v_lshl_add_u32 %s, %s, 7, s%d' % (v(vt + 1), v(vt + 1), sT[1]))
TB('v_add_u32 %s, %s, %s' % (v(vTch + 2), v(vt), v(vt + 1)))
TB('s_lshl2_add_u32 s%d, s%d, s%d' % (sT[0], sL, sW))
TB('s_mul_i32 s%d, s%d, %d' % (sT[0], sT[0], 15 * 128))
TB('v_min_u32 %s, 14, %s' % (v(vt), v(vLane)))
TB('v_lshl_add_u32 %s, %s, 7, s%d' % (v(vTch + 3), v(vt), sT[0]))


def trig(asm, dst, inv):
    t = V.get(6)
    asm('v_and_b32 %s, 4, %s' % (v(t), v(vLane)))
    asm('v_bfe_u32 %s, %s, 3, 1' % (v(t + 1), v(vLane)))
    asm('v_lshl_add_u32 %s, %s, 1, %s' % (v(t), v(t + 1), v(t)))
    asm('v_bfe_u32 %s, %s, 1, 1' % (v(t + 1), v(vLane)))
    asm('v_add_u32 %s, %s, %s' % (v(t), v(t), v(t + 1)))
    asm('v_and_b32 %s, 1, %s' % (v(t + 1), v(vLane)))
    asm('v_lshlrev_b32 %s, 9, %s' % (v(t + 1), v(t + 1)))
    if not inv:
        asm('v_lshl_add_u32 %s, %s, 10, s%d' % (v(t + 2), v(vH), sL))
        asm('v_mad_u32_u24 %s, %s, %s, %s' % (v(t + 2), v(t), v(t + 2), v(t + 1)))
        asm('v_lshlrev_b32 %s, 8, %s' % (v(t + 3), v(t)))
    else:
        asm('v_lshl_add_u32 %s, %s, 8, s%d' % (v(t + 3), v(t), sL))
        asm('v_lshlrev_b32 %s, 2, %s' % (v(t + 2), v(vH)))
        asm('v_mul_u32_u24 %s, %s, %s' % (v(t + 2), v(t + 2), v(t + 3)))
        asm('v_sub_u32 %s, %s, %s' % (v(t + 2), v(t + 2), v(t + 1)))
    sc = '0x5f800000' if inv else '0x1f800000'
    for q in range(4):
        asm('v_and_b32 %s, 2047, %s' % (v(t + 4), v(t + 2)))
        asm('v_cvt_f32_u32 %s, %s' % (v(t + 4), v(t + 4)))
        asm('v_mul_f32 %s, 0x3a000000, %s' % (v(t + 4), v(t + 4)))
        asm('v_sin_f32 %s, %s' % (v(t + 5), v(t + 4)))
        asm('v_cos_f32 %s, %s' % (v(t + 4), v(t + 4)))
        asm('v_add_u32 %s, %s, %s' % (v(t + 2), v(t + 2), v(t + 3)))
        asm('v_mul_f32 %s, %s, %s' % (v(t + 5), sc, v(t + 5)))
        asm('v_mul_f32 %s, %s, %s' % (v(t + 4), sc, v(t + 4)))
        asm('v_cvt_pk_bf16_f32 %s, %s, %s%s' % (v(dst + q), v(t + 4), '-' if inv else '', v(t + 5)))
    V.put(t, 6)


def j_tw(asm):
    asm('buffer_load_dword %s, %s, %s, 0 offen' % (v(vJunk + 1), v(vTch), srd(sWF_)), tag='junk')


def j_tw1(asm):
    if not OPT.get('now1'):
        asm('buffer_load_dword %s, %s, %s, 0 offen' % (v(vJunk + 2), v(vTch + 1), srd(sW1)), tag='junk')


def j_tm(asm):
    asm('buffer_load_dword %s, %s, %s, 0 offen' % (v(vTch + 2), v(vTch + 2), srd(sWM)), tag='junk')


def j_tw2(asm):
    asm('buffer_load_dword %s, %s, %s, 0 offen' % (v(vTch + 3), v(vTch + 3), srd(sW2)), tag='junk')


def early(asm, nm):
    for x in CFG[nm].split(','):
        if x:
            globals()['j_' + x](asm)


TBE = any(x in CFG['PRE'] + CFG['SIL'] for x in ('tm', 'tw2'))
if TBE:
    B.add(TB)
early(B, 'PRE')
vA8, vA8i = V.get(4), V.get(4)
if OPT.get('trig0', 0):
    trig(B, vA8, False)
B('s_mul_i32 s%d, s%d, 0x9e3779b1' % (sT[0], sNONCE))
B('s_add_u32 s%d, s%d, 0x7f4a7c15' % (sT[0], sT[0]))
B('s_lshr_b32 s%d, s%d, 15' % (sT[1], sT[0]))
B('s_xor_b32 s%d, s%d, s%d' % (sT[0], sT[0], sT[1]))
B('s_mul_i32 s%d, s%d, 0x85ebca6b' % (sT[0], sT[0]))
B('s_lshr_b32 s%d, s%d, 13' % (sT[1], sT[0]))
B('s_xor_b32 s%d, s%d, s%d' % (sT[0], sT[0], sT[1]))
B('s_mov_b32 s%d, 0x55555555' % sT[5])
B('s_or_b32 s%d, s%d, 16' % (sT[0], sT[0]))
B('s_lshr_b32 s%d, s%d, 1' % (sT[1], sNONCE))
B('s_and_b32 s%d, s%d, s%d' % (sT[1], sT[1], sT[5]))
B('s_orn2_b32 s%d, s%d, s%d' % (sT[2], sNONCE, sT[1]))
B('s_and_b32 s%d, s%d, s%d' % (sT[2], sT[2], sT[5]))
B('s_and_b32 s%d, s%d, s%d' % (sT[3], sT[0], sT[1]))
B('s_xor_b32 s%d, s%d, s%d' % (sT[3], sT[3], sT[2]))
B('s_andn2_b32 s%d, s%d, s%d' % (sT[4], sT[2], sT[0]))
B('s_xor_b32 s%d, s%d, s%d' % (sT[4], sT[4], sT[1]))
B('s_lshl1_add_u32 s%d, s%d, s%d' % (sNONCE, sT[3], sT[4]))
B('s_lshl1_add_u32 s%d, s%d, s%d' % (sT[1], sT[1], sT[2]))
B('s_and_b32 s%d, s%d, 3' % (sT[1], sT[1]))
B('s_lshr_b32 s%d, s%d, 2' % (sT[2], sNONCE))
B('s_xor_b32 s%d, s%d, s%d' % (sT[2], sT[2], sNONCE))
B('s_lshl_b32 s%d, s%d, 2' % (sT[2], sT[2]))
B('s_cselect_b32 s%d, 0, s%d' % (sT[1], sT[1]))
B('s_xor_b32 s%d, s%d, s%d' % (sNONCE, sNONCE, sT[1]))
B('s_lshr_b32 s%d, s%d, 1' % (sT[1], sNONCE))
B('s_xor_b32 s%d, s%d, s%d' % (sT[2], sT[1], sNONCE))
B('s_and_b32 s%d, s%d, s%d' % (sT[1], sT[1], sT[5]))
B('s_and_b32 s%d, s%d, s%d' % (sT[2], sT[2], sT[5]))
B('s_lshl1_add_u32 s%d, s%d, s%d' % (sTAGZ, sT[2], sT[1]))
B('s_mov_b32 s%d, 0x40004000' % sTM)
A.add(B)
stamp('pre_wm', lvl=3)


def silu(asm, x, t, n):
    for i in range(n):
        asm('v_mul_f32 %s, 0xbfb8aa3b, %s' % (v(t + i), v(x + i)))
    for i in range(n):
        asm('v_exp_f32 %s, %s' % (v(t + i), v(t + i)))
    for i in range(n):
        asm('v_add_f32 %s, 1.0, %s' % (v(t + i), v(t + i)))
    for i in range(n):
        asm('v_rcp_f32 %s, %s' % (v(t + i), v(t + i)))
    for i in range(n):
        asm('v_mul_f32 %s, %s, %s' % (v(x + i), v(x + i), v(t + i)))


def w2_reformat(LW, tag, mid=None):
    ad, f = V.get(2, 'mh', 1), V.get(24)
    sD = [6, 7]
    A('s_mul_i32 s%d, s%d, 205' % (sT[1], sNU))
    A('s_lshr_b32 s%d, s%d, 10' % (sT[1], sT[1]))
    A('s_mul_i32 s%d, s%d, 5' % (sT[2], sT[1]))
    A('s_sub_u32 s%d, s%d, s%d' % (sT[0], sNU, sT[2]))
    A('s_lshl2_add_u32 s%d, s%d, s%d' % (sT[0], sT[0], sW))
    A('s_lshr_b32 s%d, s%d, 1' % (sT[2], sT[0]))
    A('s_mul_i32 s%d, s%d, 238' % (sT[2], sT[2]))
    A('s_and_b32 s%d, s%d, 1' % (sT[3], sT[0]))
    A('s_add_u32 s%d, s%d, s%d' % (sT[2], sT[2], sT[3]))
    A('s_add_u32 s%d, s%d, s%d' % (sT[2], sT[2], sT[0]))
    A('s_mul_i32 s%d, s%d, 480' % (sT[3], sT[0]))
    A('s_sub_u32 s%d, s%d, %d' % (sT[3], sT[3], 480 * 16 - 4))
    A('s_cmp_lt_u32 s%d, 16' % sT[0])
    A('s_cselect_b32 s%d, s%d, s%d' % (sT[2], sT[2], sT[3]))
    A('s_cselect_b32 s%d, 1, 240' % sT[3])
    A('s_mul_i32 s%d, s%d, 15' % (sT[4], sT[1]))
    A('s_add_u32 s%d, s%d, s%d' % (sT[2], sT[2], sT[4]))
    A('s_add_u32 s%d, s%d, s%d' % (sT[3], sT[3], sT[2]))
    for k in range(2):
        A('s_lshl_b32 s%d, s%d, 10' % (sD[k], sT[2 + k]))
    A('s_lshr_b32 s%d, s%d, 1' % (sT[2], sT[1]))
    A('s_mul_i32 s%d, s%d, %d' % (sT[2], sT[2], 192 * 1280))
    A('s_lshl_b32 s%d, s%d, 6' % (sT[0], sT[0]))
    A('s_add_u32 s%d, s%d, s%d' % (sT[0], sT[0], sT[2]))
    A('s_and_b32 s%d, s%d, 1' % (sT[1], sT[1]))
    A('v_mul_u32_u24 %s, 1280, %s' % (v(ad), v(vQ)))
    A('v_lshl_add_u32 %s, %s, 4, %s' % (v(ad), v(vC8), v(ad)))
    A('v_add_u32 %s, s%d, %s' % (v(ad), sT[0], v(ad)))
    A('s_mul_i32 s%d, s%d, %d' % (sT[2], sT[1], 40 * 1280))
    A('v_mul_u32_u24 %s, s%d, %s' % (v(ad + 1), sT[2], v(vH)))
    A('v_add_u32 %s, %s, %s' % (v(ad + 1), v(ad + 1), v(ad)))
    A('s_lshl1_add_u32 s%d, s%d, %d' % (sT[0], sRING, LW))
    for e in range(3):
        for rd in range(2):
            r0 = 48 * e + 16 * rd
            r1 = 144 + 16 * rd if e == 0 else 96 * (e - 1) + 32 + 8 * rd
            A('s_mul_i32 s%d, s%d, %d' % (sT[2], sT[1], (r1 - r0) * 1280))
            A('s_add_u32 s%d, s%d, %d' % (sT[2], sT[2], r0 * 1280))
            A('s_add_u32 m0, s%d, %d' % (sT[0], 2048 * e + 1024 * rd))
            A('buffer_load_dwordx4 %s, %s, s%d offen lds' % (v(ad + (e > 0)), srd(sW2), sT[2]), tag='w2raw')
    A('v_add_u32 %s, s%d, %s' % (v(ad), sT[0], v(vT64)))
    if mid:
        mid()
    A.wait_tag('w2raw')
    for e in range(3):
        for tt_ in range(2):
            for rd in range(2):
                A('ds_read_b64_tr_b16 %s, %s offset:%d' % (v(f + 8 * e + 4 * tt_ + 2 * rd, 2), v(ad), 2048 * e + 1024 * rd + 32 * tt_))
    for e in range(3):
        for tt_ in range(2):
            A('s_add_u32 s%d, s%d, %d' % (sT[2], sD[tt_], WS_W2F + 5120 * e))
            A('buffer_store_dwordx4 %s, %s, %s, s%d offen sc1' % (v(f + 8 * e + 4 * tt_, 4), v(vL16), srd(sWS), sT[2]), tag=tag)
    A('s_nop 1')
    V.put(ad, 2)
    V.put(f, 24)


lfar, lback = out_of_line('s_cmp_ge_u32 s%d, 20' % sIDX)
A.opt_begin()
t = V.get(8)
A('s_lshl_b32 s%d, s%d, 8' % (sT[0], sW))
A('v_add_u32 %s, s%d, %s' % (v(t + 4), sT[0], v(vL4)))
A('s_add_u32 s%d, s%d, %d' % (sT[0], sT[0], L_SILU))
A('v_lshl_add_u32 %s, %s, 3, s%d' % (v(t + 5), v(vG), sT[0]))
A('s_lshl_b32 s%d, s%d, 10' % (sT[0], sW))
A('v_add_u32 %s, s%d, %s' % (v(t + 6), sT[0], v(vL8)))
A('s_lshl_b32 s%d, s%d, 6' % (sT[0], sW))
A('v_lshl_add_u32 %s, %s, 4, s%d' % (v(t + 7), v(vG), sT[0]))
A('v_lshlrev_b32 %s, 16, %s' % (v(t), v(vC)))
A('v_and_b32 %s, s%d, %s' % (v(t + 1), sMASK, v(vC)))
silu(A, t, t + 2, 2)
A('v_cvt_pk_bf16_f32 %s, %s, %s' % (v(t), v(t), v(t + 1)))
A('ds_write_b32 %s, %s offset:%d' % (v(t + 4), v(t), L_SILU))
vSB, f, d, p = V.get(12), V.get(12), V.get(4), V.get(8)
for i in range(3):
    A('ds_read2_b64 %s, %s offset0:%d offset1:%d' % (v(vSB + 4 * i, 4), v(t + 5), 8 * i, 8 * i + 4))
A('s_lshl_b32 s%d, s%d, 7' % (sT[0], sTAU))
A('s_add_u32 s%d, s%d, %d' % (sT[0], sT[0], WS_MODX))
A('v_mov_b32 %s, s%d' % (v(t + 1), sNONCE))
A('v_mov_b32 %s, s%d' % (v(t + 3), sNONCE))
if XPOS == 1:
    A.add(XL)
early(A, 'SIL')
stamp('silu', lvl=2)
A.wait_tag('wm')
stamp('wm_land', lvl=2)
for i in range(3):
    for rd in range(2):
        A('ds_read_b64_tr_b16 %s, %s offset:%d' % (v(f + 4 * i + 2 * rd, 2), v(t + 6), L_EX + 4096 * i + 512 * rd))
A('%s %s, %s, %s, 0' % (MF16, v(d, 4), v(f, 4), v(vSB, 4)))
A('%s %s, %s, %s, %s' % (MF16, v(d, 4), v(f + 4, 4), v(vSB + 4, 4), v(d, 4)))
lb2 = opt('s_cmp_ge_u32 s%d, 2' % sW)
A('%s %s, %s, %s, %s' % (MF16, v(d, 4), v(f + 8, 4), v(vSB + 8, 4), v(d, 4)))
opt_end(lb2)
A('ds_write_b128 %s, %s offset:%d' % (v(t + 7), v(d, 4), L_RED))
barrier()
lb = opt('s_cmp_lg_u32 s%d, 3' % sW)
for i in range(4):
    A('ds_read_b64 %s, %s offset:%d' % (v(p + 2 * i, 2), v(vL8), L_RED + 64 * i))
A('s_mov_b64 exec, 0xff')
A('v_pk_add_f32 %s, %s, %s' % (v(p, 2), v(p, 2), v(p + 2, 2)))
A('v_pk_add_f32 %s, %s, %s' % (v(p + 4, 2), v(p + 4, 2), v(p + 6, 2)))
A('v_add_f32 %s, %s, %s' % (v(t + 2), v(p + 1), v(p + 5)))
A('v_add_f32 %s, %s, %s' % (v(t), v(p), v(p + 4)))
A('buffer_store_dwordx4 %s, %s, %s, s%d offen sc1' % (v(t, 4), v(vL16), srd(sWS), sT[0]), tag='pub')
A('s_mov_b64 exec, -1')
A('s_nop 1')
opt_end(lb)
for x, n in ((t, 8), (vSB, 12), (f, 12), (d, 4), (p, 8), (vC, 1)):
    V.put(x, n)
A.opt_end()
A.far_begin(lfar)
if XPOS == 1:
    A.add(XL2)
A('s_mul_i32 s%d, s%d, 10' % (sT[0], sXCD))
A('s_max_u32 s%d, s%d, 22' % (sT[1], sIDX))
A('s_add_u32 s%d, s%d, s%d' % (sT[0], sT[0], sT[1]))
A('s_sub_u32 s%d, s%d, 22' % (sNU, sT[0]))
if OPT.get('w2at', 1) == 0:
    assert 0
early(A, 'SIL')
FAR0 = len(A.l)
A.far_end(lback)
stamp('pub0', lvl=3)

vW1 = V.get(6, 'l', 1)
vW1r = V.get(1, 'l')
vWD = V.get(1)
vb2, vb1 = V.get(4, 'l'), V.get(6, 'l')
W1S = dict(iss=0, drn=0, lim=20)


def w1_addr(asm, late):
    asm('s_mul_i32 s%d, s%d, 384' % (sT[0], sJ1))
    asm('s_mul_i32 s%d, s%d, 96' % (sT[1], sW))
    asm('s_add_u32 s%d, s%d, s%d' % (sT[0], sT[0], sT[1]))
    for i in range(3):
        asm('v_add_u32 %s, %d, %s' % (v(vt), 64 * i, v(vLane)))
        asm('v_mul_u32_u24 %s, 10923, %s' % (v(vt), v(vt)))
        asm('v_lshrrev_b32 %s, 16, %s' % (v(vt + 1), v(vt)))
        if not late:
            asm('v_lshrrev_b32 %s, 4, %s' % (v(vt + 2), v(vt + 1)))
            asm('v_bfe_u32 %s, %s, 1, 1' % (v(vt + 3), v(vt + 1)))
            asm('v_lshl_add_u32 %s, %s, 1, %s' % (v(vt + 2), v(vt + 2), v(vt + 3)))
            asm('v_bfe_u32 %s, %s, 2, 2' % (v(vt + 3), v(vt + 1)))
            asm('v_lshl_add_u32 %s, %s, 6, %s' % (v(vt + 2), v(vt + 2), v(vt + 3)))
            asm('v_and_b32 %s, 1, %s' % (v(vt + 3), v(vt + 1)))
            asm('v_lshl_add_u32 %s, %s, 1, %s' % (v(vt + 2), v(vt + 2), v(vt + 3)))
        else:
            asm('v_bfe_u32 %s, %s, 2, 2' % (v(vt + 2), v(vt + 1)))
            asm('v_lshrrev_b32 %s, 4, %s' % (v(vt + 3), v(vt + 1)))
            asm('v_lshl_add_u32 %s, %s, 1, %s' % (v(vt + 2), v(vt + 2), v(vt + 3)))
            asm('v_and_b32 %s, 3, %s' % (v(vt + 3), v(vt + 1)))
            asm('v_lshl_add_u32 %s, %s, 2, %s' % (v(vt + 2), v(vt + 2), v(vt + 3)))
        asm('v_lshlrev_b32 %s, 5, %s' % (v(vt + 2), v(vt + 2)))
        asm('v_sub_u32 %s, %s, %s' % (v(vt + 2), v(vt + 2), v(vt + 1)))
        asm('v_mul_u32_u24 %s, 96, %s' % (v(vt + 2), v(vt + 2)))
        asm('v_add3_u32 %s, %s, %s, s%d' % (v(vW1 + 3 * late + i), v(vt + 2), v(vL16), sT[0]))
    W1S['late'] = late


def slot(q):
    return (q + 4) % 8


def j_w1(asm, n):
    for q in range(W1S['iss'], min(20, W1S['iss'] + n)):
        W1S['iss'] = q + 1
        prev = q - 8
        assert prev < W1S['drn'] and q < W1S['lim'] and (W1S['late'] or q < 16), (q, W1S)
        if OPT.get('now1'):
            continue
        row = 8 * q if q < 16 else 512 + 32 * (q - 16)
        for i in range(3):
            g = Asm()
            if i == 0:
                g('s_add_u32 m0, s%d, %d' % (sRING, L_RING + 12288 * slot(q)))
                g('s_mov_b32 s%d, %d' % (sBG[0], row * 3072))
            g('buffer_load_dwordx4 %s, %s, s%d offen offset:%d lds' % (v(vW1 + 3 * (q >= 16) + i), srd(sW1), sBG[0], 1024 * i), tag='w1_%d' % q)
            grp(asm, g)


def w1_drain(asm, q1):
    q0 = W1S['drn']
    if q1 <= q0:
        return
    W1S['drn'] = q1
    asm.wait_tag(['w1_%d' % q for q in range(q0, q1)])
    hi = None
    for q in range(q0, q1):
        s = slot(q)
        if hi != s // 4:
            hi = s // 4
            asm('v_add_u32 %s, %d, %s' % (v(tmp), L_RING + 49152 * hi, v(vW1r)))
        for c in range(3):
            for rd in range(2):
                asm('ds_read_b64_tr_b16 %s, %s offset:%d' % (a((3 * q + c) * 4 + 2 * rd, 2), v(tmp), 12288 * (s % 4) + 1536 * rd + 32 * c))
    asm.wait_lds()


def j_const(asm):
    for hlf in range(2):
        g = Asm()
        if hlf == 1:
            g('v_add_co_u32 %s, vcc, 4096, %s' % (v(vPC), v(vPC)))
        g('s_lshl_b32 s%d, s%d, 13' % (sBG[0], sW))
        g('s_add_u32 m0, s%d, %d' % (sBG[0], L_CONST + 4096 * hlf))
        if hlf == 1:
            g('v_addc_co_u32 %s, vcc, 0, %s, vcc' % (v(vPC + 1), v(vPC + 1)))
        for i in range(4):
            g('global_load_lds_dwordx4 %s, off offset:%d' % (v(vPC, 2), 1024 * i), tag='const')
            grp(asm, g)
            g = Asm()


def j_warmp(asm):
    g = Asm()
    g('s_mul_i32 s%d, s%d, 2816' % (sBG[1], sW))
    g('s_add_u32 s%d, s%d, s%d' % (sBG[1], sBG[1], sPB))
    for i in range(3):
        if i == 2:
            g('s_mov_b32 exec_hi, 0xffff')
        g('buffer_store_dwordx4 %s, %s, %s, s%d offen offset:%d sc1' % (v(vFILL, 4), v(vL16), srd(sWS), sBG[1], 1024 * i), tag='warmp')
        if i == 2:
            g('s_mov_b64 exec, -1')
        grp(asm, g)
        g = Asm()


HC = [0]


def j_hclr(asm, n):
    for i in range(HC[0], HC[0] + n):
        g = Asm()
        if i % 3 == 0 or i == HC[0]:
            g('s_lshl2_add_u32 s%d, s%d, s%d' % (sBG[1], sL, sW))
            g('s_mul_i32 s%d, s%d, 6144' % (sBG[1], sBG[1]))
            g('s_add_u32 s%d, s%d, %d' % (sBG[1], sBG[1], WS_H + 3072 * (i // 3)))
        g('buffer_store_dwordx4 %s, %s, %s, s%d offen offset:%d sc1' % (v(vFILL, 4), v(vL16), srd(sWS), sBG[1], 1024 * (i % 3)), tag='clrh')
        grp(asm, g)
    HC[0] += n


WFC = [0]


def j_wf(asm, n):
    for i in range(WFC[0], WFC[0] + n):
        g = Asm()
        g('s_lshl_b32 s%d, s%d, 12' % (sBG[1], sW))
        g('s_add_u32 m0, s%d, %d' % (sBG[1], L_GW + 1024 * i))
        g('s_mov_b32 s%d, %d' % (sBG[1], 32 * 5136 * i))
        g('buffer_load_dwordx4 %s, %s, s%d offen lds' % (v(vWD), srd(sWF_), sBG[1]), tag='wf')
        grp(asm, g)
    WFC[0] += n


def j_bias(asm):
    g = Asm()
    g('s_lshl_b32 s%d, s%d, 7' % (sBG[1], sJ))
    g('v_lshlrev_b32 %s, 3, %s' % (v(vb2), v(vN)))
    g('buffer_load_dwordx2 %s, %s, %s, s%d offen' % (v(vb2, 2), v(vb2), srd(sB2), sBG[1]))
    grp(asm, g)
    g = Asm()
    g('s_lshl_b32 s%d, s%d, 5' % (sBG[1], sJ))
    g('v_lshlrev_b32 %s, 3, %s' % (v(vb2 + 2), v(vC8)))
    g('buffer_load_dwordx2 %s, %s, %s, s%d offen offset:1024' % (v(vb2 + 2, 2), v(vb2 + 2), srd(sB2), sBG[1]))
    grp(asm, g)
    g = Asm()
    g('s_lshl2_add_u32 s%d, s%d, s%d' % (sBG[1], sJ1, sW))
    g('s_mul_i32 s%d, s%d, 96' % (sBG[1], sBG[1]))
    g('v_lshlrev_b32 %s, 3, %s' % (v(vb1 + 4), v(vG)))
    for c in range(3):
        g('buffer_load_dwordx2 %s, %s, %s, s%d offen offset:%d' % (v(vb1 + 2 * c, 2), v(vb1 + 4), srd(sB1), sBG[1], 32 * c))
        grp(asm, g)
        g = Asm()


W2C = [0]


def j_w2(asm, n):
    w2_loads(asm, W2C[0], W2C[0] + n)
    W2C[0] += n


WEIGHT = dict(wf=5, hclr=3, warmp=3, tw=2, tw1=2, tm=2, tw2=2)


def jobs(slot_name, weights=False):
    out = []
    for js in [x for x in CFG.get(slot_name, '').split(',') if x]:
        nm, _, n = js.partition(':')
        x = Asm()
        globals()['j_' + nm](x, *([int(n)] if n else []))
        out += [(y, WEIGHT.get(nm, 1)) if weights else y for y in x.l]
    return out


if not TBE:
    A.add(TB)
B = Asm()
if not OPT.get('trig0', 0):
    trig(B, vA8, False)
w1_addr(B, False)
B('v_mul_u32_u24 %s, 96, %s' % (v(vW1r), v(vQ)))
B('v_lshl_add_u32 %s, %s, 3, %s' % (v(vW1r), v(vC8), v(vW1r)))
B('v_add_u32 %s, s%d, %s' % (v(vW1r), sRING, v(vW1r)))
A.l += interleave(B, jobs('PUB'))
B = Asm()
vXF = [V.get(10, 'l'), V.get(10, 'l')]
for r in range(2):
    for j in range(5):
        lo, hi = (j, 4 + j) if j < 4 else (8, 9)
        B('v_lshlrev_b32 %s, 16, %s' % (v(vXF[r] + lo), v(vXR + 5 * r + j)))
        B('v_and_b32 %s, s%d, %s' % (v(vXF[r] + hi), sMASK, v(vXR + 5 * r + j)))
V.put(vXR, 10)
ln_stats(B, vXF)
vNn = [V.get(10), V.get(10)]
ln_apply(B, vNn, vXF)
A.l += interleave(B, jobs('PUB2'))
V.put(vPC, 2)
warm(A, ['pg1', 's0r0', 'pg2', 's0r2'])
stamp('ln1', lvl=2)
ACK = OPT.get('ack', 1)
if ACK & 1:
    A.wait_tag(['pub', 'const'])
if OPT.setdefault('wj', 1):
    lb = opt('s_cmp_lt_u32 s%d, 20' % sIDX)
    A('s_waitcnt vmcnt(0)')
    if OPT['wj'] > 1:
        A('s_sleep %d' % OPT['wj'])
    opt_end(lb)
if ACK & 1:
    barrier()
stamp('b0b', lvl=3)


def mod_gather_loads(asm, d, i0, i1):
    for i in range(i0, i1):
        if i < 2:
            asm('s_mov_b32 s%d, %d' % (sT[5], WS_MODX + 10240 * i))
        for kh in range(2):
            asm('buffer_load_dwordx4 %s, %s, %s, s%d offen offset:%d sc1' % (v(d + 8 * i + 4 * kh, 4), v(vMG), srd(sWS), sT[5] if i < 2 else sADD + 1, 128 * kh))


vMD = V.get(24)
mod_gather_loads(A, vMD, 0, 2)
lb = opt('s_cmp_ge_u32 s%d, 2' % sW)
mod_gather_loads(A, vMD, 2, 3)
opt_end(lb)
K, KA = {}, {}
B = Asm()
if not ACK & 1:
    B.wait_tag('const')
    B('s_barrier')
na, nb = 0, 0
ca_ = V.get(1)
B('v_add_u32 %s, %d, %s' % (v(ca_), L_CONST, v(vL16)))
for i, n in enumerate(TN):
    if n.startswith('TW'):
        K[n] = V.get(4, 'l' if n.startswith('TW3') else 'mh')
        B('ds_read_b128 %s, %s offset:%d' % (v(K[n], 4), v(ca_), 1024 * i))
    else:
        if i < 10:
            KA[n] = a(96 + 4 * na, 4)
            na += 1
        else:
            KA[n] = a(192 + 4 * nb, 4)
            nb += 1
        B('ds_read_b128 %s, %s offset:%d' % (KA[n], v(ca_), 1024 * i))
assert 192 + 4 * nb <= 256
BC, B = B, Asm()
vAF = V.get(16)
for i in range(4):
    B('v_mov_b32 %s, 0' % v(vAF + 4 * i + 3))
vEXlo, vEXhi = [V.get(1), V.get(1)], [V.get(1), V.get(1)]
vEXa, vEXb = V.get(1), V.get(1)
B('v_mul_u32_u24 %s, 84, %s' % (v(vEXa), v(vC8)))
B('v_lshrrev_b32 %s, 2, %s' % (v(vt), v(vN)))
B('v_add_u32 %s, %s, %s' % (v(vEXa), v(vEXa), v(vt)))
B('v_sub_u32 %s, 0, %s' % (v(vt), v(vN)))
B('v_and_b32 %s, 3, %s' % (v(vt + 1), v(vt)))
B('v_ashrrev_i32 %s, 2, %s' % (v(vt), v(vt)))
B('v_mul_u32_u24 %s, 84, %s' % (v(vEXb), v(vt + 1)))
B('v_add_u32 %s, %s, %s' % (v(vEXb), v(vEXb), v(vt)))


def ex_addr(asm, lo, hi, gs, hb):
    asm('v_mul_u32_u24 %s, %d, %s' % (v(vt), gs, v(vG)))
    asm('s_add_u32 s%d, s%d, %d' % (sT[0], sRING, L_EX))
    asm('v_add_u32 %s, %s, %s' % (v(vt + 1), v(vEXa), v(vt)))
    asm('v_lshl_add_u32 %s, %s, 2, s%d' % (v(lo[0]), v(vt + 1), sT[0]))
    asm('v_add_u32 %s, 1536, %s' % (v(lo[1]), v(lo[0])))
    asm('s_add_u32 s%d, s%d, %d' % (sT[0], sT[0], 4 * hb))
    asm('v_sub_u32 %s, %s, %s' % (v(vt + 1), v(vEXb), v(vt)))
    asm('v_lshl_add_u32 %s, %s, 2, s%d' % (v(hi[0]), v(vt + 1), sT[0]))
    asm('v_add_u32 %s, 1536, %s' % (v(hi[1]), v(hi[0])))


ex_addr(B, vEXlo, vEXhi, 10, 35)
vEX8 = V.get(4, 'mh', 1)
B('v_mul_u32_u24 %s, 6144, %s' % (v(vt), v(vH)))
B('v_cmp_gt_u32 vcc, 84, %s' % v(vKW))
B('v_lshl_add_u32 %s, %s, 2, %s' % (v(vt), v(vKW), v(vt)))
B('v_mov_b32 %s, 336' % v(vt + 1))
B('v_add_u32 %s, 1008, %s' % (v(vEX8 + 3), v(vt)))
B('v_cndmask_b32 %s, 0, %s, vcc' % (v(vt + 1), v(vt + 1)))
for c in (2, 1, 0):
    B('v_sub_u32 %s, %s, %s' % (v(vEX8 + c), v(vEX8 + c + 1), v(vt + 1)))
EXO = L_EX // 256
vP = V.get(1)
B('v_mul_u32_u24 %s, 5632, %s' % (v(vP), v(vH)))
B('v_cmp_gt_u32 vcc, 88, %s' % v(vKW))
B('v_lshl_add_u32 %s, %s, 4, %s' % (v(vP), v(vKW), v(vP)))
B('v_lshlrev_b32 %s, 3, %s' % (v(vt), v(vC8)))
B('v_cndmask_b32 %s, %s, %s, vcc' % (v(vP), v(vOOB), v(vP)))
vTG = V.get(4, 'mh', 1)


def tag_masks(asm, dst, sreg):
    asm('v_lshrrev_b32_e64 %s, %s, s%d' % (v(vt), v(vt), sreg))
    asm('v_and_b32 %s, 0xff, %s' % (v(vt), v(vt)))
    asm('v_lshl_or_b32 %s, %s, 15, %s' % (v(vt), v(vt), v(vt)))
    for d in range(4):
        asm('v_lshlrev_b32 %s, %d, %s' % (v(dst + d), 14 - 2 * d, v(vt)))
        asm('v_and_b32 %s, s%d, %s' % (v(dst + d), sTM, v(dst + d)))


tag_masks(B, vTG, sNONCE)
g = Asm()
g('s_mul_i32 s%d, s%d, 642' % (sT[0], sXCD))
g('s_lshl_b32 s%d, s%d, 5' % (sT[1], sIDX))
g('s_min_u32 s%d, s%d, 610' % (sT[1], sT[1]))
g('s_add_u32 s%d, s%d, s%d' % (sT[0], sT[0], sT[1]))
g('s_and_b32 s%d, s%d, 1' % (sT[1], sW))
g('s_mul_i32 s%d, s%d, %d' % (sT[1], sT[1], 128 * 5136))
g('s_add_u32 s%d, s%d, s%d' % (sT[0], sT[0], sT[1]))
g('s_cmp_lt_u32 s%d, 21' % sIDX)
g('s_cselect_b32 s%d, s%d, %d' % (sT[0], sT[0], 0x40000000))
grp(B, g)
B('v_lshrrev_b32 %s, 1, %s' % (v(vWD), v(vLane)))
B('v_mul_u32_u24 %s, 5136, %s' % (v(vWD), v(vWD)))
B('v_and_b32 %s, 1, %s' % (v(vt), v(vLane)))
B('v_lshl_add_u32 %s, %s, 4, s%d' % (v(vt), v(vt), sT[0]))
B('v_add_u32 %s, %s, %s' % (v(vWD), v(vWD), v(vt)))
A.l += interleave(BC.l + B.l if ACK & 1 else B.l + BC.l, jobs('G0'))
stamp('s0_wait', lvl=3)
V.put(ca_)


def mod_finish(i0, i1):
    verify(A, lambda c: mod_gather_loads(c, vMD, i0, i1), lambda c: check_tags(c, [vMD + 4 * k + 3 for k in range(2 * i0, 2 * i1)], tmp), name='s0r%d' % i0)
    for i in range(i0, i1):
        b = vMD + 8 * i
        A('v_add_f32 %s, %s, %s' % (v(b), v(b), v(b + 4)))
        A('v_add_f32 %s, %s, %s' % (v(b + 2), v(b + 2), v(b + 6)))
    for i in range(i0, i1):
        b = vMD + 8 * i
        A('v_cvt_pk_bf16_f32 %s, %s, %s' % (v(b), v(b), v(b + 2)))
    for i in range(i0, i1):
        b = vMD + 8 * i
        A('v_and_b32 %s, s%d, %s' % (v(b + 1), sMASK, v(b)))
        A('v_lshlrev_b32 %s, 16, %s' % (v(b), v(b)))
        if i:
            ad_ = '1.0' if i == 1 else 's%d' % sADD
            A('v_add_f32 %s, %s, %s' % (v(b + 1), ad_, v(b + 1)))
            A('v_add_f32 %s, %s, %s' % (v(b), ad_, v(b)))
        o = L_MOD // 256 + [0, 10, 4][i]
        A('ds_write2st64_b32 %s, %s, %s offset0:%d offset1:%d' % (v(vMA + (i == 2)), v(b), v(b + 1), o, o + 5))


mod_finish(0, 2)
lb = opt('s_cmp_ge_u32 s%d, 2' % sW)
mod_finish(2, 3)
opt_end(lb)
V.put(vMD, 24)
V.put(vMG)
V.put(vMA, 2)
barrier()
W1S['lim'] = 20
stamp('s0_done', lvl=3)
GAP = OPT.get('gap', 72)
P = Asm()
vM0, vM1 = V.get(10), V.get(10)
read_mod(P, vM1, 1, vL16, vL4)
read_mod(P, vM0, 0, vL16, vL4)
for r in range(2):
    for p in range(5):
        P('v_pk_fma_f32 %s, %s, %s, %s' % (v(vNn[r] + 2 * p, 2), v(vNn[r] + 2 * p, 2), v(vM1 + 2 * p, 2), v(vM0 + 2 * p, 2)))
V.put(vM0, 10)
V.put(vM1, 10)
vD = [V.get(16), V.get(16)]
RT = [(r, t_) for r in range(2) for t_ in range(2)]
cv, mf = {}, {}
for r, t_ in RT:
    f, h, d = vAF + 8 * r + 4 * t_, vNn[r], vD[r] + 8 * t_
    cv[r, t_], mf[r, t_] = Asm(), Asm()
    cv[r, t_]('v_cvt_pk_bf16_f32 %s, %s, %s' % (v(f), v(h + 4 * t_), v(h + 4 * t_ + 1)))
    cv[r, t_]('v_cvt_pk_bf16_f32 %s, %s, %s' % (v(f + 1), v(h + 4 * t_ + 2), v(h + 4 * t_ + 3)))
    cv[r, t_]('v_cvt_pk_bf16_f32 %s, %s, %s' % (v(f + 2), v(h + 8 + t_), v(h + 8 + t_)))
    mf[r, t_]('%s %s, %s, %s, 0' % (MF16, v(d, 4), v(f, 4), KA['C1c']))
    mf[r, t_]('%s %s, %s, %s, 0' % (MF16, v(d + 4, 4), v(f, 4), KA['C1s']))
allc = sum((cv[k].l for k in RT), [])
P.l += allc[:5] + under(sum((mf[k].l for k in RT), []), allc[5:])
V.put(vNn[0], 10)
V.put(vNn[1], 10)
tts = [V.get(8) for _ in range(4)]
vBn = [V.get(4), V.get(4)]
for r, t_ in RT:
    d, tt = vD[r] + 8 * t_, tts[2 * r + t_]
    cmul(P, d, d + 4, K['TW1c%d' % t_], K['TW1s%d' % t_], tt, tt + 4, -1)
C, Mx, O = Asm(), Asm(), [Asm(), Asm()]
for r in range(2):
    vB, vE, d = vAF + 8 * r, tts[2 * r], vD[r]
    for t_ in range(2):
        tt = tts[2 * r + t_]
        for i in range(4):
            C('v_cvt_pk_bf16_f32 %s, %s, %s' % (v(vB + 4 * t_ + i), v(tt + i), v(tt + 4 + i)))
    for i in range(4):
        C('v_cvt_pk_bf16_f32 %s, -%s, -%s' % (v(vBn[r] + i), v(tt + i), v(tt + 4 + i)))
    for mt in range(2):
        Mx('%s %s, %s, %s, 0' % (MF16, v(vE + 4 * mt, 4), KA['A2_%d0' % mt], v(vB, 4)))
    for mt in range(2):
        Mx('%s %s, %s, %s, %s' % (MF16, v(d + 4 * mt, 4), KA['A2_%d1' % mt], v(vB + 4, 4), v(vE + 4 * mt, 4)))
    for mt in range(2):
        Mx('%s %s, %s, %s, %s' % (MF16, v(d + 8 + 4 * mt, 4), KA['A2_%d1' % mt], v(vBn[r], 4), v(vE + 4 * mt, 4)))
    o = tts[2 * r + 1]
    for hi in range(2):
        for mt in range(2):
            for e in range(2):
                O[r]('v_cvt_pk_bf16_f32 %s, %s, %s%s' % (v(o + 4 * hi + 2 * mt + e), v(d + 8 * hi + 4 * mt + 2 * e), '-' if hi else '', v(d + 8 * hi + 4 * mt + 2 * e + 1)))
    for mt in range(2):
        O[r]('ds_write2_b32 %s, %s, %s offset0:%d offset1:%d' % (v(vEXlo[r]), v(o + 2 * mt), v(o + 2 * mt + 1), 40 * mt, 40 * mt + 5))
    for mt in range(2):
        O[r]('ds_write2_b32 %s, %s, %s offset0:%d offset1:%d' % (v(vEXhi[r]), v(o + 4 + 2 * mt), v(o + 4 + 2 * mt + 1), 45 - 40 * mt, 40 - 40 * mt))
P.l += C.l[:6] + under(Mx, C.l[6:] + O[0].l) + O[1].l
for x, n in [(x, 8) for x in tts] + [(x, 4) for x in vBn] + [(x, 16) for x in vD] + [(x, 1) for x in vEXlo + vEXhi]:
    V.put(x, n)
for n in TN[:10]:
    if n in K:
        V.put(K[n], 4)
A.l += schedule(P, jobs('P1', True), 30, GAP, 'P1a', True)
A.wait_tag('warmp')
barrier()
stamp('b1', lvl=8)
lb = opt('s_cmp_eq_u32 s%d, 3' % sW)
vD8 = [V.get(16) for _ in range(4)]
vB = V.get(16)
P = Asm()
for c in range(4):
    P('ds_read2st64_b32 %s, %s offset0:%d offset1:%d' % (v(vB + 4 * c, 2), v(vEX8 + c), EXO, EXO + 6))
    P('ds_read2st64_b32 %s, %s offset0:%d offset1:%d' % (v(vB + 4 * c + 2, 2), v(vEX8 + c), EXO + 12, EXO + 18))
P('s_add_u32 s%d, s%d, %d' % (sT[1], sPB, 2816))
for c in range(4):
    P('%s %s, %s, %s, 0' % (MF32, v(vD8[c], 16), v(vA8, 4), v(vB + 4 * c, 4)))
for c in range(4):
    for q in range(4):
        P('v_cvt_pk_bf16_f32 %s, %s, %s' % (v(vAF + 4 * q + c), v(vD8[c] + 2 * q), v(vD8[c] + 2 * q + 1)))
        P('v_bfi_b32 %s, s%d, %s, %s' % (v(vAF + 4 * q + c), sTM, v(vTG + c), v(vAF + 4 * q + c)))
for q in range(4):
    P('buffer_store_dwordx4 %s, %s, %s, s%d offen offset:%d sc1' % (v(vAF + 4 * q, 4), v(vP), srd(sWS), sT[1] if q > 1 else sPB, 1408 * (q & 1)), tag='pst')
A.l += schedule(P, verbose='P1b')
A('s_nop 1')
opt_end(lb)
for x in vD8:
    V.put(x, 16)
V.put(vB, 16)
V.put(vA8, 4)
stamp('p1_done', lvl=9)
V.put(vAF, 16)
warm(A, ['s1r', 'pg3', 's2r', 'm2a+pg4'])
SAVE = (dict(W1S), list(HC), list(WFC))
lfar, lback = out_of_line('s_cmp_ge_u32 s%d, 21' % sIDX)
A.opt_begin()
vPG, vGR, vZB, vWR = V.get(1), V.get(1), V.get(1), V.get(1)
B = Asm()
B('s_mul_i32 s%d, s%d, 1408' % (sT[1], sXCD))
B('s_lshl_b32 s%d, s%d, 6' % (sT[0], sIDX))
B('s_add_u32 s%d, s%d, s%d' % (sPG, sT[0], sT[1]))
B('s_lshl_b32 s%d, s%d, 6' % (sT[0], sW))
B('v_add_u32 %s, s%d, %s' % (v(vPG), sT[0], v(vQ)))
B('v_mul_u32_u24 %s, %d, %s' % (v(vPG), PBLK, v(vPG)))
B('v_lshl_add_u32 %s, %s, 4, %s' % (v(vPG), v(vC8), v(vPG)))
B('v_xor_b32 %s, %s, %s' % (v(vt), v(vC8), v(vG)))
B('s_lshl_b32 s%d, s%d, 12' % (sT[0], sW))
B('v_lshl_add_u32 %s, %s, 4, s%d' % (v(vZB), v(vt), sT[0]))
B('v_lshl_add_u32 %s, %s, 6, %s' % (v(vZB), v(vQ), v(vZB)))
B('v_lshrrev_b32 %s, 2, %s' % (v(vt), v(vN)))
B('v_xor_b32 %s, s%d, %s' % (v(vt), sW, v(vt)))
B('v_lshlrev_b32 %s, 4, %s' % (v(vt), v(vt)))
B('v_lshl_add_u32 %s, %s, 6, %s' % (v(vt), v(vN), v(vt)))
B('v_lshl_add_u32 %s, %s, 12, %s' % (v(vGR), v(vG), v(vt)))
g = Asm()
g('s_lshl_b32 s%d, s%d, 3' % (sT[1], sW))
g('s_cmp_eq_u32 s%d, 20' % sIDX)
g('s_cselect_b32 s%d, 30, s%d' % (sT[0], sT[1]))
grp(B, g)
B('v_lshl_add_u32 %s, %s, 6, %s' % (v(vWR), v(vG), v(vN)))
B('v_lshl_add_u32 %s, %s, 5, s%d' % (v(vWR), v(vWR), sT[0]))
vTW = V.get(4, 'mh', 1)
B('v_mov_b32 %s, s%d' % (v(vt), sT[1]))
tag_masks(B, vTW, sTAGZ)
trig(B, vA8i, True)
q_pub = W1S['iss']
A.l += interleave(B, jobs('A1'))


def p_gather(asm, d):
    for i in range(4):
        asm('s_add_u32 s%d, s%d, %d' % (sT[5], sPG, WS_P + i * 16 * PBLK))
        asm('buffer_load_dwordx4 %s, %s, %s, s%d offen sc1' % (v(d + 4 * i, 4), v(vPG), srd(sWS), sT[5]))


vPD, vWG, vWr, vWi = V.get(16), V.get(16), V.get(16), V.get(16)
WFEARLY = 'wf' not in CFG.get('A1', '') and ACK & 2
if ACK & 2:
    A.wait_tag(['pst', 'wf'] if WFEARLY else 'pst')
A('s_barrier')
stamp('s1_acked', lvl=9)
p_gather(A, vPD)
q_g = W1S['iss']
assert WFC[0] == 4
if not WFEARLY:
    A.wait_tag('wf')
    A('s_barrier')
for k in range(2):
    for i in range(4):
        A('ds_read_b64 %s, %s offset:%d' % (v(vWG + 8 * k + 2 * i, 2), v(vWR), L_GW + 8192 * k + 512 * i))
B = Asm()
for k, dst in enumerate((vWr, vWi)):
    for i in range(4):
        for p in range(2):
            B('v_lshlrev_b32 %s, 16, %s' % (v(dst + 8 * p + i), v(vWG + 8 * k + 2 * i + p)))
            B('v_and_b32 %s, s%d, %s' % (v(dst + 8 * p + 4 + i), sMASK, v(vWG + 8 * k + 2 * i + p)))
A.l += interleave(B, jobs('G1'))
w1_drain(A, q_g)
A.l += jobs('G1b')
stamp('s1_wait', lvl=8)
verify(A, lambda c: p_gather(c, vPD), lambda c: check_bits(c, range(vPD, vPD + 16), vTG, tmp), False, 's1r')
stamp('s1_ok', lvl=8)
for i in range(4):
    A('ds_write_b128 %s, %s offset:%d' % (v(vZB), v(vPD + 4 * i, 4), L_GP + 1024 * i))
barrier()
stamp('s1_done', lvl=9)
P = Asm()
for i in range(4):
    P('ds_read_b128 %s, %s offset:%d' % (v(vPD + 4 * i, 4), v(vGR), L_GP + 1024 * i))
X = Asm()
for i in range(4):
    for c in range(i + 1, 4):
        X('v_swap_b32 %s, %s' % (v(vPD + 4 * i + c), v(vPD + 4 * c + i)))
vD = [V.get(8) for _ in range(4)]
tts = [vWG, vWG + 8, V.get(8), V.get(8)]
TWc, TWs = K['TW2c'], K['TW2s']


def st(stage):
    m = Asm()
    for c in range(4):
        d, x = vD[c], v(vPD + 4 * c, 4)
        fr, fi = KA['Fre'], KA['Fim']
        ops = [((x, fr), (x, fi)), ((fr, x), (fi, x)), ((x, fi), (x, fr)), ((fi, x), (fr, x))][stage]
        for k in range(2):
            m('%s %s, %s, %s, 0' % (MF16, v(d + 4 * k, 4), ops[k][0], ops[k][1]))
    return m


P.l += X.l[:5] + under(st(0), X.l[5:])
vO = vWr
for stage in range(3):
    C = Asm()
    for c in range(4):
        d, tt = vD[c], tts[c]
        if stage == 0:
            cmul(P, d, d + 4, TWc, TWs, tt, tt + 4, -1)
        elif stage == 1:
            cmul(P, d, d + 4, vWr + 4 * c, vWi + 4 * c, tt, tt + 4, +1)
        else:
            cmul(P, d, d + 4, TWc, TWs, tt, tt + 4, +1)
        for i in range(4):
            lo, hi = (tt + i, tt + 4 + i) if stage == 0 else (tt + 4 + i, tt + i)
            C('v_cvt_pk_bf16_f32 %s, %s, %s' % (v(vPD + 4 * c + i), v(lo), v(hi)))
    if stage == 2:
        for c in range(4):
            for i in range(4):
                C('v_cvt_pk_bf16_f32 %s, %s, %s' % (v(vO + 4 * i + c), v(vD[c] + i), v(vD[c] + 4 + i)))
            for i in range(4):
                C('v_bfi_b32 %s, s%d, %s, %s' % (v(vO + 4 * i + c), sTM, v(vTW + c), v(vO + 4 * i + c)))
    P.l += C.l[:6] + under(st(stage + 1), C.l[6:])
for i in range(4):
    P('ds_write_b128 %s, %s offset:%d' % (v(vGR), v(vO + 4 * i, 4), L_GW + 1024 * i))
A.l += schedule(P, jobs('P2', True), 20, GAP, 'P2', True)
HEARLY = HC[0] == 6
if HEARLY:
    A.wait_tag('clrh')
barrier()
stamp('bd', lvl=8)
for i in range(4):
    A('ds_read_b128 %s, %s offset:%d' % (v(vPD + 4 * i, 4), v(vZB), L_GW + 1024 * i))
for i in range(4):
    A('s_add_u32 s%d, s%d, %d' % (sT[2 + i], sPG, WS_P + i * 16 * PBLK))
for i in range(4):
    A('buffer_store_dwordx4 %s, %s, %s, s%d offen sc1' % (v(vPD + 4 * i, 4), v(vPG), srd(sWS), sT[2 + i]), tag='zst')
stamp('p2_done', lvl=9)
w1_drain(A, max(W1S['drn'], W1S['iss'] - OPT.get('lag', 2)))
for x, n in [(x, 8) for x in vD + tts[2:]] + [(x, 16) for x in (vWG, vPD, vWr, vWi)] + [(vTW, 4)] + [(x, 1) for x in (vPG, vWR, vGR, vZB)]:
    V.put(x, n)
A.opt_end()
for n in TN[10:14]:
    if n in K:
        V.put(K[n], 4)
END = (dict(W1S), list(HC))
W1S.update(SAVE[0])
HC[:] = SAVE[1]
A.far_begin(lfar)
A.wait_tag('wf')
barrier()
x_, t, ad = V.get(4), V.get(4), V.get(4)
A('s_mul_i32 s%d, s%d, 320' % (sT[0], sW))
A('v_add_u32 %s, s%d, %s' % (v(ad + 1), sT[0], v(vL8)))
A('buffer_load_dwordx2 %s, %s, %s, 0 offen' % (v(t, 2), v(ad + 1), srd(sC)))
A('s_lshl_b32 s%d, s%d, 6' % (sT[2], sNU))
A('s_mul_i32 s%d, s%d, %d' % (sT[3], sW, 160 * 7680))
A('s_add_u32 s%d, s%d, s%d' % (sT[2], sT[2], sT[3]))
A('s_add_u32 s%d, s%d, 2560' % (sT[2], sT[2]))
A('v_mul_u32_u24 %s, 7680, %s' % (v(ad), v(vQ)))
A('v_lshl_add_u32 %s, %s, 4, %s' % (v(ad), v(vC8), v(ad)))
A('s_mul_i32 s%d, s%d, 10240' % (sT[3], sW))
for b in range(10):
    A('s_add_u32 m0, s%d, %d' % (sT[3], L_EX + 1024 * b))
    A('s_add_u32 s%d, s%d, %d' % (sT[4], sT[2], b * 16 * 7680))
    A('buffer_load_dwordx4 %s, %s, s%d offen lds' % (v(ad), srd(sWM), sT[4]), tag='wm2')
A('v_add_u32 %s, s%d, %s' % (v(ad), sT[3], v(vT64)))
A('s_add_u32 s%d, s%d, %d' % (sT[0], sT[0], L_SILU))
A('v_lshl_add_u32 %s, %s, 3, s%d' % (v(ad + 2), v(vG), sT[0]))
A('s_lshl_b32 s%d, s%d, 7' % (sT[0], sW))
A('v_lshl_add_u32 %s, %s, 4, s%d' % (v(ad + 3), v(vG), sT[0]))
A('s_mul_i32 s%d, s%d, 205' % (sT[1], sNU))
A('s_lshr_b32 s%d, s%d, 12' % (sT[1], sT[1]))
A('s_cmp_eq_u32 s%d, 2' % sT[1])
A('s_cselect_b32 s%d, 1.0, 0' % sCOL)
A('s_mul_i32 s%d, s%d, 20' % (sT[2], sT[1]))
A('s_sub_u32 s%d, s%d, s%d' % (sT[2], sNU, sT[2]))
A('s_lshl4_add_u32 s%d, s%d, s%d' % (sT[3], sT[1], sT[2]))
A('s_lshl2_add_u32 s%d, s%d, s%d' % (sT[4], sT[1], sT[2]))
A('s_add_u32 s%d, s%d, 48' % (sT[4], sT[4]))
A('s_cmp_lt_u32 s%d, 16' % sT[2])
A('s_cselect_b32 s%d, s%d, s%d' % (sT[3], sT[3], sT[4]))
A('s_add_u32 s%d, s%d, 80' % (sT[4], sXCD))
A('s_cmp_ge_u32 s%d, 22' % sIDX)
A('s_cselect_b32 s%d, s%d, s%d' % (sT[1], sT[3], sT[4]))
A('s_lshl_b32 s%d, s%d, 7' % (sT[1], sT[1]))
A('s_add_u32 s%d, s%d, %d' % (sPG, sT[1], WS_MOD2))
trig(A, vA8i, True)
w1_drain(A, W1S['iss'])


def ii_rest():
    j_hclr(A, END[1][0] - HC[0])
    if any('bias' in CFG.get(x, '') for x in ('A1', 'G1', 'G1b', 'P2')):
        j_bias(A)


if OPT.get('w2at', 1) == 1:
    if W1S['iss'] > 6:
        A('s_barrier')
    w2_reformat(L_RING + 2 * 12288, 'w2st', ii_rest)
    A.wait_lds()
else:
    ii_rest()
for p in range(2):
    A('v_lshlrev_b32 %s, 16, %s' % (v(x_ + 2 * p), v(t + p)))
    A('v_and_b32 %s, s%d, %s' % (v(x_ + 2 * p + 1), sMASK, v(t + p)))
silu(A, x_, t, 4)
for p in range(2):
    A('v_cvt_pk_bf16_f32 %s, %s, %s' % (v(x_ + p), v(x_ + 2 * p), v(x_ + 2 * p + 1)))
A('s_mov_b32 exec_hi, 0xff')
A('ds_write_b64 %s, %s offset:%d' % (v(ad + 1), v(x_, 2), L_SILU))
A('s_mov_b64 exec, -1')
f, sb, d = [V.get(8) for _ in range(5)], V.get(20), V.get(8)
for k in range(5):
    A('ds_read2_b64 %s, %s offset0:%d offset1:%d' % (v(sb + 4 * k, 4), v(ad + 2), 8 * k, 8 * k + 4))
A.wait_tag('wm2')
for k in range(5):
    for tt_ in range(2):
        for rd in range(2):
            A('ds_read_b64_tr_b16 %s, %s offset:%d' % (v(f[k] + 4 * tt_ + 2 * rd, 2), v(ad), L_EX + 2048 * k + 1024 * rd + 32 * tt_))
for k in range(5):
    for tt_ in range(2):
        A('%s %s, %s, %s, %s' % (MF16, v(d + 4 * tt_, 4), v(f[k] + 4 * tt_, 4), v(sb + 4 * k, 4), v(d + 4 * tt_, 4) if k else '0'))
for tt_ in range(2):
    A('ds_write_b128 %s, %s offset:%d' % (v(ad + 3), v(d + 4 * tt_, 4), L_RED + 64 * tt_))
A.wait_tag(['clrh', 'w2st'] if HEARLY else 'w2st')
barrier()
lb = opt('s_cmp_lg_u32 s%d, 0' % sW)
for i in range(4):
    A('ds_read_b128 %s, %s offset:%d' % (v(sb + 4 * i, 4), v(vL16), L_RED + 128 * i))
A('s_mov_b64 exec, 0xff')
for p in (0, 2):
    A('v_pk_add_f32 %s, %s, %s' % (v(sb + p, 2), v(sb + p, 2), v(sb + 4 + p, 2)))
    A('v_pk_add_f32 %s, %s, %s' % (v(sb + 8 + p, 2), v(sb + 8 + p, 2), v(sb + 12 + p, 2)))
    A('v_pk_add_f32 %s, %s, %s' % (v(sb + p, 2), v(sb + p, 2), v(sb + 8 + p, 2)))
    A('v_cvt_pk_bf16_f32 %s, %s, %s' % (v(sb + p), v(sb + p), v(sb + p + 1)))
    A('v_and_b32 %s, s%d, %s' % (v(sb + p + 1), sMASK, v(sb + p)))
    A('v_lshlrev_b32 %s, 16, %s' % (v(sb + p), v(sb + p)))
    A('v_add_f32 %s, s%d, %s' % (v(sb + p + 1), sCOL, v(sb + p + 1)))
    A('v_add_f32 %s, s%d, %s' % (v(sb + p), sCOL, v(sb + p)))
    A('v_cvt_pk_bf16_f32 %s, %s, %s' % (v(sb + p), v(sb + p), v(sb + p + 1)))
    A('v_mov_b32 %s, s%d' % (v(sb + p + 1), sNONCE))
A('buffer_store_dwordx4 %s, %s, %s, s%d offen sc1' % (v(sb, 4), v(vL16), srd(sWS), sPG), tag='zst')
A('s_mov_b64 exec, -1')
A('s_nop 1')
opt_end(lb)
stamp('p2_done', lvl=9, again=True)
j_w1(A, min(8, END[0]['iss'] - W1S['iss']))
if W1S['iss'] < END[0]['iss']:
    w1_drain(A, min(W1S['iss'], END[0]['drn']))
    j_w1(A, END[0]['iss'] - W1S['iss'])
w1_drain(A, END[0]['drn'])
assert W1S == END[0], (W1S, END[0])
for x, n in [(x_, 4), (t, 4), (ad, 4), (sb, 20), (d, 8)] + [(x, 8) for x in f]:
    V.put(x, n)
A.far_end(lback)
for x, n in ((vT64, 1), (vWD, 1), (vTch, 5), (vJunk, 3)):
    V.put(x, n)
vZ, vTZ = vP, vTG


def z_gather(asm, d):
    asm('s_add_u32 s%d, s%d, 2816' % (sT[5], sPB))
    for q in range(4):
        asm('buffer_load_dwordx4 %s, %s, %s, s%d offen offset:%d sc1' % (v(d + 4 * q, 4), v(vZ), srd(sWS), sT[5] if q > 1 else sPB, 1408 * (q & 1)))


def mod2_gather(asm):
    for i in range(11):
        if i % 4 == 0:
            asm('s_mov_b32 s%d, %d' % (sT[5], WS_MOD2 + 1024 * i))
        asm('buffer_load_dwordx4 %s, %s, %s, s%d offen offset:%d sc1' % (v(vMD[i], 4), v(vL16), srd(sWS), sT[5], 1024 * (i % 4)))


vD8 = [V.get(16) for _ in range(4)]
vZD = V.get(16)
vMD = [vD8[i // 4] + 4 * (i % 4) for i in range(11)]
vMA = vD8[3]
lfar, lback = out_of_line('s_cmp_eq_u32 s%d, 3' % sW)
A.far_begin(lfar)
pad(A, 'm2a')
mod2_gather(A)
A('v_lshlrev_b32 %s, 5, %s' % (v(vMA), v(vKD)))
A('v_lshl_add_u32 %s, %s, 2, %s' % (v(vMA), v(vH), v(vMA)))
for k, o in ((1, 16), (2, 8), (3, 24)):
    A('v_add_u32 %s, %d, %s' % (v(vMA + k), o, v(vMA)))
A('v_mul_u32_u24 %s, 2560, %s' % (v(vMA + 4), v(vH)))
A('v_lshl_add_u32 %s, %s, 3, %s' % (v(vMA + 4), v(vKD), v(vMA + 4)))
A('v_add_u32 %s, 4, %s' % (v(vMA + 5), v(vMA + 4)))
A.far_end(lback)
B = Asm()
vZ, vTZ = vP, vTG
B('v_lshlrev_b32 %s, 3, %s' % (v(vt), v(vC8)))
tag_masks(B, vTZ, sTAGZ)
g = Asm()
g('v_cmp_gt_u32 vcc, 84, %s' % v(vKW))
g('s_mul_i32 s%d, s%d, 2560' % (sT[0], sW))
g('s_add_u32 s%d, s%d, s%d' % (sYX, sPB, sT[0]))
g('v_cndmask_b32 %s, %s, %s, vcc' % (v(vZ), v(vOOB), v(vZ)))
for d in range(4):
    g('v_cndmask_b32 %s, 0, %s, vcc' % (v(vTZ + d), v(vTZ + d)))
grp(B, g)
V.put(vKW)
vU0, vU1 = [V.get(1, 'h'), V.get(1, 'h')], [V.get(1, 'h'), V.get(1, 'h')]
ex_addr(B, vU0, vU1, 20, 65)
V.put(vEXa)
V.put(vEXb)
sHS, sW2F = sPG, sZS
B('s_mul_i32 s%d, s%d, 196608' % (sT[0], sG1))
B('s_mul_i32 s%d, s%d, 6144' % (sT[1], sJ1))
B('s_add_u32 s%d, s%d, s%d' % (sHS, sT[0], sT[1]))
B('s_add_u32 s%d, s%d, %d' % (sHS, sHS, WS_H))
B('s_lshl2_add_u32 s%d, s%d, s%d' % (sT[0], sJ, sW))
B('s_mul_i32 s%d, s%d, 61440' % (sW2F, sT[0]))
B('s_add_u32 s%d, s%d, %d' % (sW2F, sW2F, WS_W2F))
sROT = [3, 6, 7, 50, 71, 72]
sHL = sTAU
B('s_lshl4_add_u32 s%d, s%d, s%d' % (sT[0], sG, sW))
B('s_mul_i32 s%d, s%d, 12288' % (sHL, sT[0]))
B('s_add_u32 s%d, s%d, %d' % (sHL, sHL, WS_H))
B('s_mul_i32 s%d, s%d, 5' % (sT[0], sHL))
B('s_sub_u32 s%d, s%d, s%d' % (sW2F, sW2F, sT[0]))
B('s_and_b32 s%d, s%d, %d' % (sT[0], sG, OPT.get('rot', 0)))
for k in range(6):
    g = Asm()
    if k:
        g('s_add_u32 s%d, s%d, 1' % (sT[0], sT[0]))
    g('s_cmp_ge_u32 s%d, 6' % sT[0])
    g('s_cselect_b32 s%d, 6, 0' % sT[1])
    g('s_sub_u32 s%d, s%d, s%d' % (sT[0], sT[0], sT[1]))
    g('s_lshl_b32 s%d, s%d, 11' % (sT[1], sT[0]))
    g('s_add_u32 s%d, s%d, s%d' % (sROT[k], sT[1], sHL))
    grp(B, g)
A.l += interleave(B, jobs('A2'))


if ACK & 4:
    A.wait_tag('zst')
if OPT.get('b2b', 1):
    barrier()
stamp('s2_acked', lvl=9)
lfar, lback = out_of_line('s_cmp_eq_u32 s%d, 3' % sW)
A.opt_begin()
z_gather(A, vZD)
A.opt_end()
A.far_begin(lfar)
verify(A, mod2_gather, lambda c: check_tags(c, [x + 3 for x in vMD], tmp))
for i in range(10):
    for k in range(2):
        b = vMD[i] + 2 * k
        A('v_and_b32 %s, s%d, %s' % (v(b + 1), sMASK, v(b)))
        A('v_lshlrev_b32 %s, 16, %s' % (v(b), v(b)))
    for k in range(2):
        b = vMD[i] + 2 * k
        ad_, o = (vMA + 2 * (i & 1) + k, 10 * (2 + i // 2)) if i < 8 else (vMA + 4 + k, 10 * (2 + 2 * (i - 8)) + 4)
        A('ds_write2st64_b32 %s, %s, %s offset0:%d offset1:%d' % (v(ad_), v(b), v(b + 1), L_MOD // 256 + o, L_MOD // 256 + o + 5))
A.far_end(lback)
q_g = W1S['iss']
A.l += jobs('G2')
assert W1S['iss'] <= 16
w1_addr(A, True)
w1_drain(A, q_g)
A.l += jobs('G2b')
warm(A, ['pg5', 'pg6', 's3r0', 's3r1'])
stamp('s2_wait', lvl=8)
lb = opt('s_cmp_eq_u32 s%d, 3' % sW)
verify(A, lambda c: z_gather(c, vZD), lambda c: check_bits(c, range(vZD, vZD + 16), vTZ, tmp), False, 's2r')
stamp('s2_done', lvl=9)
P = Asm()
for i in range(4):
    for c in range(i + 1, 4):
        P('v_swap_b32 %s, %s' % (v(vZD + 4 * i + c), v(vZD + 4 * c + i)))
for c in range(4):
    P('%s %s, %s, %s, 0' % (MF32, v(vD8[c], 16), v(vA8i, 4), v(vZD + 4 * c, 4)))
for c in range(4):
    for q in range(4):
        P('v_cvt_pk_bf16_f32 %s, %s, %s' % (v(vZD + 4 * c + q), v(vD8[c] + 2 * q), v(vD8[c] + 2 * q + 1)))
    P('ds_write2st64_b32 %s, %s, %s offset0:%d offset1:%d' % (v(vEX8 + c), v(vZD + 4 * c), v(vZD + 4 * c + 1), EXO, EXO + 6))
    P('ds_write2st64_b32 %s, %s, %s offset0:%d offset1:%d' % (v(vEX8 + c), v(vZD + 4 * c + 2), v(vZD + 4 * c + 3), EXO + 12, EXO + 18))
A.l += schedule(P, verbose='P3a')
opt_end(lb)
barrier()
stamp('b3', lvl=8)
for x, n in [(x, 16) for x in vD8] + [(vA8i, 4), (vZ, 1), (vTZ, 4), (vZD, 16), (vEX8, 4)]:
    V.put(x, n)
W2V = 96
W2A = 144
V.take(W2V, 64)


def w2frag(k, t_, c=4, o=0):
    if k < 8:
        return v(W2V + 20 * k + 4 * t_ + o, c)
    return a(W2A + 20 * (k - 8) + 4 * t_ + o, c)


def w2_base(g, n, first):
    m = n % 10
    if m == 0 or first:
        g('s_mul_i32 s%d, s%d, 5' % (sBG[1], sROT[n // 10]))
        g('s_add_u32 s%d, s%d, s%d' % (sBG[1], sBG[1], sW2F))
        if m >= 4:
            g('s_add_u32 s%d, s%d, %d' % (sBG[1], sBG[1], 4096 * (m // 4)))
    elif m % 4 == 0:
        g('s_add_u32 s%d, s%d, 4096' % (sBG[1], sBG[1]))


def w2_loads(asm, n0, n1):
    if OPT.get('now2'):
        return
    for n in range(n0, n1):
        g = Asm()
        w2_base(g, n, n == n0)
        g('buffer_load_dwordx4 %s, %s, %s, s%d offen offset:%d sc1' % (w2frag(n // 5, n % 5), v(vL16), srd(sWS), sBG[1], 1024 * (n % 10 % 4)), tag='w2l')
        grp(asm, g)


P = Asm()
vUF = V.get(16, 'xl')
for r in range(2):
    P('ds_read2_b32 %s, %s offset0:0 offset1:5' % (v(vUF + 8 * r, 2), v(vU0[r])))
    P('ds_read2_b32 %s, %s offset0:10 offset1:15' % (v(vUF + 8 * r + 2, 2), v(vU0[r])))
    P('ds_read2_b32 %s, %s offset0:15 offset1:10' % (v(vUF + 8 * r + 4, 2), v(vU1[r])))
    P('ds_read2_b32 %s, %s offset0:5 offset1:0' % (v(vUF + 8 * r + 6, 2), v(vU1[r])))
vGA = V.get(10, 'lx')
read_mod(P, vGA, 2, vL16, vL4)
vD = [V.get(16, 'xl'), V.get(16, 'xl')]
for r in range(2):
    for u in range(2):
        for t_ in range(2):
            for ro in range(2):
                d = v(vD[r] + 8 * t_ + 4 * ro, 4)
                P('%s %s, %s, %s, %s' % (MF16, d, v(vUF + 8 * r + 4 * u, 4), KA['G%d%d%d' % (u, t_, ro)], d if u else '0'))
tts = [V.get(8, 'xl'), V.get(8, 'xl')]
vY = [V.get(12, 'xl'), V.get(12, 'xl')]
C, Mx = Asm(), Asm()
for r, t_ in RT:
    d, b, tt = vD[r] + 8 * t_, vUF + 8 * r + 4 * t_, tts[t_]
    cmul(P, d, d + 4, K['TW3c%d' % t_], K['TW3s%d' % t_], tt, tt + 4, +1, True)
    for i in range(4):
        C('v_cvt_pk_bf16_f32 %s, %s, %s' % (v(b + i), v(d + i), v(d + 4 + i)))
    Mx('%s %s, %s, %s, 0' % (MF16, v(vY[r] + 4 * t_, 4), KA['A3_0'], v(b, 4)))
    Mx('%s %s, %s, %s, %s' % (MF16, v(vY[r] + 8, 4), KA['A3_%d' % (1 + t_)], v(b, 4), v(vY[r] + 8, 4) if t_ else '0'))
vG2, vSb = vD
read_mod(C, vG2, 4, vL16, vL4)
read_mod(C, vSb, 3, vL16, vL4)
P.l += C.l[:6] + under(Mx, C.l[6:])
for x, n in [(x, 8) for x in tts] + [(x, 1) for x in vU0 + vU1]:
    V.put(x, n)
for n in TN[14:]:
    if n in K:
        V.put(K[n], 4)
PA, P = P, Asm()
for r in range(2):
    for p in range(5):
        P('v_pk_fma_f32 %s, %s, %s, %s' % (v(vXF[r] + 2 * p, 2), v(vY[r] + 2 * p, 2), v(vGA + 2 * p, 2), v(vXF[r] + 2 * p, 2)))
ln_stats(P, vXF)
ln_apply(P, vY, vXF)
for r in range(2):
    for p in range(5):
        P('v_pk_fma_f32 %s, %s, %s, %s' % (v(vY[r] + 2 * p, 2), v(vY[r] + 2 * p, 2), v(vG2 + 2 * p, 2), v(vSb + 2 * p, 2)))
ln_stats(P, vY, '0x37800000')
ln_apply(P, vY, vY)
vXP = vGA
for r in range(2):
    for j in range(5):
        lo, hi = (j, 4 + j) if j < 4 else (8, 9)
        P('v_cvt_pk_bf16_f32 %s, %s, %s' % (v(vXP + 5 * r + j), v(vXF[r] + lo), v(vXF[r] + hi)))
for r in range(2):
    o = vUF + 8 * r
    for j in range(5):
        lo, hi = (j, 4 + j) if j < 4 else (8, 9)
        P('v_cvt_pk_bf16_f32 %s, %s, %s' % (v(o + j), v(vY[r] + lo), v(vY[r] + hi)))
A.l += schedule(PA.l + schedule(P), jobs('P3', True), 20, GAP, 'P3b', True)
assert W2C[0] <= 16 and HC[0] == 6
A.wait_tag('clrh')
for r in range(2):
    o = vUF + 8 * r
    A('buffer_store_dwordx4 %s, %s, %s, s%d offen offset:%d sc1' % (v(o, 4), v(vL16), srd(sWS), sYX, 1280 * r), tag='yst')
    A('buffer_store_dword %s, %s, %s, s%d offen offset:%d sc1' % (v(o + 4), v(vL4), srd(sWS), sYX, 1280 * r + 1024), tag='yst')
stamp('p3_done', lvl=9)
A('s_nop 0')
for x, n in ((vD[0], 16), (vD[1], 16), (vXF[0], 10), (vXF[1], 10), (vY[0], 12), (vY[1], 12), (vUF, 16), (vFILL, 4)):
    V.put(x, n)
assert vXP < 96
V.take(W2V + 64, 96)


def j_x1(asm):
    g = Asm()
    g('s_lshl2_add_u32 s%d, s%d, s%d' % (sBG[0], sL, sW))
    g('s_mul_i32 s%d, s%d, 2560' % (sBG[0], sBG[0]))
    g('s_add_u32 s%d, s%d, %d' % (sBG[0], sBG[0], WS_X1))
    for k in range(10):
        g('buffer_store_dword %s, %s, %s, s%d offen offset:%d sc1' % (v(vXP + k), v(vL4), srd(sWS), sBG[0], 256 * k), tag='xst')
        grp(asm, g)
        g = Asm()


B = Asm()
vgb = V.get(8, 'l')
o = (L_MOD + 5 * 2560) // 256
B('s_and_b32 s%d, s%d, 1' % (sT[2], sJ))
B('s_lshl_b32 s%d, s%d, 9' % (sT[2], sT[2]))
B('s_lshr_b32 s%d, s%d, 1' % (sT[3], sJ))
B('s_lshl2_add_u32 s%d, s%d, s%d' % (sT[2], sT[3], sT[2]))
B('v_lshl_add_u32 %s, %s, 5, s%d' % (v(vt), v(vN), sT[2]))
B('v_add_u32 %s, 16, %s' % (v(vt + 1), v(vt)))
B('s_lshl_b32 s%d, s%d, 5' % (sT[3], sJ))
B('v_lshl_add_u32 %s, %s, 3, s%d' % (v(vt + 2), v(vC8), sT[3]))
B('v_add_u32 %s, 4, %s' % (v(vt + 3), v(vt + 2)))
for q in range(4):
    B('ds_read2st64_b32 %s, %s offset0:%d offset1:%d' % (v(vgb + 2 * q, 2), v(vt + q), o + 4 * (q >> 1), o + 5 + 4 * (q >> 1)))
vYG, vYW = V.get(1, 'l'), V.get(1, 'l')
sYL = sPB
B('v_lshrrev_b32 %s, 3, %s' % (v(vt), v(vLane)))
B('v_and_b32 %s, 7, %s' % (v(vt + 1), v(vLane)))
B('s_and_b32 s%d, s%d, 1' % (sT[2], sW))
B('s_lshr_b32 s%d, s%d, 1' % (sT[3], sW))
B('s_lshl_b32 s%d, s%d, 2' % (sT[4], sT[2]))
B('v_add_u32 %s, s%d, %s' % (v(vt + 2), sT[4], v(vG)))
B('v_xor_b32 %s, %s, %s' % (v(vt + 1), v(vt + 2), v(vt + 1)))
B('v_mul_u32_u24 %s, 1280, %s' % (v(vYG), v(vt)))
B('v_lshl_add_u32 %s, %s, 4, %s' % (v(vYG), v(vt + 1), v(vYG)))
B('s_lshl3_add_u32 s%d, s%d, s%d' % (sT[4], sG1, sT[2]))
B('s_mul_i32 s%d, s%d, %d' % (sT[4], sT[4], PBLK))
B('s_mul_i32 s%d, s%d, 640' % (sT[5], sT[3]))
B('s_add_u32 s%d, s%d, s%d' % (sT[4], sT[4], sT[5]))
B('v_add_u32 %s, s%d, %s' % (v(vYG), sT[4], v(vYG)))
B('s_mul_i32 s%d, s%d, 10240' % (sT[3], sT[3]))
B('s_lshl_b32 s%d, s%d, 10' % (sT[2], sT[2]))
B('s_add_u32 s%d, s%d, s%d' % (sYL, sT[2], sT[3]))
B('v_add_u32 %s, s%d, %s' % (v(vYW), sYL, v(vL16)))
q_pub = W1S['iss']
ja = jobs('A3')
assert W1S['iss'] == 20
w1_drain(B, max(14, q_pub - OPT.get('lag3', 2)))
A.l += interleave(B, ja)
A('s_or_b32 s%d, s%d, s%d' % (sT[0], sL, sW))
lfar, lback = out_of_line('s_cmp_eq_u32 s%d, 0' % sT[0])
A.far_begin(lfar)
A('v_mov_b32 %s, s%d' % (v(vt), sTAGZ))
A('s_mov_b64 exec, 1')
A('buffer_store_dword %s, %s, %s, 0 offen offset:%d sc1' % (v(vt), v(vL4), srd(sWS), WS_EPOCH), tag='ep')
A('s_mov_b64 exec, -1')
A.far_end(lback)
vCK = V.get(20, 'l')
CKB = [vCK, vCK, vCK, W2V + 140]


def y_dma(asm, rt, so=sT[5]):
    for u in range(5):
        g = Asm()
        if u == 0:
            g('s_mov_b32 s%d, %d' % (so, WS_P + 2 * PBLK * rt))
        g('s_add_u32 m0, s%d, %d' % (sYL, 20480 * rt + 1920 * u))
        g('buffer_load_dwordx4 %s, %s, s%d offen offset:%d sc1 lds' % (v(vYG), srd(sWS), so, 128 * u), tag='yg%d' % rt)
        grp(asm, g)


def y_back(asm, rt):
    for u in range(5):
        asm('ds_read_b128 %s, %s offset:%d' % (v(CKB[rt] + 4 * u, 4), v(vYW), 20480 * min(rt, 2) + 2048 * u))


def y_check1(asm, rt):
    if rt == 3:
        asm('v_add_u32 %s, %d, %s' % (v(vYW), 20480, v(vYW)))
    asm.wait_tag('yg%d' % rt)
    y_back(asm, rt)


def y_check2(asm, rt):
    def again(c):
        c('s_mov_b32 s%d, m0' % sVER)
        y_dma(c, rt)
        c('s_mov_b32 m0, s%d' % sVER)
        c('s_waitcnt vmcnt(0)')
        y_back(c, rt)
    verify(asm, again, lambda c: check_bits(c, range(CKB[rt], CKB[rt] + 20), None, tmp), name='s3r%d' % rt)


if ACK & 8:
    A.wait_tag('yst')
barrier()
stamp('s3_acked', lvl=9)
NY = OPT.get('ny', 3)
M = Asm()
y_dma(A, 0)
for rt in range(1, NY):
    y_dma(M, rt)
B = Asm()
w1_drain(B, 20)
V.put(vW1, 6)
V.put(vW1r)
for i in range(8):
    B('v_mul_f32 %s, 0x47800000, %s' % (v(vgb + i), v(vgb + i)))
for i in range(8):
    B('v_accvgpr_write_b32 %s, %s' % (a(240 + i), v(vgb + i)))
V.put(vgb, 8)
vYR = [V.get(1, 'l'), V.get(1, 'l')]
B('v_lshrrev_b32 %s, 1, %s' % (v(vt + 2), v(vN)))
B('v_xor_b32 %s, %s, %s' % (v(vt + 2), v(vt + 2), v(vG)))
B('v_lshlrev_b32 %s, 4, %s' % (v(vt + 2), v(vt + 2)))
B('v_lshl_add_u32 %s, %s, 7, %s' % (v(vYR[0]), v(vN), v(vt + 2)))
B('v_xor_b32 %s, 64, %s' % (v(vYR[1]), v(vYR[0])))
vBI = V.get(12, 'l')
for c in range(3):
    for p in range(2):
        B('v_lshlrev_b32 %s, 16, %s' % (v(vBI + 4 * c + 2 * p), v(vb1 + 2 * c + p)))
        B('v_and_b32 %s, s%d, %s' % (v(vBI + 4 * c + 2 * p + 1), sMASK, v(vb1 + 2 * c + p)))
for i in range(12):
    B('v_mul_f32 %s, 0x37800000, %s' % (v(vBI + i), v(vBI + i)))
for p in range(4):
    B('v_lshlrev_b32 %s, 16, %s' % (v(vt), v(vb2 + p)))
    B('v_and_b32 %s, s%d, %s' % (v(vt + 1), sMASK, v(vb2 + p)))
    B('v_mul_f32 %s, 0x37800000, %s' % (v(vt), v(vt)))
    B('v_mul_f32 %s, 0x37800000, %s' % (v(vt + 1), v(vt + 1)))
    B('v_accvgpr_write_b32 %s, %s' % (a(248 + 2 * p), v(vt)))
    B('v_accvgpr_write_b32 %s, %s' % (a(249 + 2 * p), v(vt + 1)))
A.l += interleave(B, M)
A.l += jobs('G3')
for x, n in ((vb1, 6), (vb2, 4), (vKD, 1), (vH, 1)):
    V.put(x, n)
stamp('s3_wait', lvl=8)
y_check1(A, 0)
y_check2(A, 0)
barrier()
stamp('s3_done', lvl=13)
T0 = Asm()
vHs4, vHs2 = V.get(1, 'l'), V.get(1, 'l')
T0('s_lshl_b32 s%d, s%d, 10' % (sT[0], sW))
T0('v_add_u32 %s, s%d, %s' % (v(vHs4), sT[0], v(vL16)))
T0('s_lshl_b32 s%d, s%d, 9' % (sT[0], sW))
T0('s_add_u32 s%d, s%d, 4096' % (sT[0], sT[0]))
T0('v_cmp_gt_u32 vcc, 32, %s' % v(vLane))
T0('v_add_u32 %s, s%d, %s' % (v(vHs2), sT[0], v(vL16)))
T0('v_cndmask_b32 %s, %s, %s, vcc' % (v(vHs2), v(vOOB), v(vHs2)))
sW2L = sRING
T0('s_mul_i32 s%d, s%d, 20480' % (sW2L, sW))
T0('s_add_u32 s%d, s%d, %d' % (sW2L, sW2L, L_W2))
GC0 = -2.302208198
GC1 = GC0 * 0.044715 * 2.0 ** 48
GC0 *= 2.0 ** 16
import struct
fhex = lambda x: '0x%08x' % struct.unpack('<I', struct.pack('<f', x))[0]
sGC1 = sADD
vGC0 = V.get(1, 'l')
T0('s_mov_b32 s%d, %s' % (sGC1, fhex(GC1)))
T0('v_mov_b32 %s, %s' % (v(vGC0), fhex(GC0)))
NB = OPT.get('nb', 4)
vAC = [V.get(12, 'l'), vCK]
vBFl = [V.get(4, 'l') for _ in range(NB)]
print('free low in GEMM1:', sorted(x for x in V.free))
vGT = vCK + 12
vHP = vXP


def h_store(asm, rt):
    g = Asm()
    g('s_add_u32 s%d, s%d, %d' % (sT[2], sHS, 49152 * rt))
    g('buffer_store_dwordx4 %s, %s, %s, s%d offen sc1' % (v(vHP, 4), v(vHs4), srd(sWS), sT[2]), tag='hst%d' % rt)
    grp(asm, g)


def gelu(rt):
    g = Asm()
    ac = vAC[rt & 1]
    for c in range(3):
        x = ac + 4 * c
        tb = vGT + 4 * (c & 1)
        for i in range(4):
            g('v_mul_f32 %s, %s, %s' % (v(tb + i), v(x + i), v(x + i)))
        for i in range(4):
            g('v_fma_f32 %s, %s, s%d, %s' % (v(tb + i), v(tb + i), sGC1, v(vGC0)))
        for i in range(4):
            g('v_mul_f32 %s, %s, %s' % (v(tb + i), v(tb + i), v(x + i)))
        for i in range(4):
            g('v_exp_f32 %s, %s' % (v(tb + i), v(tb + i)))
        for i in range(4):
            g('v_add_f32 %s, 1.0, %s' % (v(tb + i), v(tb + i)))
        for i in range(4):
            g('v_rcp_f32 %s, %s' % (v(tb + i), v(tb + i)))
        for i in range(4):
            g('v_mul_f32 %s, %s, %s' % (v(tb + i), v(tb + i), v(x + i)))
        for p in range(2):
            g('v_cvt_pk_bf16_f32 %s, %s, %s' % (v(vHP + 2 * c + p), v(tb + 2 * p), v(tb + 2 * p + 1)))
        if c == 1:
            h_store(g, rt)
    for p in range(2):
        g('v_permlane32_swap_b32 %s, %s' % (v(vHP + 4 + p), v(vHP + 6 + p)))
    g('buffer_store_dwordx4 %s, %s, %s, s%d offen sc1' % (v(vHP + 4, 4), v(vHs2), srd(sWS), sT[2]), tag='hst%d' % rt)
    return g


def yread(rt, q):
    base = 20480 * (rt & 1)
    return Ins('ds_read_b128 %s, %s offset:%d' % (v(vBFl[(20 * rt + q) % NB], 4), v(vYR[q & 1]), base + 2048 * (q >> 1)))


def g1_main(rt):
    out = []
    for q in range(20):
        for c in range(3):
            d = v(vAC[rt & 1] + 4 * c, 4)
            gr = [Ins('%s %s, %s, %s, %s' % (MF16, d, a((3 * q + c) * 4, 4), v(vBFl[(20 * rt + q) % NB], 4), d if q else v(vBI + 4 * c, 4)))]
            if c == 0:
                nq = q + NB - 1
                if nq < 20:
                    gr.append(yread(rt, nq))
                elif rt < 3:
                    if rt in (0, 2) and nq == 20:
                        gr.append(Ins('s_barrier'))
                    if rt == 1 and nq < 22:
                        gr.append(Ins('v_add_u32 %s, 40960, %s' % (v(vYR[nq & 1]), v(vYR[nq & 1]))))
                    gr.append(yread(rt + 1, nq - 20))
            out.append(gr)
    return out


HB = [0, 48, 96, 0]


def probe(asm, rt):
    g = Asm()
    g('s_add_u32 s%d, s%d, %d' % (sT[5], sHL, 49152 * rt + 4096))
    g('buffer_load_dword %s, %s, %s, s%d offen offset:448 sc1' % (v(tmp), v(vPB), srd(sWS), sT[5]))
    asm.l.append([Ins('; probe')] + g.l)


def h_loads(asm, rt, so=sBG[0], k0=0, k1=12):
    if k0 == 0 and asm is not COLD and not OPT.get('probeh'):
        asm.wait_tag('hst%d' % rt)
    if k0 == 0 and asm is not COLD and OPT.get('probeh'):
        g = Asm()
        verify(g, lambda c: probe(c, rt), lambda c: c('v_cmp_eq_u32 vcc, -1, %s' % v(tmp)))
        grp(asm, g)
    for k in range(k0, k1):
        g = Asm()
        if k % 2 == 0:
            g('s_add_u32 s%d, s%d, %d' % (so, sROT[k // 2], 49152 * rt))
        g('buffer_load_dwordx4 %s, %s, %s, s%d offen offset:%d sc1' % (a(HB[rt] + 4 * k, 4), v(vL16), srd(sWS), so, 1024 * (k % 2)), tag='hld')
        grp(asm, g)


def w2_dma(asm, n0, n1):
    if OPT.get('now2'):
        return
    for n in range(n0, n1):
        g = Asm()
        w2_base(g, n, n == n0)
        if n % 10 % 4 == 0 or n == n0:
            g('s_add_u32 m0, s%d, %d' % (sW2L, 1024 * (n - 40 - n % 10 % 4)))
        g('buffer_load_dwordx4 %s, %s, s%d offen offset:%d sc1 lds' % (v(vL16), srd(sWS), sBG[1], 1024 * (n % 10 % 4)), tag='w2d')
        grp(asm, g)


for q in range(NB - 1):
    A.l.append(yread(0, q))


def emit(name, main, fixed=(), flex=()):
    out, est = weave(main, fixed, flex, range(2, 60, 3) if name[1] == '1' else range(4, 60, 5))
    A.l += out
    print(name, 'est cycles', est)
    stamp(name, lvl=4)


def flag_store(asm):
    asm('v_mov_b32 %s, s%d' % (v(vt + 1), sNONCE))
    asm.wait_tag('xst')
    g = Asm()
    g('s_lshl2_add_u32 s%d, s%d, s%d' % (sT[1], sL, sW))
    g('s_lshl_b32 s%d, s%d, 6' % (sT[1], sT[1]))
    g('s_add_u32 s%d, s%d, %d' % (sT[1], sT[1], WS_FLAG))
    g('; flag')
    g('s_mov_b64 exec, 0xffff')
    g('buffer_store_dword %s, %s, %s, s%d offen sc1' % (v(vt + 1), v(vL4), srd(sWS), sT[1]), tag='flag')
    g('s_mov_b64 exec, -1')
    grp(asm, g)


def flag_load(asm):
    g = Asm()
    g('s_lshl_b32 s%d, s%d, 11' % (sT[1], sG))
    g('s_add_u32 s%d, s%d, %d' % (sT[1], sT[1], WS_FLAG))
    g('buffer_load_dword %s, %s, %s, s%d offen sc1' % (v(vt), v(vL8), srd(sWS), sT[1]))
    grp(asm, g)


T0('v_lshlrev_b32 %s, 2, %s' % (v(vL8), v(vL8)))
X1T0 = not any('x1' in x for x in CFG.values())
W2SEQ = mk(w2_loads, W2C[0], 35).l + mk(w2_dma, 40, 60).l + mk(w2_loads, 35, 40).l
n0, n1, n2 = OPT.get('n0', 8), OPT.get('n1', 18), OPT.get('n2', 18)
assert n0 <= 35 - W2C[0]
fx = []
g0 = 0
for rt in range(NY, 4):
    fx.append((mk(y_dma, rt, sT[1]), g0, g0 + 18))
    g0 += 18
if X1T0:
    fx.append((mk(j_x1), g0, g0 + 20))
    g0 += 20
fx.append((W2SEQ[:n0], g0, 60))
Y3 = OPT.get('y3', 1)
ywin = [(1, 2), (2, 24)] + ([(3, 44)] if Y3 == 0 else [])
emit('g1_t0', g1_main(0), [(mk(y_check1, rt), g, g + 4) for rt, g in ywin] + fx,
     [(T0, 0, 12)] + [(mk(y_check2, rt), g + 11, min(60, g + 20)) for rt, g in ywin])
fx = [(W2SEQ[n0:n0 + n1], 0, 60), (mk(flag_store), 22, 25)]
ge = gelu(0).l
if Y3:
    fx = [(mk(y_check1, 3), 0, 4)] + fx
    ge = ge[:30] + mk(y_check2, 3).l + ge[30:]
emit('g1_t1', g1_main(1), fx, [(ge, 2, 60)])
HE, H0 = OPT.get('he', 50), OPT.get('h0', 1)
pr = lambda rt: ([], 0, 1)
hl = lambda rt: (mk(h_loads, rt), H0, HE)
for rt in (2, 3):
    f = gelu(rt - 1)
    fx = [(W2SEQ[n0 + n1:n0 + n1 + n2], 0, 60)] if rt == 2 else [hl(0), (W2SEQ[n0 + n1 + n2:], 0, 60)]
    if rt == (3 if HEARLY or OPT.get('pair', 2) != 1 else 2):
        fx = [(mk(flag_load), 8, 11)] + fx
        verify(f, flag_load, lambda c: c('v_cmp_ne_u32 vcc, s%d, %s' % (sNONCE, v(vt))))
    emit('g1_t%d' % rt, g1_main(rt), fx, [(f, 2, 60)])
stamp('g1_done')
V.put(vAC[0], 12)
for x in vBFl:
    V.put(x, 4)
V.put(vBI, 12)
for x in [vYG, vYW] + vYR:
    V.put(x)
vA2 = [V.get(20, 'l'), vCK]
vPW = V.get(1, 'l')
vPR, vXO, vOO = [[V.get(1, 'l') for _ in range(2)] for _ in range(3)]
vX1 = V.get(10, 'l')
E = Asm()
E('v_bfe_u32 %s, %s, 1, 2' % (v(vt + 2), v(vN)))
E('v_xor_b32 %s, %s, %s' % (v(vt + 2), v(vt + 2), v(vG)))
E('s_mul_i32 s%d, s%d, 13312' % (sT[0], sW))
E('v_lshl_add_u32 %s, %s, 4, s%d' % (v(vPW), v(vt + 2), sT[0]))
E('v_lshl_add_u32 %s, %s, 6, %s' % (v(vPW), v(vN), v(vPW)))
E2 = Asm()
vRow = V.get(1, 'l')
E('s_lshl_b32 s%d, s%d, 2' % (sT[0], sW))
E('v_add_u32 %s, s%d, %s' % (v(vRow), sT[0], v(vG)))
for k in range(2):
    row = vRow if k == 0 else vQ
    if k == 0:
        E('s_lshl_b32 s%d, s%d, 7' % (sT[1], sJ))
        E('s_mul_i32 s%d, s%d, 81920' % (sT[0], sG))
    else:
        E('s_lshl_b32 s%d, s%d, 5' % (sT[1], sJ))
        E('s_add_u32 s%d, s%d, 1024' % (sT[1], sT[1]))
        E('s_lshl2_add_u32 s%d, s%d, s%d' % (sT[4], sG, sW))
        E('s_mul_i32 s%d, s%d, 20480' % (sT[0], sT[4]))
    E('v_lshl_add_u32 %s, %s, 3, s%d' % (v(vOO[k]), v(vN if k == 0 else vC8), sT[1]))
    E('v_mul_u32_u24 %s, 1280, %s' % (v(vt + 3), v(row)))
    E('v_add3_u32 %s, %s, %s, s%d' % (v(vXO[k]), v(vt + 3), v(vOO[k]), sT[0]))
    E2('v_bfe_u32 %s, %s, 1, 2' % (v(vt + 3), v(row)))
    E2('v_xor_b32 %s, %s, %s' % (v(vt + 3), v(vt + 3), v(vC8)))
    E2('v_lshlrev_b32 %s, 4, %s' % (v(vt + 3), v(vt + 3)))
    E2('v_lshl_add_u32 %s, %s, 6, %s' % (v(vPR[k]), v(row), v(vt + 3)))
    if k == 0:
        E2('v_lshrrev_b32 %s, 2, %s' % (v(vt + 3), v(vN)))
        E2('v_mul_u32_u24 %s, 1152, %s' % (v(vt + 3), v(vt + 3)))
        E2('v_add_u32 %s, %s, %s' % (v(vPR[k]), v(vt + 3), v(vPR[k])))
        E2('s_mul_i32 s%d, s%d, 10240' % (sT[4], sG))
    else:
        E2('s_lshl_b32 s%d, s%d, 10' % (sT[0], sW))
        E2('v_add_u32 %s, s%d, %s' % (v(vPR[k]), sT[0], v(vPR[k])))
        E2('s_lshl2_add_u32 s%d, s%d, s%d' % (sT[4], sG, sW))
        E2('s_mul_i32 s%d, s%d, 2560' % (sT[4], sT[4]))
    E2('v_and_b32 %s, 7, %s' % (v(vt + 3), v(row)))
    E2('v_lshrrev_b32 %s, 3, %s' % (v(vt + 2), v(row)))
    E2('v_lshl_add_u32 %s, %s, 8, %s' % (v(vt + 3), v(vt + 3), v(vt + 2)))
    E2('v_mul_u32_u24 %s, 1280, %s' % (v(vt + 3), v(vt + 3)))
    E2('v_add3_u32 %s, %s, %s, s%d' % (v(vOO[k]), v(vt + 3), v(vOO[k]), sT[4]))
    if k == 0:
        E2a, E2 = E2, Asm()
OUTF = ['', ' sc1', ' nt'][OPT.get('outf', 0)]


def x1_load(asm, rt):
    k = int(rt == 4)
    g = Asm()
    g('s_mov_b32 s%d, %d' % (sBG[1], WS_X1 + 20480 * (rt & 3)))
    g('buffer_load_dwordx2 %s, %s, %s, s%d offen sc1' % (v(vX1 + 2 * rt, 2), v(vXO[k]), srd(sWS), sBG[1]))
    grp(asm, g)


def part_write(asm, rt, tiles=range(5)):
    for t_ in tiles:
        off = 4608 * (rt & 1) + 1152 * t_ if t_ < 4 else 9216 + 1024 * rt
        asm('ds_write_b128 %s, %s offset:%d' % (v(vPW), v(vA2[rt & 1] + 4 * t_, 4), off))


def epi_read(asm, rt):
    s = vA2[rt & 1]
    for p in range(4):
        asm('ds_read_b128 %s, %s offset:%d' % (v(s + 4 * p, 4), v(vPR[int(rt == 4)]), 13312 * p + (4608 * (rt & 1) if rt < 4 else 9216)))


def epi_const(asm):
    for i in range(8):
        asm('v_accvgpr_read_b32 %s, %s' % (v(vGB[i]), a(240 + i)))
        asm('v_accvgpr_read_b32 %s, %s' % (v(vB2[i]), a(248 + i)))


def epi_pre(asm, rt):
    k = int(rt == 4)
    e = vER + 4 * k
    for p in range(2):
        asm('v_lshlrev_b32 %s, 16, %s' % (v(e + 2 * p), v(vX1 + 2 * rt + p)))
        asm('v_and_b32 %s, s%d, %s' % (v(e + 2 * p + 1), sMASK, v(vX1 + 2 * rt + p)))
    for i in range(4):
        asm('v_fmac_f32 %s, %s, %s' % (v(e + i), v(vGB[4 * k + i]), v(vB2[4 * k + i])))


def epilogue(asm, rt):
    k = int(rt == 4)
    s = vA2[rt & 1]
    e = vER + 4 * k
    for i in range(4):
        asm('v_add_f32 %s, %s, %s' % (v(s + i), v(s + i), v(s + 4 + i)))
    for i in range(4):
        asm('v_add_f32 %s, %s, %s' % (v(s + 8 + i), v(s + 8 + i), v(s + 12 + i)))
    for i in range(4):
        asm('v_add_f32 %s, %s, %s' % (v(s + i), v(s + i), v(s + 8 + i)))
    for i in range(4):
        asm('v_fmac_f32 %s, %s, %s' % (v(e + i), v(s + i), v(vGB[4 * k + i])))
    for p in range(2):
        asm('v_cvt_pk_bf16_f32 %s, %s, %s' % (v(s + 16 + p), v(e + 2 * p), v(e + 2 * p + 1)))
    g = Asm()
    g('s_mov_b32 s%d, %d' % (sT[3], 2560 * (rt & 3)))
    g('buffer_store_dwordx2 %s, %s, %s, s%d offen%s' % (v(s + 16, 2), v(vOO[k]), srd(sOUT), sT[3], OUTF), tag='out')
    grp(asm, g)


def g2_mfma(rt, k, t_):
    d = v(vA2[rt & 1] + 4 * t_, 4)
    return Ins('%s %s, %s, %s, %s' % (MF16, d, w2frag(k, t_), a(HB[rt] + 4 * k, 4), d if k else '0'))


KT = OPT.get('kt', 5)


def g2_main(rt):
    if rt == 3 and KT:
        return [g2_mfma(rt, k, t_) for k in range(12 - KT) for t_ in range(5)] + [g2_mfma(rt, k, t_) for t_ in range(5) for k in range(12 - KT, 12)]
    return [g2_mfma(rt, k, t_) for k in range(12) for t_ in range(5)]


def h_check(asm, rt):
    if OPT.get('now1') or OPT.get('now2'):
        return
    ls, lo, ll, lr = label('hslow'), label('hok'), label('hl'), label('hredo')
    g = Asm()
    g('v_cmp_u_f32 vcc, %s, %s' % (v(vA2[rt & 1]), v(vA2[rt & 1])))
    g('s_cbranch_vccnz %s' % ls)
    g('%s:' % lo)
    grp(asm, g)
    c = COLD
    c.cold_begin()
    c('%s:' % ls)
    c('s_add_u32 s%d, s%d, 1' % (sSPIN, sSPIN))
    c('s_cmp_gt_u32 s%d, %d' % (sSPIN, SPIN))
    c('s_cbranch_scc1 %s' % lr)
    h_loads(c, rt, sT[5])
    c('s_waitcnt vmcnt(0)')
    t2 = vA2[rt & 1]
    c('v_mov_b32 %s, 0' % v(t2))
    for i in range(0, 48, 2):
        c('v_accvgpr_read_b32 %s, %s' % (v(vt), a(HB[rt] + i)))
        c('v_accvgpr_read_b32 %s, %s' % (v(vt + 1), a(HB[rt] + i + 1)))
        c('v_max3_u32 %s, %s, %s, %s' % (v(t2), v(t2), v(vt), v(vt + 1)))
    c('v_cmp_eq_u32 vcc, -1, %s' % v(t2))
    c('s_cbranch_vccnz %s' % ls)
    c('%s:' % lr)
    c.l += g2_main(rt)
    c('s_nop 7')
    if rt == 3 and KT:
        part_write(c, 3, range(3))
    c('s_branch %s' % lo)


vW2r = vPR[0]
R = Asm()
R('v_add_u32 %s, s%d, %s' % (v(vW2r), sW2L, v(vL16)))
R.wait_tag('w2d')
for n in range(40, 60):
    R('ds_read_b128 %s, %s offset:%d' % (w2frag(n // 5, n % 5), v(vW2r), 1024 * (n - 40)))
g3 = gelu(3).l
NG = min(OPT.get('ng', 30), len(g3))
HS = OPT.get('hs', 0) if NG > 60 else 0
x1_load(E, 0)
if HS:
    A.l += interleave(g3[:NG], mk(h_loads, 1, sBG[0], 0, HS), NG - 16 * HS, NG)
else:
    A.l += g3[:NG]
stamp('g2_start', lvl=4)
emit('g2_t0', g2_main(0), [(R, 0, 30), (mk(h_loads, 1, sBG[0], HS, 12), 1 if HS else H0, HE - 4 * HS), pr(2)], [(g3[NG:] + E.l, 0, 60)])
V.put(vHP, 10)
V.put(vGC0)
for x in (vHs4, vHs2, vL4, vOOB, vLane):
    V.put(x)
vER = V.get(8, 'l')
vGB = [V.get(1, 'l') for _ in range(8)]
vB2 = [V.get(1, 'l') for _ in range(8)]
GB_, GR_, GW_ = OPT.get('gb', 27), OPT.get('gr', 28), OPT.get('gw', 40)
for rt in range(1, 4):
    f = Asm()
    if rt == 1:
        f('s_barrier')
    h_check(f, rt - 1)
    wl = Asm()
    wl.wait_lds()
    fx = [(f, 3, 4), (mk(part_write, rt - 1), 4, 14), (mk(barrier), GB_, GB_ + 1), (mk(epi_read, rt - 1), GR_, GR_ + 2), (wl, GW_, GW_ + 1)]
    if rt == 1:
        fx += [hl(2), pr(3), (mk(x1_load, 1), 15, 20)]
        epi_const(E2a)
        fl = [(E2a, 0, GB_), (mk(epi_pre, 0), GB_, GW_), (mk(epilogue, 0), GW_, 60)]
    elif rt == 2:
        fx += [hl(3), (mk(x1_load, 2).l + mk(x1_load, 4).l + mk(x1_load, 3).l, 15, 30)]
        fl = [(E2, 0, GB_), (mk(epi_pre, 1), GB_, GW_), (mk(epilogue, 1), GW_, 60)]
    else:
        fl = [(mk(epi_pre, 2).l + mk(epi_pre, 4).l, GB_, GW_), (mk(epilogue, 2).l + mk(epi_pre, 3).l, GW_, 60)]
        if KT:
            for t_ in range(3):
                g = 60 - KT * (4 - t_) + 4
                fx.append((mk(part_write, 3, [t_]), g, g + 1))
    emit('g2_t%d' % rt, g2_main(rt), fx, fl)
stamp('g2_done')
h_check(A, 3)
part_write(A, 3, range(3, 5) if KT else range(5))
barrier()
stamp('lastbar', lvl=4)
epi_read(A, 3)
epi_read(A, 4)
epilogue(A, 3)
epilogue(A, 4)
stamp('laststore', lvl=4)
if OPT['stamps']:
    A('s_waitcnt vmcnt(0)')
    stamp('end')
    A('s_memtime s[4:5]')
    A('s_sub_u32 s4, s4, s100')
    A('s_lshl_b32 s%d, s2, 2' % sT[0])
    A('s_add_u32 s%d, s%d, s%d' % (sT[0], sT[0], sW))
    A('s_lshl_b32 s%d, s%d, 7' % (sT[0], sT[0]))
    A('s_add_u32 s%d, s%d, %d' % (sT[0], sT[0], WS_STAMP))
    A('s_mov_b64 exec, 1')
    for i, s in [(i, sSTAMP + i) for i in range(nstamp[0])] + [(30, 4), (31, sSPIN)]:
        A('v_mov_b32 %s, s%d' % (v(vt), s))
        A('buffer_store_dword %s, %s, %s, s%d offen offset:%d' % (v(vt), v(vL16), srd(sWS), sT[0], 4 * i))
        A('s_waitcnt vmcnt(0)')
if OPT.get('echo'):
    A('s_or_b32 s%d, s%d, s%d' % (sT[0], sL, sW))
    A('s_cmp_lg_u32 s%d, 0' % sT[0])
    A('s_cbranch_scc1 L_end')
    A('s_waitcnt vmcnt(0)')
    A('s_memrealtime s[92:93]')
    A('s_waitcnt lgkmcnt(0)')
    A('s_sub_u32 s94, s%d, s88' % (92 if OPT['echo'] == 1 else 90))
    A('s_min_u32 s94, s94, 20000')
    A('L_echo:')
    A('s_memrealtime s[96:97]')
    A('s_waitcnt lgkmcnt(0)')
    A('s_sub_u32 s95, s96, s92')
    A('s_cmp_lt_u32 s95, s94')
    A('s_cbranch_scc1 L_echo')
if OPT.get('probe'):
    pr = OPT['probe']
    A('s_or_b32 s%d, s%d, s%d' % (sT[0], sL, sW))
    A('s_cmp_lg_u32 s%d, 0' % sT[0])
    A('s_cbranch_scc1 L_end')
    A('s_waitcnt vmcnt(0)')
    sr = sWS if pr >= 2 else sPRB
    if pr >= 2:
        A('s_mov_b32 s%d, 0x10000000' % (sWS + 2))
    base = {1: 0, 2: 0x1a00000, 3: 0x8000000, 4: 0xfc00000}[pr]
    for i in range(40):
        A('s_mov_b32 s%d, %d' % (sT[0], base + i * (40960 + 128)))
        A('buffer_load_dword %s, off, %s, s%d' % (v(vt), srd(sr), sT[0]))
        A('s_waitcnt vmcnt(0)')
A('L_end:')
A('s_endpgm')
A.add(COLD)

body, ins = finalize(A)
far = ''
while '; FARBEGIN' in body:
    i = body.index('; FARBEGIN')
    j = body.index('; FAREND\n', i) + 9
    far += body[i + 11:j - 9]
    body = body[:i] + body[j:]
body = body.replace('L_end:\n  s_endpgm\n', 'L_end:\n  s_endpgm\n' + far)
import subprocess, re as _re
for n, r in PADS.items():
    body = body.replace('; PAD %s\n' % n, 'L_pad_%s:\n  s_cbranch_execz %s\n' % (n, r))
pages = sorted(int(n[2:]) for n in PADS if n.startswith('pg'))
if pages:
    trial = '.amdgcn_target "amdgcn-amd-amdhsa--gfx950"\n.text\n' + body + ''.join('L_pad_pg%d:\n' % p for p in pages) + 'L_tab:\n.fill 8192,4,0\nL_tabend:\n'
    tf = sys.argv[1] + '.trial'
    open(tf, 'w').write(trial)
    subprocess.run(['clang', '-x', 'assembler', '-target', 'amdgcn-amd-amdhsa', '-mcpu=gfx950', '-c', tf, '-o', tf + '.o'], check=True)
    dis = subprocess.run(['llvm-objdump', '-d', '--mcpu=gfx950', tf + '.o'], capture_output=True, text=True).stdout
    addr = [int(x, 16) for x in _re.findall(r'// ([0-9A-F]{12}):', dis)]
    import os
    os.remove(tf)
    os.remove(tf + '.o')
    lines = body.split('\n')
    il = [k for k, x in enumerate(lines) if x.startswith('  ')]
    ins_at = {}
    for cnt, p in enumerate(pages):
        cand = [n for n in range(1, len(il)) if 0 <= addr[n] + 4 * cnt - 4096 * p <= 56]
        best = [n for n in cand if 'v_mfma' in lines[il[n - 1]] and lines[il[n]].startswith('  v_')] or cand
        ins_at[il[best[0]]] = p
        print('page', p, 'pad before', lines[il[best[0]]])
    body = '\n'.join(('L_pad_pg%d:\n  s_cbranch_execz %s\n' % (ins_at[k], PADS['pg%d' % ins_at[k]]) if k in ins_at else '') + x for k, x in enumerate(lines))
ref = open('cdna_kernels/%s.s.ref' % NAME).read()
hdr = ref[:ref.index('; Override launch')]
src = hdr + '; @launch grid=(256,1,1) block=(256,1,1) lds=163840\n'
src += '.amdgcn_target "amdgcn-amd-amdhsa--gfx950"\n.text\n.p2align 12\n.fill 832, 4, 0xbf810000\n.globl %s_kernel\n.p2align 8\n.type %s_kernel,@function\n%s_kernel:\n' % (NAME, NAME, NAME)
src += body
src += '.p2align 7\n.type L_tab,@object\nL_tab:\n'
for n in TN:
    for row in T[n].reshape(-1, 8):
        src += '.long ' + ','.join('0x%x' % x for x in row) + '\n'
src += '.fill %d, 4, 0\nL_tabend:\n.size L_tab, L_tabend-L_tab\n' % ((32 - len(TN)) * 256)
src += '''.section .rodata,"a"
.p2align 6
.amdhsa_kernel %s_kernel
  .amdhsa_next_free_vgpr 512
  .amdhsa_next_free_sgpr 102
  .amdhsa_accum_offset 256
  .amdhsa_group_segment_fixed_size 0
  .amdhsa_kernarg_size 104
  .amdhsa_user_sgpr_count 2
  .amdhsa_user_sgpr_kernarg_segment_ptr 1
  .amdhsa_system_sgpr_workgroup_id_x 1
  .amdhsa_float_denorm_mode_32 3
.end_amdhsa_kernel
''' % NAME
open(sys.argv[1], 'w').write(src)
open(sys.argv[1] + '.stamps', 'w').write('\n'.join(stamp_names))
from collections import Counter
cnt = Counter(i.cls for i in ins)
print('instr', dict(cnt), 'nop states', sum(states(i) for i in ins if i.cls == 'nop'), 'src bytes', len(src))
```

```python
import sys
sys.path.insert(0, 'work')
from asmlib import *
import tables

NAME = 'adaLN_cond__spectral_gfnet__mixer_channel_mlp__prompt'
OPT = dict(stamps=0)
CFG = dict(PRE='', SIL='', PUB='const,tw,tw1,tm', PUB2='', G0='', P1='wf:3', A1='wf:1,w1:3,bias', G1='w1:2', G1b='', P2='w1:6', A2='w1:4', G2='w1:1', G2b='hclr:3',
           P3='hclr:3,w1:3', A3='w1:1,w2:8', G3='')
for arg in sys.argv[2:]:
    k, v = arg.split('=')
    if k in CFG:
        CFG[k] = v
    else:
        OPT[k] = int(v)

PBLK = 11264
WS_EPOCH = 0
WS_MODX = 0x1000
WS_MOD2 = 0x9000
WS_FLAG = 0x10000
WS_P = 0x50000
WS_X1 = WS_P + 256 * PBLK
WS_H = WS_X1 + 256 * 10240
WS_W2F = WS_H + 32 * 196608
WS_END = WS_W2F + 1920 * 1024
WS_STAMP = 0x1800000
WS_REC = 0x2000000
OOB = 0x7ff00000
assert WS_END < WS_STAMP
L_MOD = 0
L_SILU = 17920
L_RED = 19200
L_EX = 20480
L_GP = 32768
L_GW = 49152
L_RING = 65536
L_CONST = L_GP
L_WRAW = L_RING + 7 * 12288
L_W2 = 81920
L_PART = [0, 21504]
SPIN = 200000

T = tables.build()
TN = list(T)

sC, sWM, sX, sWS, sWF_, sW1, sW2, sB1, sB2, sOUT = [8 + 4 * i for i in range(10)]
sWRp, sWIp = 48, 50
sL, sW, sNONCE, sJ, sG, sSPIN, sMASK, sVER = 52, 53, 54, 55, 56, 57, 58, 59
sT = [60, 61, 62, 63, 64, 65]
sST = 66
sADD = 70
sIDX = 73
sXCD = 74
sPG = 75
sZS = 76
sPB = 77
sRING = 78
sTAU = 79
sEX = 80
sBG = [48, 49]
sCOL = 50
sYX = 51
sJ1, sG1, sTM, sTAGZ, sNU = 4, 5, 0, 1, 3
sSTAMP = 82


def srd(s):
    return 's[%d:%d]' % (s, s + 3)


def v(n, c=1):
    return 'v%d' % n if c == 1 else 'v[%d:%d]' % (n, n + c - 1)


def a(n, c=1):
    return 'a%d' % n if c == 1 else 'a[%d:%d]' % (n, n + c - 1)


class Pool:
    def __init__(self, lo, hi):
        self.free = set(range(lo, hi))
        self.hw = 0

    def get(self, n, z='mhxl', al=2):
        if n == 1:
            al = 1
        Z = dict(l=(1, 96), m=(96, 176), h=(176, 256), x=(96, 256))
        for b, hi in [(b, Z[c][1]) for c in z for b in range(*Z[c])]:
            if b % al == 0 and b + n <= hi and all(b + i in self.free for i in range(n)):
                for i in range(n):
                    self.free.remove(b + i)
                self.hw = max(self.hw, b + n)
                return b
        raise RuntimeError('out of registers (%d)' % n)

    def take(self, b, n):
        for i in range(n):
            assert b + i in self.free, 'v%d busy' % (b + i)
            self.free.remove(b + i)
        return b

    def put(self, b, n=1):
        for i in range(n):
            assert b + i not in self.free
            self.free.add(b + i)


A = Asm()
COLD = Asm()
V = Pool(1, 256)
nstamp = [0]
stamp_names = []


CLK = 's_memtime' if OPT.get('cyc') else 's_memrealtime'
ECHO = {3: 'pub0', 4: 's0_done', 5: 's1_done', 6: 's2_done', 7: 's3_done', 8: 'g1_done', 9: 'crit_iss', 10: 'g2_t0', 11: 'g2_t1', 12: 'g2_done', 13: 'laststore', 14: 'g1_t1'}


def stamp(name, asm=None, lvl=1, again=False):
    if ECHO.get(OPT.get('gecho')) == name:
        (asm or A)('s_memrealtime s[90:91]')
        (asm or A)('s_waitcnt lgkmcnt(0)')
    if not (OPT['stamps'] & lvl) and not (OPT['stamps'] and name in ('end',)):
        return
    asm = asm or A
    if again:
        i = stamp_names.index(name)
    else:
        i = nstamp[0]
        nstamp[0] += 1
        stamp_names.append(name)
    asm('%s s[%d:%d]' % (CLK, sEX, sEX + 1))
    asm('s_mov_b32 s%d, s%d' % (sSTAMP + i, sEX))
    assert sSTAMP + i < 100


MF16 = 'v_mfma_f32_16x16x32_bf16'
MF32 = 'v_mfma_f32_32x32x16_bf16'
lab = [0]


def label(p):
    lab[0] += 1
    return 'L_%s_%d' % (p, lab[0])


def barrier(asm=None):
    asm = asm or A
    asm.wait_lds()
    asm('s_barrier')


PADS = {}


def pad(asm, name):
    asm('; PAD %s' % name)


def warm(asm, names):
    if not OPT.get('warm', 1):
        return
    ret = label('wret')
    g = Asm()
    g('s_mov_b64 exec, 0')
    for w, chain in enumerate(names):
        chain = chain.split('+')
        for a_, b_ in zip(chain, chain[1:] + [None]):
            PADS[a_] = 'L_pad_' + b_ if b_ else ret
        g('s_cmp_eq_u32 s%d, %d' % (sW, w))
        g('s_cbranch_scc1 L_pad_%s' % chain[0])
    g('%s:' % ret)
    g('s_mov_b64 exec, -1')
    asm.l.append(g.l)


def check_sentinel(asm, regs, tmp):
    r = list(regs)
    first = True
    while r:
        if first:
            if len(r) >= 3:
                asm('v_max3_u32 %s, %s, %s, %s' % (v(tmp), v(r[0]), v(r[1]), v(r[2])))
                r = r[3:]
            else:
                asm('v_max_u32 %s, %s, %s' % (v(tmp), v(r[0]), v(r[-1])))
                r = []
            first = False
        elif len(r) >= 2:
            asm('v_max3_u32 %s, %s, %s, %s' % (v(tmp), v(tmp), v(r[0]), v(r[1])))
            r = r[2:]
        else:
            asm('v_max_u32 %s, %s, %s' % (v(tmp), v(tmp), v(r[0])))
            r = []
    asm('v_cmp_eq_u32 vcc, -1, %s' % v(tmp))


def check_bits(asm, regs, masks, tmp):
    r = list(regs)
    for k, x in enumerate(r if masks is not None else []):
        asm('v_xor_b32 %s, %s, %s' % (v(x), v(masks + k % 4), v(x)))
    asm('v_or3_b32 %s, %s, %s, %s' % (v(tmp), v(r[0]), v(r[1]), v(r[2])))
    for k in range(3, len(r) - 1, 2):
        asm('v_or3_b32 %s, %s, %s, %s' % (v(tmp), v(tmp), v(r[k]), v(r[k + 1])))
    asm('v_bitop3_b32 %s, %s, %s, s%d bitop3:0xa8' % (v(tmp), v(tmp), v(r[-1]), sTM))
    asm('v_cmp_ne_u32 vcc, 0, %s' % v(tmp))


def check_tags(asm, regs, tmp):
    asm('v_xor_b32 %s, s%d, %s' % (v(tmp), sNONCE, v(regs[0])))
    for r in regs[1:]:
        asm('v_bitop3_b32 %s, %s, s%d, %s bitop3:0xbe' % (v(tmp), v(r), sNONCE, v(tmp)))
    asm('v_cmp_ne_u32 vcc, 0, %s' % v(tmp))


def verify(asm, loads, checker, masked=True, name=None):
    ls, lo = label('slow'), label('ok')
    checker(asm)
    grp = Asm()
    grp('s_cbranch_vccnz %s' % ls)
    grp('%s:' % lo)
    asm.l.append(grp.l)
    c = COLD
    c.cold_begin()
    lx = label('out')
    c('%s:' % ls)
    if name:
        pad(c, name)
    c('s_add_u32 s%d, s%d, 1' % (sSPIN, sSPIN))
    c('s_cmp_gt_u32 s%d, %d' % (sSPIN, SPIN))
    c('s_cbranch_scc1 %s' % lx)
    c('s_mov_b64 exec, vcc' if masked else 's_wqm_b64 exec, vcc')
    loads(c)
    c('s_waitcnt vmcnt(0)')
    checker(c)
    c('s_cbranch_vccnz %s' % ls)
    c('%s:' % lx)
    c('s_mov_b64 exec, -1')
    c('s_nop 4')
    c('s_branch %s' % lo)


def cmul(asm, re_, im_, c_, s_, t0, t1, sign, inplace=False):
    neg = ' neg_lo:[0,0,1] neg_hi:[0,0,1]'
    for p in (0, 2):
        asm('v_pk_mul_f32 %s, %s, %s' % (v(t0 + p, 2), v(im_ + p, 2), v(s_ + p, 2)))
        asm('v_pk_mul_f32 %s, %s, %s' % (v(t1 + p, 2), v(re_ + p, 2), v(s_ + p, 2)))
    for p in (0, 2):
        asm('v_pk_fma_f32 %s, %s, %s, %s%s' % (v((re_ if inplace else t0) + p, 2), v(re_ + p, 2), v(c_ + p, 2), v(t0 + p, 2), neg if sign > 0 else ''))
        asm('v_pk_fma_f32 %s, %s, %s, %s%s' % (v((im_ if inplace else t1) + p, 2), v(im_ + p, 2), v(c_ + p, 2), v(t1 + p, 2), '' if sign > 0 else neg))


def ln_stats(asm, x, scale=None):
    t = V.get(8, 'hxl')
    for r in range(2):
        asm('v_pk_add_f32 %s, %s, %s' % (v(t + 2 * r, 2), v(x[r], 2), v(x[r] + 2, 2)))
        asm('v_pk_mul_f32 %s, %s, %s' % (v(t + 4 + 2 * r, 2), v(x[r], 2), v(x[r], 2)))
    for p in range(1, 5):
        for r in range(2):
            if p >= 2:
                asm('v_pk_add_f32 %s, %s, %s' % (v(t + 2 * r, 2), v(t + 2 * r, 2), v(x[r] + 2 * p, 2)))
            asm('v_pk_fma_f32 %s, %s, %s, %s' % (v(t + 4 + 2 * r, 2), v(x[r] + 2 * p, 2), v(x[r] + 2 * p, 2), v(t + 4 + 2 * r, 2)))
    for q in range(4):
        asm('v_add_f32 %s, %s, %s' % (v(t + 2 * q), v(t + 2 * q), v(t + 2 * q + 1)))
    asm('v_permlane32_swap_b32 %s, %s' % (v(t), v(t + 2)))
    asm('v_permlane32_swap_b32 %s, %s' % (v(t + 4), v(t + 6)))
    asm('v_add_f32 %s, %s, %s' % (v(t), v(t), v(t + 2)))
    asm('v_add_f32 %s, %s, %s' % (v(t + 4), v(t + 4), v(t + 6)))
    asm('v_permlane16_swap_b32 %s, %s' % (v(t), v(t + 4)))
    asm('v_add_f32 %s, %s, %s' % (v(t), v(t), v(t + 4)))
    for sh in (8, 4, 2, 1):
        asm('v_add_f32_dpp %s, %s, %s row_ror:%d row_mask:0xf bank_mask:0xf' % (v(t), v(t), v(t), sh))
    asm('v_mul_f32 %s, 0x3acccccd, %s' % (v(t + 1), v(t)))
    asm('v_mul_f32 %s, 0x3acccccd, %s' % (v(t), v(t)))
    asm('v_permlane16_swap_b32 %s, %s' % (v(t), v(t + 1)))
    asm('v_fma_f32 %s, -%s, %s, %s' % (v(t + 1), v(t), v(t), v(t + 1)))
    asm('v_max_f32 %s, 0, %s' % (v(t + 1), v(t + 1)))
    asm('v_add_f32 %s, 0x3727c5ac, %s' % (v(t + 1), v(t + 1)))
    asm('v_rsq_f32 %s, %s' % (v(t + 1), v(t + 1)))
    if scale:
        asm('v_mul_f32 %s, %s, %s' % (v(t + 1), scale, v(t + 1)))
    asm('v_mul_f32_e64 %s, -%s, %s' % (v(t), v(t), v(t + 1)))
    for r in range(2):
        asm('v_readlane_b32 s%d, %s, %d' % (sST + 2 * r, v(t + 1), 32 * r))
    for r in range(2):
        asm('v_readlane_b32 s%d, %s, %d' % (sST + 2 * r + 1, v(t), 32 * r))
    V.put(t, 8)


def ln_apply(asm, dst, x):
    for p in range(5):
        for r in range(2):
            s = 's[%d:%d]' % (sST + 2 * r, sST + 2 * r + 1)
            asm('v_pk_fma_f32 %s, %s, %s, %s op_sel:[0,0,1] op_sel_hi:[1,0,1]' % (v(dst[r] + 2 * p, 2), v(x[r] + 2 * p, 2), s, s))


def read_mod(asm, dst, vec, vL16, vL4):
    b = L_MOD + vec * 2560
    asm('ds_read_b128 %s, %s offset:%d' % (v(dst, 4), v(vL16), b))
    asm('ds_read_b128 %s, %s offset:%d' % (v(dst + 4, 4), v(vL16), b + 1280))
    o = (b + 1024) // 256
    assert (b + 1024) % 256 == 0
    asm('ds_read2st64_b32 %s, %s offset0:%d offset1:%d' % (v(dst + 8, 2), v(vL4), o, o + 5))


def S(asm, fmt, *args):
    asm(fmt % args)


def opt(cond, asm=None):
    asm = asm or A
    lb = label('skip')
    asm(cond)
    asm('s_cbranch_scc1 %s' % lb)
    asm.opt_begin()
    return lb


def opt_end(lb, asm=None):
    asm = asm or A
    asm.opt_end()
    asm('%s:' % lb)


def grp(asm, g):
    asm.l.append(g.l)


A('s_cmp_ge_u32 s2, 256')
A('s_cbranch_scc1 L_end')
for s, off in ((sC, 64), (sWM, 72), (sX, 0), (sWS, 96), (sWRp, 8), (sWIp, 16), (sW1, 32)):
    A('s_load_dwordx2 s[%d:%d], s[0:1], %d' % (s, s + 1, off))
if OPT['stamps']:
    A('%s s[%d:%d]' % (CLK, sSTAMP, sSTAMP + 1))
    A('s_memtime s[100:101]')
if OPT.get('gecho'):
    A('s_memrealtime s[88:89]')
    A('s_load_dwordx2 s[96:97], s[0:1], 88')
    A('s_mov_b32 s90, 0')
vLane = V.get(1, 'l')
vt = V.get(4, 'l')
tmp = V.get(1, 'l')
A('v_lshrrev_b32 %s, 6, v0' % v(vt))
A('v_and_b32 %s, 63, v0' % v(vLane))
A('v_readfirstlane_b32 s%d, %s' % (sW, v(vt)))
A('s_lshr_b32 s%d, s2, 3' % sIDX)
vPC = V.get(2)
A('s_getpc_b64 s[6:7]')
A('L_pc:')
A('s_lshl_b32 s%d, s%d, 7' % (sT[1], sIDX))
A('v_lshl_add_u32 %s, v0, 12, s%d' % (v(vt + 1), sT[1]))
A('v_mov_b32 %s, s7' % v(vPC + 1))
A('v_add_co_u32 %s, vcc, s6, %s' % (v(vt + 2), v(vt + 1)))
A('s_and_b32 s%d, s2, 7' % sT[0])
A('s_mul_i32 s%d, s%d, 20' % (sTAU, sT[0]))
A('v_addc_co_u32 %s, vcc, 0, %s, vcc' % (v(vt + 3), v(vPC + 1)))
A('v_cmp_gt_u32 vcc, (L_tabend-L_pc-4), %s' % v(vt + 1))
A('s_add_u32 s%d, s%d, s%d' % (sTAU, sTAU, sIDX))
A('s_and_saveexec_b64 s[%d:%d], vcc' % (sEX, sEX + 1))
A('s_cbranch_execz L_nopf')
A.opt_begin()
vJunk = V.get(3, 'h', 1)
A('global_load_dword %s, %s, off' % (v(vJunk), v(vt + 2, 2)), tag='junk')
A.opt_end()
A('L_nopf:')
A('s_mov_b64 exec, -1')
A('s_lshl_b32 s%d, s%d, 5' % (sL, sT[0]))
A('s_add_u32 s%d, s%d, s%d' % (sL, sL, sIDX))
vL16, vL4, vL8 = V.get(1, 'l'), V.get(1, 'l'), V.get(1, 'l')
vN, vG, vKD, vH = V.get(1, 'l'), V.get(1, 'l'), V.get(1, 'l'), V.get(1, 'l')
A('v_and_b32 %s, 15, %s' % (v(vN), v(vLane)))
A('v_lshrrev_b32 %s, 4, %s' % (v(vG), v(vLane)))
vCo = V.get(1)
A('s_and_b32 s%d, s%d, 1' % (sT[2], sTAU))
A('s_mul_i32 s%d, s%d, 640' % (sT[0], sT[2]))
A('s_lshl_b32 s%d, s%d, 6' % (sT[1], sW))
A('s_add_u32 s%d, s%d, s%d' % (sT[0], sT[0], sT[1]))
A('v_lshl_add_u32 %s, %s, 8, s%d' % (v(vCo), v(vG), sT[0]))
A('v_lshl_add_u32 %s, %s, 2, %s' % (v(vCo), v(vN), v(vCo)))
vWM = V.get(1)
A('v_lshrrev_b32 %s, 1, %s' % (v(vWM), v(vLane)))
A('v_mul_u32_u24 %s, 7680, %s' % (v(vWM), v(vWM)))
A('v_and_b32 %s, 1, %s' % (v(vt), v(vLane)))
A('v_lshl_add_u32 %s, %s, 4, %s' % (v(vWM), v(vt), v(vWM)))
A('s_mul_i32 s%d, s%d, 3840' % (sT[0], sT[0]))
A('s_lshr_b32 s%d, s%d, 1' % (sT[1], sTAU))
A('s_lshl_b32 s%d, s%d, 5' % (sT[1], sT[1]))
A('s_add_u32 s%d, s%d, s%d' % (sT[0], sT[0], sT[1]))
A('s_lshl_b32 s%d, s%d, 10' % (sT[1], sW))
for s, n in ((sC, 1280), (sWM, 640 * 7680), (sX, 2621440), (sWS, WS_REC)):
    A('s_mov_b32 s%d, %d' % (s + 2, n))
    A('s_mov_b32 s%d, 0x20000' % (s + 3))
A('v_lshlrev_b32 %s, 2, %s' % (v(vL4), v(vLane)))
A('s_lshl_b32 s%d, s%d, 9' % (sT[2], sW))
A('s_add_u32 s%d, s%d, s%d' % (sT[2], sT[2], sL))
A('s_mul_i32 s%d, s%d, 1280' % (sPG, sT[2]))
A('s_add_u32 s%d, s%d, %d' % (sZS, sPG, 256 * 1280))
A('s_add_u32 m0, s%d, %d' % (sT[1], L_EX))
A('s_waitcnt lgkmcnt(0)')
XPOS = OPT.get('xpos', 2)
vXR = V.get(10)
XL, XL2 = Asm(), Asm()
for r in range(2):
    for j in range(5):
        for X in (XL, XL2):
            X('buffer_load_dword %s, %s, %s, s%d offen offset:%d' % (v(vXR + 5 * r + j), v(vL4), srd(sX), (sPG, sZS)[r], 256 * j))
if XPOS == 0:
    A.add(XL)
vC = V.get(1)
lb = opt('s_cmp_ge_u32 s%d, 20' % sIDX)
A('buffer_load_dword %s, %s, %s, 0 offen' % (v(vC), v(vCo), srd(sC)))
for i in range(3):
    if i == 2:
        lb2 = opt('s_cmp_ge_u32 s%d, 2' % sW)
    if i:
        A('s_add_u32 m0, s%d, %d' % (sT[1], L_EX + 4096 * i))
        A('s_add_u32 s%d, s%d, %d' % (sT[0], sT[0], 128 * 7680))
    A('buffer_load_dwordx4 %s, %s, s%d offen lds' % (v(vWM), srd(sWM), sT[0]), tag='wm')
opt_end(lb2)
opt_end(lb)
V.put(vCo)
V.put(vWM)
if OPT['stamps']:
    nstamp[0] = 1
    stamp_names.append('start')
A('s_load_dword s%d, s[%d:%d], %d' % (sNONCE, sWS, sWS + 1, WS_EPOCH))
for s, off in ((sW2, 48), (sB1, 40), (sB2, 56), (sOUT, 80)):
    A('s_load_dwordx2 s[%d:%d], s[0:1], %d' % (s, s + 1, off))
stamp('crit_iss', lvl=2)
if XPOS == 2:
    A.add(XL)


def mk(fn, *args):
    x = Asm()
    fn(x, *args)
    return x


def out_of_line(cond, asm=None):
    asm = asm or A
    lb, lj = label('far'), label('back')
    asm(cond)
    asm('s_cbranch_scc1 %s' % lb)
    return lb, lj


B = Asm()
for s, n in ((sWF_, 2048 * 642), (sW1, 640 * 3072), (sW2, 1536 * 1280), (sB1, 3072), (sB2, 1280), (sOUT, 2621440)):
    B('s_mov_b32 s%d, %d' % (s + 2, n))
    B('s_mov_b32 s%d, 0x20000' % (s + 3))
B('v_lshlrev_b32 %s, 4, %s' % (v(vL16), v(vLane)))
B('v_lshlrev_b32 %s, 3, %s' % (v(vL8), v(vLane)))
B('v_and_b32 %s, 31, %s' % (v(vKD), v(vLane)))
B('v_lshrrev_b32 %s, 5, %s' % (v(vH), v(vLane)))
B('s_mov_b32 s%d, 0' % sSPIN)
B('s_mov_b32 s%d, 0xffff0000' % sMASK)
B('s_and_b32 s%d, s%d, 7' % (sJ, sL))
B('s_lshr_b32 s%d, s%d, 3' % (sG, sL))
B('s_mul_i32 s%d, s%d, %d' % (sPB, sL, PBLK))
B('s_add_u32 s%d, s%d, %d' % (sPB, sPB, WS_P))
vOOB = V.get(1, 'l')
vKW = V.get(1)
vQ = V.get(1, 'l')
vC8 = V.get(1, 'l')
vT64 = V.get(1)
B('v_lshrrev_b32 %s, 2, %s' % (v(vQ), v(vLane)))
B('v_and_b32 %s, 3, %s' % (v(vC8), v(vLane)))
B('s_lshl_b32 s%d, s%d, 5' % (sT[0], sW))
B('v_add_u32 %s, s%d, %s' % (v(vKW), sT[0], v(vKD)))
B('v_mov_b32 %s, %d' % (v(vOOB), OOB))
B('s_mul_i32 s%d, s%d, 3072' % (sRING, sW))
B('s_lshr_b32 s%d, s%d, 5' % (sXCD, sL))
B('s_andn2_b32 s%d, s%d, 7' % (sT[0], sG))
B('s_lshr_b32 s%d, s%d, 2' % (sT[1], sIDX))
B('s_add_u32 s%d, s%d, s%d' % (sG1, sT[0], sT[1]))
B('s_and_b32 s%d, s%d, 4' % (sT[0], sG))
B('s_and_b32 s%d, s%d, 3' % (sT[1], sIDX))
B('s_add_u32 s%d, s%d, s%d' % (sJ1, sT[0], sT[1]))
if not OPT.get('pair', 1):
    B('s_mov_b32 s%d, s%d' % (sG1, sG))
    B('s_mov_b32 s%d, s%d' % (sJ1, sJ))
if OPT.get('pair', 2) == 2:
    B('s_mov_b32 s%d, s%d' % (sG, sG1))
    B('s_mov_b32 s%d, s%d' % (sJ, sJ1))
vFILL = V.get(4, 'l')
for i in range(4):
    B('v_mov_b32 %s, -1' % v(vFILL + i))
B('s_cmp_ge_u32 s%d, 2' % sW)
B('s_cselect_b32 s%d, s%d, s%d' % (sWF_, sWIp, sWRp))
B('s_cselect_b32 s%d, s%d, s%d' % (sWF_ + 1, sWIp + 1, sWRp + 1))
B('s_lshl_b32 s%d, s%d, 13' % (sT[0], sW))
B('s_add_u32 s%d, s%d, (L_tab-L_pc)' % (sT[1], sT[0]))
B('v_add_u32 %s, s%d, %s' % (v(vt + 2), sT[1], v(vL16)))
B('v_add_co_u32 %s, vcc, s6, %s' % (v(vPC), v(vt + 2)))
B('v_lshlrev_b32 %s, 6, %s' % (v(vT64), v(vQ)))
B('v_lshl_add_u32 %s, %s, 3, %s' % (v(vT64), v(vC8), v(vT64)))
B('v_addc_co_u32 %s, vcc, 0, %s, vcc' % (v(vPC + 1), v(vPC + 1)))
vTch = V.get(5, 'mh', 1)
B('s_mul_i32 s%d, s%d, 642' % (sT[0], sXCD))
B('s_and_b32 s%d, s%d, 1' % (sT[1], sW))
B('s_lshl1_add_u32 s%d, s%d, s%d' % (sT[1], sIDX, sT[1]))
B('s_mul_i32 s%d, s%d, %d' % (sT[1], sT[1], 4 * 5136))
B('s_add_u32 s%d, s%d, s%d' % (sT[0], sT[0], sT[1]))
B('s_and_b32 s%d, s%d, -4' % (sT[0], sT[0]))
B('v_bfe_u32 %s, %s, 3, 2' % (v(vt), v(vLane)))
B('v_and_b32 %s, 7, %s' % (v(vt + 3), v(vLane)))
B('v_min_u32 %s, 5, %s' % (v(vt + 1), v(vt + 3)))
B('v_mul_u32_u24 %s, 5136, %s' % (v(vt), v(vt)))
B('v_lshl_add_u32 %s, %s, 7, s%d' % (v(vt + 1), v(vt + 1), sT[0]))
B('v_add_u32 %s, %s, %s' % (v(vTch), v(vt), v(vt + 1)))
vMG, vMA = V.get(1), V.get(2, 'mh', 1)
B('v_lshrrev_b32 %s, 3, %s' % (v(vMG), v(vLane)))
B('s_lshl_b32 s%d, s%d, 11' % (sT[0], sW))
B('v_lshl_add_u32 %s, %s, 8, s%d' % (v(vMG), v(vMG), sT[0]))
B('v_lshl_add_u32 %s, %s, 4, %s' % (v(vMG), v(vt + 3), v(vMG)))
B('s_lshl_b32 s%d, s%d, 2' % (sT[0], sW))
B('v_add_u32 %s, s%d, %s' % (v(vMA), sT[0], v(vL16)))
B('s_mul_i32 s%d, s%d, 2560' % (sT[0], sW))
B('v_add_u32 %s, s%d, %s' % (v(vMA + 1), sT[0], v(vL4)))
B('s_mul_i32 s%d, s%d, 1.0' % (sADD, sW))
B('s_lshl_b32 s%d, s%d, 13' % (sADD + 1, sW))
B('s_add_u32 s%d, s%d, %d' % (sADD + 1, sADD + 1, WS_MODX + 8192))
B('s_lshr_b32 s%d, s%d, 6' % (sT[0], sL))
B('s_lshl_b32 s%d, s%d, 5' % (sT[0], sT[0]))
B('s_add_u32 s%d, s%d, s%d' % (sT[0], sT[0], sIDX))
B('s_lshl2_add_u32 s%d, s%d, s%d' % (sT[0], sT[0], sW))
B('s_mul_i32 s%d, s%d, 15' % (sT[0], sT[0]))
B('v_min_u32 %s, 14, %s' % (v(vt), v(vLane)))
B('v_add_u32 %s, s%d, %s' % (v(vt), sT[0], v(vt)))
B('v_mul_u32_u24 %s, 43691, %s' % (v(vt + 1), v(vt)))
B('v_lshrrev_b32 %s, 19, %s' % (v(vt + 1), v(vt + 1)))
B('s_and_b32 s%d, s%d, 1' % (sT[0], sXCD))
B('v_add_u32 %s, s%d, %s' % (v(vt + 1), sT[0], v(vt + 1)))
B('v_mul_u32_u24 %s, 12, %s' % (v(vt + 1), v(vt + 1)))
B('v_add_lshl_u32 %s, %s, %s, 7' % (v(vTch + 1), v(vt), v(vt + 1)))

TB = Asm()
TB('s_lshl2_add_u32 s%d, s%d, s%d' % (sT[0], sIDX, sW))
TB('s_mul_i32 s%d, s%d, %d' % (sT[1], sT[0], 5 * 7680))
TB('s_mul_i32 s%d, s%d, 640' % (sT[2], sXCD))
TB('s_add_u32 s%d, s%d, s%d' % (sT[1], sT[1], sT[2]))
TB('s_add_u32 s%d, s%d, 2560' % (sT[1], sT[1]))
TB('v_lshrrev_b32 %s, 3, %s' % (v(vt), v(vLane)))
TB('v_min_u32 %s, 4, %s' % (v(vt), v(vt)))
TB('v_mul_u32_u24 %s, 7680, %s' % (v(vt), v(vt)))
TB('v_and_b32 %s, 7, %s' % (v(vt + 1), v(vLane)))
TB('v_min_u32 %s, 4, %s' % (v(vt + 1), v(vt + 1)))
TB('v_lshl_add_u32 %s, %s, 7, s%d' % (v(vt + 1), v(vt + 1), sT[1]))
TB('v_add_u32 %s, %s, %s' % (v(vTch + 2), v(vt), v(vt + 1)))
TB('s_lshl2_add_u32 s%d, s%d, s%d' % (sT[0], sL, sW))
TB('s_mul_i32 s%d, s%d, %d' % (sT[0], sT[0], 15 * 128))
TB('v_min_u32 %s, 14, %s' % (v(vt), v(vLane)))
TB('v_lshl_add_u32 %s, %s, 7, s%d' % (v(vTch + 3), v(vt), sT[0]))


def trig(asm, dst, inv):
    t = V.get(6)
    asm('v_and_b32 %s, 4, %s' % (v(t), v(vLane)))
    asm('v_bfe_u32 %s, %s, 3, 1' % (v(t + 1), v(vLane)))
    asm('v_lshl_add_u32 %s, %s, 1, %s' % (v(t), v(t + 1), v(t)))
    asm('v_bfe_u32 %s, %s, 1, 1' % (v(t + 1), v(vLane)))
    asm('v_add_u32 %s, %s, %s' % (v(t), v(t), v(t + 1)))
    asm('v_and_b32 %s, 1, %s' % (v(t + 1), v(vLane)))
    asm('v_lshlrev_b32 %s, 9, %s' % (v(t + 1), v(t + 1)))
    if not inv:
        asm('v_lshl_add_u32 %s, %s, 10, s%d' % (v(t + 2), v(vH), sL))
        asm('v_mad_u32_u24 %s, %s, %s, %s' % (v(t + 2), v(t), v(t + 2), v(t + 1)))
        asm('v_lshlrev_b32 %s, 8, %s' % (v(t + 3), v(t)))
    else:
        asm('v_lshl_add_u32 %s, %s, 8, s%d' % (v(t + 3), v(t), sL))
        asm('v_lshlrev_b32 %s, 2, %s' % (v(t + 2), v(vH)))
        asm('v_mul_u32_u24 %s, %s, %s' % (v(t + 2), v(t + 2), v(t + 3)))
        asm('v_sub_u32 %s, %s, %s' % (v(t + 2), v(t + 2), v(t + 1)))
    sc = '0x5f800000' if inv else '0x1f800000'
    for q in range(4):
        asm('v_and_b32 %s, 2047, %s' % (v(t + 4), v(t + 2)))
        asm('v_cvt_f32_u32 %s, %s' % (v(t + 4), v(t + 4)))
        asm('v_mul_f32 %s, 0x3a000000, %s' % (v(t + 4), v(t + 4)))
        asm('v_sin_f32 %s, %s' % (v(t + 5), v(t + 4)))
        asm('v_cos_f32 %s, %s' % (v(t + 4), v(t + 4)))
        asm('v_add_u32 %s, %s, %s' % (v(t + 2), v(t + 2), v(t + 3)))
        asm('v_mul_f32 %s, %s, %s' % (v(t + 5), sc, v(t + 5)))
        asm('v_mul_f32 %s, %s, %s' % (v(t + 4), sc, v(t + 4)))
        asm('v_cvt_pk_bf16_f32 %s, %s, %s%s' % (v(dst + q), v(t + 4), '-' if inv else '', v(t + 5)))
    V.put(t, 6)


def j_tw(asm):
    asm('buffer_load_dword %s, %s, %s, 0 offen' % (v(vJunk + 1), v(vTch), srd(sWF_)), tag='junk')


def j_tw1(asm):
    if not OPT.get('now1'):
        asm('buffer_load_dword %s, %s, %s, 0 offen' % (v(vJunk + 2), v(vTch + 1), srd(sW1)), tag='junk')


def j_tm(asm):
    asm('buffer_load_dword %s, %s, %s, 0 offen' % (v(vTch + 2), v(vTch + 2), srd(sWM)), tag='junk')


def j_tw2(asm):
    asm('buffer_load_dword %s, %s, %s, 0 offen' % (v(vTch + 3), v(vTch + 3), srd(sW2)), tag='junk')


def early(asm, nm):
    for x in CFG[nm].split(','):
        if x:
            globals()['j_' + x](asm)


TBE = any(x in CFG['PRE'] + CFG['SIL'] for x in ('tm', 'tw2'))
if TBE:
    B.add(TB)
early(B, 'PRE')
vA8, vA8i = V.get(4), V.get(4)
if OPT.get('trig0', 0):
    trig(B, vA8, False)
B('s_mul_i32 s%d, s%d, 0x9e3779b1' % (sT[0], sNONCE))
B('s_add_u32 s%d, s%d, 0x7f4a7c15' % (sT[0], sT[0]))
B('s_lshr_b32 s%d, s%d, 15' % (sT[1], sT[0]))
B('s_xor_b32 s%d, s%d, s%d' % (sT[0], sT[0], sT[1]))
B('s_mul_i32 s%d, s%d, 0x85ebca6b' % (sT[0], sT[0]))
B('s_lshr_b32 s%d, s%d, 13' % (sT[1], sT[0]))
B('s_xor_b32 s%d, s%d, s%d' % (sT[0], sT[0], sT[1]))
B('s_mov_b32 s%d, 0x55555555' % sT[5])
B('s_or_b32 s%d, s%d, 16' % (sT[0], sT[0]))
B('s_lshr_b32 s%d, s%d, 1' % (sT[1], sNONCE))
B('s_and_b32 s%d, s%d, s%d' % (sT[1], sT[1], sT[5]))
B('s_orn2_b32 s%d, s%d, s%d' % (sT[2], sNONCE, sT[1]))
B('s_and_b32 s%d, s%d, s%d' % (sT[2], sT[2], sT[5]))
B('s_and_b32 s%d, s%d, s%d' % (sT[3], sT[0], sT[1]))
B('s_xor_b32 s%d, s%d, s%d' % (sT[3], sT[3], sT[2]))
B('s_andn2_b32 s%d, s%d, s%d' % (sT[4], sT[2], sT[0]))
B('s_xor_b32 s%d, s%d, s%d' % (sT[4], sT[4], sT[1]))
B('s_lshl1_add_u32 s%d, s%d, s%d' % (sNONCE, sT[3], sT[4]))
B('s_lshl1_add_u32 s%d, s%d, s%d' % (sT[1], sT[1], sT[2]))
B('s_and_b32 s%d, s%d, 3' % (sT[1], sT[1]))
B('s_lshr_b32 s%d, s%d, 2' % (sT[2], sNONCE))
B('s_xor_b32 s%d, s%d, s%d' % (sT[2], sT[2], sNONCE))
B('s_lshl_b32 s%d, s%d, 2' % (sT[2], sT[2]))
B('s_cselect_b32 s%d, 0, s%d' % (sT[1], sT[1]))
B('s_xor_b32 s%d, s%d, s%d' % (sNONCE, sNONCE, sT[1]))
B('s_lshr_b32 s%d, s%d, 1' % (sT[1], sNONCE))
B('s_xor_b32 s%d, s%d, s%d' % (sT[2], sT[1], sNONCE))
B('s_and_b32 s%d, s%d, s%d' % (sT[1], sT[1], sT[5]))
B('s_and_b32 s%d, s%d, s%d' % (sT[2], sT[2], sT[5]))
B('s_lshl1_add_u32 s%d, s%d, s%d' % (sTAGZ, sT[2], sT[1]))
B('s_mov_b32 s%d, 0x40004000' % sTM)
A.add(B)
stamp('pre_wm', lvl=3)


def silu(asm, x, t, n):
    for i in range(n):
        asm('v_mul_f32 %s, 0xbfb8aa3b, %s' % (v(t + i), v(x + i)))
    for i in range(n):
        asm('v_exp_f32 %s, %s' % (v(t + i), v(t + i)))
    for i in range(n):
        asm('v_add_f32 %s, 1.0, %s' % (v(t + i), v(t + i)))
    for i in range(n):
        asm('v_rcp_f32 %s, %s' % (v(t + i), v(t + i)))
    for i in range(n):
        asm('v_mul_f32 %s, %s, %s' % (v(x + i), v(x + i), v(t + i)))


def w2_reformat(LW, tag, mid=None):
    ad, f = V.get(2, 'mh', 1), V.get(24)
    sD = [6, 7]
    A('s_mul_i32 s%d, s%d, 205' % (sT[1], sNU))
    A('s_lshr_b32 s%d, s%d, 10' % (sT[1], sT[1]))
    A('s_mul_i32 s%d, s%d, 5' % (sT[2], sT[1]))
    A('s_sub_u32 s%d, s%d, s%d' % (sT[0], sNU, sT[2]))
    A('s_lshl2_add_u32 s%d, s%d, s%d' % (sT[0], sT[0], sW))
    A('s_lshr_b32 s%d, s%d, 1' % (sT[2], sT[0]))
    A('s_mul_i32 s%d, s%d, 238' % (sT[2], sT[2]))
    A('s_and_b32 s%d, s%d, 1' % (sT[3], sT[0]))
    A('s_add_u32 s%d, s%d, s%d' % (sT[2], sT[2], sT[3]))
    A('s_add_u32 s%d, s%d, s%d' % (sT[2], sT[2], sT[0]))
    A('s_mul_i32 s%d, s%d, 480' % (sT[3], sT[0]))
    A('s_sub_u32 s%d, s%d, %d' % (sT[3], sT[3], 480 * 16 - 4))
    A('s_cmp_lt_u32 s%d, 16' % sT[0])
    A('s_cselect_b32 s%d, s%d, s%d' % (sT[2], sT[2], sT[3]))
    A('s_cselect_b32 s%d, 1, 240' % sT[3])
    A('s_mul_i32 s%d, s%d, 15' % (sT[4], sT[1]))
    A('s_add_u32 s%d, s%d, s%d' % (sT[2], sT[2], sT[4]))
    A('s_add_u32 s%d, s%d, s%d' % (sT[3], sT[3], sT[2]))
    for k in range(2):
        A('s_lshl_b32 s%d, s%d, 10' % (sD[k], sT[2 + k]))
    A('s_lshr_b32 s%d, s%d, 1' % (sT[2], sT[1]))
    A('s_mul_i32 s%d, s%d, %d' % (sT[2], sT[2], 192 * 1280))
    A('s_lshl_b32 s%d, s%d, 6' % (sT[0], sT[0]))
    A('s_add_u32 s%d, s%d, s%d' % (sT[0], sT[0], sT[2]))
    A('s_and_b32 s%d, s%d, 1' % (sT[1], sT[1]))
    A('v_mul_u32_u24 %s, 1280, %s' % (v(ad), v(vQ)))
    A('v_lshl_add_u32 %s, %s, 4, %s' % (v(ad), v(vC8), v(ad)))
    A('v_add_u32 %s, s%d, %s' % (v(ad), sT[0], v(ad)))
    A('s_mul_i32 s%d, s%d, %d' % (sT[2], sT[1], 40 * 1280))
    A('v_mul_u32_u24 %s, s%d, %s' % (v(ad + 1), sT[2], v(vH)))
    A('v_add_u32 %s, %s, %s' % (v(ad + 1), v(ad + 1), v(ad)))
    A('s_lshl1_add_u32 s%d, s%d, %d' % (sT[0], sRING, LW))
    for e in range(3):
        for rd in range(2):
            r0 = 48 * e + 16 * rd
            r1 = 144 + 16 * rd if e == 0 else 96 * (e - 1) + 32 + 8 * rd
            A('s_mul_i32 s%d, s%d, %d' % (sT[2], sT[1], (r1 - r0) * 1280))
            A('s_add_u32 s%d, s%d, %d' % (sT[2], sT[2], r0 * 1280))
            A('s_add_u32 m0, s%d, %d' % (sT[0], 2048 * e + 1024 * rd))
            A('buffer_load_dwordx4 %s, %s, s%d offen lds' % (v(ad + (e > 0)), srd(sW2), sT[2]), tag='w2raw')
    A('v_add_u32 %s, s%d, %s' % (v(ad), sT[0], v(vT64)))
    if mid:
        mid()
    A.wait_tag('w2raw')
    for e in range(3):
        for tt_ in range(2):
            for rd in range(2):
                A('ds_read_b64_tr_b16 %s, %s offset:%d' % (v(f + 8 * e + 4 * tt_ + 2 * rd, 2), v(ad), 2048 * e + 1024 * rd + 32 * tt_))
    for e in range(3):
        for tt_ in range(2):
            A('s_add_u32 s%d, s%d, %d' % (sT[2], sD[tt_], WS_W2F + 5120 * e))
            A('buffer_store_dwordx4 %s, %s, %s, s%d offen sc1' % (v(f + 8 * e + 4 * tt_, 4), v(vL16), srd(sWS), sT[2]), tag=tag)
    A('s_nop 1')
    V.put(ad, 2)
    V.put(f, 24)


lfar, lback = out_of_line('s_cmp_ge_u32 s%d, 20' % sIDX)
A.opt_begin()
t = V.get(8)
A('s_lshl_b32 s%d, s%d, 8' % (sT[0], sW))
A('v_add_u32 %s, s%d, %s' % (v(t + 4), sT[0], v(vL4)))
A('s_add_u32 s%d, s%d, %d' % (sT[0], sT[0], L_SILU))
A('v_lshl_add_u32 %s, %s, 3, s%d' % (v(t + 5), v(vG), sT[0]))
A('s_lshl_b32 s%d, s%d, 10' % (sT[0], sW))
A('v_add_u32 %s, s%d, %s' % (v(t + 6), sT[0], v(vL8)))
A('s_lshl_b32 s%d, s%d, 6' % (sT[0], sW))
A('v_lshl_add_u32 %s, %s, 4, s%d' % (v(t + 7), v(vG), sT[0]))
A('v_lshlrev_b32 %s, 16, %s' % (v(t), v(vC)))
A('v_and_b32 %s, s%d, %s' % (v(t + 1), sMASK, v(vC)))
silu(A, t, t + 2, 2)
A('v_cvt_pk_bf16_f32 %s, %s, %s' % (v(t), v(t), v(t + 1)))
A('ds_write_b32 %s, %s offset:%d' % (v(t + 4), v(t), L_SILU))
vSB, f, d, p = V.get(12), V.get(12), V.get(4), V.get(8)
for i in range(3):
    A('ds_read2_b64 %s, %s offset0:%d offset1:%d' % (v(vSB + 4 * i, 4), v(t + 5), 8 * i, 8 * i + 4))
A('s_lshl_b32 s%d, s%d, 7' % (sT[0], sTAU))
A('s_add_u32 s%d, s%d, %d' % (sT[0], sT[0], WS_MODX))
A('v_mov_b32 %s, s%d' % (v(t + 1), sNONCE))
A('v_mov_b32 %s, s%d' % (v(t + 3), sNONCE))
if XPOS == 1:
    A.add(XL)
early(A, 'SIL')
stamp('silu', lvl=2)
A.wait_tag('wm')
stamp('wm_land', lvl=2)
for i in range(3):
    for rd in range(2):
        A('ds_read_b64_tr_b16 %s, %s offset:%d' % (v(f + 4 * i + 2 * rd, 2), v(t + 6), L_EX + 4096 * i + 512 * rd))
A('%s %s, %s, %s, 0' % (MF16, v(d, 4), v(f, 4), v(vSB, 4)))
A('%s %s, %s, %s, %s' % (MF16, v(d, 4), v(f + 4, 4), v(vSB + 4, 4), v(d, 4)))
lb2 = opt('s_cmp_ge_u32 s%d, 2' % sW)
A('%s %s, %s, %s, %s' % (MF16, v(d, 4), v(f + 8, 4), v(vSB + 8, 4), v(d, 4)))
opt_end(lb2)
A('ds_write_b128 %s, %s offset:%d' % (v(t + 7), v(d, 4), L_RED))
barrier()
lb = opt('s_cmp_lg_u32 s%d, 3' % sW)
for i in range(4):
    A('ds_read_b64 %s, %s offset:%d' % (v(p + 2 * i, 2), v(vL8), L_RED + 64 * i))
A('s_mov_b64 exec, 0xff')
A('v_pk_add_f32 %s, %s, %s' % (v(p, 2), v(p, 2), v(p + 2, 2)))
A('v_pk_add_f32 %s, %s, %s' % (v(p + 4, 2), v(p + 4, 2), v(p + 6, 2)))
A('v_add_f32 %s, %s, %s' % (v(t + 2), v(p + 1), v(p + 5)))
A('v_add_f32 %s, %s, %s' % (v(t), v(p), v(p + 4)))
A('buffer_store_dwordx4 %s, %s, %s, s%d offen sc1' % (v(t, 4), v(vL16), srd(sWS), sT[0]), tag='pub')
A('s_mov_b64 exec, -1')
A('s_nop 1')
opt_end(lb)
for x, n in ((t, 8), (vSB, 12), (f, 12), (d, 4), (p, 8), (vC, 1)):
    V.put(x, n)
A.opt_end()
A.far_begin(lfar)
if XPOS == 1:
    A.add(XL2)
A('s_mul_i32 s%d, s%d, 10' % (sT[0], sXCD))
A('s_max_u32 s%d, s%d, 22' % (sT[1], sIDX))
A('s_add_u32 s%d, s%d, s%d' % (sT[0], sT[0], sT[1]))
A('s_sub_u32 s%d, s%d, 22' % (sNU, sT[0]))
if OPT.get('w2at', 1) == 0:
    assert 0
early(A, 'SIL')
FAR0 = len(A.l)
A.far_end(lback)
stamp('pub0', lvl=3)

vW1 = V.get(6, 'l', 1)
vW1r = V.get(1, 'l')
vWD = V.get(1)
vb2, vb1 = V.get(4, 'l'), V.get(6, 'l')
W1S = dict(iss=0, drn=0, lim=20)


def w1_addr(asm, late):
    asm('s_mul_i32 s%d, s%d, 384' % (sT[0], sJ1))
    asm('s_mul_i32 s%d, s%d, 96' % (sT[1], sW))
    asm('s_add_u32 s%d, s%d, s%d' % (sT[0], sT[0], sT[1]))
    for i in range(3):
        asm('v_add_u32 %s, %d, %s' % (v(vt), 64 * i, v(vLane)))
        asm('v_mul_u32_u24 %s, 10923, %s' % (v(vt), v(vt)))
        asm('v_lshrrev_b32 %s, 16, %s' % (v(vt + 1), v(vt)))
        if not late:
            asm('v_lshrrev_b32 %s, 4, %s' % (v(vt + 2), v(vt + 1)))
            asm('v_bfe_u32 %s, %s, 1, 1' % (v(vt + 3), v(vt + 1)))
            asm('v_lshl_add_u32 %s, %s, 1, %s' % (v(vt + 2), v(vt + 2), v(vt + 3)))
            asm('v_bfe_u32 %s, %s, 2, 2' % (v(vt + 3), v(vt + 1)))
            asm('v_lshl_add_u32 %s, %s, 6, %s' % (v(vt + 2), v(vt + 2), v(vt + 3)))
            asm('v_and_b32 %s, 1, %s' % (v(vt + 3), v(vt + 1)))
            asm('v_lshl_add_u32 %s, %s, 1, %s' % (v(vt + 2), v(vt + 2), v(vt + 3)))
        else:
            asm('v_bfe_u32 %s, %s, 2, 2' % (v(vt + 2), v(vt + 1)))
            asm('v_lshrrev_b32 %s, 4, %s' % (v(vt + 3), v(vt + 1)))
            asm('v_lshl_add_u32 %s, %s, 1, %s' % (v(vt + 2), v(vt + 2), v(vt + 3)))
            asm('v_and_b32 %s, 3, %s' % (v(vt + 3), v(vt + 1)))
            asm('v_lshl_add_u32 %s, %s, 2, %s' % (v(vt + 2), v(vt + 2), v(vt + 3)))
        asm('v_lshlrev_b32 %s, 5, %s' % (v(vt + 2), v(vt + 2)))
        asm('v_sub_u32 %s, %s, %s' % (v(vt + 2), v(vt + 2), v(vt + 1)))
        asm('v_mul_u32_u24 %s, 96, %s' % (v(vt + 2), v(vt + 2)))
        asm('v_add3_u32 %s, %s, %s, s%d' % (v(vW1 + 3 * late + i), v(vt + 2), v(vL16), sT[0]))
    W1S['late'] = late


def slot(q):
    return (q + 4) % 8


def j_w1(asm, n):
    for q in range(W1S['iss'], min(20, W1S['iss'] + n)):
        W1S['iss'] = q + 1
        prev = q - 8
        assert prev < W1S['drn'] and q < W1S['lim'] and (W1S['late'] or q < 16), (q, W1S)
        if OPT.get('now1'):
            continue
        row = 8 * q if q < 16 else 512 + 32 * (q - 16)
        for i in range(3):
            g = Asm()
            if i == 0:
                g('s_add_u32 m0, s%d, %d' % (sRING, L_RING + 12288 * slot(q)))
                g('s_mov_b32 s%d, %d' % (sBG[0], row * 3072))
            g('buffer_load_dwordx4 %s, %s, s%d offen offset:%d lds' % (v(vW1 + 3 * (q >= 16) + i), srd(sW1), sBG[0], 1024 * i), tag='w1_%d' % q)
            grp(asm, g)


def w1_drain(asm, q1):
    q0 = W1S['drn']
    if q1 <= q0:
        return
    W1S['drn'] = q1
    asm.wait_tag(['w1_%d' % q for q in range(q0, q1)])
    hi = None
    for q in range(q0, q1):
        s = slot(q)
        if hi != s // 4:
            hi = s // 4
            asm('v_add_u32 %s, %d, %s' % (v(tmp), L_RING + 49152 * hi, v(vW1r)))
        for c in range(3):
            for rd in range(2):
                asm('ds_read_b64_tr_b16 %s, %s offset:%d' % (a((3 * q + c) * 4 + 2 * rd, 2), v(tmp), 12288 * (s % 4) + 1536 * rd + 32 * c))
    asm.wait_lds()


def j_const(asm):
    for hlf in range(2):
        g = Asm()
        if hlf == 1:
            g('v_add_co_u32 %s, vcc, 4096, %s' % (v(vPC), v(vPC)))
        g('s_lshl_b32 s%d, s%d, 13' % (sBG[0], sW))
        g('s_add_u32 m0, s%d, %d' % (sBG[0], L_CONST + 4096 * hlf))
        if hlf == 1:
            g('v_addc_co_u32 %s, vcc, 0, %s, vcc' % (v(vPC + 1), v(vPC + 1)))
        for i in range(4):
            g('global_load_lds_dwordx4 %s, off offset:%d' % (v(vPC, 2), 1024 * i), tag='const')
            grp(asm, g)
            g = Asm()


def j_warmp(asm):
    g = Asm()
    g('s_mul_i32 s%d, s%d, 2816' % (sBG[1], sW))
    g('s_add_u32 s%d, s%d, s%d' % (sBG[1], sBG[1], sPB))
    for i in range(3):
        if i == 2:
            g('s_mov_b32 exec_hi, 0xffff')
        g('buffer_store_dwordx4 %s, %s, %s, s%d offen offset:%d sc1' % (v(vFILL, 4), v(vL16), srd(sWS), sBG[1], 1024 * i), tag='warmp')
        if i == 2:
            g('s_mov_b64 exec, -1')
        grp(asm, g)
        g = Asm()


HC = [0]


def j_hclr(asm, n):
    for i in range(HC[0], HC[0] + n):
        g = Asm()
        if i % 3 == 0 or i == HC[0]:
            g('s_lshl2_add_u32 s%d, s%d, s%d' % (sBG[1], sL, sW))
            g('s_mul_i32 s%d, s%d, 6144' % (sBG[1], sBG[1]))
            g('s_add_u32 s%d, s%d, %d' % (sBG[1], sBG[1], WS_H + 3072 * (i // 3)))
        g('buffer_store_dwordx4 %s, %s, %s, s%d offen offset:%d sc1' % (v(vFILL, 4), v(vL16), srd(sWS), sBG[1], 1024 * (i % 3)), tag='clrh')
        grp(asm, g)
    HC[0] += n


WFC = [0]


def j_wf(asm, n):
    for i in range(WFC[0], WFC[0] + n):
        g = Asm()
        g('s_lshl_b32 s%d, s%d, 12' % (sBG[1], sW))
        g('s_add_u32 m0, s%d, %d' % (sBG[1], L_GW + 1024 * i))
        g('s_mov_b32 s%d, %d' % (sBG[1], 32 * 5136 * i))
        g('buffer_load_dwordx4 %s, %s, s%d offen lds' % (v(vWD), srd(sWF_), sBG[1]), tag='wf')
        grp(asm, g)
    WFC[0] += n


def j_bias(asm):
    g = Asm()
    g('s_lshl_b32 s%d, s%d, 7' % (sBG[1], sJ))
    g('v_lshlrev_b32 %s, 3, %s' % (v(vb2), v(vN)))
    g('buffer_load_dwordx2 %s, %s, %s, s%d offen' % (v(vb2, 2), v(vb2), srd(sB2), sBG[1]))
    grp(asm, g)
    g = Asm()
    g('s_lshl_b32 s%d, s%d, 5' % (sBG[1], sJ))
    g('v_lshlrev_b32 %s, 3, %s' % (v(vb2 + 2), v(vC8)))
    g('buffer_load_dwordx2 %s, %s, %s, s%d offen offset:1024' % (v(vb2 + 2, 2), v(vb2 + 2), srd(sB2), sBG[1]))
    grp(asm, g)
    g = Asm()
    g('s_lshl2_add_u32 s%d, s%d, s%d' % (sBG[1], sJ1, sW))
    g('s_mul_i32 s%d, s%d, 96' % (sBG[1], sBG[1]))
    g('v_lshlrev_b32 %s, 3, %s' % (v(vb1 + 4), v(vG)))
    for c in range(3):
        g('buffer_load_dwordx2 %s, %s, %s, s%d offen offset:%d' % (v(vb1 + 2 * c, 2), v(vb1 + 4), srd(sB1), sBG[1], 32 * c))
        grp(asm, g)
        g = Asm()


W2C = [0]


def j_w2(asm, n):
    w2_loads(asm, W2C[0], W2C[0] + n)
    W2C[0] += n


WEIGHT = dict(wf=5, hclr=3, warmp=3, tw=2, tw1=2, tm=2, tw2=2)


def jobs(slot_name, weights=False):
    out = []
    for js in [x for x in CFG.get(slot_name, '').split(',') if x]:
        nm, _, n = js.partition(':')
        x = Asm()
        globals()['j_' + nm](x, *([int(n)] if n else []))
        out += [(y, WEIGHT.get(nm, 1)) if weights else y for y in x.l]
    return out


if not TBE:
    A.add(TB)
B = Asm()
if not OPT.get('trig0', 0):
    trig(B, vA8, False)
w1_addr(B, False)
B('v_mul_u32_u24 %s, 96, %s' % (v(vW1r), v(vQ)))
B('v_lshl_add_u32 %s, %s, 3, %s' % (v(vW1r), v(vC8), v(vW1r)))
B('v_add_u32 %s, s%d, %s' % (v(vW1r), sRING, v(vW1r)))
A.l += interleave(B, jobs('PUB'))
B = Asm()
vXF = [V.get(10, 'l'), V.get(10, 'l')]
for r in range(2):
    for j in range(5):
        lo, hi = (j, 4 + j) if j < 4 else (8, 9)
        B('v_lshlrev_b32 %s, 16, %s' % (v(vXF[r] + lo), v(vXR + 5 * r + j)))
        B('v_and_b32 %s, s%d, %s' % (v(vXF[r] + hi), sMASK, v(vXR + 5 * r + j)))
V.put(vXR, 10)
ln_stats(B, vXF)
vNn = [V.get(10), V.get(10)]
ln_apply(B, vNn, vXF)
A.l += interleave(B, jobs('PUB2'))
V.put(vPC, 2)
warm(A, ['pg1', 's0r0', 'pg2', 's0r2'])
stamp('ln1', lvl=2)
ACK = OPT.get('ack', 1)
if ACK & 1:
    A.wait_tag(['pub', 'const'])
if OPT.setdefault('wj', 1):
    lb = opt('s_cmp_lt_u32 s%d, 20' % sIDX)
    A('s_waitcnt vmcnt(0)')
    if OPT['wj'] > 1:
        A('s_sleep %d' % OPT['wj'])
    opt_end(lb)
if ACK & 1:
    barrier()
stamp('b0b', lvl=3)


def mod_gather_loads(asm, d, i0, i1):
    for i in range(i0, i1):
        if i < 2:
            asm('s_mov_b32 s%d, %d' % (sT[5], WS_MODX + 10240 * i))
        for kh in range(2):
            asm('buffer_load_dwordx4 %s, %s, %s, s%d offen offset:%d sc1' % (v(d + 8 * i + 4 * kh, 4), v(vMG), srd(sWS), sT[5] if i < 2 else sADD + 1, 128 * kh))


vMD = V.get(24)
mod_gather_loads(A, vMD, 0, 2)
lb = opt('s_cmp_ge_u32 s%d, 2' % sW)
mod_gather_loads(A, vMD, 2, 3)
opt_end(lb)
K, KA = {}, {}
B = Asm()
if not ACK & 1:
    B.wait_tag('const')
    B('s_barrier')
na, nb = 0, 0
ca_ = V.get(1)
B('v_add_u32 %s, %d, %s' % (v(ca_), L_CONST, v(vL16)))
for i, n in enumerate(TN):
    if n.startswith('TW'):
        K[n] = V.get(4, 'l' if n.startswith('TW3') else 'mh')
        B('ds_read_b128 %s, %s offset:%d' % (v(K[n], 4), v(ca_), 1024 * i))
    else:
        if i < 10:
            KA[n] = a(96 + 4 * na, 4)
            na += 1
        else:
            KA[n] = a(192 + 4 * nb, 4)
            nb += 1
        B('ds_read_b128 %s, %s offset:%d' % (KA[n], v(ca_), 1024 * i))
assert 192 + 4 * nb <= 256
BC, B = B, Asm()
vAF = V.get(16)
for i in range(4):
    B('v_mov_b32 %s, 0' % v(vAF + 4 * i + 3))
vEXlo, vEXhi = [V.get(1), V.get(1)], [V.get(1), V.get(1)]
vEXa, vEXb = V.get(1), V.get(1)
B('v_mul_u32_u24 %s, 84, %s' % (v(vEXa), v(vC8)))
B('v_lshrrev_b32 %s, 2, %s' % (v(vt), v(vN)))
B('v_add_u32 %s, %s, %s' % (v(vEXa), v(vEXa), v(vt)))
B('v_sub_u32 %s, 0, %s' % (v(vt), v(vN)))
B('v_and_b32 %s, 3, %s' % (v(vt + 1), v(vt)))
B('v_ashrrev_i32 %s, 2, %s' % (v(vt), v(vt)))
B('v_mul_u32_u24 %s, 84, %s' % (v(vEXb), v(vt + 1)))
B('v_add_u32 %s, %s, %s' % (v(vEXb), v(vEXb), v(vt)))


def ex_addr(asm, lo, hi, gs, hb):
    asm('v_mul_u32_u24 %s, %d, %s' % (v(vt), gs, v(vG)))
    asm('s_add_u32 s%d, s%d, %d' % (sT[0], sRING, L_EX))
    asm('v_add_u32 %s, %s, %s' % (v(vt + 1), v(vEXa), v(vt)))
    asm('v_lshl_add_u32 %s, %s, 2, s%d' % (v(lo[0]), v(vt + 1), sT[0]))
    asm('v_add_u32 %s, 1536, %s' % (v(lo[1]), v(lo[0])))
    asm('s_add_u32 s%d, s%d, %d' % (sT[0], sT[0], 4 * hb))
    asm('v_sub_u32 %s, %s, %s' % (v(vt + 1), v(vEXb), v(vt)))
    asm('v_lshl_add_u32 %s, %s, 2, s%d' % (v(hi[0]), v(vt + 1), sT[0]))
    asm('v_add_u32 %s, 1536, %s' % (v(hi[1]), v(hi[0])))


ex_addr(B, vEXlo, vEXhi, 10, 35)
vEX8 = V.get(4, 'mh', 1)
B('v_mul_u32_u24 %s, 6144, %s' % (v(vt), v(vH)))
B('v_cmp_gt_u32 vcc, 84, %s' % v(vKW))
B('v_lshl_add_u32 %s, %s, 2, %s' % (v(vt), v(vKW), v(vt)))
B('v_mov_b32 %s, 336' % v(vt + 1))
B('v_add_u32 %s, 1008, %s' % (v(vEX8 + 3), v(vt)))
B('v_cndmask_b32 %s, 0, %s, vcc' % (v(vt + 1), v(vt + 1)))
for c in (2, 1, 0):
    B('v_sub_u32 %s, %s, %s' % (v(vEX8 + c), v(vEX8 + c + 1), v(vt + 1)))
EXO = L_EX // 256
vP = V.get(1)
B('v_mul_u32_u24 %s, 5632, %s' % (v(vP), v(vH)))
B('v_cmp_gt_u32 vcc, 88, %s' % v(vKW))
B('v_lshl_add_u32 %s, %s, 4, %s' % (v(vP), v(vKW), v(vP)))
B('v_lshlrev_b32 %s, 3, %s' % (v(vt), v(vC8)))
B('v_cndmask_b32 %s, %s, %s, vcc' % (v(vP), v(vOOB), v(vP)))
vTG = V.get(4, 'mh', 1)


def tag_masks(asm, dst, sreg):
    asm('v_lshrrev_b32_e64 %s, %s, s%d' % (v(vt), v(vt), sreg))
    asm('v_and_b32 %s, 0xff, %s' % (v(vt), v(vt)))
    asm('v_lshl_or_b32 %s, %s, 15, %s' % (v(vt), v(vt), v(vt)))
    for d in range(4):
        asm('v_lshlrev_b32 %s, %d, %s' % (v(dst + d), 14 - 2 * d, v(vt)))
        asm('v_and_b32 %s, s%d, %s' % (v(dst + d), sTM, v(dst + d)))


tag_masks(B, vTG, sNONCE)
g = Asm()
g('s_mul_i32 s%d, s%d, 642' % (sT[0], sXCD))
g('s_lshl_b32 s%d, s%d, 5' % (sT[1], sIDX))
g('s_min_u32 s%d, s%d, 610' % (sT[1], sT[1]))
g('s_add_u32 s%d, s%d, s%d' % (sT[0], sT[0], sT[1]))
g('s_and_b32 s%d, s%d, 1' % (sT[1], sW))
g('s_mul_i32 s%d, s%d, %d' % (sT[1], sT[1], 128 * 5136))
g('s_add_u32 s%d, s%d, s%d' % (sT[0], sT[0], sT[1]))
g('s_cmp_lt_u32 s%d, 21' % sIDX)
g('s_cselect_b32 s%d, s%d, %d' % (sT[0], sT[0], 0x40000000))
grp(B, g)
B('v_lshrrev_b32 %s, 1, %s' % (v(vWD), v(vLane)))
B('v_mul_u32_u24 %s, 5136, %s' % (v(vWD), v(vWD)))
B('v_and_b32 %s, 1, %s' % (v(vt), v(vLane)))
B('v_lshl_add_u32 %s, %s, 4, s%d' % (v(vt), v(vt), sT[0]))
B('v_add_u32 %s, %s, %s' % (v(vWD), v(vWD), v(vt)))
A.l += interleave(BC.l + B.l if ACK & 1 else B.l + BC.l, jobs('G0'))
stamp('s0_wait', lvl=3)
V.put(ca_)


def mod_finish(i0, i1):
    verify(A, lambda c: mod_gather_loads(c, vMD, i0, i1), lambda c: check_tags(c, [vMD + 4 * k + 3 for k in range(2 * i0, 2 * i1)], tmp), name='s0r%d' % i0)
    for i in range(i0, i1):
        b = vMD + 8 * i
        A('v_add_f32 %s, %s, %s' % (v(b), v(b), v(b + 4)))
        A('v_add_f32 %s, %s, %s' % (v(b + 2), v(b + 2), v(b + 6)))
    for i in range(i0, i1):
        b = vMD + 8 * i
        A('v_cvt_pk_bf16_f32 %s, %s, %s' % (v(b), v(b), v(b + 2)))
    for i in range(i0, i1):
        b = vMD + 8 * i
        A('v_and_b32 %s, s%d, %s' % (v(b + 1), sMASK, v(b)))
        A('v_lshlrev_b32 %s, 16, %s' % (v(b), v(b)))
        if i:
            ad_ = '1.0' if i == 1 else 's%d' % sADD
            A('v_add_f32 %s, %s, %s' % (v(b + 1), ad_, v(b + 1)))
            A('v_add_f32 %s, %s, %s' % (v(b), ad_, v(b)))
        o = L_MOD // 256 + [0, 10, 4][i]
        A('ds_write2st64_b32 %s, %s, %s offset0:%d offset1:%d' % (v(vMA + (i == 2)), v(b), v(b + 1), o, o + 5))


mod_finish(0, 2)
lb = opt('s_cmp_ge_u32 s%d, 2' % sW)
mod_finish(2, 3)
opt_end(lb)
V.put(vMD, 24)
V.put(vMG)
V.put(vMA, 2)
barrier()
W1S['lim'] = 20
stamp('s0_done', lvl=3)
GAP = OPT.get('gap', 72)
P = Asm()
vM0, vM1 = V.get(10), V.get(10)
read_mod(P, vM1, 1, vL16, vL4)
read_mod(P, vM0, 0, vL16, vL4)
for r in range(2):
    for p in range(5):
        P('v_pk_fma_f32 %s, %s, %s, %s' % (v(vNn[r] + 2 * p, 2), v(vNn[r] + 2 * p, 2), v(vM1 + 2 * p, 2), v(vM0 + 2 * p, 2)))
V.put(vM0, 10)
V.put(vM1, 10)
vD = [V.get(16), V.get(16)]
RT = [(r, t_) for r in range(2) for t_ in range(2)]
cv, mf = {}, {}
for r, t_ in RT:
    f, h, d = vAF + 8 * r + 4 * t_, vNn[r], vD[r] + 8 * t_
    cv[r, t_], mf[r, t_] = Asm(), Asm()
    cv[r, t_]('v_cvt_pk_bf16_f32 %s, %s, %s' % (v(f), v(h + 4 * t_), v(h + 4 * t_ + 1)))
    cv[r, t_]('v_cvt_pk_bf16_f32 %s, %s, %s' % (v(f + 1), v(h + 4 * t_ + 2), v(h + 4 * t_ + 3)))
    cv[r, t_]('v_cvt_pk_bf16_f32 %s, %s, %s' % (v(f + 2), v(h + 8 + t_), v(h + 8 + t_)))
    mf[r, t_]('%s %s, %s, %s, 0' % (MF16, v(d, 4), v(f, 4), KA['C1c']))
    mf[r, t_]('%s %s, %s, %s, 0' % (MF16, v(d + 4, 4), v(f, 4), KA['C1s']))
allc = sum((cv[k].l for k in RT), [])
P.l += allc[:5] + under(sum((mf[k].l for k in RT), []), allc[5:])
V.put(vNn[0], 10)
V.put(vNn[1], 10)
tts = [V.get(8) for _ in range(4)]
vBn = [V.get(4), V.get(4)]
for r, t_ in RT:
    d, tt = vD[r] + 8 * t_, tts[2 * r + t_]
    cmul(P, d, d + 4, K['TW1c%d' % t_], K['TW1s%d' % t_], tt, tt + 4, -1)
C, Mx, O = Asm(), Asm(), [Asm(), Asm()]
for r in range(2):
    vB, vE, d = vAF + 8 * r, tts[2 * r], vD[r]
    for t_ in range(2):
        tt = tts[2 * r + t_]
        for i in range(4):
            C('v_cvt_pk_bf16_f32 %s, %s, %s' % (v(vB + 4 * t_ + i), v(tt + i), v(tt + 4 + i)))
    for i in range(4):
        C('v_cvt_pk_bf16_f32 %s, -%s, -%s' % (v(vBn[r] + i), v(tt + i), v(tt + 4 + i)))
    for mt in range(2):
        Mx('%s %s, %s, %s, 0' % (MF16, v(vE + 4 * mt, 4), KA['A2_%d0' % mt], v(vB, 4)))
    for mt in range(2):
        Mx('%s %s, %s, %s, %s' % (MF16, v(d + 4 * mt, 4), KA['A2_%d1' % mt], v(vB + 4, 4), v(vE + 4 * mt, 4)))
    for mt in range(2):
        Mx('%s %s, %s, %s, %s' % (MF16, v(d + 8 + 4 * mt, 4), KA['A2_%d1' % mt], v(vBn[r], 4), v(vE + 4 * mt, 4)))
    o = tts[2 * r + 1]
    for hi in range(2):
        for mt in range(2):
            for e in range(2):
                O[r]('v_cvt_pk_bf16_f32 %s, %s, %s%s' % (v(o + 4 * hi + 2 * mt + e), v(d + 8 * hi + 4 * mt + 2 * e), '-' if hi else '', v(d + 8 * hi + 4 * mt + 2 * e + 1)))
    for mt in range(2):
        O[r]('ds_write2_b32 %s, %s, %s offset0:%d offset1:%d' % (v(vEXlo[r]), v(o + 2 * mt), v(o + 2 * mt + 1), 40 * mt, 40 * mt + 5))
    for mt in range(2):
        O[r]('ds_write2_b32 %s, %s, %s offset0:%d offset1:%d' % (v(vEXhi[r]), v(o + 4 + 2 * mt), v(o + 4 + 2 * mt + 1), 45 - 40 * mt, 40 - 40 * mt))
P.l += C.l[:6] + under(Mx, C.l[6:] + O[0].l) + O[1].l
for x, n in [(x, 8) for x in tts] + [(x, 4) for x in vBn] + [(x, 16) for x in vD] + [(x, 1) for x in vEXlo + vEXhi]:
    V.put(x, n)
for n in TN[:10]:
    if n in K:
        V.put(K[n], 4)
A.l += schedule(P, jobs('P1', True), 30, GAP, 'P1a', True)
A.wait_tag('warmp')
barrier()
stamp('b1', lvl=8)
lb = opt('s_cmp_eq_u32 s%d, 3' % sW)
vD8 = [V.get(16) for _ in range(4)]
vB = V.get(16)
P = Asm()
for c in range(4):
    P('ds_read2st64_b32 %s, %s offset0:%d offset1:%d' % (v(vB + 4 * c, 2), v(vEX8 + c), EXO, EXO + 6))
    P('ds_read2st64_b32 %s, %s offset0:%d offset1:%d' % (v(vB + 4 * c + 2, 2), v(vEX8 + c), EXO + 12, EXO + 18))
P('s_add_u32 s%d, s%d, %d' % (sT[1], sPB, 2816))
for c in range(4):
    P('%s %s, %s, %s, 0' % (MF32, v(vD8[c], 16), v(vA8, 4), v(vB + 4 * c, 4)))
for c in range(4):
    for q in range(4):
        P('v_cvt_pk_bf16_f32 %s, %s, %s' % (v(vAF + 4 * q + c), v(vD8[c] + 2 * q), v(vD8[c] + 2 * q + 1)))
        P('v_bfi_b32 %s, s%d, %s, %s' % (v(vAF + 4 * q + c), sTM, v(vTG + c), v(vAF + 4 * q + c)))
for q in range(4):
    P('buffer_store_dwordx4 %s, %s, %s, s%d offen offset:%d sc1' % (v(vAF + 4 * q, 4), v(vP), srd(sWS), sT[1] if q > 1 else sPB, 1408 * (q & 1)), tag='pst')
A.l += schedule(P, verbose='P1b')
A('s_nop 1')
opt_end(lb)
for x in vD8:
    V.put(x, 16)
V.put(vB, 16)
V.put(vA8, 4)
stamp('p1_done', lvl=9)
V.put(vAF, 16)
warm(A, ['s1r', 'pg3', 's2r', 'm2a+pg4'])
SAVE = (dict(W1S), list(HC), list(WFC))
lfar, lback = out_of_line('s_cmp_ge_u32 s%d, 21' % sIDX)
A.opt_begin()
vPG, vGR, vZB, vWR = V.get(1), V.get(1), V.get(1), V.get(1)
B = Asm()
B('s_mul_i32 s%d, s%d, 1408' % (sT[1], sXCD))
B('s_lshl_b32 s%d, s%d, 6' % (sT[0], sIDX))
B('s_add_u32 s%d, s%d, s%d' % (sPG, sT[0], sT[1]))
B('s_lshl_b32 s%d, s%d, 6' % (sT[0], sW))
B('v_add_u32 %s, s%d, %s' % (v(vPG), sT[0], v(vQ)))
B('v_mul_u32_u24 %s, %d, %s' % (v(vPG), PBLK, v(vPG)))
B('v_lshl_add_u32 %s, %s, 4, %s' % (v(vPG), v(vC8), v(vPG)))
B('v_xor_b32 %s, %s, %s' % (v(vt), v(vC8), v(vG)))
B('s_lshl_b32 s%d, s%d, 12' % (sT[0], sW))
B('v_lshl_add_u32 %s, %s, 4, s%d' % (v(vZB), v(vt), sT[0]))
B('v_lshl_add_u32 %s, %s, 6, %s' % (v(vZB), v(vQ), v(vZB)))
B('v_lshrrev_b32 %s, 2, %s' % (v(vt), v(vN)))
B('v_xor_b32 %s, s%d, %s' % (v(vt), sW, v(vt)))
B('v_lshlrev_b32 %s, 4, %s' % (v(vt), v(vt)))
B('v_lshl_add_u32 %s, %s, 6, %s' % (v(vt), v(vN), v(vt)))
B('v_lshl_add_u32 %s, %s, 12, %s' % (v(vGR), v(vG), v(vt)))
g = Asm()
g('s_lshl_b32 s%d, s%d, 3' % (sT[1], sW))
g('s_cmp_eq_u32 s%d, 20' % sIDX)
g('s_cselect_b32 s%d, 30, s%d' % (sT[0], sT[1]))
grp(B, g)
B('v_lshl_add_u32 %s, %s, 6, %s' % (v(vWR), v(vG), v(vN)))
B('v_lshl_add_u32 %s, %s, 5, s%d' % (v(vWR), v(vWR), sT[0]))
vTW = V.get(4, 'mh', 1)
B('v_mov_b32 %s, s%d' % (v(vt), sT[1]))
tag_masks(B, vTW, sTAGZ)
trig(B, vA8i, True)
q_pub = W1S['iss']
A.l += interleave(B, jobs('A1'))


def p_gather(asm, d):
    for i in range(4):
        asm('s_add_u32 s%d, s%d, %d' % (sT[5], sPG, WS_P + i * 16 * PBLK))
        asm('buffer_load_dwordx4 %s, %s, %s, s%d offen sc1' % (v(d + 4 * i, 4), v(vPG), srd(sWS), sT[5]))


vPD, vWG, vWr, vWi = V.get(16), V.get(16), V.get(16), V.get(16)
WFEARLY = 'wf' not in CFG.get('A1', '') and ACK & 2
if ACK & 2:
    A.wait_tag(['pst', 'wf'] if WFEARLY else 'pst')
A('s_barrier')
stamp('s1_acked', lvl=9)
p_gather(A, vPD)
q_g = W1S['iss']
assert WFC[0] == 4
if not WFEARLY:
    A.wait_tag('wf')
    A('s_barrier')
for k in range(2):
    for i in range(4):
        A('ds_read_b64 %s, %s offset:%d' % (v(vWG + 8 * k + 2 * i, 2), v(vWR), L_GW + 8192 * k + 512 * i))
B = Asm()
for k, dst in enumerate((vWr, vWi)):
    for i in range(4):
        for p in range(2):
            B('v_lshlrev_b32 %s, 16, %s' % (v(dst + 8 * p + i), v(vWG + 8 * k + 2 * i + p)))
            B('v_and_b32 %s, s%d, %s' % (v(dst + 8 * p + 4 + i), sMASK, v(vWG + 8 * k + 2 * i + p)))
A.l += interleave(B, jobs('G1'))
w1_drain(A, q_g)
A.l += jobs('G1b')
stamp('s1_wait', lvl=8)
verify(A, lambda c: p_gather(c, vPD), lambda c: check_bits(c, range(vPD, vPD + 16), vTG, tmp), False, 's1r')
stamp('s1_ok', lvl=8)
for i in range(4):
    A('ds_write_b128 %s, %s offset:%d' % (v(vZB), v(vPD + 4 * i, 4), L_GP + 1024 * i))
barrier()
stamp('s1_done', lvl=9)
P = Asm()
for i in range(4):
    P('ds_read_b128 %s, %s offset:%d' % (v(vPD + 4 * i, 4), v(vGR), L_GP + 1024 * i))
X = Asm()
for i in range(4):
    for c in range(i + 1, 4):
        X('v_swap_b32 %s, %s' % (v(vPD + 4 * i + c), v(vPD + 4 * c + i)))
vD = [V.get(8) for _ in range(4)]
tts = [vWG, vWG + 8, V.get(8), V.get(8)]
TWc, TWs = K['TW2c'], K['TW2s']


def st(stage):
    m = Asm()
    for c in range(4):
        d, x = vD[c], v(vPD + 4 * c, 4)
        fr, fi = KA['Fre'], KA['Fim']
        ops = [((x, fr), (x, fi)), ((fr, x), (fi, x)), ((x, fi), (x, fr)), ((fi, x), (fr, x))][stage]
        for k in range(2):
            m('%s %s, %s, %s, 0' % (MF16, v(d + 4 * k, 4), ops[k][0], ops[k][1]))
    return m


P.l += X.l[:5] + under(st(0), X.l[5:])
vO = vWr
for stage in range(3):
    C = Asm()
    for c in range(4):
        d, tt = vD[c], tts[c]
        if stage == 0:
            cmul(P, d, d + 4, TWc, TWs, tt, tt + 4, -1)
        elif stage == 1:
            cmul(P, d, d + 4, vWr + 4 * c, vWi + 4 * c, tt, tt + 4, +1)
        else:
            cmul(P, d, d + 4, TWc, TWs, tt, tt + 4, +1)
        for i in range(4):
            lo, hi = (tt + i, tt + 4 + i) if stage == 0 else (tt + 4 + i, tt + i)
            C('v_cvt_pk_bf16_f32 %s, %s, %s' % (v(vPD + 4 * c + i), v(lo), v(hi)))
    if stage == 2:
        for c in range(4):
            for i in range(4):
                C('v_cvt_pk_bf16_f32 %s, %s, %s' % (v(vO + 4 * i + c), v(vD[c] + i), v(vD[c] + 4 + i)))
            for i in range(4):
                C('v_bfi_b32 %s, s%d, %s, %s' % (v(vO + 4 * i + c), sTM, v(vTW + c), v(vO + 4 * i + c)))
    P.l += C.l[:6] + under(st(stage + 1), C.l[6:])
for i in range(4):
    P('ds_write_b128 %s, %s offset:%d' % (v(vGR), v(vO + 4 * i, 4), L_GW + 1024 * i))
A.l += schedule(P, jobs('P2', True), 20, GAP, 'P2', True)
HEARLY = HC[0] == 6
if HEARLY:
    A.wait_tag('clrh')
barrier()
stamp('bd', lvl=8)
for i in range(4):
    A('ds_read_b128 %s, %s offset:%d' % (v(vPD + 4 * i, 4), v(vZB), L_GW + 1024 * i))
for i in range(4):
    A('s_add_u32 s%d, s%d, %d' % (sT[2 + i], sPG, WS_P + i * 16 * PBLK))
for i in range(4):
    A('buffer_store_dwordx4 %s, %s, %s, s%d offen sc1' % (v(vPD + 4 * i, 4), v(vPG), srd(sWS), sT[2 + i]), tag='zst')
stamp('p2_done', lvl=9)
w1_drain(A, max(W1S['drn'], W1S['iss'] - OPT.get('lag', 2)))
for x, n in [(x, 8) for x in vD + tts[2:]] + [(x, 16) for x in (vWG, vPD, vWr, vWi)] + [(vTW, 4)] + [(x, 1) for x in (vPG, vWR, vGR, vZB)]:
    V.put(x, n)
A.opt_end()
for n in TN[10:14]:
    if n in K:
        V.put(K[n], 4)
END = (dict(W1S), list(HC))
W1S.update(SAVE[0])
HC[:] = SAVE[1]
A.far_begin(lfar)
A.wait_tag('wf')
barrier()
x_, t, ad = V.get(4), V.get(4), V.get(4)
A('s_mul_i32 s%d, s%d, 320' % (sT[0], sW))
A('v_add_u32 %s, s%d, %s' % (v(ad + 1), sT[0], v(vL8)))
A('buffer_load_dwordx2 %s, %s, %s, 0 offen' % (v(t, 2), v(ad + 1), srd(sC)))
A('s_lshl_b32 s%d, s%d, 6' % (sT[2], sNU))
A('s_mul_i32 s%d, s%d, %d' % (sT[3], sW, 160 * 7680))
A('s_add_u32 s%d, s%d, s%d' % (sT[2], sT[2], sT[3]))
A('s_add_u32 s%d, s%d, 2560' % (sT[2], sT[2]))
A('v_mul_u32_u24 %s, 7680, %s' % (v(ad), v(vQ)))
A('v_lshl_add_u32 %s, %s, 4, %s' % (v(ad), v(vC8), v(ad)))
A('s_mul_i32 s%d, s%d, 10240' % (sT[3], sW))
for b in range(10):
    A('s_add_u32 m0, s%d, %d' % (sT[3], L_EX + 1024 * b))
    A('s_add_u32 s%d, s%d, %d' % (sT[4], sT[2], b * 16 * 7680))
    A('buffer_load_dwordx4 %s, %s, s%d offen lds' % (v(ad), srd(sWM), sT[4]), tag='wm2')
A('v_add_u32 %s, s%d, %s' % (v(ad), sT[3], v(vT64)))
A('s_add_u32 s%d, s%d, %d' % (sT[0], sT[0], L_SILU))
A('v_lshl_add_u32 %s, %s, 3, s%d' % (v(ad + 2), v(vG), sT[0]))
A('s_lshl_b32 s%d, s%d, 7' % (sT[0], sW))
A('v_lshl_add_u32 %s, %s, 4, s%d' % (v(ad + 3), v(vG), sT[0]))
A('s_mul_i32 s%d, s%d, 205' % (sT[1], sNU))
A('s_lshr_b32 s%d, s%d, 12' % (sT[1], sT[1]))
A('s_cmp_eq_u32 s%d, 2' % sT[1])
A('s_cselect_b32 s%d, 1.0, 0' % sCOL)
A('s_mul_i32 s%d, s%d, 20' % (sT[2], sT[1]))
A('s_sub_u32 s%d, s%d, s%d' % (sT[2], sNU, sT[2]))
A('s_lshl4_add_u32 s%d, s%d, s%d' % (sT[3], sT[1], sT[2]))
A('s_lshl2_add_u32 s%d, s%d, s%d' % (sT[4], sT[1], sT[2]))
A('s_add_u32 s%d, s%d, 48' % (sT[4], sT[4]))
A('s_cmp_lt_u32 s%d, 16' % sT[2])
A('s_cselect_b32 s%d, s%d, s%d' % (sT[3], sT[3], sT[4]))
A('s_add_u32 s%d, s%d, 80' % (sT[4], sXCD))
A('s_cmp_ge_u32 s%d, 22' % sIDX)
A('s_cselect_b32 s%d, s%d, s%d' % (sT[1], sT[3], sT[4]))
A('s_lshl_b32 s%d, s%d, 7' % (sT[1], sT[1]))
A('s_add_u32 s%d, s%d, %d' % (sPG, sT[1], WS_MOD2))
trig(A, vA8i, True)
w1_drain(A, W1S['iss'])


def ii_rest():
    j_hclr(A, END[1][0] - HC[0])
    if any('bias' in CFG.get(x, '') for x in ('A1', 'G1', 'G1b', 'P2')):
        j_bias(A)


if OPT.get('w2at', 1) == 1:
    if W1S['iss'] > 6:
        A('s_barrier')
    w2_reformat(L_RING + 2 * 12288, 'w2st', ii_rest)
    A.wait_lds()
else:
    ii_rest()
for p in range(2):
    A('v_lshlrev_b32 %s, 16, %s' % (v(x_ + 2 * p), v(t + p)))
    A('v_and_b32 %s, s%d, %s' % (v(x_ + 2 * p + 1), sMASK, v(t + p)))
silu(A, x_, t, 4)
for p in range(2):
    A('v_cvt_pk_bf16_f32 %s, %s, %s' % (v(x_ + p), v(x_ + 2 * p), v(x_ + 2 * p + 1)))
A('s_mov_b32 exec_hi, 0xff')
A('ds_write_b64 %s, %s offset:%d' % (v(ad + 1), v(x_, 2), L_SILU))
A('s_mov_b64 exec, -1')
f, sb, d = [V.get(8) for _ in range(5)], V.get(20), V.get(8)
for k in range(5):
    A('ds_read2_b64 %s, %s offset0:%d offset1:%d' % (v(sb + 4 * k, 4), v(ad + 2), 8 * k, 8 * k + 4))
A.wait_tag('wm2')
for k in range(5):
    for tt_ in range(2):
        for rd in range(2):
            A('ds_read_b64_tr_b16 %s, %s offset:%d' % (v(f[k] + 4 * tt_ + 2 * rd, 2), v(ad), L_EX + 2048 * k + 1024 * rd + 32 * tt_))
for k in range(5):
    for tt_ in range(2):
        A('%s %s, %s, %s, %s' % (MF16, v(d + 4 * tt_, 4), v(f[k] + 4 * tt_, 4), v(sb + 4 * k, 4), v(d + 4 * tt_, 4) if k else '0'))
for tt_ in range(2):
    A('ds_write_b128 %s, %s offset:%d' % (v(ad + 3), v(d + 4 * tt_, 4), L_RED + 64 * tt_))
A.wait_tag(['clrh', 'w2st'] if HEARLY else 'w2st')
barrier()
lb = opt('s_cmp_lg_u32 s%d, 0' % sW)
for i in range(4):
    A('ds_read_b128 %s, %s offset:%d' % (v(sb + 4 * i, 4), v(vL16), L_RED + 128 * i))
A('s_mov_b64 exec, 0xff')
for p in (0, 2):
    A('v_pk_add_f32 %s, %s, %s' % (v(sb + p, 2), v(sb + p, 2), v(sb + 4 + p, 2)))
    A('v_pk_add_f32 %s, %s, %s' % (v(sb + 8 + p, 2), v(sb + 8 + p, 2), v(sb + 12 + p, 2)))
    A('v_pk_add_f32 %s, %s, %s' % (v(sb + p, 2), v(sb + p, 2), v(sb + 8 + p, 2)))
    A('v_cvt_pk_bf16_f32 %s, %s, %s' % (v(sb + p), v(sb + p), v(sb + p + 1)))
    A('v_and_b32 %s, s%d, %s' % (v(sb + p + 1), sMASK, v(sb + p)))
    A('v_lshlrev_b32 %s, 16, %s' % (v(sb + p), v(sb + p)))
    A('v_add_f32 %s, s%d, %s' % (v(sb + p + 1), sCOL, v(sb + p + 1)))
    A('v_add_f32 %s, s%d, %s' % (v(sb + p), sCOL, v(sb + p)))
    A('v_cvt_pk_bf16_f32 %s, %s, %s' % (v(sb + p), v(sb + p), v(sb + p + 1)))
    A('v_mov_b32 %s, s%d' % (v(sb + p + 1), sNONCE))
A('buffer_store_dwordx4 %s, %s, %s, s%d offen sc1' % (v(sb, 4), v(vL16), srd(sWS), sPG), tag='zst')
A('s_mov_b64 exec, -1')
A('s_nop 1')
opt_end(lb)
stamp('p2_done', lvl=9, again=True)
j_w1(A, min(8, END[0]['iss'] - W1S['iss']))
if W1S['iss'] < END[0]['iss']:
    w1_drain(A, min(W1S['iss'], END[0]['drn']))
    j_w1(A, END[0]['iss'] - W1S['iss'])
w1_drain(A, END[0]['drn'])
assert W1S == END[0], (W1S, END[0])
for x, n in [(x_, 4), (t, 4), (ad, 4), (sb, 20), (d, 8)] + [(x, 8) for x in f]:
    V.put(x, n)
A.far_end(lback)
for x, n in ((vT64, 1), (vWD, 1), (vTch, 5), (vJunk, 3)):
    V.put(x, n)
vZ, vTZ = vP, vTG


def z_gather(asm, d):
    asm('s_add_u32 s%d, s%d, 2816' % (sT[5], sPB))
    for q in range(4):
        asm('buffer_load_dwordx4 %s, %s, %s, s%d offen offset:%d sc1' % (v(d + 4 * q, 4), v(vZ), srd(sWS), sT[5] if q > 1 else sPB, 1408 * (q & 1)))


def mod2_gather(asm):
    for i in range(11):
        if i % 4 == 0:
            asm('s_mov_b32 s%d, %d' % (sT[5], WS_MOD2 + 1024 * i))
        asm('buffer_load_dwordx4 %s, %s, %s, s%d offen offset:%d sc1' % (v(vMD[i], 4), v(vL16), srd(sWS), sT[5], 1024 * (i % 4)))


vD8 = [V.get(16) for _ in range(4)]
vZD = V.get(16)
vMD = [vD8[i // 4] + 4 * (i % 4) for i in range(11)]
vMA = vD8[3]
lfar, lback = out_of_line('s_cmp_eq_u32 s%d, 3' % sW)
A.far_begin(lfar)
pad(A, 'm2a')
mod2_gather(A)
A('v_lshlrev_b32 %s, 5, %s' % (v(vMA), v(vKD)))
A('v_lshl_add_u32 %s, %s, 2, %s' % (v(vMA), v(vH), v(vMA)))
for k, o in ((1, 16), (2, 8), (3, 24)):
    A('v_add_u32 %s, %d, %s' % (v(vMA + k), o, v(vMA)))
A('v_mul_u32_u24 %s, 2560, %s' % (v(vMA + 4), v(vH)))
A('v_lshl_add_u32 %s, %s, 3, %s' % (v(vMA + 4), v(vKD), v(vMA + 4)))
A('v_add_u32 %s, 4, %s' % (v(vMA + 5), v(vMA + 4)))
A.far_end(lback)
B = Asm()
vZ, vTZ = vP, vTG
B('v_lshlrev_b32 %s, 3, %s' % (v(vt), v(vC8)))
tag_masks(B, vTZ, sTAGZ)
g = Asm()
g('v_cmp_gt_u32 vcc, 84, %s' % v(vKW))
g('s_mul_i32 s%d, s%d, 2560' % (sT[0], sW))
g('s_add_u32 s%d, s%d, s%d' % (sYX, sPB, sT[0]))
g('v_cndmask_b32 %s, %s, %s, vcc' % (v(vZ), v(vOOB), v(vZ)))
for d in range(4):
    g('v_cndmask_b32 %s, 0, %s, vcc' % (v(vTZ + d), v(vTZ + d)))
grp(B, g)
V.put(vKW)
vU0, vU1 = [V.get(1, 'h'), V.get(1, 'h')], [V.get(1, 'h'), V.get(1, 'h')]
ex_addr(B, vU0, vU1, 20, 65)
V.put(vEXa)
V.put(vEXb)
sHS, sW2F = sPG, sZS
B('s_mul_i32 s%d, s%d, 196608' % (sT[0], sG1))
B('s_mul_i32 s%d, s%d, 6144' % (sT[1], sJ1))
B('s_add_u32 s%d, s%d, s%d' % (sHS, sT[0], sT[1]))
B('s_add_u32 s%d, s%d, %d' % (sHS, sHS, WS_H))
B('s_lshl2_add_u32 s%d, s%d, s%d' % (sT[0], sJ, sW))
B('s_mul_i32 s%d, s%d, 61440' % (sW2F, sT[0]))
B('s_add_u32 s%d, s%d, %d' % (sW2F, sW2F, WS_W2F))
sROT = [3, 6, 7, 50, 71, 72]
sHL = sTAU
B('s_lshl4_add_u32 s%d, s%d, s%d' % (sT[0], sG, sW))
B('s_mul_i32 s%d, s%d, 12288' % (sHL, sT[0]))
B('s_add_u32 s%d, s%d, %d' % (sHL, sHL, WS_H))
B('s_mul_i32 s%d, s%d, 5' % (sT[0], sHL))
B('s_sub_u32 s%d, s%d, s%d' % (sW2F, sW2F, sT[0]))
B('s_and_b32 s%d, s%d, %d' % (sT[0], sG, OPT.get('rot', 0)))
for k in range(6):
    g = Asm()
    if k:
        g('s_add_u32 s%d, s%d, 1' % (sT[0], sT[0]))
    g('s_cmp_ge_u32 s%d, 6' % sT[0])
    g('s_cselect_b32 s%d, 6, 0' % sT[1])
    g('s_sub_u32 s%d, s%d, s%d' % (sT[0], sT[0], sT[1]))
    g('s_lshl_b32 s%d, s%d, 11' % (sT[1], sT[0]))
    g('s_add_u32 s%d, s%d, s%d' % (sROT[k], sT[1], sHL))
    grp(B, g)
A.l += interleave(B, jobs('A2'))


if ACK & 4:
    A.wait_tag('zst')
if OPT.get('b2b', 1):
    barrier()
stamp('s2_acked', lvl=9)
lfar, lback = out_of_line('s_cmp_eq_u32 s%d, 3' % sW)
A.opt_begin()
z_gather(A, vZD)
A.opt_end()
A.far_begin(lfar)
verify(A, mod2_gather, lambda c: check_tags(c, [x + 3 for x in vMD], tmp))
for i in range(10):
    for k in range(2):
        b = vMD[i] + 2 * k
        A('v_and_b32 %s, s%d, %s' % (v(b + 1), sMASK, v(b)))
        A('v_lshlrev_b32 %s, 16, %s' % (v(b), v(b)))
    for k in range(2):
        b = vMD[i] + 2 * k
        ad_, o = (vMA + 2 * (i & 1) + k, 10 * (2 + i // 2)) if i < 8 else (vMA + 4 + k, 10 * (2 + 2 * (i - 8)) + 4)
        A('ds_write2st64_b32 %s, %s, %s offset0:%d offset1:%d' % (v(ad_), v(b), v(b + 1), L_MOD // 256 + o, L_MOD // 256 + o + 5))
A.far_end(lback)
q_g = W1S['iss']
A.l += jobs('G2')
assert W1S['iss'] <= 16
w1_addr(A, True)
w1_drain(A, q_g)
A.l += jobs('G2b')
warm(A, ['pg5', 'pg6', 's3r0', 's3r1'])
stamp('s2_wait', lvl=8)
lb = opt('s_cmp_eq_u32 s%d, 3' % sW)
verify(A, lambda c: z_gather(c, vZD), lambda c: check_bits(c, range(vZD, vZD + 16), vTZ, tmp), False, 's2r')
stamp('s2_done', lvl=9)
P = Asm()
for i in range(4):
    for c in range(i + 1, 4):
        P('v_swap_b32 %s, %s' % (v(vZD + 4 * i + c), v(vZD + 4 * c + i)))
for c in range(4):
    P('%s %s, %s, %s, 0' % (MF32, v(vD8[c], 16), v(vA8i, 4), v(vZD + 4 * c, 4)))
for c in range(4):
    for q in range(4):
        P('v_cvt_pk_bf16_f32 %s, %s, %s' % (v(vZD + 4 * c + q), v(vD8[c] + 2 * q), v(vD8[c] + 2 * q + 1)))
    P('ds_write2st64_b32 %s, %s, %s offset0:%d offset1:%d' % (v(vEX8 + c), v(vZD + 4 * c), v(vZD + 4 * c + 1), EXO, EXO + 6))
    P('ds_write2st64_b32 %s, %s, %s offset0:%d offset1:%d' % (v(vEX8 + c), v(vZD + 4 * c + 2), v(vZD + 4 * c + 3), EXO + 12, EXO + 18))
A.l += schedule(P, verbose='P3a')
opt_end(lb)
barrier()
stamp('b3', lvl=8)
for x, n in [(x, 16) for x in vD8] + [(vA8i, 4), (vZ, 1), (vTZ, 4), (vZD, 16), (vEX8, 4)]:
    V.put(x, n)
W2V = 96
W2A = 144
V.take(W2V, 64)


def w2frag(k, t_, c=4, o=0):
    if k < 8:
        return v(W2V + 20 * k + 4 * t_ + o, c)
    return a(W2A + 20 * (k - 8) + 4 * t_ + o, c)


def w2_base(g, n, first):
    m = n % 10
    if m == 0 or first:
        g('s_mul_i32 s%d, s%d, 5' % (sBG[1], sROT[n // 10]))
        g('s_add_u32 s%d, s%d, s%d' % (sBG[1], sBG[1], sW2F))
        if m >= 4:
            g('s_add_u32 s%d, s%d, %d' % (sBG[1], sBG[1], 4096 * (m // 4)))
    elif m % 4 == 0:
        g('s_add_u32 s%d, s%d, 4096' % (sBG[1], sBG[1]))


def w2_loads(asm, n0, n1):
    if OPT.get('now2'):
        return
    for n in range(n0, n1):
        g = Asm()
        w2_base(g, n, n == n0)
        g('buffer_load_dwordx4 %s, %s, %s, s%d offen offset:%d sc1' % (w2frag(n // 5, n % 5), v(vL16), srd(sWS), sBG[1], 1024 * (n % 10 % 4)), tag='w2l')
        grp(asm, g)


P = Asm()
vUF = V.get(16, 'xl')
for r in range(2):
    P('ds_read2_b32 %s, %s offset0:0 offset1:5' % (v(vUF + 8 * r, 2), v(vU0[r])))
    P('ds_read2_b32 %s, %s offset0:10 offset1:15' % (v(vUF + 8 * r + 2, 2), v(vU0[r])))
    P('ds_read2_b32 %s, %s offset0:15 offset1:10' % (v(vUF + 8 * r + 4, 2), v(vU1[r])))
    P('ds_read2_b32 %s, %s offset0:5 offset1:0' % (v(vUF + 8 * r + 6, 2), v(vU1[r])))
vGA = V.get(10, 'lx')
read_mod(P, vGA, 2, vL16, vL4)
vD = [V.get(16, 'xl'), V.get(16, 'xl')]
for r in range(2):
    for u in range(2):
        for t_ in range(2):
            for ro in range(2):
                d = v(vD[r] + 8 * t_ + 4 * ro, 4)
                P('%s %s, %s, %s, %s' % (MF16, d, v(vUF + 8 * r + 4 * u, 4), KA['G%d%d%d' % (u, t_, ro)], d if u else '0'))
tts = [V.get(8, 'xl'), V.get(8, 'xl')]
vY = [V.get(12, 'xl'), V.get(12, 'xl')]
C, Mx = Asm(), Asm()
for r, t_ in RT:
    d, b, tt = vD[r] + 8 * t_, vUF + 8 * r + 4 * t_, tts[t_]
    cmul(P, d, d + 4, K['TW3c%d' % t_], K['TW3s%d' % t_], tt, tt + 4, +1, True)
    for i in range(4):
        C('v_cvt_pk_bf16_f32 %s, %s, %s' % (v(b + i), v(d + i), v(d + 4 + i)))
    Mx('%s %s, %s, %s, 0' % (MF16, v(vY[r] + 4 * t_, 4), KA['A3_0'], v(b, 4)))
    Mx('%s %s, %s, %s, %s' % (MF16, v(vY[r] + 8, 4), KA['A3_%d' % (1 + t_)], v(b, 4), v(vY[r] + 8, 4) if t_ else '0'))
vG2, vSb = vD
read_mod(C, vG2, 4, vL16, vL4)
read_mod(C, vSb, 3, vL16, vL4)
P.l += C.l[:6] + under(Mx, C.l[6:])
for x, n in [(x, 8) for x in tts] + [(x, 1) for x in vU0 + vU1]:
    V.put(x, n)
for n in TN[14:]:
    if n in K:
        V.put(K[n], 4)
PA, P = P, Asm()
for r in range(2):
    for p in range(5):
        P('v_pk_fma_f32 %s, %s, %s, %s' % (v(vXF[r] + 2 * p, 2), v(vY[r] + 2 * p, 2), v(vGA + 2 * p, 2), v(vXF[r] + 2 * p, 2)))
ln_stats(P, vXF)
ln_apply(P, vY, vXF)
for r in range(2):
    for p in range(5):
        P('v_pk_fma_f32 %s, %s, %s, %s' % (v(vY[r] + 2 * p, 2), v(vY[r] + 2 * p, 2), v(vG2 + 2 * p, 2), v(vSb + 2 * p, 2)))
ln_stats(P, vY, '0x37800000')
ln_apply(P, vY, vY)
vXP = vGA
for r in range(2):
    for j in range(5):
        lo, hi = (j, 4 + j) if j < 4 else (8, 9)
        P('v_cvt_pk_bf16_f32 %s, %s, %s' % (v(vXP + 5 * r + j), v(vXF[r] + lo), v(vXF[r] + hi)))
for r in range(2):
    o = vUF + 8 * r
    for j in range(5):
        lo, hi = (j, 4 + j) if j < 4 else (8, 9)
        P('v_cvt_pk_bf16_f32 %s, %s, %s' % (v(o + j), v(vY[r] + lo), v(vY[r] + hi)))
A.l += schedule(PA.l + schedule(P), jobs('P3', True), 20, GAP, 'P3b', True)
assert W2C[0] <= 16 and HC[0] == 6
A.wait_tag('clrh')
for r in range(2):
    o = vUF + 8 * r
    A('buffer_store_dwordx4 %s, %s, %s, s%d offen offset:%d sc1' % (v(o, 4), v(vL16), srd(sWS), sYX, 1280 * r), tag='yst')
    A('buffer_store_dword %s, %s, %s, s%d offen offset:%d sc1' % (v(o + 4), v(vL4), srd(sWS), sYX, 1280 * r + 1024), tag='yst')
stamp('p3_done', lvl=9)
A('s_nop 0')
for x, n in ((vD[0], 16), (vD[1], 16), (vXF[0], 10), (vXF[1], 10), (vY[0], 12), (vY[1], 12), (vUF, 16), (vFILL, 4)):
    V.put(x, n)
assert vXP < 96
V.take(W2V + 64, 96)


def j_x1(asm):
    g = Asm()
    g('s_lshl2_add_u32 s%d, s%d, s%d' % (sBG[0], sL, sW))
    g('s_mul_i32 s%d, s%d, 2560' % (sBG[0], sBG[0]))
    g('s_add_u32 s%d, s%d, %d' % (sBG[0], sBG[0], WS_X1))
    for k in range(10):
        g('buffer_store_dword %s, %s, %s, s%d offen offset:%d sc1' % (v(vXP + k), v(vL4), srd(sWS), sBG[0], 256 * k), tag='xst')
        grp(asm, g)
        g = Asm()


B = Asm()
vgb = V.get(8, 'l')
o = (L_MOD + 5 * 2560) // 256
B('s_and_b32 s%d, s%d, 1' % (sT[2], sJ))
B('s_lshl_b32 s%d, s%d, 9' % (sT[2], sT[2]))
B('s_lshr_b32 s%d, s%d, 1' % (sT[3], sJ))
B('s_lshl2_add_u32 s%d, s%d, s%d' % (sT[2], sT[3], sT[2]))
B('v_lshl_add_u32 %s, %s, 5, s%d' % (v(vt), v(vN), sT[2]))
B('v_add_u32 %s, 16, %s' % (v(vt + 1), v(vt)))
B('s_lshl_b32 s%d, s%d, 5' % (sT[3], sJ))
B('v_lshl_add_u32 %s, %s, 3, s%d' % (v(vt + 2), v(vC8), sT[3]))
B('v_add_u32 %s, 4, %s' % (v(vt + 3), v(vt + 2)))
for q in range(4):
    B('ds_read2st64_b32 %s, %s offset0:%d offset1:%d' % (v(vgb + 2 * q, 2), v(vt + q), o + 4 * (q >> 1), o + 5 + 4 * (q >> 1)))
vYG, vYW = V.get(1, 'l'), V.get(1, 'l')
sYL = sPB
B('v_lshrrev_b32 %s, 3, %s' % (v(vt), v(vLane)))
B('v_and_b32 %s, 7, %s' % (v(vt + 1), v(vLane)))
B('s_and_b32 s%d, s%d, 1' % (sT[2], sW))
B('s_lshr_b32 s%d, s%d, 1' % (sT[3], sW))
B('s_lshl_b32 s%d, s%d, 2' % (sT[4], sT[2]))
B('v_add_u32 %s, s%d, %s' % (v(vt + 2), sT[4], v(vG)))
B('v_xor_b32 %s, %s, %s' % (v(vt + 1), v(vt + 2), v(vt + 1)))
B('v_mul_u32_u24 %s, 1280, %s' % (v(vYG), v(vt)))
B('v_lshl_add_u32 %s, %s, 4, %s' % (v(vYG), v(vt + 1), v(vYG)))
B('s_lshl3_add_u32 s%d, s%d, s%d' % (sT[4], sG1, sT[2]))
B('s_mul_i32 s%d, s%d, %d' % (sT[4], sT[4], PBLK))
B('s_mul_i32 s%d, s%d, 640' % (sT[5], sT[3]))
B('s_add_u32 s%d, s%d, s%d' % (sT[4], sT[4], sT[5]))
B('v_add_u32 %s, s%d, %s' % (v(vYG), sT[4], v(vYG)))
B('s_mul_i32 s%d, s%d, 10240' % (sT[3], sT[3]))
B('s_lshl_b32 s%d, s%d, 10' % (sT[2], sT[2]))
B('s_add_u32 s%d, s%d, s%d' % (sYL, sT[2], sT[3]))
B('v_add_u32 %s, s%d, %s' % (v(vYW), sYL, v(vL16)))
q_pub = W1S['iss']
ja = jobs('A3')
assert W1S['iss'] == 20
w1_drain(B, max(14, q_pub - OPT.get('lag3', 2)))
A.l += interleave(B, ja)
A('s_or_b32 s%d, s%d, s%d' % (sT[0], sL, sW))
lfar, lback = out_of_line('s_cmp_eq_u32 s%d, 0' % sT[0])
A.far_begin(lfar)
A('v_mov_b32 %s, s%d' % (v(vt), sTAGZ))
A('s_mov_b64 exec, 1')
A('buffer_store_dword %s, %s, %s, 0 offen offset:%d sc1' % (v(vt), v(vL4), srd(sWS), WS_EPOCH), tag='ep')
A('s_mov_b64 exec, -1')
A.far_end(lback)
vCK = V.get(20, 'l')
CKB = [vCK, vCK, vCK, W2V + 140]


def y_dma(asm, rt, so=sT[5]):
    for u in range(5):
        g = Asm()
        if u == 0:
            g('s_mov_b32 s%d, %d' % (so, WS_P + 2 * PBLK * rt))
        g('s_add_u32 m0, s%d, %d' % (sYL, 20480 * rt + 1920 * u))
        g('buffer_load_dwordx4 %s, %s, s%d offen offset:%d sc1 lds' % (v(vYG), srd(sWS), so, 128 * u), tag='yg%d' % rt)
        grp(asm, g)


def y_back(asm, rt):
    for u in range(5):
        asm('ds_read_b128 %s, %s offset:%d' % (v(CKB[rt] + 4 * u, 4), v(vYW), 20480 * min(rt, 2) + 2048 * u))


def y_check1(asm, rt):
    if rt == 3:
        asm('v_add_u32 %s, %d, %s' % (v(vYW), 20480, v(vYW)))
    asm.wait_tag('yg%d' % rt)
    y_back(asm, rt)


def y_check2(asm, rt):
    def again(c):
        c('s_mov_b32 s%d, m0' % sVER)
        y_dma(c, rt)
        c('s_mov_b32 m0, s%d' % sVER)
        c('s_waitcnt vmcnt(0)')
        y_back(c, rt)
    verify(asm, again, lambda c: check_bits(c, range(CKB[rt], CKB[rt] + 20), None, tmp), name='s3r%d' % rt)


if ACK & 8:
    A.wait_tag('yst')
barrier()
stamp('s3_acked', lvl=9)
NY = OPT.get('ny', 3)
M = Asm()
y_dma(A, 0)
for rt in range(1, NY):
    y_dma(M, rt)
B = Asm()
w1_drain(B, 20)
V.put(vW1, 6)
V.put(vW1r)
for i in range(8):
    B('v_mul_f32 %s, 0x47800000, %s' % (v(vgb + i), v(vgb + i)))
for i in range(8):
    B('v_accvgpr_write_b32 %s, %s' % (a(240 + i), v(vgb + i)))
V.put(vgb, 8)
vYR = [V.get(1, 'l'), V.get(1, 'l')]
B('v_lshrrev_b32 %s, 1, %s' % (v(vt + 2), v(vN)))
B('v_xor_b32 %s, %s, %s' % (v(vt + 2), v(vt + 2), v(vG)))
B('v_lshlrev_b32 %s, 4, %s' % (v(vt + 2), v(vt + 2)))
B('v_lshl_add_u32 %s, %s, 7, %s' % (v(vYR[0]), v(vN), v(vt + 2)))
B('v_xor_b32 %s, 64, %s' % (v(vYR[1]), v(vYR[0])))
vBI = V.get(12, 'l')
for c in range(3):
    for p in range(2):
        B('v_lshlrev_b32 %s, 16, %s' % (v(vBI + 4 * c + 2 * p), v(vb1 + 2 * c + p)))
        B('v_and_b32 %s, s%d, %s' % (v(vBI + 4 * c + 2 * p + 1), sMASK, v(vb1 + 2 * c + p)))
for i in range(12):
    B('v_mul_f32 %s, 0x37800000, %s' % (v(vBI + i), v(vBI + i)))
for p in range(4):
    B('v_lshlrev_b32 %s, 16, %s' % (v(vt), v(vb2 + p)))
    B('v_and_b32 %s, s%d, %s' % (v(vt + 1), sMASK, v(vb2 + p)))
    B('v_mul_f32 %s, 0x37800000, %s' % (v(vt), v(vt)))
    B('v_mul_f32 %s, 0x37800000, %s' % (v(vt + 1), v(vt + 1)))
    B('v_accvgpr_write_b32 %s, %s' % (a(248 + 2 * p), v(vt)))
    B('v_accvgpr_write_b32 %s, %s' % (a(249 + 2 * p), v(vt + 1)))
A.l += interleave(B, M)
A.l += jobs('G3')
for x, n in ((vb1, 6), (vb2, 4), (vKD, 1), (vH, 1)):
    V.put(x, n)
stamp('s3_wait', lvl=8)
y_check1(A, 0)
y_check2(A, 0)
barrier()
stamp('s3_done', lvl=13)
T0 = Asm()
vHs4, vHs2 = V.get(1, 'l'), V.get(1, 'l')
T0('s_lshl_b32 s%d, s%d, 10' % (sT[0], sW))
T0('v_add_u32 %s, s%d, %s' % (v(vHs4), sT[0], v(vL16)))
T0('s_lshl_b32 s%d, s%d, 9' % (sT[0], sW))
T0('s_add_u32 s%d, s%d, 4096' % (sT[0], sT[0]))
T0('v_cmp_gt_u32 vcc, 32, %s' % v(vLane))
T0('v_add_u32 %s, s%d, %s' % (v(vHs2), sT[0], v(vL16)))
T0('v_cndmask_b32 %s, %s, %s, vcc' % (v(vHs2), v(vOOB), v(vHs2)))
sW2L = sRING
T0('s_mul_i32 s%d, s%d, 20480' % (sW2L, sW))
T0('s_add_u32 s%d, s%d, %d' % (sW2L, sW2L, L_W2))
GC0 = -2.302208198
GC1 = GC0 * 0.044715 * 2.0 ** 48
GC0 *= 2.0 ** 16
import struct
fhex = lambda x: '0x%08x' % struct.unpack('<I', struct.pack('<f', x))[0]
sGC1 = sADD
vGC0 = V.get(1, 'l')
T0('s_mov_b32 s%d, %s' % (sGC1, fhex(GC1)))
T0('v_mov_b32 %s, %s' % (v(vGC0), fhex(GC0)))
NB = OPT.get('nb', 4)
vAC = [V.get(12, 'l'), vCK]
vBFl = [V.get(4, 'l') for _ in range(NB)]
print('free low in GEMM1:', sorted(x for x in V.free))
vGT = vCK + 12
vHP = vXP


def h_store(asm, rt):
    g = Asm()
    g('s_add_u32 s%d, s%d, %d' % (sT[2], sHS, 49152 * rt))
    g('buffer_store_dwordx4 %s, %s, %s, s%d offen sc1' % (v(vHP, 4), v(vHs4), srd(sWS), sT[2]), tag='hst%d' % rt)
    grp(asm, g)


def gelu(rt):
    g = Asm()
    ac = vAC[rt & 1]
    for c in range(3):
        x = ac + 4 * c
        tb = vGT + 4 * (c & 1)
        for i in range(4):
            g('v_mul_f32 %s, %s, %s' % (v(tb + i), v(x + i), v(x + i)))
        for i in range(4):
            g('v_fma_f32 %s, %s, s%d, %s' % (v(tb + i), v(tb + i), sGC1, v(vGC0)))
        for i in range(4):
            g('v_mul_f32 %s, %s, %s' % (v(tb + i), v(tb + i), v(x + i)))
        for i in range(4):
            g('v_exp_f32 %s, %s' % (v(tb + i), v(tb + i)))
        for i in range(4):
            g('v_add_f32 %s, 1.0, %s' % (v(tb + i), v(tb + i)))
        for i in range(4):
            g('v_rcp_f32 %s, %s' % (v(tb + i), v(tb + i)))
        for i in range(4):
            g('v_mul_f32 %s, %s, %s' % (v(tb + i), v(tb + i), v(x + i)))
        for p in range(2):
            g('v_cvt_pk_bf16_f32 %s, %s, %s' % (v(vHP + 2 * c + p), v(tb + 2 * p), v(tb + 2 * p + 1)))
        if c == 1:
            h_store(g, rt)
    for p in range(2):
        g('v_permlane32_swap_b32 %s, %s' % (v(vHP + 4 + p), v(vHP + 6 + p)))
    g('buffer_store_dwordx4 %s, %s, %s, s%d offen sc1' % (v(vHP + 4, 4), v(vHs2), srd(sWS), sT[2]), tag='hst%d' % rt)
    return g


def yread(rt, q):
    base = 20480 * (rt & 1)
    return Ins('ds_read_b128 %s, %s offset:%d' % (v(vBFl[(20 * rt + q) % NB], 4), v(vYR[q & 1]), base + 2048 * (q >> 1)))


def g1_main(rt):
    out = []
    for q in range(20):
        for c in range(3):
            d = v(vAC[rt & 1] + 4 * c, 4)
            gr = [Ins('%s %s, %s, %s, %s' % (MF16, d, a((3 * q + c) * 4, 4), v(vBFl[(20 * rt + q) % NB], 4), d if q else v(vBI + 4 * c, 4)))]
            if c == 0:
                nq = q + NB - 1
                if nq < 20:
                    gr.append(yread(rt, nq))
                elif rt < 3:
                    if rt in (0, 2) and nq == 20:
                        gr.append(Ins('s_barrier'))
                    if rt == 1 and nq < 22:
                        gr.append(Ins('v_add_u32 %s, 40960, %s' % (v(vYR[nq & 1]), v(vYR[nq & 1]))))
                    gr.append(yread(rt + 1, nq - 20))
            out.append(gr)
    return out


HB = [0, 48, 96, 0]


def probe(asm, rt):
    g = Asm()
    g('s_add_u32 s%d, s%d, %d' % (sT[5], sHL, 49152 * rt + 4096))
    g('buffer_load_dword %s, %s, %s, s%d offen offset:448 sc1' % (v(tmp), v(vPB), srd(sWS), sT[5]))
    asm.l.append([Ins('; probe')] + g.l)


def h_loads(asm, rt, so=sBG[0], k0=0, k1=12):
    if k0 == 0 and asm is not COLD and not OPT.get('probeh'):
        asm.wait_tag('hst%d' % rt)
    if k0 == 0 and asm is not COLD and OPT.get('probeh'):
        g = Asm()
        verify(g, lambda c: probe(c, rt), lambda c: c('v_cmp_eq_u32 vcc, -1, %s' % v(tmp)))
        grp(asm, g)
    for k in range(k0, k1):
        g = Asm()
        if k % 2 == 0:
            g('s_add_u32 s%d, s%d, %d' % (so, sROT[k // 2], 49152 * rt))
        g('buffer_load_dwordx4 %s, %s, %s, s%d offen offset:%d sc1' % (a(HB[rt] + 4 * k, 4), v(vL16), srd(sWS), so, 1024 * (k % 2)), tag='hld')
        grp(asm, g)


def w2_dma(asm, n0, n1):
    if OPT.get('now2'):
        return
    for n in range(n0, n1):
        g = Asm()
        w2_base(g, n, n == n0)
        if n % 10 % 4 == 0 or n == n0:
            g('s_add_u32 m0, s%d, %d' % (sW2L, 1024 * (n - 40 - n % 10 % 4)))
        g('buffer_load_dwordx4 %s, %s, s%d offen offset:%d sc1 lds' % (v(vL16), srd(sWS), sBG[1], 1024 * (n % 10 % 4)), tag='w2d')
        grp(asm, g)


for q in range(NB - 1):
    A.l.append(yread(0, q))


def emit(name, main, fixed=(), flex=()):
    out, est = weave(main, fixed, flex, range(2, 60, 3) if name[1] == '1' else range(4, 60, 5))
    A.l += out
    print(name, 'est cycles', est)
    stamp(name, lvl=4)


def flag_store(asm):
    asm('v_mov_b32 %s, s%d' % (v(vt + 1), sNONCE))
    asm.wait_tag('xst')
    g = Asm()
    g('s_lshl2_add_u32 s%d, s%d, s%d' % (sT[1], sL, sW))
    g('s_lshl_b32 s%d, s%d, 6' % (sT[1], sT[1]))
    g('s_add_u32 s%d, s%d, %d' % (sT[1], sT[1], WS_FLAG))
    g('; flag')
    g('s_mov_b64 exec, 0xffff')
    g('buffer_store_dword %s, %s, %s, s%d offen sc1' % (v(vt + 1), v(vL4), srd(sWS), sT[1]), tag='flag')
    g('s_mov_b64 exec, -1')
    grp(asm, g)


def flag_load(asm):
    g = Asm()
    g('s_lshl_b32 s%d, s%d, 11' % (sT[1], sG))
    g('s_add_u32 s%d, s%d, %d' % (sT[1], sT[1], WS_FLAG))
    g('buffer_load_dword %s, %s, %s, s%d offen sc1' % (v(vt), v(vL8), srd(sWS), sT[1]))
    grp(asm, g)


T0('v_lshlrev_b32 %s, 2, %s' % (v(vL8), v(vL8)))
X1T0 = not any('x1' in x for x in CFG.values())
W2SEQ = mk(w2_loads, W2C[0], 35).l + mk(w2_dma, 40, 60).l + mk(w2_loads, 35, 40).l
n0, n1, n2 = OPT.get('n0', 8), OPT.get('n1', 18), OPT.get('n2', 18)
assert n0 <= 35 - W2C[0]
fx = []
g0 = 0
for rt in range(NY, 4):
    fx.append((mk(y_dma, rt, sT[1]), g0, g0 + 18))
    g0 += 18
if X1T0:
    fx.append((mk(j_x1), g0, g0 + 20))
    g0 += 20
fx.append((W2SEQ[:n0], g0, 60))
Y3 = OPT.get('y3', 1)
ywin = [(1, 2), (2, 24)] + ([(3, 44)] if Y3 == 0 else [])
emit('g1_t0', g1_main(0), [(mk(y_check1, rt), g, g + 4) for rt, g in ywin] + fx,
     [(T0, 0, 12)] + [(mk(y_check2, rt), g + 11, min(60, g + 20)) for rt, g in ywin])
fx = [(W2SEQ[n0:n0 + n1], 0, 60), (mk(flag_store), 22, 25)]
ge = gelu(0).l
if Y3:
    fx = [(mk(y_check1, 3), 0, 4)] + fx
    ge = ge[:30] + mk(y_check2, 3).l + ge[30:]
emit('g1_t1', g1_main(1), fx, [(ge, 2, 60)])
HE, H0 = OPT.get('he', 50), OPT.get('h0', 1)
pr = lambda rt: ([], 0, 1)
hl = lambda rt: (mk(h_loads, rt), H0, HE)
for rt in (2, 3):
    f = gelu(rt - 1)
    fx = [(W2SEQ[n0 + n1:n0 + n1 + n2], 0, 60)] if rt == 2 else [hl(0), (W2SEQ[n0 + n1 + n2:], 0, 60)]
    if rt == (3 if HEARLY or OPT.get('pair', 2) != 1 else 2):
        fx = [(mk(flag_load), 8, 11)] + fx
        verify(f, flag_load, lambda c: c('v_cmp_ne_u32 vcc, s%d, %s' % (sNONCE, v(vt))))
    emit('g1_t%d' % rt, g1_main(rt), fx, [(f, 2, 60)])
stamp('g1_done')
V.put(vAC[0], 12)
for x in vBFl:
    V.put(x, 4)
V.put(vBI, 12)
for x in [vYG, vYW] + vYR:
    V.put(x)
vA2 = [V.get(20, 'l'), vCK]
vPW = V.get(1, 'l')
vPR, vXO, vOO = [[V.get(1, 'l') for _ in range(2)] for _ in range(3)]
vX1 = V.get(10, 'l')
E = Asm()
E('v_bfe_u32 %s, %s, 1, 2' % (v(vt + 2), v(vN)))
E('v_xor_b32 %s, %s, %s' % (v(vt + 2), v(vt + 2), v(vG)))
E('s_mul_i32 s%d, s%d, 13312' % (sT[0], sW))
E('v_lshl_add_u32 %s, %s, 4, s%d' % (v(vPW), v(vt + 2), sT[0]))
E('v_lshl_add_u32 %s, %s, 6, %s' % (v(vPW), v(vN), v(vPW)))
E2 = Asm()
vRow = V.get(1, 'l')
E('s_lshl_b32 s%d, s%d, 2' % (sT[0], sW))
E('v_add_u32 %s, s%d, %s' % (v(vRow), sT[0], v(vG)))
for k in range(2):
    row = vRow if k == 0 else vQ
    if k == 0:
        E('s_lshl_b32 s%d, s%d, 7' % (sT[1], sJ))
        E('s_mul_i32 s%d, s%d, 81920' % (sT[0], sG))
    else:
        E('s_lshl_b32 s%d, s%d, 5' % (sT[1], sJ))
        E('s_add_u32 s%d, s%d, 1024' % (sT[1], sT[1]))
        E('s_lshl2_add_u32 s%d, s%d, s%d' % (sT[4], sG, sW))
        E('s_mul_i32 s%d, s%d, 20480' % (sT[0], sT[4]))
    E('v_lshl_add_u32 %s, %s, 3, s%d' % (v(vOO[k]), v(vN if k == 0 else vC8), sT[1]))
    E('v_mul_u32_u24 %s, 1280, %s' % (v(vt + 3), v(row)))
    E('v_add3_u32 %s, %s, %s, s%d' % (v(vXO[k]), v(vt + 3), v(vOO[k]), sT[0]))
    E2('v_bfe_u32 %s, %s, 1, 2' % (v(vt + 3), v(row)))
    E2('v_xor_b32 %s, %s, %s' % (v(vt + 3), v(vt + 3), v(vC8)))
    E2('v_lshlrev_b32 %s, 4, %s' % (v(vt + 3), v(vt + 3)))
    E2('v_lshl_add_u32 %s, %s, 6, %s' % (v(vPR[k]), v(row), v(vt + 3)))
    if k == 0:
        E2('v_lshrrev_b32 %s, 2, %s' % (v(vt + 3), v(vN)))
        E2('v_mul_u32_u24 %s, 1152, %s' % (v(vt + 3), v(vt + 3)))
        E2('v_add_u32 %s, %s, %s' % (v(vPR[k]), v(vt + 3), v(vPR[k])))
        E2('s_mul_i32 s%d, s%d, 10240' % (sT[4], sG))
    else:
        E2('s_lshl_b32 s%d, s%d, 10' % (sT[0], sW))
        E2('v_add_u32 %s, s%d, %s' % (v(vPR[k]), sT[0], v(vPR[k])))
        E2('s_lshl2_add_u32 s%d, s%d, s%d' % (sT[4], sG, sW))
        E2('s_mul_i32 s%d, s%d, 2560' % (sT[4], sT[4]))
    E2('v_and_b32 %s, 7, %s' % (v(vt + 3), v(row)))
    E2('v_lshrrev_b32 %s, 3, %s' % (v(vt + 2), v(row)))
    E2('v_lshl_add_u32 %s, %s, 8, %s' % (v(vt + 3), v(vt + 3), v(vt + 2)))
    E2('v_mul_u32_u24 %s, 1280, %s' % (v(vt + 3), v(vt + 3)))
    E2('v_add3_u32 %s, %s, %s, s%d' % (v(vOO[k]), v(vt + 3), v(vOO[k]), sT[4]))
    if k == 0:
        E2a, E2 = E2, Asm()
OUTF = ['', ' sc1', ' nt'][OPT.get('outf', 0)]


def x1_load(asm, rt):
    k = int(rt == 4)
    g = Asm()
    g('s_mov_b32 s%d, %d' % (sBG[1], WS_X1 + 20480 * (rt & 3)))
    g('buffer_load_dwordx2 %s, %s, %s, s%d offen sc1' % (v(vX1 + 2 * rt, 2), v(vXO[k]), srd(sWS), sBG[1]))
    grp(asm, g)


def part_write(asm, rt, tiles=range(5)):
    for t_ in tiles:
        off = 4608 * (rt & 1) + 1152 * t_ if t_ < 4 else 9216 + 1024 * rt
        asm('ds_write_b128 %s, %s offset:%d' % (v(vPW), v(vA2[rt & 1] + 4 * t_, 4), off))


def epi_read(asm, rt):
    s = vA2[rt & 1]
    for p in range(4):
        asm('ds_read_b128 %s, %s offset:%d' % (v(s + 4 * p, 4), v(vPR[int(rt == 4)]), 13312 * p + (4608 * (rt & 1) if rt < 4 else 9216)))


def epi_const(asm):
    for i in range(8):
        asm('v_accvgpr_read_b32 %s, %s' % (v(vGB[i]), a(240 + i)))
        asm('v_accvgpr_read_b32 %s, %s' % (v(vB2[i]), a(248 + i)))


def epi_pre(asm, rt):
    k = int(rt == 4)
    e = vER + 4 * k
    for p in range(2):
        asm('v_lshlrev_b32 %s, 16, %s' % (v(e + 2 * p), v(vX1 + 2 * rt + p)))
        asm('v_and_b32 %s, s%d, %s' % (v(e + 2 * p + 1), sMASK, v(vX1 + 2 * rt + p)))
    for i in range(4):
        asm('v_fmac_f32 %s, %s, %s' % (v(e + i), v(vGB[4 * k + i]), v(vB2[4 * k + i])))


def epilogue(asm, rt):
    k = int(rt == 4)
    s = vA2[rt & 1]
    e = vER + 4 * k
    for i in range(4):
        asm('v_add_f32 %s, %s, %s' % (v(s + i), v(s + i), v(s + 4 + i)))
    for i in range(4):
        asm('v_add_f32 %s, %s, %s' % (v(s + 8 + i), v(s + 8 + i), v(s + 12 + i)))
    for i in range(4):
        asm('v_add_f32 %s, %s, %s' % (v(s + i), v(s + i), v(s + 8 + i)))
    for i in range(4):
        asm('v_fmac_f32 %s, %s, %s' % (v(e + i), v(s + i), v(vGB[4 * k + i])))
    for p in range(2):
        asm('v_cvt_pk_bf16_f32 %s, %s, %s' % (v(s + 16 + p), v(e + 2 * p), v(e + 2 * p + 1)))
    g = Asm()
    g('s_mov_b32 s%d, %d' % (sT[3], 2560 * (rt & 3)))
    g('buffer_store_dwordx2 %s, %s, %s, s%d offen%s' % (v(s + 16, 2), v(vOO[k]), srd(sOUT), sT[3], OUTF), tag='out')
    grp(asm, g)


def g2_mfma(rt, k, t_):
    d = v(vA2[rt & 1] + 4 * t_, 4)
    return Ins('%s %s, %s, %s, %s' % (MF16, d, w2frag(k, t_), a(HB[rt] + 4 * k, 4), d if k else '0'))


KT = OPT.get('kt', 5)


def g2_main(rt):
    if rt == 3 and KT:
        return [g2_mfma(rt, k, t_) for k in range(12 - KT) for t_ in range(5)] + [g2_mfma(rt, k, t_) for t_ in range(5) for k in range(12 - KT, 12)]
    return [g2_mfma(rt, k, t_) for k in range(12) for t_ in range(5)]


def h_check(asm, rt):
    if OPT.get('now1') or OPT.get('now2'):
        return
    ls, lo, ll, lr = label('hslow'), label('hok'), label('hl'), label('hredo')
    g = Asm()
    g('v_cmp_u_f32 vcc, %s, %s' % (v(vA2[rt & 1]), v(vA2[rt & 1])))
    g('s_cbranch_vccnz %s' % ls)
    g('%s:' % lo)
    grp(asm, g)
    c = COLD
    c.cold_begin()
    c('%s:' % ls)
    c('s_add_u32 s%d, s%d, 1' % (sSPIN, sSPIN))
    c('s_cmp_gt_u32 s%d, %d' % (sSPIN, SPIN))
    c('s_cbranch_scc1 %s' % lr)
    h_loads(c, rt, sT[5])
    c('s_waitcnt vmcnt(0)')
    t2 = vA2[rt & 1]
    c('v_mov_b32 %s, 0' % v(t2))
    for i in range(0, 48, 2):
        c('v_accvgpr_read_b32 %s, %s' % (v(vt), a(HB[rt] + i)))
        c('v_accvgpr_read_b32 %s, %s' % (v(vt + 1), a(HB[rt] + i + 1)))
        c('v_max3_u32 %s, %s, %s, %s' % (v(t2), v(t2), v(vt), v(vt + 1)))
    c('v_cmp_eq_u32 vcc, -1, %s' % v(t2))
    c('s_cbranch_vccnz %s' % ls)
    c('%s:' % lr)
    c.l += g2_main(rt)
    c('s_nop 7')
    if rt == 3 and KT:
        part_write(c, 3, range(3))
    c('s_branch %s' % lo)


vW2r = vPR[0]
R = Asm()
R('v_add_u32 %s, s%d, %s' % (v(vW2r), sW2L, v(vL16)))
R.wait_tag('w2d')
for n in range(40, 60):
    R('ds_read_b128 %s, %s offset:%d' % (w2frag(n // 5, n % 5), v(vW2r), 1024 * (n - 40)))
g3 = gelu(3).l
NG = min(OPT.get('ng', 30), len(g3))
HS = OPT.get('hs', 0) if NG > 60 else 0
x1_load(E, 0)
if HS:
    A.l += interleave(g3[:NG], mk(h_loads, 1, sBG[0], 0, HS), NG - 16 * HS, NG)
else:
    A.l += g3[:NG]
stamp('g2_start', lvl=4)
emit('g2_t0', g2_main(0), [(R, 0, 30), (mk(h_loads, 1, sBG[0], HS, 12), 1 if HS else H0, HE - 4 * HS), pr(2)], [(g3[NG:] + E.l, 0, 60)])
V.put(vHP, 10)
V.put(vGC0)
for x in (vHs4, vHs2, vL4, vOOB, vLane):
    V.put(x)
vER = V.get(8, 'l')
vGB = [V.get(1, 'l') for _ in range(8)]
vB2 = [V.get(1, 'l') for _ in range(8)]
GB_, GR_, GW_ = OPT.get('gb', 27), OPT.get('gr', 28), OPT.get('gw', 40)
for rt in range(1, 4):
    f = Asm()
    if rt == 1:
        f('s_barrier')
    h_check(f, rt - 1)
    wl = Asm()
    wl.wait_lds()
    fx = [(f, 3, 4), (mk(part_write, rt - 1), 4, 14), (mk(barrier), GB_, GB_ + 1), (mk(epi_read, rt - 1), GR_, GR_ + 2), (wl, GW_, GW_ + 1)]
    if rt == 1:
        fx += [hl(2), pr(3), (mk(x1_load, 1), 15, 20)]
        epi_const(E2a)
        fl = [(E2a, 0, GB_), (mk(epi_pre, 0), GB_, GW_), (mk(epilogue, 0), GW_, 60)]
    elif rt == 2:
        fx += [hl(3), (mk(x1_load, 2).l + mk(x1_load, 4).l + mk(x1_load, 3).l, 15, 30)]
        fl = [(E2, 0, GB_), (mk(epi_pre, 1), GB_, GW_), (mk(epilogue, 1), GW_, 60)]
    else:
        fl = [(mk(epi_pre, 2).l + mk(epi_pre, 4).l, GB_, GW_), (mk(epilogue, 2).l + mk(epi_pre, 3).l, GW_, 60)]
        if KT:
            for t_ in range(3):
                g = 60 - KT * (4 - t_) + 4
                fx.append((mk(part_write, 3, [t_]), g, g + 1))
    emit('g2_t%d' % rt, g2_main(rt), fx, fl)
stamp('g2_done')
h_check(A, 3)
part_write(A, 3, range(3, 5) if KT else range(5))
barrier()
stamp('lastbar', lvl=4)
epi_read(A, 3)
epi_read(A, 4)
epilogue(A, 3)
epilogue(A, 4)
stamp('laststore', lvl=4)
if OPT['stamps']:
    A('s_waitcnt vmcnt(0)')
    stamp('end')
    A('s_memtime s[4:5]')
    A('s_sub_u32 s4, s4, s100')
    A('s_lshl_b32 s%d, s2, 2' % sT[0])
    A('s_add_u32 s%d, s%d, s%d' % (sT[0], sT[0], sW))
    A('s_lshl_b32 s%d, s%d, 7' % (sT[0], sT[0]))
    A('s_add_u32 s%d, s%d, %d' % (sT[0], sT[0], WS_STAMP))
    A('s_mov_b64 exec, 1')
    for i, s in [(i, sSTAMP + i) for i in range(nstamp[0])] + [(30, 4), (31, sSPIN)]:
        A('v_mov_b32 %s, s%d' % (v(vt), s))
        A('buffer_store_dword %s, %s, %s, s%d offen offset:%d' % (v(vt), v(vL16), srd(sWS), sT[0], 4 * i))
        A('s_waitcnt vmcnt(0)')
if OPT.get('gecho'):
    A('s_cmp_lg_u32 s%d, 0' % sW)
    A('s_cbranch_scc1 L_end')
    A('s_waitcnt vmcnt(0)')
    A('s_memrealtime s[92:93]')
    A('s_waitcnt lgkmcnt(0)')
    A('s_mov_b32 s98, 256')
    A('s_mov_b32 s99, 0x20000')
    A('s_mov_b64 exec, 1')
    A('s_not_b32 s94, s88')
    for o, r in ((0, 94), (4, 90), (8, 92), (16, 88), (20, sSPIN)):
        A('v_mov_b32 %s, s%d' % (v(vt), r))
        A('buffer_atomic_%s %s, off, s[96:99], 0 offset:%d' % ('add' if o == 20 else 'umax', v(vt), o))
        A('s_nop 1')
    A('s_waitcnt vmcnt(0)')
    A('v_mov_b32 %s, 1' % v(vt))
    A('buffer_atomic_add %s, off, s[96:99], 0 offset:12 sc0' % v(vt))
    A('s_waitcnt vmcnt(0)')
    A('v_readfirstlane_b32 s94, %s' % v(vt))
    A('s_cmp_lg_u32 s94, 255')
    A('s_cbranch_scc1 L_end')
    A('buffer_load_dwordx4 %s, off, s[96:99], 0 sc1' % v(vt, 4))
    A('buffer_load_dword %s, off, s[96:99], 0 offset:16 sc1' % v(tmp))
    A('s_waitcnt vmcnt(0)')
    A('v_readfirstlane_b32 s94, %s' % v(vt))
    A('v_readfirstlane_b32 s95, %s' % v({1: vt + 2, 2: tmp}.get(OPT['gecho'], vt + 1)))
    A('s_add_u32 s94, s94, s95')
    A('s_add_u32 s94, s94, 1')
    A('s_mul_i32 s94, s94, %d' % OPT.get('gk', 4))
    A('s_min_u32 s94, s94, 50000')
    A('s_memrealtime s[92:93]')
    A('L_echo:')
    A('s_memrealtime s[90:91]')
    A('s_waitcnt lgkmcnt(0)')
    A('s_sub_u32 s95, s90, s92')
    A('s_cmp_lt_u32 s95, s94')
    A('s_cbranch_scc1 L_echo')
if OPT.get('probe'):
    pr = OPT['probe']
    A('s_or_b32 s%d, s%d, s%d' % (sT[0], sL, sW))
    A('s_cmp_lg_u32 s%d, 0' % sT[0])
    A('s_cbranch_scc1 L_end')
    A('s_waitcnt vmcnt(0)')
    sr = sWS if pr >= 2 else sPRB
    if pr >= 2:
        A('s_mov_b32 s%d, 0x10000000' % (sWS + 2))
    base = {1: 0, 2: 0x1a00000, 3: 0x8000000, 4: 0xfc00000}[pr]
    for i in range(40):
        A('s_mov_b32 s%d, %d' % (sT[0], base + i * (40960 + 128)))
        A('buffer_load_dword %s, off, %s, s%d' % (v(vt), srd(sr), sT[0]))
        A('s_waitcnt vmcnt(0)')
A('L_end:')
A('s_endpgm')
A.add(COLD)

body, ins = finalize(A)
far = ''
while '; FARBEGIN' in body:
    i = body.index('; FARBEGIN')
    j = body.index('; FAREND\n', i) + 9
    far += body[i + 11:j - 9]
    body = body[:i] + body[j:]
body = body.replace('L_end:\n  s_endpgm\n', 'L_end:\n  s_endpgm\n' + far)
import subprocess, re as _re
for n, r in PADS.items():
    body = body.replace('; PAD %s\n' % n, 'L_pad_%s:\n  s_cbranch_execz %s\n' % (n, r))
pages = sorted(int(n[2:]) for n in PADS if n.startswith('pg'))
if pages:
    trial = '.amdgcn_target "amdgcn-amd-amdhsa--gfx950"\n.text\n' + body + ''.join('L_pad_pg%d:\n' % p for p in pages) + 'L_tab:\n.fill 8192,4,0\nL_tabend:\n'
    tf = sys.argv[1] + '.trial'
    open(tf, 'w').write(trial)
    subprocess.run(['clang', '-x', 'assembler', '-target', 'amdgcn-amd-amdhsa', '-mcpu=gfx950', '-c', tf, '-o', tf + '.o'], check=True)
    dis = subprocess.run(['llvm-objdump', '-d', '--mcpu=gfx950', tf + '.o'], capture_output=True, text=True).stdout
    addr = [int(x, 16) for x in _re.findall(r'// ([0-9A-F]{12}):', dis)]
    import os
    os.remove(tf)
    os.remove(tf + '.o')
    lines = body.split('\n')
    il = [k for k, x in enumerate(lines) if x.startswith('  ')]
    ins_at = {}
    for cnt, p in enumerate(pages):
        cand = [n for n in range(1, len(il)) if 0 <= addr[n] + 4 * cnt - 4096 * p <= 56]
        best = [n for n in cand if 'v_mfma' in lines[il[n - 1]] and lines[il[n]].startswith('  v_')] or cand
        ins_at[il[best[0]]] = p
        print('page', p, 'pad before', lines[il[best[0]]])
    body = '\n'.join(('L_pad_pg%d:\n  s_cbranch_execz %s\n' % (ins_at[k], PADS['pg%d' % ins_at[k]]) if k in ins_at else '') + x for k, x in enumerate(lines))
ref = open('cdna_kernels/%s.s.ref' % NAME).read()
hdr = ref[:ref.index('; Override launch')]
src = hdr + '; @launch grid=(256,1,1) block=(256,1,1) lds=163840\n'
src += '.amdgcn_target "amdgcn-amd-amdhsa--gfx950"\n.text\n.p2align 12\n.fill 832, 4, 0xbf810000\n.globl %s_kernel\n.p2align 8\n.type %s_kernel,@function\n%s_kernel:\n' % (NAME, NAME, NAME)
src += body
src += '.p2align 7\n.type L_tab,@object\nL_tab:\n'
for n in TN:
    for row in T[n].reshape(-1, 8):
        src += '.long ' + ','.join('0x%x' % x for x in row) + '\n'
src += '.fill %d, 4, 0\nL_tabend:\n.size L_tab, L_tabend-L_tab\n' % ((32 - len(TN)) * 256)
src += '''.section .rodata,"a"
.p2align 6
.amdhsa_kernel %s_kernel
  .amdhsa_next_free_vgpr 512
  .amdhsa_next_free_sgpr 102
  .amdhsa_accum_offset 256
  .amdhsa_group_segment_fixed_size 0
  .amdhsa_kernarg_size 104
  .amdhsa_user_sgpr_count 2
  .amdhsa_user_sgpr_kernarg_segment_ptr 1
  .amdhsa_system_sgpr_workgroup_id_x 1
  .amdhsa_float_denorm_mode_32 3
.end_amdhsa_kernel
''' % NAME
open(sys.argv[1], 'w').write(src)
open(sys.argv[1] + '.stamps', 'w').write('\n'.join(stamp_names))
from collections import Counter
cnt = Counter(i.cls for i in ins)
print('instr', dict(cnt), 'nop states', sum(states(i) for i in ins if i.cls == 'nop'), 'src bytes', len(src))
```

```python
import sys
sys.path.insert(0, 'work')
from asmlib import *
import tables

NAME = 'adaLN_cond__spectral_gfnet__mixer_channel_mlp__prompt'
OPT = dict(stamps=0)
CFG = dict(PRE='', SIL='', PUB='const,tw,tw1,tm', PUB2='', G0='', P1='wf:3', A1='wf:1,w1:3,bias', G1='w1:2', G1b='', P2='w1:6', A2='w1:4', G2='w1:1', G2b='hclr:3',
           P3='hclr:3,w1:3', A3='w1:1,w2:8', G3='')
for arg in sys.argv[2:]:
    k, v = arg.split('=')
    if k in CFG:
        CFG[k] = v
    else:
        OPT[k] = int(v)

PBLK = 11264
WS_EPOCH = 0
WS_MODX = 0x1000
WS_MOD2 = 0x9000
WS_FLAG = 0x10000
WS_P = 0x50000
WS_X1 = WS_P + 256 * PBLK
WS_H = WS_X1 + 256 * 10240
WS_W2F = WS_H + 32 * 196608
WS_END = WS_W2F + 1920 * 1024
WS_STAMP = 0x1800000
WS_REC = 0x2000000
OOB = 0x7ff00000
assert WS_END < WS_STAMP
L_MOD = 0
L_SILU = 17920
L_RED = 19200
L_EX = 20480
L_GP = 32768
L_GW = 49152
L_RING = 65536
L_CONST = L_GP
L_WRAW = L_RING + 7 * 12288
L_W2 = 81920
L_PART = [0, 21504]
SPIN = 200000

T = tables.build()
TN = list(T)

sC, sWM, sX, sWS, sWF_, sW1, sW2, sB1, sB2, sOUT = [8 + 4 * i for i in range(10)]
sWRp, sWIp = 48, 50
sL, sW, sNONCE, sJ, sG, sSPIN, sMASK, sVER = 52, 53, 54, 55, 56, 57, 58, 59
sT = [60, 61, 62, 63, 64, 65]
sST = 66
sADD = 70
sIDX = 73
sXCD = 74
sPG = 75
sZS = 76
sPB = 77
sRING = 78
sTAU = 79
sEX = 80
sBG = [48, 49]
sCOL = 50
sYX = 51
sJ1, sG1, sTM, sTAGZ, sNU = 4, 5, 0, 1, 3
sSTAMP = 82


def srd(s):
    return 's[%d:%d]' % (s, s + 3)


def v(n, c=1):
    return 'v%d' % n if c == 1 else 'v[%d:%d]' % (n, n + c - 1)


def a(n, c=1):
    return 'a%d' % n if c == 1 else 'a[%d:%d]' % (n, n + c - 1)


class Pool:
    def __init__(self, lo, hi):
        self.free = set(range(lo, hi))
        self.hw = 0

    def get(self, n, z='mhxl', al=2):
        if n == 1:
            al = 1
        Z = dict(l=(1, 96), m=(96, 176), h=(176, 256), x=(96, 256))
        for b, hi in [(b, Z[c][1]) for c in z for b in range(*Z[c])]:
            if b % al == 0 and b + n <= hi and all(b + i in self.free for i in range(n)):
                for i in range(n):
                    self.free.remove(b + i)
                self.hw = max(self.hw, b + n)
                return b
        raise RuntimeError('out of registers (%d)' % n)

    def take(self, b, n):
        for i in range(n):
            assert b + i in self.free, 'v%d busy' % (b + i)
            self.free.remove(b + i)
        return b

    def put(self, b, n=1):
        for i in range(n):
            assert b + i not in self.free
            self.free.add(b + i)


A = Asm()
COLD = Asm()
V = Pool(1, 256)
nstamp = [0]
stamp_names = []


CLK = 's_memtime' if OPT.get('cyc') else 's_memrealtime'
ECHO = {3: 'pub0', 4: 's0_done', 5: 's1_done', 6: 's2_done', 7: 's3_done', 8: 'g1_done', 9: 'crit_iss', 10: 'g2_t0', 11: 'g2_t1', 12: 'g2_done', 13: 'laststore', 14: 'g1_t1'}


def stamp(name, asm=None, lvl=1, again=False):
    if ECHO.get(OPT.get('gecho')) == name:
        (asm or A)('s_memrealtime s[90:91]')
        (asm or A)('s_waitcnt lgkmcnt(0)')
    if not (OPT['stamps'] & lvl) and not (OPT['stamps'] and name in ('end',)):
        return
    asm = asm or A
    if again:
        i = stamp_names.index(name)
    else:
        i = nstamp[0]
        nstamp[0] += 1
        stamp_names.append(name)
    asm('%s s[%d:%d]' % (CLK, sEX, sEX + 1))
    asm('s_mov_b32 s%d, s%d' % (sSTAMP + i, sEX))
    assert sSTAMP + i < 100


MF16 = 'v_mfma_f32_16x16x32_bf16'
MF32 = 'v_mfma_f32_32x32x16_bf16'
lab = [0]


def label(p):
    lab[0] += 1
    return 'L_%s_%d' % (p, lab[0])


def barrier(asm=None):
    asm = asm or A
    asm.wait_lds()
    asm('s_barrier')


PADS = {}


def pad(asm, name):
    asm('; PAD %s' % name)


def warm(asm, names):
    if not OPT.get('warm', 1):
        return
    ret = label('wret')
    g = Asm()
    g('s_mov_b64 exec, 0')
    for w, chain in enumerate(names):
        chain = chain.split('+')
        for a_, b_ in zip(chain, chain[1:] + [None]):
            PADS[a_] = 'L_pad_' + b_ if b_ else ret
        g('s_cmp_eq_u32 s%d, %d' % (sW, w))
        g('s_cbranch_scc1 L_pad_%s' % chain[0])
    g('%s:' % ret)
    g('s_mov_b64 exec, -1')
    asm.l.append(g.l)


def check_sentinel(asm, regs, tmp):
    r = list(regs)
    first = True
    while r:
        if first:
            if len(r) >= 3:
                asm('v_max3_u32 %s, %s, %s, %s' % (v(tmp), v(r[0]), v(r[1]), v(r[2])))
                r = r[3:]
            else:
                asm('v_max_u32 %s, %s, %s' % (v(tmp), v(r[0]), v(r[-1])))
                r = []
            first = False
        elif len(r) >= 2:
            asm('v_max3_u32 %s, %s, %s, %s' % (v(tmp), v(tmp), v(r[0]), v(r[1])))
            r = r[2:]
        else:
            asm('v_max_u32 %s, %s, %s' % (v(tmp), v(tmp), v(r[0])))
            r = []
    asm('v_cmp_eq_u32 vcc, -1, %s' % v(tmp))


def check_bits(asm, regs, masks, tmp):
    r = list(regs)
    for k, x in enumerate(r if masks is not None else []):
        asm('v_xor_b32 %s, %s, %s' % (v(x), v(masks + k % 4), v(x)))
    asm('v_or3_b32 %s, %s, %s, %s' % (v(tmp), v(r[0]), v(r[1]), v(r[2])))
    for k in range(3, len(r) - 1, 2):
        asm('v_or3_b32 %s, %s, %s, %s' % (v(tmp), v(tmp), v(r[k]), v(r[k + 1])))
    asm('v_bitop3_b32 %s, %s, %s, s%d bitop3:0xa8' % (v(tmp), v(tmp), v(r[-1]), sTM))
    asm('v_cmp_ne_u32 vcc, 0, %s' % v(tmp))


def check_tags(asm, regs, tmp):
    asm('v_xor_b32 %s, s%d, %s' % (v(tmp), sNONCE, v(regs[0])))
    for r in regs[1:]:
        asm('v_bitop3_b32 %s, %s, s%d, %s bitop3:0xbe' % (v(tmp), v(r), sNONCE, v(tmp)))
    asm('v_cmp_ne_u32 vcc, 0, %s' % v(tmp))


def verify(asm, loads, checker, masked=True, name=None):
    ls, lo = label('slow'), label('ok')
    checker(asm)
    grp = Asm()
    grp('s_cbranch_vccnz %s' % ls)
    grp('%s:' % lo)
    asm.l.append(grp.l)
    c = COLD
    c.cold_begin()
    lx = label('out')
    c('%s:' % ls)
    if name:
        pad(c, name)
    c('s_add_u32 s%d, s%d, 1' % (sSPIN, sSPIN))
    c('s_cmp_gt_u32 s%d, %d' % (sSPIN, SPIN))
    c('s_cbranch_scc1 %s' % lx)
    c('s_mov_b64 exec, vcc' if masked else 's_wqm_b64 exec, vcc')
    loads(c)
    c('s_waitcnt vmcnt(0)')
    checker(c)
    c('s_cbranch_vccnz %s' % ls)
    c('%s:' % lx)
    c('s_mov_b64 exec, -1')
    c('s_nop 4')
    c('s_branch %s' % lo)


def cmul(asm, re_, im_, c_, s_, t0, t1, sign, inplace=False):
    neg = ' neg_lo:[0,0,1] neg_hi:[0,0,1]'
    for p in (0, 2):
        asm('v_pk_mul_f32 %s, %s, %s' % (v(t0 + p, 2), v(im_ + p, 2), v(s_ + p, 2)))
        asm('v_pk_mul_f32 %s, %s, %s' % (v(t1 + p, 2), v(re_ + p, 2), v(s_ + p, 2)))
    for p in (0, 2):
        asm('v_pk_fma_f32 %s, %s, %s, %s%s' % (v((re_ if inplace else t0) + p, 2), v(re_ + p, 2), v(c_ + p, 2), v(t0 + p, 2), neg if sign > 0 else ''))
        asm('v_pk_fma_f32 %s, %s, %s, %s%s' % (v((im_ if inplace else t1) + p, 2), v(im_ + p, 2), v(c_ + p, 2), v(t1 + p, 2), '' if sign > 0 else neg))


def ln_stats(asm, x, scale=None):
    t = V.get(8, 'hxl')
    for r in range(2):
        asm('v_pk_add_f32 %s, %s, %s' % (v(t + 2 * r, 2), v(x[r], 2), v(x[r] + 2, 2)))
        asm('v_pk_mul_f32 %s, %s, %s' % (v(t + 4 + 2 * r, 2), v(x[r], 2), v(x[r], 2)))
    for p in range(1, 5):
        for r in range(2):
            if p >= 2:
                asm('v_pk_add_f32 %s, %s, %s' % (v(t + 2 * r, 2), v(t + 2 * r, 2), v(x[r] + 2 * p, 2)))
            asm('v_pk_fma_f32 %s, %s, %s, %s' % (v(t + 4 + 2 * r, 2), v(x[r] + 2 * p, 2), v(x[r] + 2 * p, 2), v(t + 4 + 2 * r, 2)))
    for q in range(4):
        asm('v_add_f32 %s, %s, %s' % (v(t + 2 * q), v(t + 2 * q), v(t + 2 * q + 1)))
    asm('v_permlane32_swap_b32 %s, %s' % (v(t), v(t + 2)))
    asm('v_permlane32_swap_b32 %s, %s' % (v(t + 4), v(t + 6)))
    asm('v_add_f32 %s, %s, %s' % (v(t), v(t), v(t + 2)))
    asm('v_add_f32 %s, %s, %s' % (v(t + 4), v(t + 4), v(t + 6)))
    asm('v_permlane16_swap_b32 %s, %s' % (v(t), v(t + 4)))
    asm('v_add_f32 %s, %s, %s' % (v(t), v(t), v(t + 4)))
    for sh in (8, 4, 2, 1):
        asm('v_add_f32_dpp %s, %s, %s row_ror:%d row_mask:0xf bank_mask:0xf' % (v(t), v(t), v(t), sh))
    asm('v_mul_f32 %s, 0x3acccccd, %s' % (v(t + 1), v(t)))
    asm('v_mul_f32 %s, 0x3acccccd, %s' % (v(t), v(t)))
    asm('v_permlane16_swap_b32 %s, %s' % (v(t), v(t + 1)))
    asm('v_fma_f32 %s, -%s, %s, %s' % (v(t + 1), v(t), v(t), v(t + 1)))
    asm('v_max_f32 %s, 0, %s' % (v(t + 1), v(t + 1)))
    asm('v_add_f32 %s, 0x3727c5ac, %s' % (v(t + 1), v(t + 1)))
    asm('v_rsq_f32 %s, %s' % (v(t + 1), v(t + 1)))
    if scale:
        asm('v_mul_f32 %s, %s, %s' % (v(t + 1), scale, v(t + 1)))
    asm('v_mul_f32_e64 %s, -%s, %s' % (v(t), v(t), v(t + 1)))
    for r in range(2):
        asm('v_readlane_b32 s%d, %s, %d' % (sST + 2 * r, v(t + 1), 32 * r))
    for r in range(2):
        asm('v_readlane_b32 s%d, %s, %d' % (sST + 2 * r + 1, v(t), 32 * r))
    V.put(t, 8)


def ln_apply(asm, dst, x):
    for p in range(5):
        for r in range(2):
            s = 's[%d:%d]' % (sST + 2 * r, sST + 2 * r + 1)
            asm('v_pk_fma_f32 %s, %s, %s, %s op_sel:[0,0,1] op_sel_hi:[1,0,1]' % (v(dst[r] + 2 * p, 2), v(x[r] + 2 * p, 2), s, s))


def read_mod(asm, dst, vec, vL16, vL4):
    b = L_MOD + vec * 2560
    asm('ds_read_b128 %s, %s offset:%d' % (v(dst, 4), v(vL16), b))
    asm('ds_read_b128 %s, %s offset:%d' % (v(dst + 4, 4), v(vL16), b + 1280))
    o = (b + 1024) // 256
    assert (b + 1024) % 256 == 0
    asm('ds_read2st64_b32 %s, %s offset0:%d offset1:%d' % (v(dst + 8, 2), v(vL4), o, o + 5))


def S(asm, fmt, *args):
    asm(fmt % args)


def opt(cond, asm=None):
    asm = asm or A
    lb = label('skip')
    asm(cond)
    asm('s_cbranch_scc1 %s' % lb)
    asm.opt_begin()
    return lb


def opt_end(lb, asm=None):
    asm = asm or A
    asm.opt_end()
    asm('%s:' % lb)


def grp(asm, g):
    asm.l.append(g.l)


A('s_cmp_ge_u32 s2, 256')
A('s_cbranch_scc1 L_end')
for s, off in ((sC, 64), (sWM, 72), (sX, 0), (sWS, 96), (sWRp, 8), (sWIp, 16), (sW1, 32)):
    A('s_load_dwordx2 s[%d:%d], s[0:1], %d' % (s, s + 1, off))
if OPT['stamps']:
    A('%s s[%d:%d]' % (CLK, sSTAMP, sSTAMP + 1))
    A('s_memtime s[100:101]')
if OPT.get('gecho'):
    A('s_memrealtime s[88:89]')
    A('s_load_dwordx2 s[96:97], s[0:1], 88')
    A('s_mov_b32 s90, 0')
vLane = V.get(1, 'l')
vt = V.get(4, 'l')
tmp = V.get(1, 'l')
A('v_lshrrev_b32 %s, 6, v0' % v(vt))
A('v_and_b32 %s, 63, v0' % v(vLane))
A('v_readfirstlane_b32 s%d, %s' % (sW, v(vt)))
A('s_lshr_b32 s%d, s2, 3' % sIDX)
vPC = V.get(2)
A('s_getpc_b64 s[6:7]')
A('L_pc:')
A('s_lshl_b32 s%d, s%d, 7' % (sT[1], sIDX))
A('v_lshl_add_u32 %s, v0, 12, s%d' % (v(vt + 1), sT[1]))
A('v_mov_b32 %s, s7' % v(vPC + 1))
A('v_add_co_u32 %s, vcc, s6, %s' % (v(vt + 2), v(vt + 1)))
A('s_and_b32 s%d, s2, 7' % sT[0])
A('s_mul_i32 s%d, s%d, 20' % (sTAU, sT[0]))
A('v_addc_co_u32 %s, vcc, 0, %s, vcc' % (v(vt + 3), v(vPC + 1)))
A('v_cmp_gt_u32 vcc, (L_tabend-L_pc-4), %s' % v(vt + 1))
A('s_add_u32 s%d, s%d, s%d' % (sTAU, sTAU, sIDX))
A('s_and_saveexec_b64 s[%d:%d], vcc' % (sEX, sEX + 1))
A('s_cbranch_execz L_nopf')
A.opt_begin()
vJunk = V.get(3, 'h', 1)
A('global_load_dword %s, %s, off' % (v(vJunk), v(vt + 2, 2)), tag='junk')
A.opt_end()
A('L_nopf:')
A('s_mov_b64 exec, -1')
A('s_lshl_b32 s%d, s%d, 5' % (sL, sT[0]))
A('s_add_u32 s%d, s%d, s%d' % (sL, sL, sIDX))
vL16, vL4, vL8 = V.get(1, 'l'), V.get(1, 'l'), V.get(1, 'l')
vN, vG, vKD, vH = V.get(1, 'l'), V.get(1, 'l'), V.get(1, 'l'), V.get(1, 'l')
A('v_and_b32 %s, 15, %s' % (v(vN), v(vLane)))
A('v_lshrrev_b32 %s, 4, %s' % (v(vG), v(vLane)))
vCo = V.get(1)
A('s_and_b32 s%d, s%d, 1' % (sT[2], sTAU))
A('s_mul_i32 s%d, s%d, 640' % (sT[0], sT[2]))
A('s_lshl_b32 s%d, s%d, 6' % (sT[1], sW))
A('s_add_u32 s%d, s%d, s%d' % (sT[0], sT[0], sT[1]))
A('v_lshl_add_u32 %s, %s, 8, s%d' % (v(vCo), v(vG), sT[0]))
A('v_lshl_add_u32 %s, %s, 2, %s' % (v(vCo), v(vN), v(vCo)))
vWM = V.get(1)
A('v_lshrrev_b32 %s, 1, %s' % (v(vWM), v(vLane)))
A('v_mul_u32_u24 %s, 7680, %s' % (v(vWM), v(vWM)))
A('v_and_b32 %s, 1, %s' % (v(vt), v(vLane)))
A('v_lshl_add_u32 %s, %s, 4, %s' % (v(vWM), v(vt), v(vWM)))
A('s_mul_i32 s%d, s%d, 3840' % (sT[0], sT[0]))
A('s_lshr_b32 s%d, s%d, 1' % (sT[1], sTAU))
A('s_lshl_b32 s%d, s%d, 5' % (sT[1], sT[1]))
A('s_add_u32 s%d, s%d, s%d' % (sT[0], sT[0], sT[1]))
A('s_lshl_b32 s%d, s%d, 10' % (sT[1], sW))
for s, n in ((sC, 1280), (sWM, 640 * 7680), (sX, 2621440), (sWS, WS_REC)):
    A('s_mov_b32 s%d, %d' % (s + 2, n))
    A('s_mov_b32 s%d, 0x20000' % (s + 3))
A('v_lshlrev_b32 %s, 2, %s' % (v(vL4), v(vLane)))
A('s_lshl_b32 s%d, s%d, 9' % (sT[2], sW))
A('s_add_u32 s%d, s%d, s%d' % (sT[2], sT[2], sL))
A('s_mul_i32 s%d, s%d, 1280' % (sPG, sT[2]))
A('s_add_u32 s%d, s%d, %d' % (sZS, sPG, 256 * 1280))
A('s_add_u32 m0, s%d, %d' % (sT[1], L_EX))
A('s_waitcnt lgkmcnt(0)')
XPOS = OPT.get('xpos', 2)
vXR = V.get(10)
XL, XL2 = Asm(), Asm()
for r in range(2):
    for j in range(5):
        for X in (XL, XL2):
            X('buffer_load_dword %s, %s, %s, s%d offen offset:%d' % (v(vXR + 5 * r + j), v(vL4), srd(sX), (sPG, sZS)[r], 256 * j))
if XPOS == 0:
    A.add(XL)
vC = V.get(1)
lb = opt('s_cmp_ge_u32 s%d, 20' % sIDX)
A('buffer_load_dword %s, %s, %s, 0 offen' % (v(vC), v(vCo), srd(sC)))
for i in range(3):
    if i == 2:
        lb2 = opt('s_cmp_ge_u32 s%d, 2' % sW)
    if i:
        A('s_add_u32 m0, s%d, %d' % (sT[1], L_EX + 4096 * i))
        A('s_add_u32 s%d, s%d, %d' % (sT[0], sT[0], 128 * 7680))
    A('buffer_load_dwordx4 %s, %s, s%d offen lds' % (v(vWM), srd(sWM), sT[0]), tag='wm')
opt_end(lb2)
opt_end(lb)
V.put(vCo)
V.put(vWM)
if OPT['stamps']:
    nstamp[0] = 1
    stamp_names.append('start')
A('s_load_dword s%d, s[%d:%d], %d' % (sNONCE, sWS, sWS + 1, WS_EPOCH))
for s, off in ((sW2, 48), (sB1, 40), (sB2, 56), (sOUT, 80)):
    A('s_load_dwordx2 s[%d:%d], s[0:1], %d' % (s, s + 1, off))
stamp('crit_iss', lvl=2)
if XPOS == 2:
    A.add(XL)


def mk(fn, *args):
    x = Asm()
    fn(x, *args)
    return x


def out_of_line(cond, asm=None):
    asm = asm or A
    lb, lj = label('far'), label('back')
    asm(cond)
    asm('s_cbranch_scc1 %s' % lb)
    return lb, lj


B = Asm()
for s, n in ((sWF_, 2048 * 642), (sW1, 640 * 3072), (sW2, 1536 * 1280), (sB1, 3072), (sB2, 1280), (sOUT, 2621440)):
    B('s_mov_b32 s%d, %d' % (s + 2, n))
    B('s_mov_b32 s%d, 0x20000' % (s + 3))
B('v_lshlrev_b32 %s, 4, %s' % (v(vL16), v(vLane)))
B('v_lshlrev_b32 %s, 3, %s' % (v(vL8), v(vLane)))
B('v_and_b32 %s, 31, %s' % (v(vKD), v(vLane)))
B('v_lshrrev_b32 %s, 5, %s' % (v(vH), v(vLane)))
B('s_mov_b32 s%d, 0' % sSPIN)
B('s_mov_b32 s%d, 0xffff0000' % sMASK)
B('s_and_b32 s%d, s%d, 7' % (sJ, sL))
B('s_lshr_b32 s%d, s%d, 3' % (sG, sL))
B('s_mul_i32 s%d, s%d, %d' % (sPB, sL, PBLK))
B('s_add_u32 s%d, s%d, %d' % (sPB, sPB, WS_P))
vOOB = V.get(1, 'l')
vKW = V.get(1)
vQ = V.get(1, 'l')
vC8 = V.get(1, 'l')
vT64 = V.get(1)
B('v_lshrrev_b32 %s, 2, %s' % (v(vQ), v(vLane)))
B('v_and_b32 %s, 3, %s' % (v(vC8), v(vLane)))
B('s_lshl_b32 s%d, s%d, 5' % (sT[0], sW))
B('v_add_u32 %s, s%d, %s' % (v(vKW), sT[0], v(vKD)))
B('v_mov_b32 %s, %d' % (v(vOOB), OOB))
B('s_mul_i32 s%d, s%d, 3072' % (sRING, sW))
B('s_lshr_b32 s%d, s%d, 5' % (sXCD, sL))
B('s_andn2_b32 s%d, s%d, 7' % (sT[0], sG))
B('s_lshr_b32 s%d, s%d, 2' % (sT[1], sIDX))
B('s_add_u32 s%d, s%d, s%d' % (sG1, sT[0], sT[1]))
B('s_and_b32 s%d, s%d, 4' % (sT[0], sG))
B('s_and_b32 s%d, s%d, 3' % (sT[1], sIDX))
B('s_add_u32 s%d, s%d, s%d' % (sJ1, sT[0], sT[1]))
if not OPT.get('pair', 1):
    B('s_mov_b32 s%d, s%d' % (sG1, sG))
    B('s_mov_b32 s%d, s%d' % (sJ1, sJ))
if OPT.get('pair', 2) == 2:
    B('s_mov_b32 s%d, s%d' % (sG, sG1))
    B('s_mov_b32 s%d, s%d' % (sJ, sJ1))
vFILL = V.get(4, 'l')
for i in range(4):
    B('v_mov_b32 %s, -1' % v(vFILL + i))
B('s_cmp_ge_u32 s%d, 2' % sW)
B('s_cselect_b32 s%d, s%d, s%d' % (sWF_, sWIp, sWRp))
B('s_cselect_b32 s%d, s%d, s%d' % (sWF_ + 1, sWIp + 1, sWRp + 1))
B('s_lshl_b32 s%d, s%d, 13' % (sT[0], sW))
B('s_add_u32 s%d, s%d, (L_tab-L_pc)' % (sT[1], sT[0]))
B('v_add_u32 %s, s%d, %s' % (v(vt + 2), sT[1], v(vL16)))
B('v_add_co_u32 %s, vcc, s6, %s' % (v(vPC), v(vt + 2)))
B('v_lshlrev_b32 %s, 6, %s' % (v(vT64), v(vQ)))
B('v_lshl_add_u32 %s, %s, 3, %s' % (v(vT64), v(vC8), v(vT64)))
B('v_addc_co_u32 %s, vcc, 0, %s, vcc' % (v(vPC + 1), v(vPC + 1)))
vTch = V.get(5, 'mh', 1)
B('s_mul_i32 s%d, s%d, 642' % (sT[0], sXCD))
B('s_and_b32 s%d, s%d, 1' % (sT[1], sW))
B('s_lshl1_add_u32 s%d, s%d, s%d' % (sT[1], sIDX, sT[1]))
B('s_mul_i32 s%d, s%d, %d' % (sT[1], sT[1], 4 * 5136))
B('s_add_u32 s%d, s%d, s%d' % (sT[0], sT[0], sT[1]))
B('s_and_b32 s%d, s%d, -4' % (sT[0], sT[0]))
B('v_bfe_u32 %s, %s, 3, 2' % (v(vt), v(vLane)))
B('v_and_b32 %s, 7, %s' % (v(vt + 3), v(vLane)))
B('v_min_u32 %s, 5, %s' % (v(vt + 1), v(vt + 3)))
B('v_mul_u32_u24 %s, 5136, %s' % (v(vt), v(vt)))
B('v_lshl_add_u32 %s, %s, 7, s%d' % (v(vt + 1), v(vt + 1), sT[0]))
B('v_add_u32 %s, %s, %s' % (v(vTch), v(vt), v(vt + 1)))
vMG, vMA = V.get(1), V.get(2, 'mh', 1)
B('v_lshrrev_b32 %s, 3, %s' % (v(vMG), v(vLane)))
B('s_lshl_b32 s%d, s%d, 11' % (sT[0], sW))
B('v_lshl_add_u32 %s, %s, 8, s%d' % (v(vMG), v(vMG), sT[0]))
B('v_lshl_add_u32 %s, %s, 4, %s' % (v(vMG), v(vt + 3), v(vMG)))
B('s_lshl_b32 s%d, s%d, 2' % (sT[0], sW))
B('v_add_u32 %s, s%d, %s' % (v(vMA), sT[0], v(vL16)))
B('s_mul_i32 s%d, s%d, 2560' % (sT[0], sW))
B('v_add_u32 %s, s%d, %s' % (v(vMA + 1), sT[0], v(vL4)))
B('s_mul_i32 s%d, s%d, 1.0' % (sADD, sW))
B('s_lshl_b32 s%d, s%d, 13' % (sADD + 1, sW))
B('s_add_u32 s%d, s%d, %d' % (sADD + 1, sADD + 1, WS_MODX + 8192))
B('s_lshr_b32 s%d, s%d, 6' % (sT[0], sL))
B('s_lshl_b32 s%d, s%d, 5' % (sT[0], sT[0]))
B('s_add_u32 s%d, s%d, s%d' % (sT[0], sT[0], sIDX))
B('s_lshl2_add_u32 s%d, s%d, s%d' % (sT[0], sT[0], sW))
B('s_mul_i32 s%d, s%d, 15' % (sT[0], sT[0]))
B('v_min_u32 %s, 14, %s' % (v(vt), v(vLane)))
B('v_add_u32 %s, s%d, %s' % (v(vt), sT[0], v(vt)))
B('v_mul_u32_u24 %s, 43691, %s' % (v(vt + 1), v(vt)))
B('v_lshrrev_b32 %s, 19, %s' % (v(vt + 1), v(vt + 1)))
B('s_and_b32 s%d, s%d, 1' % (sT[0], sXCD))
B('v_add_u32 %s, s%d, %s' % (v(vt + 1), sT[0], v(vt + 1)))
B('v_mul_u32_u24 %s, 12, %s' % (v(vt + 1), v(vt + 1)))
B('v_add_lshl_u32 %s, %s, %s, 7' % (v(vTch + 1), v(vt), v(vt + 1)))

TB = Asm()
TB('s_lshl2_add_u32 s%d, s%d, s%d' % (sT[0], sIDX, sW))
TB('s_mul_i32 s%d, s%d, %d' % (sT[1], sT[0], 5 * 7680))
TB('s_mul_i32 s%d, s%d, 640' % (sT[2], sXCD))
TB('s_add_u32 s%d, s%d, s%d' % (sT[1], sT[1], sT[2]))
TB('s_add_u32 s%d, s%d, 2560' % (sT[1], sT[1]))
TB('v_lshrrev_b32 %s, 3, %s' % (v(vt), v(vLane)))
TB('v_min_u32 %s, 4, %s' % (v(vt), v(vt)))
TB('v_mul_u32_u24 %s, 7680, %s' % (v(vt), v(vt)))
TB('v_and_b32 %s, 7, %s' % (v(vt + 1), v(vLane)))
TB('v_min_u32 %s, 4, %s' % (v(vt + 1), v(vt + 1)))
TB('v_lshl_add_u32 %s, %s, 7, s%d' % (v(vt + 1), v(vt + 1), sT[1]))
TB('v_add_u32 %s, %s, %s' % (v(vTch + 2), v(vt), v(vt + 1)))
TB('s_lshl2_add_u32 s%d, s%d, s%d' % (sT[0], sL, sW))
TB('s_mul_i32 s%d, s%d, %d' % (sT[0], sT[0], 15 * 128))
TB('v_min_u32 %s, 14, %s' % (v(vt), v(vLane)))
TB('v_lshl_add_u32 %s, %s, 7, s%d' % (v(vTch + 3), v(vt), sT[0]))


def trig(asm, dst, inv):
    t = V.get(6)
    asm('v_and_b32 %s, 4, %s' % (v(t), v(vLane)))
    asm('v_bfe_u32 %s, %s, 3, 1' % (v(t + 1), v(vLane)))
    asm('v_lshl_add_u32 %s, %s, 1, %s' % (v(t), v(t + 1), v(t)))
    asm('v_bfe_u32 %s, %s, 1, 1' % (v(t + 1), v(vLane)))
    asm('v_add_u32 %s, %s, %s' % (v(t), v(t), v(t + 1)))
    asm('v_and_b32 %s, 1, %s' % (v(t + 1), v(vLane)))
    asm('v_lshlrev_b32 %s, 9, %s' % (v(t + 1), v(t + 1)))
    if not inv:
        asm('v_lshl_add_u32 %s, %s, 10, s%d' % (v(t + 2), v(vH), sL))
        asm('v_mad_u32_u24 %s, %s, %s, %s' % (v(t + 2), v(t), v(t + 2), v(t + 1)))
        asm('v_lshlrev_b32 %s, 8, %s' % (v(t + 3), v(t)))
    else:
        asm('v_lshl_add_u32 %s, %s, 8, s%d' % (v(t + 3), v(t), sL))
        asm('v_lshlrev_b32 %s, 2, %s' % (v(t + 2), v(vH)))
        asm('v_mul_u32_u24 %s, %s, %s' % (v(t + 2), v(t + 2), v(t + 3)))
        asm('v_sub_u32 %s, %s, %s' % (v(t + 2), v(t + 2), v(t + 1)))
    sc = '0x5f800000' if inv else '0x1f800000'
    for q in range(4):
        asm('v_and_b32 %s, 2047, %s' % (v(t + 4), v(t + 2)))
        asm('v_cvt_f32_u32 %s, %s' % (v(t + 4), v(t + 4)))
        asm('v_mul_f32 %s, 0x3a000000, %s' % (v(t + 4), v(t + 4)))
        asm('v_sin_f32 %s, %s' % (v(t + 5), v(t + 4)))
        asm('v_cos_f32 %s, %s' % (v(t + 4), v(t + 4)))
        asm('v_add_u32 %s, %s, %s' % (v(t + 2), v(t + 2), v(t + 3)))
        asm('v_mul_f32 %s, %s, %s' % (v(t + 5), sc, v(t + 5)))
        asm('v_mul_f32 %s, %s, %s' % (v(t + 4), sc, v(t + 4)))
        asm('v_cvt_pk_bf16_f32 %s, %s, %s%s' % (v(dst + q), v(t + 4), '-' if inv else '', v(t + 5)))
    V.put(t, 6)


def j_tw(asm):
    asm('buffer_load_dword %s, %s, %s, 0 offen' % (v(vJunk + 1), v(vTch), srd(sWF_)), tag='junk')


def j_tw1(asm):
    if not OPT.get('now1'):
        asm('buffer_load_dword %s, %s, %s, 0 offen' % (v(vJunk + 2), v(vTch + 1), srd(sW1)), tag='junk')


def j_tm(asm):
    asm('buffer_load_dword %s, %s, %s, 0 offen' % (v(vTch + 2), v(vTch + 2), srd(sWM)), tag='junk')


def j_tw2(asm):
    asm('buffer_load_dword %s, %s, %s, 0 offen' % (v(vTch + 3), v(vTch + 3), srd(sW2)), tag='junk')


def j_to(asm):
    g = Asm()
    g('s_mul_i32 s%d, s%d, 10240' % (sBG[0], sG))
    g('s_mul_i32 s%d, s%d, %d' % (sBG[1], sW, 2 * 327680))
    g('s_add_u32 s%d, s%d, s%d' % (sBG[0], sBG[0], sBG[1]))
    g('v_and_b32 %s, 1, %s' % (v(vTch + 4), v(vLane)))
    g('v_mul_u32_u24 %s, 327680, %s' % (v(vTch + 4), v(vTch + 4)))
    g('v_bfe_u32 %s, %s, 1, 2' % (v(tmp), v(vLane)))
    g('v_mul_u32_u24 %s, 3392, %s' % (v(tmp), v(tmp)))
    g('v_add3_u32 %s, %s, %s, s%d' % (v(vTch + 4), v(vTch + 4), v(tmp), sBG[0]))
    g('buffer_load_dword %s, %s, %s, 0 offen' % (v(vTch + 4), v(vTch + 4), srd(sOUT)), tag='junk')
    grp(asm, g)


def j_to2(asm):
    g = Asm()
    g('v_and_b32 %s, 3, %s' % (v(vTch + 4), v(vLane)))
    g('v_mul_u32_u24 %s, 873728, %s' % (v(vTch + 4), v(vTch + 4)))
    g('buffer_load_dword %s, %s, %s, 0 offen' % (v(vTch + 4), v(vTch + 4), srd(sOUT)), tag='junk')
    grp(asm, g)


def early(asm, nm):
    for x in CFG[nm].split(','):
        if x:
            globals()['j_' + x](asm)


TBE = any(x in CFG['PRE'] + CFG['SIL'] for x in ('tm', 'tw2'))
if TBE:
    B.add(TB)
early(B, 'PRE')
vA8, vA8i = V.get(4), V.get(4)
if OPT.get('trig0', 0):
    trig(B, vA8, False)
B('s_mul_i32 s%d, s%d, 0x9e3779b1' % (sT[0], sNONCE))
B('s_add_u32 s%d, s%d, 0x7f4a7c15' % (sT[0], sT[0]))
B('s_lshr_b32 s%d, s%d, 15' % (sT[1], sT[0]))
B('s_xor_b32 s%d, s%d, s%d' % (sT[0], sT[0], sT[1]))
B('s_mul_i32 s%d, s%d, 0x85ebca6b' % (sT[0], sT[0]))
B('s_lshr_b32 s%d, s%d, 13' % (sT[1], sT[0]))
B('s_xor_b32 s%d, s%d, s%d' % (sT[0], sT[0], sT[1]))
B('s_mov_b32 s%d, 0x55555555' % sT[5])
B('s_or_b32 s%d, s%d, 16' % (sT[0], sT[0]))
B('s_lshr_b32 s%d, s%d, 1' % (sT[1], sNONCE))
B('s_and_b32 s%d, s%d, s%d' % (sT[1], sT[1], sT[5]))
B('s_orn2_b32 s%d, s%d, s%d' % (sT[2], sNONCE, sT[1]))
B('s_and_b32 s%d, s%d, s%d' % (sT[2], sT[2], sT[5]))
B('s_and_b32 s%d, s%d, s%d' % (sT[3], sT[0], sT[1]))
B('s_xor_b32 s%d, s%d, s%d' % (sT[3], sT[3], sT[2]))
B('s_andn2_b32 s%d, s%d, s%d' % (sT[4], sT[2], sT[0]))
B('s_xor_b32 s%d, s%d, s%d' % (sT[4], sT[4], sT[1]))
B('s_lshl1_add_u32 s%d, s%d, s%d' % (sNONCE, sT[3], sT[4]))
B('s_lshl1_add_u32 s%d, s%d, s%d' % (sT[1], sT[1], sT[2]))
B('s_and_b32 s%d, s%d, 3' % (sT[1], sT[1]))
B('s_lshr_b32 s%d, s%d, 2' % (sT[2], sNONCE))
B('s_xor_b32 s%d, s%d, s%d' % (sT[2], sT[2], sNONCE))
B('s_lshl_b32 s%d, s%d, 2' % (sT[2], sT[2]))
B('s_cselect_b32 s%d, 0, s%d' % (sT[1], sT[1]))
B('s_xor_b32 s%d, s%d, s%d' % (sNONCE, sNONCE, sT[1]))
B('s_lshr_b32 s%d, s%d, 1' % (sT[1], sNONCE))
B('s_xor_b32 s%d, s%d, s%d' % (sT[2], sT[1], sNONCE))
B('s_and_b32 s%d, s%d, s%d' % (sT[1], sT[1], sT[5]))
B('s_and_b32 s%d, s%d, s%d' % (sT[2], sT[2], sT[5]))
B('s_lshl1_add_u32 s%d, s%d, s%d' % (sTAGZ, sT[2], sT[1]))
B('s_mov_b32 s%d, 0x40004000' % sTM)
A.add(B)
stamp('pre_wm', lvl=3)


def silu(asm, x, t, n):
    for i in range(n):
        asm('v_mul_f32 %s, 0xbfb8aa3b, %s' % (v(t + i), v(x + i)))
    for i in range(n):
        asm('v_exp_f32 %s, %s' % (v(t + i), v(t + i)))
    for i in range(n):
        asm('v_add_f32 %s, 1.0, %s' % (v(t + i), v(t + i)))
    for i in range(n):
        asm('v_rcp_f32 %s, %s' % (v(t + i), v(t + i)))
    for i in range(n):
        asm('v_mul_f32 %s, %s, %s' % (v(x + i), v(x + i), v(t + i)))


def w2_reformat(LW, tag, mid=None):
    ad, f = V.get(2, 'mh', 1), V.get(24)
    sD = [6, 7]
    A('s_mul_i32 s%d, s%d, 205' % (sT[1], sNU))
    A('s_lshr_b32 s%d, s%d, 10' % (sT[1], sT[1]))
    A('s_mul_i32 s%d, s%d, 5' % (sT[2], sT[1]))
    A('s_sub_u32 s%d, s%d, s%d' % (sT[0], sNU, sT[2]))
    A('s_lshl2_add_u32 s%d, s%d, s%d' % (sT[0], sT[0], sW))
    A('s_lshr_b32 s%d, s%d, 1' % (sT[2], sT[0]))
    A('s_mul_i32 s%d, s%d, 238' % (sT[2], sT[2]))
    A('s_and_b32 s%d, s%d, 1' % (sT[3], sT[0]))
    A('s_add_u32 s%d, s%d, s%d' % (sT[2], sT[2], sT[3]))
    A('s_add_u32 s%d, s%d, s%d' % (sT[2], sT[2], sT[0]))
    A('s_mul_i32 s%d, s%d, 480' % (sT[3], sT[0]))
    A('s_sub_u32 s%d, s%d, %d' % (sT[3], sT[3], 480 * 16 - 4))
    A('s_cmp_lt_u32 s%d, 16' % sT[0])
    A('s_cselect_b32 s%d, s%d, s%d' % (sT[2], sT[2], sT[3]))
    A('s_cselect_b32 s%d, 1, 240' % sT[3])
    A('s_mul_i32 s%d, s%d, 15' % (sT[4], sT[1]))
    A('s_add_u32 s%d, s%d, s%d' % (sT[2], sT[2], sT[4]))
    A('s_add_u32 s%d, s%d, s%d' % (sT[3], sT[3], sT[2]))
    for k in range(2):
        A('s_lshl_b32 s%d, s%d, 10' % (sD[k], sT[2 + k]))
    A('s_lshr_b32 s%d, s%d, 1' % (sT[2], sT[1]))
    A('s_mul_i32 s%d, s%d, %d' % (sT[2], sT[2], 192 * 1280))
    A('s_lshl_b32 s%d, s%d, 6' % (sT[0], sT[0]))
    A('s_add_u32 s%d, s%d, s%d' % (sT[0], sT[0], sT[2]))
    A('s_and_b32 s%d, s%d, 1' % (sT[1], sT[1]))
    A('v_mul_u32_u24 %s, 1280, %s' % (v(ad), v(vQ)))
    A('v_lshl_add_u32 %s, %s, 4, %s' % (v(ad), v(vC8), v(ad)))
    A('v_add_u32 %s, s%d, %s' % (v(ad), sT[0], v(ad)))
    A('s_mul_i32 s%d, s%d, %d' % (sT[2], sT[1], 40 * 1280))
    A('v_mul_u32_u24 %s, s%d, %s' % (v(ad + 1), sT[2], v(vH)))
    A('v_add_u32 %s, %s, %s' % (v(ad + 1), v(ad + 1), v(ad)))
    A('s_lshl1_add_u32 s%d, s%d, %d' % (sT[0], sRING, LW))
    for e in range(3):
        for rd in range(2):
            r0 = 48 * e + 16 * rd
            r1 = 144 + 16 * rd if e == 0 else 96 * (e - 1) + 32 + 8 * rd
            A('s_mul_i32 s%d, s%d, %d' % (sT[2], sT[1], (r1 - r0) * 1280))
            A('s_add_u32 s%d, s%d, %d' % (sT[2], sT[2], r0 * 1280))
            A('s_add_u32 m0, s%d, %d' % (sT[0], 2048 * e + 1024 * rd))
            A('buffer_load_dwordx4 %s, %s, s%d offen lds' % (v(ad + (e > 0)), srd(sW2), sT[2]), tag='w2raw')
    A('v_add_u32 %s, s%d, %s' % (v(ad), sT[0], v(vT64)))
    if mid:
        mid()
    A.wait_tag('w2raw')
    for e in range(3):
        for tt_ in range(2):
            for rd in range(2):
                A('ds_read_b64_tr_b16 %s, %s offset:%d' % (v(f + 8 * e + 4 * tt_ + 2 * rd, 2), v(ad), 2048 * e + 1024 * rd + 32 * tt_))
    for e in range(3):
        for tt_ in range(2):
            A('s_add_u32 s%d, s%d, %d' % (sT[2], sD[tt_], WS_W2F + 5120 * e))
            A('buffer_store_dwordx4 %s, %s, %s, s%d offen sc1' % (v(f + 8 * e + 4 * tt_, 4), v(vL16), srd(sWS), sT[2]), tag=tag)
    A('s_nop 1')
    V.put(ad, 2)
    V.put(f, 24)


lfar, lback = out_of_line('s_cmp_ge_u32 s%d, 20' % sIDX)
A.opt_begin()
t = V.get(8)
A('s_lshl_b32 s%d, s%d, 8' % (sT[0], sW))
A('v_add_u32 %s, s%d, %s' % (v(t + 4), sT[0], v(vL4)))
A('s_add_u32 s%d, s%d, %d' % (sT[0], sT[0], L_SILU))
A('v_lshl_add_u32 %s, %s, 3, s%d' % (v(t + 5), v(vG), sT[0]))
A('s_lshl_b32 s%d, s%d, 10' % (sT[0], sW))
A('v_add_u32 %s, s%d, %s' % (v(t + 6), sT[0], v(vL8)))
A('s_lshl_b32 s%d, s%d, 6' % (sT[0], sW))
A('v_lshl_add_u32 %s, %s, 4, s%d' % (v(t + 7), v(vG), sT[0]))
A('v_lshlrev_b32 %s, 16, %s' % (v(t), v(vC)))
A('v_and_b32 %s, s%d, %s' % (v(t + 1), sMASK, v(vC)))
silu(A, t, t + 2, 2)
A('v_cvt_pk_bf16_f32 %s, %s, %s' % (v(t), v(t), v(t + 1)))
A('ds_write_b32 %s, %s offset:%d' % (v(t + 4), v(t), L_SILU))
vSB, f, d, p = V.get(12), V.get(12), V.get(4), V.get(8)
for i in range(3):
    A('ds_read2_b64 %s, %s offset0:%d offset1:%d' % (v(vSB + 4 * i, 4), v(t + 5), 8 * i, 8 * i + 4))
A('s_lshl_b32 s%d, s%d, 7' % (sT[0], sTAU))
A('s_add_u32 s%d, s%d, %d' % (sT[0], sT[0], WS_MODX))
A('v_mov_b32 %s, s%d' % (v(t + 1), sNONCE))
A('v_mov_b32 %s, s%d' % (v(t + 3), sNONCE))
if XPOS == 1:
    A.add(XL)
early(A, 'SIL')
stamp('silu', lvl=2)
A.wait_tag('wm')
stamp('wm_land', lvl=2)
for i in range(3):
    for rd in range(2):
        A('ds_read_b64_tr_b16 %s, %s offset:%d' % (v(f + 4 * i + 2 * rd, 2), v(t + 6), L_EX + 4096 * i + 512 * rd))
A('%s %s, %s, %s, 0' % (MF16, v(d, 4), v(f, 4), v(vSB, 4)))
A('%s %s, %s, %s, %s' % (MF16, v(d, 4), v(f + 4, 4), v(vSB + 4, 4), v(d, 4)))
lb2 = opt('s_cmp_ge_u32 s%d, 2' % sW)
A('%s %s, %s, %s, %s' % (MF16, v(d, 4), v(f + 8, 4), v(vSB + 8, 4), v(d, 4)))
opt_end(lb2)
A('ds_write_b128 %s, %s offset:%d' % (v(t + 7), v(d, 4), L_RED))
barrier()
lb = opt('s_cmp_lg_u32 s%d, 3' % sW)
for i in range(4):
    A('ds_read_b64 %s, %s offset:%d' % (v(p + 2 * i, 2), v(vL8), L_RED + 64 * i))
A('s_mov_b64 exec, 0xff')
A('v_pk_add_f32 %s, %s, %s' % (v(p, 2), v(p, 2), v(p + 2, 2)))
A('v_pk_add_f32 %s, %s, %s' % (v(p + 4, 2), v(p + 4, 2), v(p + 6, 2)))
A('v_add_f32 %s, %s, %s' % (v(t + 2), v(p + 1), v(p + 5)))
A('v_add_f32 %s, %s, %s' % (v(t), v(p), v(p + 4)))
A('buffer_store_dwordx4 %s, %s, %s, s%d offen sc1' % (v(t, 4), v(vL16), srd(sWS), sT[0]), tag='pub')
A('s_mov_b64 exec, -1')
A('s_nop 1')
opt_end(lb)
for x, n in ((t, 8), (vSB, 12), (f, 12), (d, 4), (p, 8), (vC, 1)):
    V.put(x, n)
A.opt_end()
A.far_begin(lfar)
if XPOS == 1:
    A.add(XL2)
A('s_mul_i32 s%d, s%d, 10' % (sT[0], sXCD))
A('s_max_u32 s%d, s%d, 22' % (sT[1], sIDX))
A('s_add_u32 s%d, s%d, s%d' % (sT[0], sT[0], sT[1]))
A('s_sub_u32 s%d, s%d, 22' % (sNU, sT[0]))
if OPT.get('w2at', 1) == 0:
    assert 0
early(A, 'SIL')
FAR0 = len(A.l)
A.far_end(lback)
stamp('pub0', lvl=3)

vW1 = V.get(6, 'l', 1)
vW1r = V.get(1, 'l')
vWD = V.get(1)
vb2, vb1 = V.get(4, 'l'), V.get(6, 'l')
W1S = dict(iss=0, drn=0, lim=20)


def w1_addr(asm, late):
    asm('s_mul_i32 s%d, s%d, 384' % (sT[0], sJ1))
    asm('s_mul_i32 s%d, s%d, 96' % (sT[1], sW))
    asm('s_add_u32 s%d, s%d, s%d' % (sT[0], sT[0], sT[1]))
    for i in range(3):
        asm('v_add_u32 %s, %d, %s' % (v(vt), 64 * i, v(vLane)))
        asm('v_mul_u32_u24 %s, 10923, %s' % (v(vt), v(vt)))
        asm('v_lshrrev_b32 %s, 16, %s' % (v(vt + 1), v(vt)))
        if not late:
            asm('v_lshrrev_b32 %s, 4, %s' % (v(vt + 2), v(vt + 1)))
            asm('v_bfe_u32 %s, %s, 1, 1' % (v(vt + 3), v(vt + 1)))
            asm('v_lshl_add_u32 %s, %s, 1, %s' % (v(vt + 2), v(vt + 2), v(vt + 3)))
            asm('v_bfe_u32 %s, %s, 2, 2' % (v(vt + 3), v(vt + 1)))
            asm('v_lshl_add_u32 %s, %s, 6, %s' % (v(vt + 2), v(vt + 2), v(vt + 3)))
            asm('v_and_b32 %s, 1, %s' % (v(vt + 3), v(vt + 1)))
            asm('v_lshl_add_u32 %s, %s, 1, %s' % (v(vt + 2), v(vt + 2), v(vt + 3)))
        else:
            asm('v_bfe_u32 %s, %s, 2, 2' % (v(vt + 2), v(vt + 1)))
            asm('v_lshrrev_b32 %s, 4, %s' % (v(vt + 3), v(vt + 1)))
            asm('v_lshl_add_u32 %s, %s, 1, %s' % (v(vt + 2), v(vt + 2), v(vt + 3)))
            asm('v_and_b32 %s, 3, %s' % (v(vt + 3), v(vt + 1)))
            asm('v_lshl_add_u32 %s, %s, 2, %s' % (v(vt + 2), v(vt + 2), v(vt + 3)))
        asm('v_lshlrev_b32 %s, 5, %s' % (v(vt + 2), v(vt + 2)))
        asm('v_sub_u32 %s, %s, %s' % (v(vt + 2), v(vt + 2), v(vt + 1)))
        asm('v_mul_u32_u24 %s, 96, %s' % (v(vt + 2), v(vt + 2)))
        asm('v_add3_u32 %s, %s, %s, s%d' % (v(vW1 + 3 * late + i), v(vt + 2), v(vL16), sT[0]))
    W1S['late'] = late


def slot(q):
    return (q + 4) % 8


def j_w1(asm, n):
    for q in range(W1S['iss'], min(20, W1S['iss'] + n)):
        W1S['iss'] = q + 1
        prev = q - 8
        assert prev < W1S['drn'] and q < W1S['lim'] and (W1S['late'] or q < 16), (q, W1S)
        if OPT.get('now1'):
            continue
        row = 8 * q if q < 16 else 512 + 32 * (q - 16)
        for i in range(3):
            g = Asm()
            if i == 0:
                g('s_add_u32 m0, s%d, %d' % (sRING, L_RING + 12288 * slot(q)))
                g('s_mov_b32 s%d, %d' % (sBG[0], row * 3072))
            g('buffer_load_dwordx4 %s, %s, s%d offen offset:%d lds' % (v(vW1 + 3 * (q >= 16) + i), srd(sW1), sBG[0], 1024 * i), tag='w1_%d' % q)
            grp(asm, g)


def w1_drain(asm, q1):
    q0 = W1S['drn']
    if q1 <= q0:
        return
    W1S['drn'] = q1
    asm.wait_tag(['w1_%d' % q for q in range(q0, q1)])
    hi = None
    for q in range(q0, q1):
        s = slot(q)
        if hi != s // 4:
            hi = s // 4
            asm('v_add_u32 %s, %d, %s' % (v(tmp), L_RING + 49152 * hi, v(vW1r)))
        for c in range(3):
            for rd in range(2):
                asm('ds_read_b64_tr_b16 %s, %s offset:%d' % (a((3 * q + c) * 4 + 2 * rd, 2), v(tmp), 12288 * (s % 4) + 1536 * rd + 32 * c))
    asm.wait_lds()


def j_const(asm):
    for hlf in range(2):
        g = Asm()
        if hlf == 1:
            g('v_add_co_u32 %s, vcc, 4096, %s' % (v(vPC), v(vPC)))
        g('s_lshl_b32 s%d, s%d, 13' % (sBG[0], sW))
        g('s_add_u32 m0, s%d, %d' % (sBG[0], L_CONST + 4096 * hlf))
        if hlf == 1:
            g('v_addc_co_u32 %s, vcc, 0, %s, vcc' % (v(vPC + 1), v(vPC + 1)))
        for i in range(4):
            g('global_load_lds_dwordx4 %s, off offset:%d' % (v(vPC, 2), 1024 * i), tag='const')
            grp(asm, g)
            g = Asm()


def j_warmp(asm):
    g = Asm()
    g('s_mul_i32 s%d, s%d, 2816' % (sBG[1], sW))
    g('s_add_u32 s%d, s%d, s%d' % (sBG[1], sBG[1], sPB))
    for i in range(3):
        if i == 2:
            g('s_mov_b32 exec_hi, 0xffff')
        g('buffer_store_dwordx4 %s, %s, %s, s%d offen offset:%d sc1' % (v(vFILL, 4), v(vL16), srd(sWS), sBG[1], 1024 * i), tag='warmp')
        if i == 2:
            g('s_mov_b64 exec, -1')
        grp(asm, g)
        g = Asm()


HC = [0]


def j_hclr(asm, n):
    for i in range(HC[0], HC[0] + n):
        g = Asm()
        if i % 3 == 0 or i == HC[0]:
            g('s_lshl2_add_u32 s%d, s%d, s%d' % (sBG[1], sL, sW))
            g('s_mul_i32 s%d, s%d, 6144' % (sBG[1], sBG[1]))
            g('s_add_u32 s%d, s%d, %d' % (sBG[1], sBG[1], WS_H + 3072 * (i // 3)))
        g('buffer_store_dwordx4 %s, %s, %s, s%d offen offset:%d sc1' % (v(vFILL, 4), v(vL16), srd(sWS), sBG[1], 1024 * (i % 3)), tag='clrh')
        grp(asm, g)
    HC[0] += n


WFC = [0]


def j_wf(asm, n):
    for i in range(WFC[0], WFC[0] + n):
        g = Asm()
        g('s_lshl_b32 s%d, s%d, 12' % (sBG[1], sW))
        g('s_add_u32 m0, s%d, %d' % (sBG[1], L_GW + 1024 * i))
        g('s_mov_b32 s%d, %d' % (sBG[1], 32 * 5136 * i))
        g('buffer_load_dwordx4 %s, %s, s%d offen lds' % (v(vWD), srd(sWF_), sBG[1]), tag='wf')
        grp(asm, g)
    WFC[0] += n


def j_bias(asm):
    g = Asm()
    g('s_lshl_b32 s%d, s%d, 7' % (sBG[1], sJ))
    g('v_lshlrev_b32 %s, 3, %s' % (v(vb2), v(vN)))
    g('buffer_load_dwordx2 %s, %s, %s, s%d offen' % (v(vb2, 2), v(vb2), srd(sB2), sBG[1]))
    grp(asm, g)
    g = Asm()
    g('s_lshl_b32 s%d, s%d, 5' % (sBG[1], sJ))
    g('v_lshlrev_b32 %s, 3, %s' % (v(vb2 + 2), v(vC8)))
    g('buffer_load_dwordx2 %s, %s, %s, s%d offen offset:1024' % (v(vb2 + 2, 2), v(vb2 + 2), srd(sB2), sBG[1]))
    grp(asm, g)
    g = Asm()
    g('s_lshl2_add_u32 s%d, s%d, s%d' % (sBG[1], sJ1, sW))
    g('s_mul_i32 s%d, s%d, 96' % (sBG[1], sBG[1]))
    g('v_lshlrev_b32 %s, 3, %s' % (v(vb1 + 4), v(vG)))
    for c in range(3):
        g('buffer_load_dwordx2 %s, %s, %s, s%d offen offset:%d' % (v(vb1 + 2 * c, 2), v(vb1 + 4), srd(sB1), sBG[1], 32 * c))
        grp(asm, g)
        g = Asm()


W2C = [0]


def j_w2(asm, n):
    w2_loads(asm, W2C[0], W2C[0] + n)
    W2C[0] += n


WEIGHT = dict(wf=5, hclr=3, warmp=3, tw=2, tw1=2, tm=2, tw2=2)


def jobs(slot_name, weights=False):
    out = []
    for js in [x for x in CFG.get(slot_name, '').split(',') if x]:
        nm, _, n = js.partition(':')
        x = Asm()
        globals()['j_' + nm](x, *([int(n)] if n else []))
        out += [(y, WEIGHT.get(nm, 1)) if weights else y for y in x.l]
    return out


if not TBE:
    A.add(TB)
B = Asm()
if not OPT.get('trig0', 0):
    trig(B, vA8, False)
w1_addr(B, False)
B('v_mul_u32_u24 %s, 96, %s' % (v(vW1r), v(vQ)))
B('v_lshl_add_u32 %s, %s, 3, %s' % (v(vW1r), v(vC8), v(vW1r)))
B('v_add_u32 %s, s%d, %s' % (v(vW1r), sRING, v(vW1r)))
A.l += interleave(B, jobs('PUB'))
B = Asm()
vXF = [V.get(10, 'l'), V.get(10, 'l')]
for r in range(2):
    for j in range(5):
        lo, hi = (j, 4 + j) if j < 4 else (8, 9)
        B('v_lshlrev_b32 %s, 16, %s' % (v(vXF[r] + lo), v(vXR + 5 * r + j)))
        B('v_and_b32 %s, s%d, %s' % (v(vXF[r] + hi), sMASK, v(vXR + 5 * r + j)))
V.put(vXR, 10)
ln_stats(B, vXF)
vNn = [V.get(10), V.get(10)]
ln_apply(B, vNn, vXF)
A.l += interleave(B, jobs('PUB2'))
V.put(vPC, 2)
warm(A, ['pg1', 's0r0', 'pg2', 's0r2'])
stamp('ln1', lvl=2)
ACK = OPT.get('ack', 1)
if ACK & 1:
    A.wait_tag(['pub', 'const'])
if OPT.setdefault('wj', 1):
    lb = opt('s_cmp_lt_u32 s%d, 20' % sIDX)
    A('s_waitcnt vmcnt(0)')
    if OPT['wj'] > 1:
        A('s_sleep %d' % OPT['wj'])
    opt_end(lb)
if ACK & 1:
    barrier()
stamp('b0b', lvl=3)


def mod_gather_loads(asm, d, i0, i1):
    for i in range(i0, i1):
        if i < 2:
            asm('s_mov_b32 s%d, %d' % (sT[5], WS_MODX + 10240 * i))
        for kh in range(2):
            asm('buffer_load_dwordx4 %s, %s, %s, s%d offen offset:%d sc1' % (v(d + 8 * i + 4 * kh, 4), v(vMG), srd(sWS), sT[5] if i < 2 else sADD + 1, 128 * kh))


vMD = V.get(24)
mod_gather_loads(A, vMD, 0, 2)
lb = opt('s_cmp_ge_u32 s%d, 2' % sW)
mod_gather_loads(A, vMD, 2, 3)
opt_end(lb)
K, KA = {}, {}
B = Asm()
if not ACK & 1:
    B.wait_tag('const')
    B('s_barrier')
na, nb = 0, 0
ca_ = V.get(1)
B('v_add_u32 %s, %d, %s' % (v(ca_), L_CONST, v(vL16)))
for i, n in enumerate(TN):
    if n.startswith('TW'):
        K[n] = V.get(4, 'l' if n.startswith('TW3') else 'mh')
        B('ds_read_b128 %s, %s offset:%d' % (v(K[n], 4), v(ca_), 1024 * i))
    else:
        if i < 10:
            KA[n] = a(96 + 4 * na, 4)
            na += 1
        else:
            KA[n] = a(192 + 4 * nb, 4)
            nb += 1
        B('ds_read_b128 %s, %s offset:%d' % (KA[n], v(ca_), 1024 * i))
assert 192 + 4 * nb <= 256
BC, B = B, Asm()
vAF = V.get(16)
for i in range(4):
    B('v_mov_b32 %s, 0' % v(vAF + 4 * i + 3))
vEXlo, vEXhi = [V.get(1), V.get(1)], [V.get(1), V.get(1)]
vEXa, vEXb = V.get(1), V.get(1)
B('v_mul_u32_u24 %s, 84, %s' % (v(vEXa), v(vC8)))
B('v_lshrrev_b32 %s, 2, %s' % (v(vt), v(vN)))
B('v_add_u32 %s, %s, %s' % (v(vEXa), v(vEXa), v(vt)))
B('v_sub_u32 %s, 0, %s' % (v(vt), v(vN)))
B('v_and_b32 %s, 3, %s' % (v(vt + 1), v(vt)))
B('v_ashrrev_i32 %s, 2, %s' % (v(vt), v(vt)))
B('v_mul_u32_u24 %s, 84, %s' % (v(vEXb), v(vt + 1)))
B('v_add_u32 %s, %s, %s' % (v(vEXb), v(vEXb), v(vt)))


def ex_addr(asm, lo, hi, gs, hb):
    asm('v_mul_u32_u24 %s, %d, %s' % (v(vt), gs, v(vG)))
    asm('s_add_u32 s%d, s%d, %d' % (sT[0], sRING, L_EX))
    asm('v_add_u32 %s, %s, %s' % (v(vt + 1), v(vEXa), v(vt)))
    asm('v_lshl_add_u32 %s, %s, 2, s%d' % (v(lo[0]), v(vt + 1), sT[0]))
    asm('v_add_u32 %s, 1536, %s' % (v(lo[1]), v(lo[0])))
    asm('s_add_u32 s%d, s%d, %d' % (sT[0], sT[0], 4 * hb))
    asm('v_sub_u32 %s, %s, %s' % (v(vt + 1), v(vEXb), v(vt)))
    asm('v_lshl_add_u32 %s, %s, 2, s%d' % (v(hi[0]), v(vt + 1), sT[0]))
    asm('v_add_u32 %s, 1536, %s' % (v(hi[1]), v(hi[0])))


ex_addr(B, vEXlo, vEXhi, 10, 35)
vEX8 = V.get(4, 'mh', 1)
B('v_mul_u32_u24 %s, 6144, %s' % (v(vt), v(vH)))
B('v_cmp_gt_u32 vcc, 84, %s' % v(vKW))
B('v_lshl_add_u32 %s, %s, 2, %s' % (v(vt), v(vKW), v(vt)))
B('v_mov_b32 %s, 336' % v(vt + 1))
B('v_add_u32 %s, 1008, %s' % (v(vEX8 + 3), v(vt)))
B('v_cndmask_b32 %s, 0, %s, vcc' % (v(vt + 1), v(vt + 1)))
for c in (2, 1, 0):
    B('v_sub_u32 %s, %s, %s' % (v(vEX8 + c), v(vEX8 + c + 1), v(vt + 1)))
EXO = L_EX // 256
vP = V.get(1)
B('v_mul_u32_u24 %s, 5632, %s' % (v(vP), v(vH)))
B('v_cmp_gt_u32 vcc, 88, %s' % v(vKW))
B('v_lshl_add_u32 %s, %s, 4, %s' % (v(vP), v(vKW), v(vP)))
B('v_lshlrev_b32 %s, 3, %s' % (v(vt), v(vC8)))
B('v_cndmask_b32 %s, %s, %s, vcc' % (v(vP), v(vOOB), v(vP)))
vTG = V.get(4, 'mh', 1)


def tag_masks(asm, dst, sreg):
    asm('v_lshrrev_b32_e64 %s, %s, s%d' % (v(vt), v(vt), sreg))
    asm('v_and_b32 %s, 0xff, %s' % (v(vt), v(vt)))
    asm('v_lshl_or_b32 %s, %s, 15, %s' % (v(vt), v(vt), v(vt)))
    for d in range(4):
        asm('v_lshlrev_b32 %s, %d, %s' % (v(dst + d), 14 - 2 * d, v(vt)))
        asm('v_and_b32 %s, s%d, %s' % (v(dst + d), sTM, v(dst + d)))


tag_masks(B, vTG, sNONCE)
g = Asm()
g('s_mul_i32 s%d, s%d, 642' % (sT[0], sXCD))
g('s_lshl_b32 s%d, s%d, 5' % (sT[1], sIDX))
g('s_min_u32 s%d, s%d, 610' % (sT[1], sT[1]))
g('s_add_u32 s%d, s%d, s%d' % (sT[0], sT[0], sT[1]))
g('s_and_b32 s%d, s%d, 1' % (sT[1], sW))
g('s_mul_i32 s%d, s%d, %d' % (sT[1], sT[1], 128 * 5136))
g('s_add_u32 s%d, s%d, s%d' % (sT[0], sT[0], sT[1]))
g('s_cmp_lt_u32 s%d, 21' % sIDX)
g('s_cselect_b32 s%d, s%d, %d' % (sT[0], sT[0], 0x40000000))
grp(B, g)
B('v_lshrrev_b32 %s, 1, %s' % (v(vWD), v(vLane)))
B('v_mul_u32_u24 %s, 5136, %s' % (v(vWD), v(vWD)))
B('v_and_b32 %s, 1, %s' % (v(vt), v(vLane)))
B('v_lshl_add_u32 %s, %s, 4, s%d' % (v(vt), v(vt), sT[0]))
B('v_add_u32 %s, %s, %s' % (v(vWD), v(vWD), v(vt)))
A.l += interleave(BC.l + B.l if ACK & 1 else B.l + BC.l, jobs('G0'))
stamp('s0_wait', lvl=3)
V.put(ca_)


def mod_finish(i0, i1):
    verify(A, lambda c: mod_gather_loads(c, vMD, i0, i1), lambda c: check_tags(c, [vMD + 4 * k + 3 for k in range(2 * i0, 2 * i1)], tmp), name='s0r%d' % i0)
    for i in range(i0, i1):
        b = vMD + 8 * i
        A('v_add_f32 %s, %s, %s' % (v(b), v(b), v(b + 4)))
        A('v_add_f32 %s, %s, %s' % (v(b + 2), v(b + 2), v(b + 6)))
    for i in range(i0, i1):
        b = vMD + 8 * i
        A('v_cvt_pk_bf16_f32 %s, %s, %s' % (v(b), v(b), v(b + 2)))
    for i in range(i0, i1):
        b = vMD + 8 * i
        A('v_and_b32 %s, s%d, %s' % (v(b + 1), sMASK, v(b)))
        A('v_lshlrev_b32 %s, 16, %s' % (v(b), v(b)))
        if i:
            ad_ = '1.0' if i == 1 else 's%d' % sADD
            A('v_add_f32 %s, %s, %s' % (v(b + 1), ad_, v(b + 1)))
            A('v_add_f32 %s, %s, %s' % (v(b), ad_, v(b)))
        o = L_MOD // 256 + [0, 10, 4][i]
        A('ds_write2st64_b32 %s, %s, %s offset0:%d offset1:%d' % (v(vMA + (i == 2)), v(b), v(b + 1), o, o + 5))


mod_finish(0, 2)
lb = opt('s_cmp_ge_u32 s%d, 2' % sW)
mod_finish(2, 3)
opt_end(lb)
V.put(vMD, 24)
V.put(vMG)
V.put(vMA, 2)
barrier()
W1S['lim'] = 20
stamp('s0_done', lvl=3)
GAP = OPT.get('gap', 72)
P = Asm()
vM0, vM1 = V.get(10), V.get(10)
read_mod(P, vM1, 1, vL16, vL4)
read_mod(P, vM0, 0, vL16, vL4)
for r in range(2):
    for p in range(5):
        P('v_pk_fma_f32 %s, %s, %s, %s' % (v(vNn[r] + 2 * p, 2), v(vNn[r] + 2 * p, 2), v(vM1 + 2 * p, 2), v(vM0 + 2 * p, 2)))
V.put(vM0, 10)
V.put(vM1, 10)
vD = [V.get(16), V.get(16)]
RT = [(r, t_) for r in range(2) for t_ in range(2)]
cv, mf = {}, {}
for r, t_ in RT:
    f, h, d = vAF + 8 * r + 4 * t_, vNn[r], vD[r] + 8 * t_
    cv[r, t_], mf[r, t_] = Asm(), Asm()
    cv[r, t_]('v_cvt_pk_bf16_f32 %s, %s, %s' % (v(f), v(h + 4 * t_), v(h + 4 * t_ + 1)))
    cv[r, t_]('v_cvt_pk_bf16_f32 %s, %s, %s' % (v(f + 1), v(h + 4 * t_ + 2), v(h + 4 * t_ + 3)))
    cv[r, t_]('v_cvt_pk_bf16_f32 %s, %s, %s' % (v(f + 2), v(h + 8 + t_), v(h + 8 + t_)))
    mf[r, t_]('%s %s, %s, %s, 0' % (MF16, v(d, 4), v(f, 4), KA['C1c']))
    mf[r, t_]('%s %s, %s, %s, 0' % (MF16, v(d + 4, 4), v(f, 4), KA['C1s']))
allc = sum((cv[k].l for k in RT), [])
P.l += allc[:5] + under(sum((mf[k].l for k in RT), []), allc[5:])
V.put(vNn[0], 10)
V.put(vNn[1], 10)
tts = [V.get(8) for _ in range(4)]
vBn = [V.get(4), V.get(4)]
for r, t_ in RT:
    d, tt = vD[r] + 8 * t_, tts[2 * r + t_]
    cmul(P, d, d + 4, K['TW1c%d' % t_], K['TW1s%d' % t_], tt, tt + 4, -1)
C, Mx, O = Asm(), Asm(), [Asm(), Asm()]
for r in range(2):
    vB, vE, d = vAF + 8 * r, tts[2 * r], vD[r]
    for t_ in range(2):
        tt = tts[2 * r + t_]
        for i in range(4):
            C('v_cvt_pk_bf16_f32 %s, %s, %s' % (v(vB + 4 * t_ + i), v(tt + i), v(tt + 4 + i)))
    for i in range(4):
        C('v_cvt_pk_bf16_f32 %s, -%s, -%s' % (v(vBn[r] + i), v(tt + i), v(tt + 4 + i)))
    for mt in range(2):
        Mx('%s %s, %s, %s, 0' % (MF16, v(vE + 4 * mt, 4), KA['A2_%d0' % mt], v(vB, 4)))
    for mt in range(2):
        Mx('%s %s, %s, %s, %s' % (MF16, v(d + 4 * mt, 4), KA['A2_%d1' % mt], v(vB + 4, 4), v(vE + 4 * mt, 4)))
    for mt in range(2):
        Mx('%s %s, %s, %s, %s' % (MF16, v(d + 8 + 4 * mt, 4), KA['A2_%d1' % mt], v(vBn[r], 4), v(vE + 4 * mt, 4)))
    o = tts[2 * r + 1]
    for hi in range(2):
        for mt in range(2):
            for e in range(2):
                O[r]('v_cvt_pk_bf16_f32 %s, %s, %s%s' % (v(o + 4 * hi + 2 * mt + e), v(d + 8 * hi + 4 * mt + 2 * e), '-' if hi else '', v(d + 8 * hi + 4 * mt + 2 * e + 1)))
    for mt in range(2):
        O[r]('ds_write2_b32 %s, %s, %s offset0:%d offset1:%d' % (v(vEXlo[r]), v(o + 2 * mt), v(o + 2 * mt + 1), 40 * mt, 40 * mt + 5))
    for mt in range(2):
        O[r]('ds_write2_b32 %s, %s, %s offset0:%d offset1:%d' % (v(vEXhi[r]), v(o + 4 + 2 * mt), v(o + 4 + 2 * mt + 1), 45 - 40 * mt, 40 - 40 * mt))
P.l += C.l[:6] + under(Mx, C.l[6:] + O[0].l) + O[1].l
for x, n in [(x, 8) for x in tts] + [(x, 4) for x in vBn] + [(x, 16) for x in vD] + [(x, 1) for x in vEXlo + vEXhi]:
    V.put(x, n)
for n in TN[:10]:
    if n in K:
        V.put(K[n], 4)
A.l += schedule(P, jobs('P1', True), 30, GAP, 'P1a', True)
A.wait_tag('warmp')
barrier()
stamp('b1', lvl=8)
lb = opt('s_cmp_eq_u32 s%d, 3' % sW)
vD8 = [V.get(16) for _ in range(4)]
vB = V.get(16)
P = Asm()
for c in range(4):
    P('ds_read2st64_b32 %s, %s offset0:%d offset1:%d' % (v(vB + 4 * c, 2), v(vEX8 + c), EXO, EXO + 6))
    P('ds_read2st64_b32 %s, %s offset0:%d offset1:%d' % (v(vB + 4 * c + 2, 2), v(vEX8 + c), EXO + 12, EXO + 18))
P('s_add_u32 s%d, s%d, %d' % (sT[1], sPB, 2816))
for c in range(4):
    P('%s %s, %s, %s, 0' % (MF32, v(vD8[c], 16), v(vA8, 4), v(vB + 4 * c, 4)))
for c in range(4):
    for q in range(4):
        P('v_cvt_pk_bf16_f32 %s, %s, %s' % (v(vAF + 4 * q + c), v(vD8[c] + 2 * q), v(vD8[c] + 2 * q + 1)))
        P('v_bfi_b32 %s, s%d, %s, %s' % (v(vAF + 4 * q + c), sTM, v(vTG + c), v(vAF + 4 * q + c)))
for q in range(4):
    P('buffer_store_dwordx4 %s, %s, %s, s%d offen offset:%d sc1' % (v(vAF + 4 * q, 4), v(vP), srd(sWS), sT[1] if q > 1 else sPB, 1408 * (q & 1)), tag='pst')
A.l += schedule(P, verbose='P1b')
A('s_nop 1')
opt_end(lb)
for x in vD8:
    V.put(x, 16)
V.put(vB, 16)
V.put(vA8, 4)
stamp('p1_done', lvl=9)
V.put(vAF, 16)
warm(A, ['s1r', 'pg3', 's2r', 'm2a+pg4'])
SAVE = (dict(W1S), list(HC), list(WFC))
lfar, lback = out_of_line('s_cmp_ge_u32 s%d, 21' % sIDX)
A.opt_begin()
vPG, vGR, vZB, vWR = V.get(1), V.get(1), V.get(1), V.get(1)
B = Asm()
B('s_mul_i32 s%d, s%d, 1408' % (sT[1], sXCD))
B('s_lshl_b32 s%d, s%d, 6' % (sT[0], sIDX))
B('s_add_u32 s%d, s%d, s%d' % (sPG, sT[0], sT[1]))
B('s_lshl_b32 s%d, s%d, 6' % (sT[0], sW))
B('v_add_u32 %s, s%d, %s' % (v(vPG), sT[0], v(vQ)))
B('v_mul_u32_u24 %s, %d, %s' % (v(vPG), PBLK, v(vPG)))
B('v_lshl_add_u32 %s, %s, 4, %s' % (v(vPG), v(vC8), v(vPG)))
B('v_xor_b32 %s, %s, %s' % (v(vt), v(vC8), v(vG)))
B('s_lshl_b32 s%d, s%d, 12' % (sT[0], sW))
B('v_lshl_add_u32 %s, %s, 4, s%d' % (v(vZB), v(vt), sT[0]))
B('v_lshl_add_u32 %s, %s, 6, %s' % (v(vZB), v(vQ), v(vZB)))
B('v_lshrrev_b32 %s, 2, %s' % (v(vt), v(vN)))
B('v_xor_b32 %s, s%d, %s' % (v(vt), sW, v(vt)))
B('v_lshlrev_b32 %s, 4, %s' % (v(vt), v(vt)))
B('v_lshl_add_u32 %s, %s, 6, %s' % (v(vt), v(vN), v(vt)))
B('v_lshl_add_u32 %s, %s, 12, %s' % (v(vGR), v(vG), v(vt)))
g = Asm()
g('s_lshl_b32 s%d, s%d, 3' % (sT[1], sW))
g('s_cmp_eq_u32 s%d, 20' % sIDX)
g('s_cselect_b32 s%d, 30, s%d' % (sT[0], sT[1]))
grp(B, g)
B('v_lshl_add_u32 %s, %s, 6, %s' % (v(vWR), v(vG), v(vN)))
B('v_lshl_add_u32 %s, %s, 5, s%d' % (v(vWR), v(vWR), sT[0]))
vTW = V.get(4, 'mh', 1)
B('v_mov_b32 %s, s%d' % (v(vt), sT[1]))
tag_masks(B, vTW, sTAGZ)
trig(B, vA8i, True)
q_pub = W1S['iss']
A.l += interleave(B, jobs('A1'))


def p_gather(asm, d):
    for i in range(4):
        asm('s_add_u32 s%d, s%d, %d' % (sT[5], sPG, WS_P + i * 16 * PBLK))
        asm('buffer_load_dwordx4 %s, %s, %s, s%d offen sc1' % (v(d + 4 * i, 4), v(vPG), srd(sWS), sT[5]))


vPD, vWG, vWr, vWi = V.get(16), V.get(16), V.get(16), V.get(16)
WFEARLY = 'wf' not in CFG.get('A1', '') and ACK & 2
if ACK & 2:
    A.wait_tag(['pst', 'wf'] if WFEARLY else 'pst')
A('s_barrier')
stamp('s1_acked', lvl=9)
p_gather(A, vPD)
q_g = W1S['iss']
assert WFC[0] == 4
if not WFEARLY:
    A.wait_tag('wf')
    A('s_barrier')
for k in range(2):
    for i in range(4):
        A('ds_read_b64 %s, %s offset:%d' % (v(vWG + 8 * k + 2 * i, 2), v(vWR), L_GW + 8192 * k + 512 * i))
B = Asm()
for k, dst in enumerate((vWr, vWi)):
    for i in range(4):
        for p in range(2):
            B('v_lshlrev_b32 %s, 16, %s' % (v(dst + 8 * p + i), v(vWG + 8 * k + 2 * i + p)))
            B('v_and_b32 %s, s%d, %s' % (v(dst + 8 * p + 4 + i), sMASK, v(vWG + 8 * k + 2 * i + p)))
A.l += interleave(B, jobs('G1'))
w1_drain(A, q_g)
A.l += jobs('G1b')
stamp('s1_wait', lvl=8)
verify(A, lambda c: p_gather(c, vPD), lambda c: check_bits(c, range(vPD, vPD + 16), vTG, tmp), False, 's1r')
stamp('s1_ok', lvl=8)
for i in range(4):
    A('ds_write_b128 %s, %s offset:%d' % (v(vZB), v(vPD + 4 * i, 4), L_GP + 1024 * i))
barrier()
stamp('s1_done', lvl=9)
P = Asm()
for i in range(4):
    P('ds_read_b128 %s, %s offset:%d' % (v(vPD + 4 * i, 4), v(vGR), L_GP + 1024 * i))
X = Asm()
for i in range(4):
    for c in range(i + 1, 4):
        X('v_swap_b32 %s, %s' % (v(vPD + 4 * i + c), v(vPD + 4 * c + i)))
vD = [V.get(8) for _ in range(4)]
tts = [vWG, vWG + 8, V.get(8), V.get(8)]
TWc, TWs = K['TW2c'], K['TW2s']


def st(stage):
    m = Asm()
    for c in range(4):
        d, x = vD[c], v(vPD + 4 * c, 4)
        fr, fi = KA['Fre'], KA['Fim']
        ops = [((x, fr), (x, fi)), ((fr, x), (fi, x)), ((x, fi), (x, fr)), ((fi, x), (fr, x))][stage]
        for k in range(2):
            m('%s %s, %s, %s, 0' % (MF16, v(d + 4 * k, 4), ops[k][0], ops[k][1]))
    return m


P.l += X.l[:5] + under(st(0), X.l[5:])
vO = vWr
for stage in range(3):
    C = Asm()
    for c in range(4):
        d, tt = vD[c], tts[c]
        if stage == 0:
            cmul(P, d, d + 4, TWc, TWs, tt, tt + 4, -1)
        elif stage == 1:
            cmul(P, d, d + 4, vWr + 4 * c, vWi + 4 * c, tt, tt + 4, +1)
        else:
            cmul(P, d, d + 4, TWc, TWs, tt, tt + 4, +1)
        for i in range(4):
            lo, hi = (tt + i, tt + 4 + i) if stage == 0 else (tt + 4 + i, tt + i)
            C('v_cvt_pk_bf16_f32 %s, %s, %s' % (v(vPD + 4 * c + i), v(lo), v(hi)))
    if stage == 2:
        for c in range(4):
            for i in range(4):
                C('v_cvt_pk_bf16_f32 %s, %s, %s' % (v(vO + 4 * i + c), v(vD[c] + i), v(vD[c] + 4 + i)))
            for i in range(4):
                C('v_bfi_b32 %s, s%d, %s, %s' % (v(vO + 4 * i + c), sTM, v(vTW + c), v(vO + 4 * i + c)))
    P.l += C.l[:6] + under(st(stage + 1), C.l[6:])
for i in range(4):
    P('ds_write_b128 %s, %s offset:%d' % (v(vGR), v(vO + 4 * i, 4), L_GW + 1024 * i))
A.l += schedule(P, jobs('P2', True), 20, GAP, 'P2', True)
HEARLY = HC[0] == 6
if HEARLY:
    A.wait_tag('clrh')
barrier()
stamp('bd', lvl=8)
for i in range(4):
    A('ds_read_b128 %s, %s offset:%d' % (v(vPD + 4 * i, 4), v(vZB), L_GW + 1024 * i))
for i in range(4):
    A('s_add_u32 s%d, s%d, %d' % (sT[2 + i], sPG, WS_P + i * 16 * PBLK))
for i in range(4):
    A('buffer_store_dwordx4 %s, %s, %s, s%d offen sc1' % (v(vPD + 4 * i, 4), v(vPG), srd(sWS), sT[2 + i]), tag='zst')
stamp('p2_done', lvl=9)
w1_drain(A, max(W1S['drn'], W1S['iss'] - OPT.get('lag', 2)))
for x, n in [(x, 8) for x in vD + tts[2:]] + [(x, 16) for x in (vWG, vPD, vWr, vWi)] + [(vTW, 4)] + [(x, 1) for x in (vPG, vWR, vGR, vZB)]:
    V.put(x, n)
A.opt_end()
for n in TN[10:14]:
    if n in K:
        V.put(K[n], 4)
END = (dict(W1S), list(HC))
W1S.update(SAVE[0])
HC[:] = SAVE[1]
A.far_begin(lfar)
A.wait_tag('wf')
barrier()
x_, t, ad = V.get(4), V.get(4), V.get(4)
A('s_mul_i32 s%d, s%d, 320' % (sT[0], sW))
A('v_add_u32 %s, s%d, %s' % (v(ad + 1), sT[0], v(vL8)))
A('buffer_load_dwordx2 %s, %s, %s, 0 offen' % (v(t, 2), v(ad + 1), srd(sC)))
A('s_lshl_b32 s%d, s%d, 6' % (sT[2], sNU))
A('s_mul_i32 s%d, s%d, %d' % (sT[3], sW, 160 * 7680))
A('s_add_u32 s%d, s%d, s%d' % (sT[2], sT[2], sT[3]))
A('s_add_u32 s%d, s%d, 2560' % (sT[2], sT[2]))
A('v_mul_u32_u24 %s, 7680, %s' % (v(ad), v(vQ)))
A('v_lshl_add_u32 %s, %s, 4, %s' % (v(ad), v(vC8), v(ad)))
A('s_mul_i32 s%d, s%d, 10240' % (sT[3], sW))
for b in range(10):
    A('s_add_u32 m0, s%d, %d' % (sT[3], L_EX + 1024 * b))
    A('s_add_u32 s%d, s%d, %d' % (sT[4], sT[2], b * 16 * 7680))
    A('buffer_load_dwordx4 %s, %s, s%d offen lds' % (v(ad), srd(sWM), sT[4]), tag='wm2')
A('v_add_u32 %s, s%d, %s' % (v(ad), sT[3], v(vT64)))
A('s_add_u32 s%d, s%d, %d' % (sT[0], sT[0], L_SILU))
A('v_lshl_add_u32 %s, %s, 3, s%d' % (v(ad + 2), v(vG), sT[0]))
A('s_lshl_b32 s%d, s%d, 7' % (sT[0], sW))
A('v_lshl_add_u32 %s, %s, 4, s%d' % (v(ad + 3), v(vG), sT[0]))
A('s_mul_i32 s%d, s%d, 205' % (sT[1], sNU))
A('s_lshr_b32 s%d, s%d, 12' % (sT[1], sT[1]))
A('s_cmp_eq_u32 s%d, 2' % sT[1])
A('s_cselect_b32 s%d, 1.0, 0' % sCOL)
A('s_mul_i32 s%d, s%d, 20' % (sT[2], sT[1]))
A('s_sub_u32 s%d, s%d, s%d' % (sT[2], sNU, sT[2]))
A('s_lshl4_add_u32 s%d, s%d, s%d' % (sT[3], sT[1], sT[2]))
A('s_lshl2_add_u32 s%d, s%d, s%d' % (sT[4], sT[1], sT[2]))
A('s_add_u32 s%d, s%d, 48' % (sT[4], sT[4]))
A('s_cmp_lt_u32 s%d, 16' % sT[2])
A('s_cselect_b32 s%d, s%d, s%d' % (sT[3], sT[3], sT[4]))
A('s_add_u32 s%d, s%d, 80' % (sT[4], sXCD))
A('s_cmp_ge_u32 s%d, 22' % sIDX)
A('s_cselect_b32 s%d, s%d, s%d' % (sT[1], sT[3], sT[4]))
A('s_lshl_b32 s%d, s%d, 7' % (sT[1], sT[1]))
A('s_add_u32 s%d, s%d, %d' % (sPG, sT[1], WS_MOD2))
trig(A, vA8i, True)
w1_drain(A, W1S['iss'])


def ii_rest():
    j_hclr(A, END[1][0] - HC[0])
    if any('bias' in CFG.get(x, '') for x in ('A1', 'G1', 'G1b', 'P2')):
        j_bias(A)


if OPT.get('w2at', 1) == 1:
    if W1S['iss'] > 6:
        A('s_barrier')
    w2_reformat(L_RING + 2 * 12288, 'w2st', ii_rest)
    A.wait_lds()
else:
    ii_rest()
for p in range(2):
    A('v_lshlrev_b32 %s, 16, %s' % (v(x_ + 2 * p), v(t + p)))
    A('v_and_b32 %s, s%d, %s' % (v(x_ + 2 * p + 1), sMASK, v(t + p)))
silu(A, x_, t, 4)
for p in range(2):
    A('v_cvt_pk_bf16_f32 %s, %s, %s' % (v(x_ + p), v(x_ + 2 * p), v(x_ + 2 * p + 1)))
A('s_mov_b32 exec_hi, 0xff')
A('ds_write_b64 %s, %s offset:%d' % (v(ad + 1), v(x_, 2), L_SILU))
A('s_mov_b64 exec, -1')
f, sb, d = [V.get(8) for _ in range(5)], V.get(20), V.get(8)
for k in range(5):
    A('ds_read2_b64 %s, %s offset0:%d offset1:%d' % (v(sb + 4 * k, 4), v(ad + 2), 8 * k, 8 * k + 4))
A.wait_tag('wm2')
for k in range(5):
    for tt_ in range(2):
        for rd in range(2):
            A('ds_read_b64_tr_b16 %s, %s offset:%d' % (v(f[k] + 4 * tt_ + 2 * rd, 2), v(ad), L_EX + 2048 * k + 1024 * rd + 32 * tt_))
for k in range(5):
    for tt_ in range(2):
        A('%s %s, %s, %s, %s' % (MF16, v(d + 4 * tt_, 4), v(f[k] + 4 * tt_, 4), v(sb + 4 * k, 4), v(d + 4 * tt_, 4) if k else '0'))
for tt_ in range(2):
    A('ds_write_b128 %s, %s offset:%d' % (v(ad + 3), v(d + 4 * tt_, 4), L_RED + 64 * tt_))
A.wait_tag(['clrh', 'w2st'] if HEARLY else 'w2st')
barrier()
lb = opt('s_cmp_lg_u32 s%d, 0' % sW)
for i in range(4):
    A('ds_read_b128 %s, %s offset:%d' % (v(sb + 4 * i, 4), v(vL16), L_RED + 128 * i))
A('s_mov_b64 exec, 0xff')
for p in (0, 2):
    A('v_pk_add_f32 %s, %s, %s' % (v(sb + p, 2), v(sb + p, 2), v(sb + 4 + p, 2)))
    A('v_pk_add_f32 %s, %s, %s' % (v(sb + 8 + p, 2), v(sb + 8 + p, 2), v(sb + 12 + p, 2)))
    A('v_pk_add_f32 %s, %s, %s' % (v(sb + p, 2), v(sb + p, 2), v(sb + 8 + p, 2)))
    A('v_cvt_pk_bf16_f32 %s, %s, %s' % (v(sb + p), v(sb + p), v(sb + p + 1)))
    A('v_and_b32 %s, s%d, %s' % (v(sb + p + 1), sMASK, v(sb + p)))
    A('v_lshlrev_b32 %s, 16, %s' % (v(sb + p), v(sb + p)))
    A('v_add_f32 %s, s%d, %s' % (v(sb + p + 1), sCOL, v(sb + p + 1)))
    A('v_add_f32 %s, s%d, %s' % (v(sb + p), sCOL, v(sb + p)))
    A('v_cvt_pk_bf16_f32 %s, %s, %s' % (v(sb + p), v(sb + p), v(sb + p + 1)))
    A('v_mov_b32 %s, s%d' % (v(sb + p + 1), sNONCE))
A('buffer_store_dwordx4 %s, %s, %s, s%d offen sc1' % (v(sb, 4), v(vL16), srd(sWS), sPG), tag='zst')
A('s_mov_b64 exec, -1')
A('s_nop 1')
opt_end(lb)
stamp('p2_done', lvl=9, again=True)
j_w1(A, min(8, END[0]['iss'] - W1S['iss']))
if W1S['iss'] < END[0]['iss']:
    w1_drain(A, min(W1S['iss'], END[0]['drn']))
    j_w1(A, END[0]['iss'] - W1S['iss'])
w1_drain(A, END[0]['drn'])
assert W1S == END[0], (W1S, END[0])
for x, n in [(x_, 4), (t, 4), (ad, 4), (sb, 20), (d, 8)] + [(x, 8) for x in f]:
    V.put(x, n)
A.far_end(lback)
for x, n in ((vT64, 1), (vWD, 1), (vTch, 5), (vJunk, 3)):
    V.put(x, n)
vZ, vTZ = vP, vTG


def z_gather(asm, d):
    asm('s_add_u32 s%d, s%d, 2816' % (sT[5], sPB))
    for q in range(4):
        asm('buffer_load_dwordx4 %s, %s, %s, s%d offen offset:%d sc1' % (v(d + 4 * q, 4), v(vZ), srd(sWS), sT[5] if q > 1 else sPB, 1408 * (q & 1)))


def mod2_gather(asm):
    for i in range(11):
        if i % 4 == 0:
            asm('s_mov_b32 s%d, %d' % (sT[5], WS_MOD2 + 1024 * i))
        asm('buffer_load_dwordx4 %s, %s, %s, s%d offen offset:%d sc1' % (v(vMD[i], 4), v(vL16), srd(sWS), sT[5], 1024 * (i % 4)))


vD8 = [V.get(16) for _ in range(4)]
vZD = V.get(16)
vMD = [vD8[i // 4] + 4 * (i % 4) for i in range(11)]
vMA = vD8[3]
lfar, lback = out_of_line('s_cmp_eq_u32 s%d, 3' % sW)
A.far_begin(lfar)
pad(A, 'm2a')
mod2_gather(A)
A('v_lshlrev_b32 %s, 5, %s' % (v(vMA), v(vKD)))
A('v_lshl_add_u32 %s, %s, 2, %s' % (v(vMA), v(vH), v(vMA)))
for k, o in ((1, 16), (2, 8), (3, 24)):
    A('v_add_u32 %s, %d, %s' % (v(vMA + k), o, v(vMA)))
A('v_mul_u32_u24 %s, 2560, %s' % (v(vMA + 4), v(vH)))
A('v_lshl_add_u32 %s, %s, 3, %s' % (v(vMA + 4), v(vKD), v(vMA + 4)))
A('v_add_u32 %s, 4, %s' % (v(vMA + 5), v(vMA + 4)))
A.far_end(lback)
B = Asm()
vZ, vTZ = vP, vTG
B('v_lshlrev_b32 %s, 3, %s' % (v(vt), v(vC8)))
tag_masks(B, vTZ, sTAGZ)
g = Asm()
g('v_cmp_gt_u32 vcc, 84, %s' % v(vKW))
g('s_mul_i32 s%d, s%d, 2560' % (sT[0], sW))
g('s_add_u32 s%d, s%d, s%d' % (sYX, sPB, sT[0]))
g('v_cndmask_b32 %s, %s, %s, vcc' % (v(vZ), v(vOOB), v(vZ)))
for d in range(4):
    g('v_cndmask_b32 %s, 0, %s, vcc' % (v(vTZ + d), v(vTZ + d)))
grp(B, g)
V.put(vKW)
vU0, vU1 = [V.get(1, 'h'), V.get(1, 'h')], [V.get(1, 'h'), V.get(1, 'h')]
ex_addr(B, vU0, vU1, 20, 65)
V.put(vEXa)
V.put(vEXb)
sHS, sW2F = sPG, sZS
B('s_mul_i32 s%d, s%d, 196608' % (sT[0], sG1))
B('s_mul_i32 s%d, s%d, 6144' % (sT[1], sJ1))
B('s_add_u32 s%d, s%d, s%d' % (sHS, sT[0], sT[1]))
B('s_add_u32 s%d, s%d, %d' % (sHS, sHS, WS_H))
B('s_lshl2_add_u32 s%d, s%d, s%d' % (sT[0], sJ, sW))
B('s_mul_i32 s%d, s%d, 61440' % (sW2F, sT[0]))
B('s_add_u32 s%d, s%d, %d' % (sW2F, sW2F, WS_W2F))
sROT = [3, 6, 7, 50, 71, 72]
sHL = sTAU
B('s_lshl4_add_u32 s%d, s%d, s%d' % (sT[0], sG, sW))
B('s_mul_i32 s%d, s%d, 12288' % (sHL, sT[0]))
B('s_add_u32 s%d, s%d, %d' % (sHL, sHL, WS_H))
B('s_mul_i32 s%d, s%d, 5' % (sT[0], sHL))
B('s_sub_u32 s%d, s%d, s%d' % (sW2F, sW2F, sT[0]))
B('s_and_b32 s%d, s%d, %d' % (sT[0], sG, OPT.get('rot', 0)))
for k in range(6):
    g = Asm()
    if k:
        g('s_add_u32 s%d, s%d, 1' % (sT[0], sT[0]))
    g('s_cmp_ge_u32 s%d, 6' % sT[0])
    g('s_cselect_b32 s%d, 6, 0' % sT[1])
    g('s_sub_u32 s%d, s%d, s%d' % (sT[0], sT[0], sT[1]))
    g('s_lshl_b32 s%d, s%d, 11' % (sT[1], sT[0]))
    g('s_add_u32 s%d, s%d, s%d' % (sROT[k], sT[1], sHL))
    grp(B, g)
A.l += interleave(B, jobs('A2'))


if ACK & 4:
    A.wait_tag('zst')
if OPT.get('b2b', 1):
    barrier()
stamp('s2_acked', lvl=9)
lfar, lback = out_of_line('s_cmp_eq_u32 s%d, 3' % sW)
A.opt_begin()
z_gather(A, vZD)
A.opt_end()
A.far_begin(lfar)
verify(A, mod2_gather, lambda c: check_tags(c, [x + 3 for x in vMD], tmp))
for i in range(10):
    for k in range(2):
        b = vMD[i] + 2 * k
        A('v_and_b32 %s, s%d, %s' % (v(b + 1), sMASK, v(b)))
        A('v_lshlrev_b32 %s, 16, %s' % (v(b), v(b)))
    for k in range(2):
        b = vMD[i] + 2 * k
        ad_, o = (vMA + 2 * (i & 1) + k, 10 * (2 + i // 2)) if i < 8 else (vMA + 4 + k, 10 * (2 + 2 * (i - 8)) + 4)
        A('ds_write2st64_b32 %s, %s, %s offset0:%d offset1:%d' % (v(ad_), v(b), v(b + 1), L_MOD // 256 + o, L_MOD // 256 + o + 5))
A.far_end(lback)
q_g = W1S['iss']
A.l += jobs('G2')
assert W1S['iss'] <= 16
w1_addr(A, True)
w1_drain(A, q_g)
A.l += jobs('G2b')
warm(A, ['pg5', 'pg6', 's3r0', 's3r1'])
stamp('s2_wait', lvl=8)
lb = opt('s_cmp_eq_u32 s%d, 3' % sW)
verify(A, lambda c: z_gather(c, vZD), lambda c: check_bits(c, range(vZD, vZD + 16), vTZ, tmp), False, 's2r')
stamp('s2_done', lvl=9)
P = Asm()
for i in range(4):
    for c in range(i + 1, 4):
        P('v_swap_b32 %s, %s' % (v(vZD + 4 * i + c), v(vZD + 4 * c + i)))
for c in range(4):
    P('%s %s, %s, %s, 0' % (MF32, v(vD8[c], 16), v(vA8i, 4), v(vZD + 4 * c, 4)))
for c in range(4):
    for q in range(4):
        P('v_cvt_pk_bf16_f32 %s, %s, %s' % (v(vZD + 4 * c + q), v(vD8[c] + 2 * q), v(vD8[c] + 2 * q + 1)))
    P('ds_write2st64_b32 %s, %s, %s offset0:%d offset1:%d' % (v(vEX8 + c), v(vZD + 4 * c), v(vZD + 4 * c + 1), EXO, EXO + 6))
    P('ds_write2st64_b32 %s, %s, %s offset0:%d offset1:%d' % (v(vEX8 + c), v(vZD + 4 * c + 2), v(vZD + 4 * c + 3), EXO + 12, EXO + 18))
A.l += schedule(P, verbose='P3a')
opt_end(lb)
barrier()
stamp('b3', lvl=8)
for x, n in [(x, 16) for x in vD8] + [(vA8i, 4), (vZ, 1), (vTZ, 4), (vZD, 16), (vEX8, 4)]:
    V.put(x, n)
W2V = 96
W2A = 144
V.take(W2V, 64)


def w2frag(k, t_, c=4, o=0):
    if k < 8:
        return v(W2V + 20 * k + 4 * t_ + o, c)
    return a(W2A + 20 * (k - 8) + 4 * t_ + o, c)


def w2_base(g, n, first):
    m = n % 10
    if m == 0 or first:
        g('s_mul_i32 s%d, s%d, 5' % (sBG[1], sROT[n // 10]))
        g('s_add_u32 s%d, s%d, s%d' % (sBG[1], sBG[1], sW2F))
        if m >= 4:
            g('s_add_u32 s%d, s%d, %d' % (sBG[1], sBG[1], 4096 * (m // 4)))
    elif m % 4 == 0:
        g('s_add_u32 s%d, s%d, 4096' % (sBG[1], sBG[1]))


def w2_loads(asm, n0, n1):
    if OPT.get('now2'):
        return
    for n in range(n0, n1):
        g = Asm()
        w2_base(g, n, n == n0)
        g('buffer_load_dwordx4 %s, %s, %s, s%d offen offset:%d sc1' % (w2frag(n // 5, n % 5), v(vL16), srd(sWS), sBG[1], 1024 * (n % 10 % 4)), tag='w2l')
        grp(asm, g)


P = Asm()
vUF = V.get(16, 'xl')
for r in range(2):
    P('ds_read2_b32 %s, %s offset0:0 offset1:5' % (v(vUF + 8 * r, 2), v(vU0[r])))
    P('ds_read2_b32 %s, %s offset0:10 offset1:15' % (v(vUF + 8 * r + 2, 2), v(vU0[r])))
    P('ds_read2_b32 %s, %s offset0:15 offset1:10' % (v(vUF + 8 * r + 4, 2), v(vU1[r])))
    P('ds_read2_b32 %s, %s offset0:5 offset1:0' % (v(vUF + 8 * r + 6, 2), v(vU1[r])))
vGA = V.get(10, 'lx')
read_mod(P, vGA, 2, vL16, vL4)
vD = [V.get(16, 'xl'), V.get(16, 'xl')]
for r in range(2):
    for u in range(2):
        for t_ in range(2):
            for ro in range(2):
                d = v(vD[r] + 8 * t_ + 4 * ro, 4)
                P('%s %s, %s, %s, %s' % (MF16, d, v(vUF + 8 * r + 4 * u, 4), KA['G%d%d%d' % (u, t_, ro)], d if u else '0'))
tts = [V.get(8, 'xl'), V.get(8, 'xl')]
vY = [V.get(12, 'xl'), V.get(12, 'xl')]
C, Mx = Asm(), Asm()
for r, t_ in RT:
    d, b, tt = vD[r] + 8 * t_, vUF + 8 * r + 4 * t_, tts[t_]
    cmul(P, d, d + 4, K['TW3c%d' % t_], K['TW3s%d' % t_], tt, tt + 4, +1, True)
    for i in range(4):
        C('v_cvt_pk_bf16_f32 %s, %s, %s' % (v(b + i), v(d + i), v(d + 4 + i)))
    Mx('%s %s, %s, %s, 0' % (MF16, v(vY[r] + 4 * t_, 4), KA['A3_0'], v(b, 4)))
    Mx('%s %s, %s, %s, %s' % (MF16, v(vY[r] + 8, 4), KA['A3_%d' % (1 + t_)], v(b, 4), v(vY[r] + 8, 4) if t_ else '0'))
vG2, vSb = vD
read_mod(C, vG2, 4, vL16, vL4)
read_mod(C, vSb, 3, vL16, vL4)
P.l += C.l[:6] + under(Mx, C.l[6:])
for x, n in [(x, 8) for x in tts] + [(x, 1) for x in vU0 + vU1]:
    V.put(x, n)
for n in TN[14:]:
    if n in K:
        V.put(K[n], 4)
PA, P = P, Asm()
for r in range(2):
    for p in range(5):
        P('v_pk_fma_f32 %s, %s, %s, %s' % (v(vXF[r] + 2 * p, 2), v(vY[r] + 2 * p, 2), v(vGA + 2 * p, 2), v(vXF[r] + 2 * p, 2)))
ln_stats(P, vXF)
ln_apply(P, vY, vXF)
for r in range(2):
    for p in range(5):
        P('v_pk_fma_f32 %s, %s, %s, %s' % (v(vY[r] + 2 * p, 2), v(vY[r] + 2 * p, 2), v(vG2 + 2 * p, 2), v(vSb + 2 * p, 2)))
ln_stats(P, vY, '0x37800000')
ln_apply(P, vY, vY)
vXP = vGA
for r in range(2):
    for j in range(5):
        lo, hi = (j, 4 + j) if j < 4 else (8, 9)
        P('v_cvt_pk_bf16_f32 %s, %s, %s' % (v(vXP + 5 * r + j), v(vXF[r] + lo), v(vXF[r] + hi)))
for r in range(2):
    o = vUF + 8 * r
    for j in range(5):
        lo, hi = (j, 4 + j) if j < 4 else (8, 9)
        P('v_cvt_pk_bf16_f32 %s, %s, %s' % (v(o + j), v(vY[r] + lo), v(vY[r] + hi)))
A.l += schedule(PA.l + schedule(P), jobs('P3', True), 20, GAP, 'P3b', True)
assert W2C[0] <= 16 and HC[0] == 6
A.wait_tag('clrh')
for r in range(2):
    o = vUF + 8 * r
    A('buffer_store_dwordx4 %s, %s, %s, s%d offen offset:%d sc1' % (v(o, 4), v(vL16), srd(sWS), sYX, 1280 * r), tag='yst')
    A('buffer_store_dword %s, %s, %s, s%d offen offset:%d sc1' % (v(o + 4), v(vL4), srd(sWS), sYX, 1280 * r + 1024), tag='yst')
stamp('p3_done', lvl=9)
A('s_nop 0')
for x, n in ((vD[0], 16), (vD[1], 16), (vXF[0], 10), (vXF[1], 10), (vY[0], 12), (vY[1], 12), (vUF, 16), (vFILL, 4)):
    V.put(x, n)
assert vXP < 96
V.take(W2V + 64, 96)


def j_x1(asm):
    g = Asm()
    g('s_lshl2_add_u32 s%d, s%d, s%d' % (sBG[0], sL, sW))
    g('s_mul_i32 s%d, s%d, 2560' % (sBG[0], sBG[0]))
    g('s_add_u32 s%d, s%d, %d' % (sBG[0], sBG[0], WS_X1))
    for k in range(10):
        g('buffer_store_dword %s, %s, %s, s%d offen offset:%d sc1' % (v(vXP + k), v(vL4), srd(sWS), sBG[0], 256 * k), tag='xst')
        grp(asm, g)
        g = Asm()


B = Asm()
vgb = V.get(8, 'l')
o = (L_MOD + 5 * 2560) // 256
B('s_and_b32 s%d, s%d, 1' % (sT[2], sJ))
B('s_lshl_b32 s%d, s%d, 9' % (sT[2], sT[2]))
B('s_lshr_b32 s%d, s%d, 1' % (sT[3], sJ))
B('s_lshl2_add_u32 s%d, s%d, s%d' % (sT[2], sT[3], sT[2]))
B('v_lshl_add_u32 %s, %s, 5, s%d' % (v(vt), v(vN), sT[2]))
B('v_add_u32 %s, 16, %s' % (v(vt + 1), v(vt)))
B('s_lshl_b32 s%d, s%d, 5' % (sT[3], sJ))
B('v_lshl_add_u32 %s, %s, 3, s%d' % (v(vt + 2), v(vC8), sT[3]))
B('v_add_u32 %s, 4, %s' % (v(vt + 3), v(vt + 2)))
for q in range(4):
    B('ds_read2st64_b32 %s, %s offset0:%d offset1:%d' % (v(vgb + 2 * q, 2), v(vt + q), o + 4 * (q >> 1), o + 5 + 4 * (q >> 1)))
vYG, vYW = V.get(1, 'l'), V.get(1, 'l')
sYL = sPB
B('v_lshrrev_b32 %s, 3, %s' % (v(vt), v(vLane)))
B('v_and_b32 %s, 7, %s' % (v(vt + 1), v(vLane)))
B('s_and_b32 s%d, s%d, 1' % (sT[2], sW))
B('s_lshr_b32 s%d, s%d, 1' % (sT[3], sW))
B('s_lshl_b32 s%d, s%d, 2' % (sT[4], sT[2]))
B('v_add_u32 %s, s%d, %s' % (v(vt + 2), sT[4], v(vG)))
B('v_xor_b32 %s, %s, %s' % (v(vt + 1), v(vt + 2), v(vt + 1)))
B('v_mul_u32_u24 %s, 1280, %s' % (v(vYG), v(vt)))
B('v_lshl_add_u32 %s, %s, 4, %s' % (v(vYG), v(vt + 1), v(vYG)))
B('s_lshl3_add_u32 s%d, s%d, s%d' % (sT[4], sG1, sT[2]))
B('s_mul_i32 s%d, s%d, %d' % (sT[4], sT[4], PBLK))
B('s_mul_i32 s%d, s%d, 640' % (sT[5], sT[3]))
B('s_add_u32 s%d, s%d, s%d' % (sT[4], sT[4], sT[5]))
B('v_add_u32 %s, s%d, %s' % (v(vYG), sT[4], v(vYG)))
B('s_mul_i32 s%d, s%d, 10240' % (sT[3], sT[3]))
B('s_lshl_b32 s%d, s%d, 10' % (sT[2], sT[2]))
B('s_add_u32 s%d, s%d, s%d' % (sYL, sT[2], sT[3]))
B('v_add_u32 %s, s%d, %s' % (v(vYW), sYL, v(vL16)))
q_pub = W1S['iss']
ja = jobs('A3')
assert W1S['iss'] == 20
w1_drain(B, max(14, q_pub - OPT.get('lag3', 2)))
A.l += interleave(B, ja)
A('s_or_b32 s%d, s%d, s%d' % (sT[0], sL, sW))
lfar, lback = out_of_line('s_cmp_eq_u32 s%d, 0' % sT[0])
A.far_begin(lfar)
A('v_mov_b32 %s, s%d' % (v(vt), sTAGZ))
A('s_mov_b64 exec, 1')
A('buffer_store_dword %s, %s, %s, 0 offen offset:%d sc1' % (v(vt), v(vL4), srd(sWS), WS_EPOCH), tag='ep')
A('s_mov_b64 exec, -1')
A.far_end(lback)
vCK = V.get(20, 'l')
CKB = [vCK, vCK, vCK, W2V + 140]


def y_dma(asm, rt, so=sT[5]):
    for u in range(5):
        g = Asm()
        if u == 0:
            g('s_mov_b32 s%d, %d' % (so, WS_P + 2 * PBLK * rt))
        g('s_add_u32 m0, s%d, %d' % (sYL, 20480 * rt + 1920 * u))
        g('buffer_load_dwordx4 %s, %s, s%d offen offset:%d sc1 lds' % (v(vYG), srd(sWS), so, 128 * u), tag='yg%d' % rt)
        grp(asm, g)


def y_back(asm, rt):
    for u in range(5):
        asm('ds_read_b128 %s, %s offset:%d' % (v(CKB[rt] + 4 * u, 4), v(vYW), 20480 * min(rt, 2) + 2048 * u))


def y_check1(asm, rt):
    if rt == 3:
        asm('v_add_u32 %s, %d, %s' % (v(vYW), 20480, v(vYW)))
    asm.wait_tag('yg%d' % rt)
    y_back(asm, rt)


def y_check2(asm, rt):
    def again(c):
        c('s_mov_b32 s%d, m0' % sVER)
        y_dma(c, rt)
        c('s_mov_b32 m0, s%d' % sVER)
        c('s_waitcnt vmcnt(0)')
        y_back(c, rt)
    verify(asm, again, lambda c: check_bits(c, range(CKB[rt], CKB[rt] + 20), None, tmp), name='s3r%d' % rt)


if ACK & 8:
    A.wait_tag('yst')
barrier()
stamp('s3_acked', lvl=9)
NY = OPT.get('ny', 3)
M = Asm()
y_dma(A, 0)
for rt in range(1, NY):
    y_dma(M, rt)
B = Asm()
w1_drain(B, 20)
V.put(vW1, 6)
V.put(vW1r)
for i in range(8):
    B('v_mul_f32 %s, 0x47800000, %s' % (v(vgb + i), v(vgb + i)))
for i in range(8):
    B('v_accvgpr_write_b32 %s, %s' % (a(240 + i), v(vgb + i)))
V.put(vgb, 8)
vYR = [V.get(1, 'l'), V.get(1, 'l')]
B('v_lshrrev_b32 %s, 1, %s' % (v(vt + 2), v(vN)))
B('v_xor_b32 %s, %s, %s' % (v(vt + 2), v(vt + 2), v(vG)))
B('v_lshlrev_b32 %s, 4, %s' % (v(vt + 2), v(vt + 2)))
B('v_lshl_add_u32 %s, %s, 7, %s' % (v(vYR[0]), v(vN), v(vt + 2)))
B('v_xor_b32 %s, 64, %s' % (v(vYR[1]), v(vYR[0])))
vBI = V.get(12, 'l')
for c in range(3):
    for p in range(2):
        B('v_lshlrev_b32 %s, 16, %s' % (v(vBI + 4 * c + 2 * p), v(vb1 + 2 * c + p)))
        B('v_and_b32 %s, s%d, %s' % (v(vBI + 4 * c + 2 * p + 1), sMASK, v(vb1 + 2 * c + p)))
for i in range(12):
    B('v_mul_f32 %s, 0x37800000, %s' % (v(vBI + i), v(vBI + i)))
for p in range(4):
    B('v_lshlrev_b32 %s, 16, %s' % (v(vt), v(vb2 + p)))
    B('v_and_b32 %s, s%d, %s' % (v(vt + 1), sMASK, v(vb2 + p)))
    B('v_mul_f32 %s, 0x37800000, %s' % (v(vt), v(vt)))
    B('v_mul_f32 %s, 0x37800000, %s' % (v(vt + 1), v(vt + 1)))
    B('v_accvgpr_write_b32 %s, %s' % (a(248 + 2 * p), v(vt)))
    B('v_accvgpr_write_b32 %s, %s' % (a(249 + 2 * p), v(vt + 1)))
A.l += interleave(B, M)
A.l += jobs('G3')
for x, n in ((vb1, 6), (vb2, 4), (vKD, 1), (vH, 1)):
    V.put(x, n)
stamp('s3_wait', lvl=8)
y_check1(A, 0)
y_check2(A, 0)
barrier()
stamp('s3_done', lvl=13)
T0 = Asm()
vHs4, vHs2 = V.get(1, 'l'), V.get(1, 'l')
T0('s_lshl_b32 s%d, s%d, 10' % (sT[0], sW))
T0('v_add_u32 %s, s%d, %s' % (v(vHs4), sT[0], v(vL16)))
T0('s_lshl_b32 s%d, s%d, 9' % (sT[0], sW))
T0('s_add_u32 s%d, s%d, 4096' % (sT[0], sT[0]))
T0('v_cmp_gt_u32 vcc, 32, %s' % v(vLane))
T0('v_add_u32 %s, s%d, %s' % (v(vHs2), sT[0], v(vL16)))
T0('v_cndmask_b32 %s, %s, %s, vcc' % (v(vHs2), v(vOOB), v(vHs2)))
sW2L = sRING
T0('s_mul_i32 s%d, s%d, 20480' % (sW2L, sW))
T0('s_add_u32 s%d, s%d, %d' % (sW2L, sW2L, L_W2))
GC0 = -2.302208198
GC1 = GC0 * 0.044715 * 2.0 ** 48
GC0 *= 2.0 ** 16
import struct
fhex = lambda x: '0x%08x' % struct.unpack('<I', struct.pack('<f', x))[0]
sGC1 = sADD
vGC0 = V.get(1, 'l')
T0('s_mov_b32 s%d, %s' % (sGC1, fhex(GC1)))
T0('v_mov_b32 %s, %s' % (v(vGC0), fhex(GC0)))
NB = OPT.get('nb', 4)
vAC = [V.get(12, 'l'), vCK]
vBFl = [V.get(4, 'l') for _ in range(NB)]
print('free low in GEMM1:', sorted(x for x in V.free))
vGT = vCK + 12
vHP = vXP


def h_store(asm, rt):
    g = Asm()
    g('s_add_u32 s%d, s%d, %d' % (sT[2], sHS, 49152 * rt))
    g('buffer_store_dwordx4 %s, %s, %s, s%d offen sc1' % (v(vHP, 4), v(vHs4), srd(sWS), sT[2]), tag='hst%d' % rt)
    grp(asm, g)


def gelu(rt):
    g = Asm()
    ac = vAC[rt & 1]
    for c in range(3):
        x = ac + 4 * c
        tb = vGT + 4 * (c & 1)
        for i in range(4):
            g('v_mul_f32 %s, %s, %s' % (v(tb + i), v(x + i), v(x + i)))
        for i in range(4):
            g('v_fma_f32 %s, %s, s%d, %s' % (v(tb + i), v(tb + i), sGC1, v(vGC0)))
        for i in range(4):
            g('v_mul_f32 %s, %s, %s' % (v(tb + i), v(tb + i), v(x + i)))
        for i in range(4):
            g('v_exp_f32 %s, %s' % (v(tb + i), v(tb + i)))
        for i in range(4):
            g('v_add_f32 %s, 1.0, %s' % (v(tb + i), v(tb + i)))
        for i in range(4):
            g('v_rcp_f32 %s, %s' % (v(tb + i), v(tb + i)))
        for i in range(4):
            g('v_mul_f32 %s, %s, %s' % (v(tb + i), v(tb + i), v(x + i)))
        for p in range(2):
            g('v_cvt_pk_bf16_f32 %s, %s, %s' % (v(vHP + 2 * c + p), v(tb + 2 * p), v(tb + 2 * p + 1)))
        if c == 1:
            h_store(g, rt)
    for p in range(2):
        g('v_permlane32_swap_b32 %s, %s' % (v(vHP + 4 + p), v(vHP + 6 + p)))
    g('buffer_store_dwordx4 %s, %s, %s, s%d offen sc1' % (v(vHP + 4, 4), v(vHs2), srd(sWS), sT[2]), tag='hst%d' % rt)
    return g


def yread(rt, q):
    base = 20480 * (rt & 1)
    return Ins('ds_read_b128 %s, %s offset:%d' % (v(vBFl[(20 * rt + q) % NB], 4), v(vYR[q & 1]), base + 2048 * (q >> 1)))


def g1_main(rt):
    out = []
    for q in range(20):
        for c in range(3):
            d = v(vAC[rt & 1] + 4 * c, 4)
            gr = [Ins('%s %s, %s, %s, %s' % (MF16, d, a((3 * q + c) * 4, 4), v(vBFl[(20 * rt + q) % NB], 4), d if q else v(vBI + 4 * c, 4)))]
            if c == 0:
                nq = q + NB - 1
                if nq < 20:
                    gr.append(yread(rt, nq))
                elif rt < 3:
                    if rt in (0, 2) and nq == 20:
                        gr.append(Ins('s_barrier'))
                    if rt == 1 and nq < 22:
                        gr.append(Ins('v_add_u32 %s, 40960, %s' % (v(vYR[nq & 1]), v(vYR[nq & 1]))))
                    gr.append(yread(rt + 1, nq - 20))
            out.append(gr)
    return out


HB = [0, 48, 96, 0]


def probe(asm, rt):
    g = Asm()
    g('s_add_u32 s%d, s%d, %d' % (sT[5], sHL, 49152 * rt + 4096))
    g('buffer_load_dword %s, %s, %s, s%d offen offset:448 sc1' % (v(tmp), v(vPB), srd(sWS), sT[5]))
    asm.l.append([Ins('; probe')] + g.l)


def h_loads(asm, rt, so=sBG[0], k0=0, k1=12):
    if k0 == 0 and asm is not COLD and not OPT.get('probeh'):
        asm.wait_tag('hst%d' % rt)
    if k0 == 0 and asm is not COLD and OPT.get('probeh'):
        g = Asm()
        verify(g, lambda c: probe(c, rt), lambda c: c('v_cmp_eq_u32 vcc, -1, %s' % v(tmp)))
        grp(asm, g)
    for k in range(k0, k1):
        g = Asm()
        if k % 2 == 0:
            g('s_add_u32 s%d, s%d, %d' % (so, sROT[k // 2], 49152 * rt))
        g('buffer_load_dwordx4 %s, %s, %s, s%d offen offset:%d sc1' % (a(HB[rt] + 4 * k, 4), v(vL16), srd(sWS), so, 1024 * (k % 2)), tag='hld')
        grp(asm, g)


def w2_dma(asm, n0, n1):
    if OPT.get('now2'):
        return
    for n in range(n0, n1):
        g = Asm()
        w2_base(g, n, n == n0)
        if n % 10 % 4 == 0 or n == n0:
            g('s_add_u32 m0, s%d, %d' % (sW2L, 1024 * (n - 40 - n % 10 % 4)))
        g('buffer_load_dwordx4 %s, %s, s%d offen offset:%d sc1 lds' % (v(vL16), srd(sWS), sBG[1], 1024 * (n % 10 % 4)), tag='w2d')
        grp(asm, g)


for q in range(NB - 1):
    A.l.append(yread(0, q))


def emit(name, main, fixed=(), flex=()):
    out, est = weave(main, fixed, flex, range(2, 60, 3) if name[1] == '1' else range(4, 60, 5))
    A.l += out
    print(name, 'est cycles', est)
    stamp(name, lvl=4)


def flag_store(asm):
    asm('v_mov_b32 %s, s%d' % (v(vt + 1), sNONCE))
    asm.wait_tag('xst')
    g = Asm()
    g('s_lshl2_add_u32 s%d, s%d, s%d' % (sT[1], sL, sW))
    g('s_lshl_b32 s%d, s%d, 6' % (sT[1], sT[1]))
    g('s_add_u32 s%d, s%d, %d' % (sT[1], sT[1], WS_FLAG))
    g('; flag')
    g('s_mov_b64 exec, 0xffff')
    g('buffer_store_dword %s, %s, %s, s%d offen sc1' % (v(vt + 1), v(vL4), srd(sWS), sT[1]), tag='flag')
    g('s_mov_b64 exec, -1')
    grp(asm, g)


def flag_load(asm):
    g = Asm()
    g('s_lshl_b32 s%d, s%d, 11' % (sT[1], sG))
    g('s_add_u32 s%d, s%d, %d' % (sT[1], sT[1], WS_FLAG))
    g('buffer_load_dword %s, %s, %s, s%d offen sc1' % (v(vt), v(vL8), srd(sWS), sT[1]))
    grp(asm, g)


T0('v_lshlrev_b32 %s, 2, %s' % (v(vL8), v(vL8)))
X1T0 = not any('x1' in x for x in CFG.values())
W2SEQ = mk(w2_loads, W2C[0], 35).l + mk(w2_dma, 40, 60).l + mk(w2_loads, 35, 40).l
n0, n1, n2 = OPT.get('n0', 8), OPT.get('n1', 18), OPT.get('n2', 18)
assert n0 <= 35 - W2C[0]
fx = []
g0 = 0
for rt in range(NY, 4):
    fx.append((mk(y_dma, rt, sT[1]), g0, g0 + 18))
    g0 += 18
if X1T0:
    fx.append((mk(j_x1), g0, g0 + 20))
    g0 += 20
fx.append((W2SEQ[:n0], g0, 60))
Y3 = OPT.get('y3', 1)
ywin = [(1, 2), (2, 24)] + ([(3, 44)] if Y3 == 0 else [])
emit('g1_t0', g1_main(0), [(mk(y_check1, rt), g, g + 4) for rt, g in ywin] + fx,
     [(T0, 0, 12)] + [(mk(y_check2, rt), g + 11, min(60, g + 20)) for rt, g in ywin])
fx = [(W2SEQ[n0:n0 + n1], 0, 60), (mk(flag_store), 22, 25)]
ge = gelu(0).l
if Y3:
    fx = [(mk(y_check1, 3), 0, 4)] + fx
    ge = ge[:30] + mk(y_check2, 3).l + ge[30:]
emit('g1_t1', g1_main(1), fx, [(ge, 2, 60)])
HE, H0 = OPT.get('he', 50), OPT.get('h0', 1)
pr = lambda rt: ([], 0, 1)
hl = lambda rt: (mk(h_loads, rt), H0, HE)
for rt in (2, 3):
    f = gelu(rt - 1)
    fx = [(W2SEQ[n0 + n1:n0 + n1 + n2], 0, 60)] if rt == 2 else [hl(0), (W2SEQ[n0 + n1 + n2:], 0, 60)]
    if rt == (3 if HEARLY or OPT.get('pair', 2) != 1 else 2):
        fx = [(mk(flag_load), 8, 11)] + fx
        verify(f, flag_load, lambda c: c('v_cmp_ne_u32 vcc, s%d, %s' % (sNONCE, v(vt))))
    emit('g1_t%d' % rt, g1_main(rt), fx, [(f, 2, 60)])
stamp('g1_done')
V.put(vAC[0], 12)
for x in vBFl:
    V.put(x, 4)
V.put(vBI, 12)
for x in [vYG, vYW] + vYR:
    V.put(x)
vA2 = [V.get(20, 'l'), vCK]
vPW = V.get(1, 'l')
vPR, vXO, vOO = [[V.get(1, 'l') for _ in range(2)] for _ in range(3)]
vX1 = V.get(10, 'l')
E = Asm()
E('v_bfe_u32 %s, %s, 1, 2' % (v(vt + 2), v(vN)))
E('v_xor_b32 %s, %s, %s' % (v(vt + 2), v(vt + 2), v(vG)))
E('s_mul_i32 s%d, s%d, 13312' % (sT[0], sW))
E('v_lshl_add_u32 %s, %s, 4, s%d' % (v(vPW), v(vt + 2), sT[0]))
E('v_lshl_add_u32 %s, %s, 6, %s' % (v(vPW), v(vN), v(vPW)))
E2 = Asm()
vRow = V.get(1, 'l')
E('s_lshl_b32 s%d, s%d, 2' % (sT[0], sW))
E('v_add_u32 %s, s%d, %s' % (v(vRow), sT[0], v(vG)))
for k in range(2):
    row = vRow if k == 0 else vQ
    if k == 0:
        E('s_lshl_b32 s%d, s%d, 7' % (sT[1], sJ))
        E('s_mul_i32 s%d, s%d, 81920' % (sT[0], sG))
    else:
        E('s_lshl_b32 s%d, s%d, 5' % (sT[1], sJ))
        E('s_add_u32 s%d, s%d, 1024' % (sT[1], sT[1]))
        E('s_lshl2_add_u32 s%d, s%d, s%d' % (sT[4], sG, sW))
        E('s_mul_i32 s%d, s%d, 20480' % (sT[0], sT[4]))
    E('v_lshl_add_u32 %s, %s, 3, s%d' % (v(vOO[k]), v(vN if k == 0 else vC8), sT[1]))
    E('v_mul_u32_u24 %s, 1280, %s' % (v(vt + 3), v(row)))
    E('v_add3_u32 %s, %s, %s, s%d' % (v(vXO[k]), v(vt + 3), v(vOO[k]), sT[0]))
    E2('v_bfe_u32 %s, %s, 1, 2' % (v(vt + 3), v(row)))
    E2('v_xor_b32 %s, %s, %s' % (v(vt + 3), v(vt + 3), v(vC8)))
    E2('v_lshlrev_b32 %s, 4, %s' % (v(vt + 3), v(vt + 3)))
    E2('v_lshl_add_u32 %s, %s, 6, %s' % (v(vPR[k]), v(row), v(vt + 3)))
    if k == 0:
        E2('v_lshrrev_b32 %s, 2, %s' % (v(vt + 3), v(vN)))
        E2('v_mul_u32_u24 %s, 1152, %s' % (v(vt + 3), v(vt + 3)))
        E2('v_add_u32 %s, %s, %s' % (v(vPR[k]), v(vt + 3), v(vPR[k])))
        E2('s_mul_i32 s%d, s%d, 10240' % (sT[4], sG))
    else:
        E2('s_lshl_b32 s%d, s%d, 10' % (sT[0], sW))
        E2('v_add_u32 %s, s%d, %s' % (v(vPR[k]), sT[0], v(vPR[k])))
        E2('s_lshl2_add_u32 s%d, s%d, s%d' % (sT[4], sG, sW))
        E2('s_mul_i32 s%d, s%d, 2560' % (sT[4], sT[4]))
    E2('v_and_b32 %s, 7, %s' % (v(vt + 3), v(row)))
    E2('v_lshrrev_b32 %s, 3, %s' % (v(vt + 2), v(row)))
    E2('v_lshl_add_u32 %s, %s, 8, %s' % (v(vt + 3), v(vt + 3), v(vt + 2)))
    E2('v_mul_u32_u24 %s, 1280, %s' % (v(vt + 3), v(vt + 3)))
    E2('v_add3_u32 %s, %s, %s, s%d' % (v(vOO[k]), v(vt + 3), v(vOO[k]), sT[4]))
    if k == 0:
        E2a, E2 = E2, Asm()
OUTF = ['', ' sc1', ' nt'][OPT.get('outf', 0)]


def x1_load(asm, rt):
    k = int(rt == 4)
    g = Asm()
    g('s_mov_b32 s%d, %d' % (sBG[1], WS_X1 + 20480 * (rt & 3)))
    g('buffer_load_dwordx2 %s, %s, %s, s%d offen sc1' % (v(vX1 + 2 * rt, 2), v(vXO[k]), srd(sWS), sBG[1]))
    grp(asm, g)


def part_write(asm, rt, tiles=range(5)):
    for t_ in tiles:
        off = 4608 * (rt & 1) + 1152 * t_ if t_ < 4 else 9216 + 1024 * rt
        asm('ds_write_b128 %s, %s offset:%d' % (v(vPW), v(vA2[rt & 1] + 4 * t_, 4), off))


def epi_read(asm, rt):
    s = vA2[rt & 1]
    for p in range(4):
        asm('ds_read_b128 %s, %s offset:%d' % (v(s + 4 * p, 4), v(vPR[int(rt == 4)]), 13312 * p + (4608 * (rt & 1) if rt < 4 else 9216)))


def epi_const(asm):
    for i in range(8):
        asm('v_accvgpr_read_b32 %s, %s' % (v(vGB[i]), a(240 + i)))
        asm('v_accvgpr_read_b32 %s, %s' % (v(vB2[i]), a(248 + i)))


def epi_pre(asm, rt):
    k = int(rt == 4)
    e = vER + 4 * k
    for p in range(2):
        asm('v_lshlrev_b32 %s, 16, %s' % (v(e + 2 * p), v(vX1 + 2 * rt + p)))
        asm('v_and_b32 %s, s%d, %s' % (v(e + 2 * p + 1), sMASK, v(vX1 + 2 * rt + p)))
    for i in range(4):
        asm('v_fmac_f32 %s, %s, %s' % (v(e + i), v(vGB[4 * k + i]), v(vB2[4 * k + i])))


def epilogue(asm, rt):
    k = int(rt == 4)
    s = vA2[rt & 1]
    e = vER + 4 * k
    for i in range(4):
        asm('v_add_f32 %s, %s, %s' % (v(s + i), v(s + i), v(s + 4 + i)))
    for i in range(4):
        asm('v_add_f32 %s, %s, %s' % (v(s + 8 + i), v(s + 8 + i), v(s + 12 + i)))
    for i in range(4):
        asm('v_add_f32 %s, %s, %s' % (v(s + i), v(s + i), v(s + 8 + i)))
    for i in range(4):
        asm('v_fmac_f32 %s, %s, %s' % (v(e + i), v(s + i), v(vGB[4 * k + i])))
    for p in range(2):
        asm('v_cvt_pk_bf16_f32 %s, %s, %s' % (v(s + 16 + p), v(e + 2 * p), v(e + 2 * p + 1)))
    g = Asm()
    g('s_mov_b32 s%d, %d' % (sT[3], 2560 * (rt & 3)))
    g('buffer_store_dwordx2 %s, %s, %s, s%d offen%s' % (v(s + 16, 2), v(vOO[k]), srd(sOUT), sT[3], OUTF), tag='out')
    grp(asm, g)


def g2_mfma(rt, k, t_):
    d = v(vA2[rt & 1] + 4 * t_, 4)
    return Ins('%s %s, %s, %s, %s' % (MF16, d, w2frag(k, t_), a(HB[rt] + 4 * k, 4), d if k else '0'))


KT = OPT.get('kt', 5)


def g2_main(rt):
    if rt == 3 and KT:
        return [g2_mfma(rt, k, t_) for k in range(12 - KT) for t_ in range(5)] + [g2_mfma(rt, k, t_) for t_ in range(5) for k in range(12 - KT, 12)]
    return [g2_mfma(rt, k, t_) for k in range(12) for t_ in range(5)]


def h_check(asm, rt):
    if OPT.get('now1') or OPT.get('now2'):
        return
    ls, lo, ll, lr = label('hslow'), label('hok'), label('hl'), label('hredo')
    g = Asm()
    g('v_cmp_u_f32 vcc, %s, %s' % (v(vA2[rt & 1]), v(vA2[rt & 1])))
    g('s_cbranch_vccnz %s' % ls)
    g('%s:' % lo)
    grp(asm, g)
    c = COLD
    c.cold_begin()
    c('%s:' % ls)
    c('s_add_u32 s%d, s%d, 1' % (sSPIN, sSPIN))
    c('s_cmp_gt_u32 s%d, %d' % (sSPIN, SPIN))
    c('s_cbranch_scc1 %s' % lr)
    h_loads(c, rt, sT[5])
    c('s_waitcnt vmcnt(0)')
    t2 = vA2[rt & 1]
    c('v_mov_b32 %s, 0' % v(t2))
    for i in range(0, 48, 2):
        c('v_accvgpr_read_b32 %s, %s' % (v(vt), a(HB[rt] + i)))
        c('v_accvgpr_read_b32 %s, %s' % (v(vt + 1), a(HB[rt] + i + 1)))
        c('v_max3_u32 %s, %s, %s, %s' % (v(t2), v(t2), v(vt), v(vt + 1)))
    c('v_cmp_eq_u32 vcc, -1, %s' % v(t2))
    c('s_cbranch_vccnz %s' % ls)
    c('%s:' % lr)
    c.l += g2_main(rt)
    c('s_nop 7')
    if rt == 3 and KT:
        part_write(c, 3, range(3))
    c('s_branch %s' % lo)


vW2r = vPR[0]
R = Asm()
R('v_add_u32 %s, s%d, %s' % (v(vW2r), sW2L, v(vL16)))
R.wait_tag('w2d')
for n in range(40, 60):
    R('ds_read_b128 %s, %s offset:%d' % (w2frag(n // 5, n % 5), v(vW2r), 1024 * (n - 40)))
g3 = gelu(3).l
NG = min(OPT.get('ng', 30), len(g3))
HS = OPT.get('hs', 0) if NG > 60 else 0
x1_load(E, 0)
if HS:
    A.l += interleave(g3[:NG], mk(h_loads, 1, sBG[0], 0, HS), NG - 16 * HS, NG)
else:
    A.l += g3[:NG]
stamp('g2_start', lvl=4)
emit('g2_t0', g2_main(0), [(R, 0, 30), (mk(h_loads, 1, sBG[0], HS, 12), 1 if HS else H0, HE - 4 * HS), pr(2)], [(g3[NG:] + E.l, 0, 60)])
V.put(vHP, 10)
V.put(vGC0)
for x in (vHs4, vHs2, vL4, vOOB, vLane):
    V.put(x)
vER = V.get(8, 'l')
vGB = [V.get(1, 'l') for _ in range(8)]
vB2 = [V.get(1, 'l') for _ in range(8)]
GB_, GR_, GW_ = OPT.get('gb', 27), OPT.get('gr', 28), OPT.get('gw', 40)
for rt in range(1, 4):
    f = Asm()
    if rt == 1:
        f('s_barrier')
    h_check(f, rt - 1)
    wl = Asm()
    wl.wait_lds()
    fx = [(f, 3, 4), (mk(part_write, rt - 1), 4, 14), (mk(barrier), GB_, GB_ + 1), (mk(epi_read, rt - 1), GR_, GR_ + 2), (wl, GW_, GW_ + 1)]
    if rt == 1:
        fx += [hl(2), pr(3), (mk(x1_load, 1), 15, 20)]
        epi_const(E2a)
        fl = [(E2a, 0, GB_), (mk(epi_pre, 0), GB_, GW_), (mk(epilogue, 0), GW_, 60)]
    elif rt == 2:
        fx += [hl(3), (mk(x1_load, 2).l + mk(x1_load, 4).l + mk(x1_load, 3).l, 15, 30)]
        fl = [(E2, 0, GB_), (mk(epi_pre, 1), GB_, GW_), (mk(epilogue, 1), GW_, 60)]
    else:
        fl = [(mk(epi_pre, 2).l + mk(epi_pre, 4).l, GB_, GW_), (mk(epilogue, 2).l + mk(epi_pre, 3).l, GW_, 60)]
        if KT:
            for t_ in range(3):
                g = 60 - KT * (4 - t_) + 4
                fx.append((mk(part_write, 3, [t_]), g, g + 1))
    emit('g2_t%d' % rt, g2_main(rt), fx, fl)
stamp('g2_done')
h_check(A, 3)
part_write(A, 3, range(3, 5) if KT else range(5))
barrier()
stamp('lastbar', lvl=4)
epi_read(A, 3)
epi_read(A, 4)
epilogue(A, 3)
epilogue(A, 4)
stamp('laststore', lvl=4)
if OPT['stamps']:
    A('s_waitcnt vmcnt(0)')
    stamp('end')
    A('s_memtime s[4:5]')
    A('s_sub_u32 s4, s4, s100')
    A('s_lshl_b32 s%d, s2, 2' % sT[0])
    A('s_add_u32 s%d, s%d, s%d' % (sT[0], sT[0], sW))
    A('s_lshl_b32 s%d, s%d, 7' % (sT[0], sT[0]))
    A('s_add_u32 s%d, s%d, %d' % (sT[0], sT[0], WS_STAMP))
    A('s_mov_b64 exec, 1')
    for i, s in [(i, sSTAMP + i) for i in range(nstamp[0])] + [(30, 4), (31, sSPIN)]:
        A('v_mov_b32 %s, s%d' % (v(vt), s))
        A('buffer_store_dword %s, %s, %s, s%d offen offset:%d' % (v(vt), v(vL16), srd(sWS), sT[0], 4 * i))
        A('s_waitcnt vmcnt(0)')
if OPT.get('gecho'):
    A('s_cmp_lg_u32 s%d, 0' % sW)
    A('s_cbranch_scc1 L_end')
    A('s_waitcnt vmcnt(0)')
    A('s_memrealtime s[92:93]')
    A('s_waitcnt lgkmcnt(0)')
    A('s_mov_b32 s98, 256')
    A('s_mov_b32 s99, 0x20000')
    A('s_mov_b64 exec, 1')
    A('s_not_b32 s94, s88')
    for o, r in ((0, 94), (4, 90), (8, 92), (16, 88), (20, sSPIN)):
        A('v_mov_b32 %s, s%d' % (v(vt), r))
        A('buffer_atomic_%s %s, off, s[96:99], 0 offset:%d' % ('add' if o == 20 else 'umax', v(vt), o))
        A('s_nop 1')
    A('s_waitcnt vmcnt(0)')
    A('v_mov_b32 %s, 1' % v(vt))
    A('buffer_atomic_add %s, off, s[96:99], 0 offset:12 sc0' % v(vt))
    A('s_waitcnt vmcnt(0)')
    A('v_readfirstlane_b32 s94, %s' % v(vt))
    A('s_cmp_lg_u32 s94, 255')
    A('s_cbranch_scc1 L_end')
    A('buffer_load_dwordx4 %s, off, s[96:99], 0 sc1' % v(vt, 4))
    A('buffer_load_dword %s, off, s[96:99], 0 offset:16 sc1' % v(tmp))
    A('s_waitcnt vmcnt(0)')
    A('v_readfirstlane_b32 s94, %s' % v(vt))
    A('v_readfirstlane_b32 s95, %s' % v({1: vt + 2, 2: tmp}.get(OPT['gecho'], vt + 1)))
    A('s_add_u32 s94, s94, s95')
    A('s_add_u32 s94, s94, 1')
    A('s_mul_i32 s94, s94, %d' % OPT.get('gk', 4))
    A('s_min_u32 s94, s94, 50000')
    A('s_memrealtime s[92:93]')
    A('L_echo:')
    A('s_memrealtime s[90:91]')
    A('s_waitcnt lgkmcnt(0)')
    A('s_sub_u32 s95, s90, s92')
    A('s_cmp_lt_u32 s95, s94')
    A('s_cbranch_scc1 L_echo')
if OPT.get('probe'):
    pr = OPT['probe']
    A('s_or_b32 s%d, s%d, s%d' % (sT[0], sL, sW))
    A('s_cmp_lg_u32 s%d, 0' % sT[0])
    A('s_cbranch_scc1 L_end')
    A('s_waitcnt vmcnt(0)')
    sr = sWS if pr >= 2 else sPRB
    if pr >= 2:
        A('s_mov_b32 s%d, 0x10000000' % (sWS + 2))
    base = {1: 0, 2: 0x1a00000, 3: 0x8000000, 4: 0xfc00000}[pr]
    for i in range(40):
        A('s_mov_b32 s%d, %d' % (sT[0], base + i * (40960 + 128)))
        A('buffer_load_dword %s, off, %s, s%d' % (v(vt), srd(sr), sT[0]))
        A('s_waitcnt vmcnt(0)')
A('L_end:')
A('s_endpgm')
A.add(COLD)

body, ins = finalize(A)
far = ''
while '; FARBEGIN' in body:
    i = body.index('; FARBEGIN')
    j = body.index('; FAREND\n', i) + 9
    far += body[i + 11:j - 9]
    body = body[:i] + body[j:]
body = body.replace('L_end:\n  s_endpgm\n', 'L_end:\n  s_endpgm\n' + far)
import subprocess, re as _re
for n, r in PADS.items():
    body = body.replace('; PAD %s\n' % n, 'L_pad_%s:\n  s_cbranch_execz %s\n' % (n, r))
pages = sorted(int(n[2:]) for n in PADS if n.startswith('pg'))
if pages:
    trial = '.amdgcn_target "amdgcn-amd-amdhsa--gfx950"\n.text\n' + body + ''.join('L_pad_pg%d:\n' % p for p in pages) + 'L_tab:\n.fill 8192,4,0\nL_tabend:\n'
    tf = sys.argv[1] + '.trial'
    open(tf, 'w').write(trial)
    subprocess.run(['clang', '-x', 'assembler', '-target', 'amdgcn-amd-amdhsa', '-mcpu=gfx950', '-c', tf, '-o', tf + '.o'], check=True)
    dis = subprocess.run(['llvm-objdump', '-d', '--mcpu=gfx950', tf + '.o'], capture_output=True, text=True).stdout
    addr = [int(x, 16) for x in _re.findall(r'// ([0-9A-F]{12}):', dis)]
    import os
    os.remove(tf)
    os.remove(tf + '.o')
    lines = body.split('\n')
    il = [k for k, x in enumerate(lines) if x.startswith('  ')]
    ins_at = {}
    for cnt, p in enumerate(pages):
        cand = [n for n in range(1, len(il)) if 0 <= addr[n] + 4 * cnt - 4096 * p <= 56]
        best = [n for n in cand if 'v_mfma' in lines[il[n - 1]] and lines[il[n]].startswith('  v_')] or cand
        ins_at[il[best[0]]] = p
        print('page', p, 'pad before', lines[il[best[0]]])
    body = '\n'.join(('L_pad_pg%d:\n  s_cbranch_execz %s\n' % (ins_at[k], PADS['pg%d' % ins_at[k]]) if k in ins_at else '') + x for k, x in enumerate(lines))
ref = open('cdna_kernels/%s.s.ref' % NAME).read()
hdr = ref[:ref.index('; Override launch')]
src = hdr + '; @launch grid=(256,1,1) block=(256,1,1) lds=163840\n'
src += '.amdgcn_target "amdgcn-amd-amdhsa--gfx950"\n.text\n.p2align 12\n.fill 832, 4, 0xbf810000\n.globl %s_kernel\n.p2align 8\n.type %s_kernel,@function\n%s_kernel:\n' % (NAME, NAME, NAME)
src += body
src += '.p2align 7\n.type L_tab,@object\nL_tab:\n'
for n in TN:
    for row in T[n].reshape(-1, 8):
        src += '.long ' + ','.join('0x%x' % x for x in row) + '\n'
src += '.fill %d, 4, 0\nL_tabend:\n.size L_tab, L_tabend-L_tab\n' % ((32 - len(TN)) * 256)
src += '''.section .rodata,"a"
.p2align 6
.amdhsa_kernel %s_kernel
  .amdhsa_next_free_vgpr 512
  .amdhsa_next_free_sgpr 102
  .amdhsa_accum_offset 256
  .amdhsa_group_segment_fixed_size 0
  .amdhsa_kernarg_size 104
  .amdhsa_user_sgpr_count 2
  .amdhsa_user_sgpr_kernarg_segment_ptr 1
  .amdhsa_system_sgpr_workgroup_id_x 1
  .amdhsa_float_denorm_mode_32 3
.end_amdhsa_kernel
''' % NAME
open(sys.argv[1], 'w').write(src)
open(sys.argv[1] + '.stamps', 'w').write('\n'.join(stamp_names))
from collections import Counter
cnt = Counter(i.cls for i in ins)
print('instr', dict(cnt), 'nop states', sum(states(i) for i in ins if i.cls == 'nop'), 'src bytes', len(src))
```

```python
import sys
sys.path.insert(0, 'work')
from asmlib import *
import tables

NAME = 'adaLN_cond__spectral_gfnet__mixer_channel_mlp__prompt'
OPT = dict(stamps=0)
CFG = dict(PRE='', SIL='', PUB='const,tw,tw1,tm', PUB2='', G0='', P1='wf:3', A1='wf:1,w1:3,bias', G1='w1:2', G1b='', P2='w1:6', A2='w1:4', G2='w1:1', G2b='hclr:3',
           P3='hclr:3,w1:3', A3='w1:1,w2:8', G3='')
for arg in sys.argv[2:]:
    k, v = arg.split('=')
    if k in CFG:
        CFG[k] = v
    else:
        OPT[k] = int(v)

PBLK = 11264
WS_EPOCH = 0
WS_MODX = 0x1000
WS_MOD2 = 0x9000
WS_FLAG = 0x10000
WS_P = 0x50000
WS_X1 = WS_P + 256 * PBLK
WS_H = WS_X1 + 256 * 10240
WS_W2F = WS_H + 32 * 196608
WS_END = WS_W2F + 1920 * 1024
WS_STAMP = 0x1800000
WS_REC = 0x2000000
OOB = 0x7ff00000
assert WS_END < WS_STAMP
L_MOD = 0
L_SILU = 17920
L_RED = 19200
L_EX = 20480
L_GP = 32768
L_GW = 49152
L_RING = 65536
L_CONST = L_GP
L_WRAW = L_RING + 7 * 12288
L_W2 = 81920
L_PART = [0, 21504]
SPIN = 200000

T = tables.build()
TN = list(T)

sC, sWM, sX, sWS, sWF_, sW1, sW2, sB1, sB2, sOUT = [8 + 4 * i for i in range(10)]
sWRp, sWIp = 48, 50
sL, sW, sNONCE, sJ, sG, sSPIN, sMASK, sVER = 52, 53, 54, 55, 56, 57, 58, 59
sT = [60, 61, 62, 63, 64, 65]
sST = 66
sADD = 70
sIDX = 73
sXCD = 74
sPG = 75
sZS = 76
sPB = 77
sRING = 78
sTAU = 79
sEX = 80
sBG = [48, 49]
sCOL = 50
sYX = 51
sJ1, sG1, sTM, sTAGZ, sNU = 4, 5, 0, 1, 3
sSTAMP = 82


def srd(s):
    return 's[%d:%d]' % (s, s + 3)


def v(n, c=1):
    return 'v%d' % n if c == 1 else 'v[%d:%d]' % (n, n + c - 1)


def a(n, c=1):
    return 'a%d' % n if c == 1 else 'a[%d:%d]' % (n, n + c - 1)


class Pool:
    def __init__(self, lo, hi):
        self.free = set(range(lo, hi))
        self.hw = 0

    def get(self, n, z='mhxl', al=2):
        if n == 1:
            al = 1
        Z = dict(l=(1, 96), m=(96, 176), h=(176, 256), x=(96, 256))
        for b, hi in [(b, Z[c][1]) for c in z for b in range(*Z[c])]:
            if b % al == 0 and b + n <= hi and all(b + i in self.free for i in range(n)):
                for i in range(n):
                    self.free.remove(b + i)
                self.hw = max(self.hw, b + n)
                return b
        raise RuntimeError('out of registers (%d)' % n)

    def take(self, b, n):
        for i in range(n):
            assert b + i in self.free, 'v%d busy' % (b + i)
            self.free.remove(b + i)
        return b

    def put(self, b, n=1):
        for i in range(n):
            assert b + i not in self.free
            self.free.add(b + i)


A = Asm()
COLD = Asm()
V = Pool(1, 256)
nstamp = [0]
stamp_names = []


CLK = 's_memtime' if OPT.get('cyc') else 's_memrealtime'
ECHO = {3: 'pub0', 4: 's0_done', 5: 's1_done', 6: 's2_done', 7: 's3_done', 8: 'g1_done', 9: 'crit_iss', 10: 'g2_t0', 11: 'g2_t1', 12: 'g2_done', 13: 'laststore', 14: 'g1_t1'}


def stamp(name, asm=None, lvl=1, again=False):
    if ECHO.get(OPT.get('gecho')) == name:
        (asm or A)('s_memrealtime s[90:91]')
        (asm or A)('s_waitcnt lgkmcnt(0)')
    if not (OPT['stamps'] & lvl) and not (OPT['stamps'] and name in ('end',)):
        return
    asm = asm or A
    if again:
        i = stamp_names.index(name)
    else:
        i = nstamp[0]
        nstamp[0] += 1
        stamp_names.append(name)
    asm('%s s[%d:%d]' % (CLK, sEX, sEX + 1))
    asm('s_mov_b32 s%d, s%d' % (sSTAMP + i, sEX))
    assert sSTAMP + i < 100


MF16 = 'v_mfma_f32_16x16x32_bf16'
MF32 = 'v_mfma_f32_32x32x16_bf16'
lab = [0]


def label(p):
    lab[0] += 1
    return 'L_%s_%d' % (p, lab[0])


def barrier(asm=None):
    asm = asm or A
    asm.wait_lds()
    asm('s_barrier')


PADS = {}


def pad(asm, name):
    asm('; PAD %s' % name)


def warm(asm, names):
    if not OPT.get('warm', 1):
        return
    ret = label('wret')
    g = Asm()
    g('s_mov_b64 exec, 0')
    for w, chain in enumerate(names):
        chain = chain.split('+')
        for a_, b_ in zip(chain, chain[1:] + [None]):
            PADS[a_] = 'L_pad_' + b_ if b_ else ret
        g('s_cmp_eq_u32 s%d, %d' % (sW, w))
        g('s_cbranch_scc1 L_pad_%s' % chain[0])
    g('%s:' % ret)
    g('s_mov_b64 exec, -1')
    asm.l.append(g.l)


def check_sentinel(asm, regs, tmp):
    r = list(regs)
    first = True
    while r:
        if first:
            if len(r) >= 3:
                asm('v_max3_u32 %s, %s, %s, %s' % (v(tmp), v(r[0]), v(r[1]), v(r[2])))
                r = r[3:]
            else:
                asm('v_max_u32 %s, %s, %s' % (v(tmp), v(r[0]), v(r[-1])))
                r = []
            first = False
        elif len(r) >= 2:
            asm('v_max3_u32 %s, %s, %s, %s' % (v(tmp), v(tmp), v(r[0]), v(r[1])))
            r = r[2:]
        else:
            asm('v_max_u32 %s, %s, %s' % (v(tmp), v(tmp), v(r[0])))
            r = []
    asm('v_cmp_eq_u32 vcc, -1, %s' % v(tmp))


def check_bits(asm, regs, masks, tmp):
    r = list(regs)
    for k, x in enumerate(r if masks is not None else []):
        asm('v_xor_b32 %s, %s, %s' % (v(x), v(masks + k % 4), v(x)))
    asm('v_or3_b32 %s, %s, %s, %s' % (v(tmp), v(r[0]), v(r[1]), v(r[2])))
    for k in range(3, len(r) - 1, 2):
        asm('v_or3_b32 %s, %s, %s, %s' % (v(tmp), v(tmp), v(r[k]), v(r[k + 1])))
    asm('v_bitop3_b32 %s, %s, %s, s%d bitop3:0xa8' % (v(tmp), v(tmp), v(r[-1]), sTM))
    asm('v_cmp_ne_u32 vcc, 0, %s' % v(tmp))


def check_tags(asm, regs, tmp):
    asm('v_xor_b32 %s, s%d, %s' % (v(tmp), sNONCE, v(regs[0])))
    for r in regs[1:]:
        asm('v_bitop3_b32 %s, %s, s%d, %s bitop3:0xbe' % (v(tmp), v(r), sNONCE, v(tmp)))
    asm('v_cmp_ne_u32 vcc, 0, %s' % v(tmp))


def verify(asm, loads, checker, masked=True, name=None):
    ls, lo = label('slow'), label('ok')
    checker(asm)
    grp = Asm()
    grp('s_cbranch_vccnz %s' % ls)
    grp('%s:' % lo)
    asm.l.append(grp.l)
    c = COLD
    c.cold_begin()
    lx = label('out')
    c('%s:' % ls)
    if name:
        pad(c, name)
    c('s_add_u32 s%d, s%d, 1' % (sSPIN, sSPIN))
    c('s_cmp_gt_u32 s%d, %d' % (sSPIN, SPIN))
    c('s_cbranch_scc1 %s' % lx)
    c('s_mov_b64 exec, vcc' if masked else 's_wqm_b64 exec, vcc')
    loads(c)
    c('s_waitcnt vmcnt(0)')
    checker(c)
    c('s_cbranch_vccnz %s' % ls)
    c('%s:' % lx)
    c('s_mov_b64 exec, -1')
    c('s_nop 4')
    c('s_branch %s' % lo)


def cmul(asm, re_, im_, c_, s_, t0, t1, sign, inplace=False):
    neg = ' neg_lo:[0,0,1] neg_hi:[0,0,1]'
    for p in (0, 2):
        asm('v_pk_mul_f32 %s, %s, %s' % (v(t0 + p, 2), v(im_ + p, 2), v(s_ + p, 2)))
        asm('v_pk_mul_f32 %s, %s, %s' % (v(t1 + p, 2), v(re_ + p, 2), v(s_ + p, 2)))
    for p in (0, 2):
        asm('v_pk_fma_f32 %s, %s, %s, %s%s' % (v((re_ if inplace else t0) + p, 2), v(re_ + p, 2), v(c_ + p, 2), v(t0 + p, 2), neg if sign > 0 else ''))
        asm('v_pk_fma_f32 %s, %s, %s, %s%s' % (v((im_ if inplace else t1) + p, 2), v(im_ + p, 2), v(c_ + p, 2), v(t1 + p, 2), '' if sign > 0 else neg))


def ln_stats(asm, x, scale=None):
    t = V.get(8, 'hxl')
    for r in range(2):
        asm('v_pk_add_f32 %s, %s, %s' % (v(t + 2 * r, 2), v(x[r], 2), v(x[r] + 2, 2)))
        asm('v_pk_mul_f32 %s, %s, %s' % (v(t + 4 + 2 * r, 2), v(x[r], 2), v(x[r], 2)))
    for p in range(1, 5):
        for r in range(2):
            if p >= 2:
                asm('v_pk_add_f32 %s, %s, %s' % (v(t + 2 * r, 2), v(t + 2 * r, 2), v(x[r] + 2 * p, 2)))
            asm('v_pk_fma_f32 %s, %s, %s, %s' % (v(t + 4 + 2 * r, 2), v(x[r] + 2 * p, 2), v(x[r] + 2 * p, 2), v(t + 4 + 2 * r, 2)))
    for q in range(4):
        asm('v_add_f32 %s, %s, %s' % (v(t + 2 * q), v(t + 2 * q), v(t + 2 * q + 1)))
    asm('v_permlane32_swap_b32 %s, %s' % (v(t), v(t + 2)))
    asm('v_permlane32_swap_b32 %s, %s' % (v(t + 4), v(t + 6)))
    asm('v_add_f32 %s, %s, %s' % (v(t), v(t), v(t + 2)))
    asm('v_add_f32 %s, %s, %s' % (v(t + 4), v(t + 4), v(t + 6)))
    asm('v_permlane16_swap_b32 %s, %s' % (v(t), v(t + 4)))
    asm('v_add_f32 %s, %s, %s' % (v(t), v(t), v(t + 4)))
    for sh in (8, 4, 2, 1):
        asm('v_add_f32_dpp %s, %s, %s row_ror:%d row_mask:0xf bank_mask:0xf' % (v(t), v(t), v(t), sh))
    asm('v_mul_f32 %s, 0x3acccccd, %s' % (v(t + 1), v(t)))
    asm('v_mul_f32 %s, 0x3acccccd, %s' % (v(t), v(t)))
    asm('v_permlane16_swap_b32 %s, %s' % (v(t), v(t + 1)))
    asm('v_fma_f32 %s, -%s, %s, %s' % (v(t + 1), v(t), v(t), v(t + 1)))
    asm('v_max_f32 %s, 0, %s' % (v(t + 1), v(t + 1)))
    asm('v_add_f32 %s, 0x3727c5ac, %s' % (v(t + 1), v(t + 1)))
    asm('v_rsq_f32 %s, %s' % (v(t + 1), v(t + 1)))
    if scale:
        asm('v_mul_f32 %s, %s, %s' % (v(t + 1), scale, v(t + 1)))
    asm('v_mul_f32_e64 %s, -%s, %s' % (v(t), v(t), v(t + 1)))
    for r in range(2):
        asm('v_readlane_b32 s%d, %s, %d' % (sST + 2 * r, v(t + 1), 32 * r))
    for r in range(2):
        asm('v_readlane_b32 s%d, %s, %d' % (sST + 2 * r + 1, v(t), 32 * r))
    V.put(t, 8)


def ln_apply(asm, dst, x):
    for p in range(5):
        for r in range(2):
            s = 's[%d:%d]' % (sST + 2 * r, sST + 2 * r + 1)
            asm('v_pk_fma_f32 %s, %s, %s, %s op_sel:[0,0,1] op_sel_hi:[1,0,1]' % (v(dst[r] + 2 * p, 2), v(x[r] + 2 * p, 2), s, s))


def read_mod(asm, dst, vec, vL16, vL4):
    b = L_MOD + vec * 2560
    asm('ds_read_b128 %s, %s offset:%d' % (v(dst, 4), v(vL16), b))
    asm('ds_read_b128 %s, %s offset:%d' % (v(dst + 4, 4), v(vL16), b + 1280))
    o = (b + 1024) // 256
    assert (b + 1024) % 256 == 0
    asm('ds_read2st64_b32 %s, %s offset0:%d offset1:%d' % (v(dst + 8, 2), v(vL4), o, o + 5))


def S(asm, fmt, *args):
    asm(fmt % args)


def opt(cond, asm=None):
    asm = asm or A
    lb = label('skip')
    asm(cond)
    asm('s_cbranch_scc1 %s' % lb)
    asm.opt_begin()
    return lb


def opt_end(lb, asm=None):
    asm = asm or A
    asm.opt_end()
    asm('%s:' % lb)


def grp(asm, g):
    asm.l.append(g.l)


A('s_cmp_ge_u32 s2, 256')
A('s_cbranch_scc1 L_end')
for s, off in ((sC, 64), (sWM, 72), (sX, 0), (sWS, 96), (sWRp, 8), (sWIp, 16), (sW1, 32)):
    A('s_load_dwordx2 s[%d:%d], s[0:1], %d' % (s, s + 1, off))
if OPT['stamps']:
    A('%s s[%d:%d]' % (CLK, sSTAMP, sSTAMP + 1))
    A('s_memtime s[100:101]')
if OPT.get('gecho'):
    A('s_memrealtime s[88:89]')
    A('s_load_dwordx2 s[96:97], s[0:1], 88')
    A('s_mov_b32 s90, 0')
    A('s_mov_b32 s85, 0')
vLane = V.get(1, 'l')
vt = V.get(4, 'l')
tmp = V.get(1, 'l')
A('v_lshrrev_b32 %s, 6, v0' % v(vt))
A('v_and_b32 %s, 63, v0' % v(vLane))
A('v_readfirstlane_b32 s%d, %s' % (sW, v(vt)))
A('s_lshr_b32 s%d, s2, 3' % sIDX)
vPC = V.get(2)
A('s_getpc_b64 s[6:7]')
A('L_pc:')
A('s_lshl_b32 s%d, s%d, 7' % (sT[1], sIDX))
A('v_lshl_add_u32 %s, v0, 12, s%d' % (v(vt + 1), sT[1]))
A('v_mov_b32 %s, s7' % v(vPC + 1))
A('v_add_co_u32 %s, vcc, s6, %s' % (v(vt + 2), v(vt + 1)))
A('s_and_b32 s%d, s2, 7' % sT[0])
A('s_mul_i32 s%d, s%d, 20' % (sTAU, sT[0]))
A('v_addc_co_u32 %s, vcc, 0, %s, vcc' % (v(vt + 3), v(vPC + 1)))
A('v_cmp_gt_u32 vcc, (L_tabend-L_pc-4), %s' % v(vt + 1))
A('s_add_u32 s%d, s%d, s%d' % (sTAU, sTAU, sIDX))
A('s_and_saveexec_b64 s[%d:%d], vcc' % (sEX, sEX + 1))
A('s_cbranch_execz L_nopf')
A.opt_begin()
vJunk = V.get(3, 'h', 1)
A('global_load_dword %s, %s, off' % (v(vJunk), v(vt + 2, 2)), tag='junk')
A.opt_end()
A('L_nopf:')
A('s_mov_b64 exec, -1')
A('s_lshl_b32 s%d, s%d, 5' % (sL, sT[0]))
A('s_add_u32 s%d, s%d, s%d' % (sL, sL, sIDX))
vL16, vL4, vL8 = V.get(1, 'l'), V.get(1, 'l'), V.get(1, 'l')
vN, vG, vKD, vH = V.get(1, 'l'), V.get(1, 'l'), V.get(1, 'l'), V.get(1, 'l')
A('v_and_b32 %s, 15, %s' % (v(vN), v(vLane)))
A('v_lshrrev_b32 %s, 4, %s' % (v(vG), v(vLane)))
vCo = V.get(1)
A('s_and_b32 s%d, s%d, 1' % (sT[2], sTAU))
A('s_mul_i32 s%d, s%d, 640' % (sT[0], sT[2]))
A('s_lshl_b32 s%d, s%d, 6' % (sT[1], sW))
A('s_add_u32 s%d, s%d, s%d' % (sT[0], sT[0], sT[1]))
A('v_lshl_add_u32 %s, %s, 8, s%d' % (v(vCo), v(vG), sT[0]))
A('v_lshl_add_u32 %s, %s, 2, %s' % (v(vCo), v(vN), v(vCo)))
vWM = V.get(1)
A('v_lshrrev_b32 %s, 1, %s' % (v(vWM), v(vLane)))
A('v_mul_u32_u24 %s, 7680, %s' % (v(vWM), v(vWM)))
A('v_and_b32 %s, 1, %s' % (v(vt), v(vLane)))
A('v_lshl_add_u32 %s, %s, 4, %s' % (v(vWM), v(vt), v(vWM)))
A('s_mul_i32 s%d, s%d, 3840' % (sT[0], sT[0]))
A('s_lshr_b32 s%d, s%d, 1' % (sT[1], sTAU))
A('s_lshl_b32 s%d, s%d, 5' % (sT[1], sT[1]))
A('s_add_u32 s%d, s%d, s%d' % (sT[0], sT[0], sT[1]))
A('s_lshl_b32 s%d, s%d, 10' % (sT[1], sW))
for s, n in ((sC, 1280), (sWM, 640 * 7680), (sX, 2621440), (sWS, WS_REC)):
    A('s_mov_b32 s%d, %d' % (s + 2, n))
    A('s_mov_b32 s%d, 0x20000' % (s + 3))
A('v_lshlrev_b32 %s, 2, %s' % (v(vL4), v(vLane)))
A('s_lshl_b32 s%d, s%d, 9' % (sT[2], sW))
A('s_add_u32 s%d, s%d, s%d' % (sT[2], sT[2], sL))
A('s_mul_i32 s%d, s%d, 1280' % (sPG, sT[2]))
A('s_add_u32 s%d, s%d, %d' % (sZS, sPG, 256 * 1280))
A('s_add_u32 m0, s%d, %d' % (sT[1], L_EX))
A('s_waitcnt lgkmcnt(0)')
XPOS = OPT.get('xpos', 2)
vXR = V.get(10)
XL, XL2 = Asm(), Asm()
for r in range(2):
    for j in range(5):
        for X in (XL, XL2):
            X('buffer_load_dword %s, %s, %s, s%d offen offset:%d' % (v(vXR + 5 * r + j), v(vL4), srd(sX), (sPG, sZS)[r], 256 * j))
if XPOS == 0:
    A.add(XL)
vC = V.get(1)
lb = opt('s_cmp_ge_u32 s%d, 20' % sIDX)
A('buffer_load_dword %s, %s, %s, 0 offen' % (v(vC), v(vCo), srd(sC)))
for i in range(3):
    if i == 2:
        lb2 = opt('s_cmp_ge_u32 s%d, 2' % sW)
    if i:
        A('s_add_u32 m0, s%d, %d' % (sT[1], L_EX + 4096 * i))
        A('s_add_u32 s%d, s%d, %d' % (sT[0], sT[0], 128 * 7680))
    A('buffer_load_dwordx4 %s, %s, s%d offen lds' % (v(vWM), srd(sWM), sT[0]), tag='wm')
opt_end(lb2)
opt_end(lb)
V.put(vCo)
V.put(vWM)
if OPT['stamps']:
    nstamp[0] = 1
    stamp_names.append('start')
A('s_load_dword s%d, s[%d:%d], %d' % (sNONCE, sWS, sWS + 1, WS_EPOCH))
for s, off in ((sW2, 48), (sB1, 40), (sB2, 56), (sOUT, 80)):
    A('s_load_dwordx2 s[%d:%d], s[0:1], %d' % (s, s + 1, off))
stamp('crit_iss', lvl=2)
if XPOS == 2:
    A.add(XL)


def mk(fn, *args):
    x = Asm()
    fn(x, *args)
    return x


def out_of_line(cond, asm=None):
    asm = asm or A
    lb, lj = label('far'), label('back')
    asm(cond)
    asm('s_cbranch_scc1 %s' % lb)
    return lb, lj


B = Asm()
for s, n in ((sWF_, 2048 * 642), (sW1, 640 * 3072), (sW2, 1536 * 1280), (sB1, 3072), (sB2, 1280), (sOUT, 2621440)):
    B('s_mov_b32 s%d, %d' % (s + 2, n))
    B('s_mov_b32 s%d, 0x20000' % (s + 3))
B('v_lshlrev_b32 %s, 4, %s' % (v(vL16), v(vLane)))
B('v_lshlrev_b32 %s, 3, %s' % (v(vL8), v(vLane)))
B('v_and_b32 %s, 31, %s' % (v(vKD), v(vLane)))
B('v_lshrrev_b32 %s, 5, %s' % (v(vH), v(vLane)))
B('s_mov_b32 s%d, 0' % sSPIN)
B('s_mov_b32 s%d, 0xffff0000' % sMASK)
B('s_and_b32 s%d, s%d, 7' % (sJ, sL))
B('s_lshr_b32 s%d, s%d, 3' % (sG, sL))
B('s_mul_i32 s%d, s%d, %d' % (sPB, sL, PBLK))
B('s_add_u32 s%d, s%d, %d' % (sPB, sPB, WS_P))
vOOB = V.get(1, 'l')
vKW = V.get(1)
vQ = V.get(1, 'l')
vC8 = V.get(1, 'l')
vT64 = V.get(1)
B('v_lshrrev_b32 %s, 2, %s' % (v(vQ), v(vLane)))
B('v_and_b32 %s, 3, %s' % (v(vC8), v(vLane)))
B('s_lshl_b32 s%d, s%d, 5' % (sT[0], sW))
B('v_add_u32 %s, s%d, %s' % (v(vKW), sT[0], v(vKD)))
B('v_mov_b32 %s, %d' % (v(vOOB), OOB))
B('s_mul_i32 s%d, s%d, 3072' % (sRING, sW))
B('s_lshr_b32 s%d, s%d, 5' % (sXCD, sL))
B('s_andn2_b32 s%d, s%d, 7' % (sT[0], sG))
B('s_lshr_b32 s%d, s%d, 2' % (sT[1], sIDX))
B('s_add_u32 s%d, s%d, s%d' % (sG1, sT[0], sT[1]))
B('s_and_b32 s%d, s%d, 4' % (sT[0], sG))
B('s_and_b32 s%d, s%d, 3' % (sT[1], sIDX))
B('s_add_u32 s%d, s%d, s%d' % (sJ1, sT[0], sT[1]))
if not OPT.get('pair', 1):
    B('s_mov_b32 s%d, s%d' % (sG1, sG))
    B('s_mov_b32 s%d, s%d' % (sJ1, sJ))
if OPT.get('pair', 2) == 2:
    B('s_mov_b32 s%d, s%d' % (sG, sG1))
    B('s_mov_b32 s%d, s%d' % (sJ, sJ1))
vFILL = V.get(4, 'l')
for i in range(4):
    B('v_mov_b32 %s, -1' % v(vFILL + i))
B('s_cmp_ge_u32 s%d, 2' % sW)
B('s_cselect_b32 s%d, s%d, s%d' % (sWF_, sWIp, sWRp))
B('s_cselect_b32 s%d, s%d, s%d' % (sWF_ + 1, sWIp + 1, sWRp + 1))
B('s_lshl_b32 s%d, s%d, 13' % (sT[0], sW))
B('s_add_u32 s%d, s%d, (L_tab-L_pc)' % (sT[1], sT[0]))
B('v_add_u32 %s, s%d, %s' % (v(vt + 2), sT[1], v(vL16)))
B('v_add_co_u32 %s, vcc, s6, %s' % (v(vPC), v(vt + 2)))
B('v_lshlrev_b32 %s, 6, %s' % (v(vT64), v(vQ)))
B('v_lshl_add_u32 %s, %s, 3, %s' % (v(vT64), v(vC8), v(vT64)))
B('v_addc_co_u32 %s, vcc, 0, %s, vcc' % (v(vPC + 1), v(vPC + 1)))
vTch = V.get(5, 'mh', 1)
B('s_mul_i32 s%d, s%d, 642' % (sT[0], sXCD))
B('s_and_b32 s%d, s%d, 1' % (sT[1], sW))
B('s_lshl1_add_u32 s%d, s%d, s%d' % (sT[1], sIDX, sT[1]))
B('s_mul_i32 s%d, s%d, %d' % (sT[1], sT[1], 4 * 5136))
B('s_add_u32 s%d, s%d, s%d' % (sT[0], sT[0], sT[1]))
B('s_and_b32 s%d, s%d, -4' % (sT[0], sT[0]))
B('v_bfe_u32 %s, %s, 3, 2' % (v(vt), v(vLane)))
B('v_and_b32 %s, 7, %s' % (v(vt + 3), v(vLane)))
B('v_min_u32 %s, 5, %s' % (v(vt + 1), v(vt + 3)))
B('v_mul_u32_u24 %s, 5136, %s' % (v(vt), v(vt)))
B('v_lshl_add_u32 %s, %s, 7, s%d' % (v(vt + 1), v(vt + 1), sT[0]))
B('v_add_u32 %s, %s, %s' % (v(vTch), v(vt), v(vt + 1)))
vMG, vMA = V.get(1), V.get(2, 'mh', 1)
B('v_lshrrev_b32 %s, 3, %s' % (v(vMG), v(vLane)))
B('s_lshl_b32 s%d, s%d, 11' % (sT[0], sW))
B('v_lshl_add_u32 %s, %s, 8, s%d' % (v(vMG), v(vMG), sT[0]))
B('v_lshl_add_u32 %s, %s, 4, %s' % (v(vMG), v(vt + 3), v(vMG)))
B('s_lshl_b32 s%d, s%d, 2' % (sT[0], sW))
B('v_add_u32 %s, s%d, %s' % (v(vMA), sT[0], v(vL16)))
B('s_mul_i32 s%d, s%d, 2560' % (sT[0], sW))
B('v_add_u32 %s, s%d, %s' % (v(vMA + 1), sT[0], v(vL4)))
B('s_mul_i32 s%d, s%d, 1.0' % (sADD, sW))
B('s_lshl_b32 s%d, s%d, 13' % (sADD + 1, sW))
B('s_add_u32 s%d, s%d, %d' % (sADD + 1, sADD + 1, WS_MODX + 8192))
B('s_lshr_b32 s%d, s%d, 6' % (sT[0], sL))
B('s_lshl_b32 s%d, s%d, 5' % (sT[0], sT[0]))
B('s_add_u32 s%d, s%d, s%d' % (sT[0], sT[0], sIDX))
B('s_lshl2_add_u32 s%d, s%d, s%d' % (sT[0], sT[0], sW))
B('s_mul_i32 s%d, s%d, 15' % (sT[0], sT[0]))
B('v_min_u32 %s, 14, %s' % (v(vt), v(vLane)))
B('v_add_u32 %s, s%d, %s' % (v(vt), sT[0], v(vt)))
B('v_mul_u32_u24 %s, 43691, %s' % (v(vt + 1), v(vt)))
B('v_lshrrev_b32 %s, 19, %s' % (v(vt + 1), v(vt + 1)))
B('s_and_b32 s%d, s%d, 1' % (sT[0], sXCD))
B('v_add_u32 %s, s%d, %s' % (v(vt + 1), sT[0], v(vt + 1)))
B('v_mul_u32_u24 %s, 12, %s' % (v(vt + 1), v(vt + 1)))
B('v_add_lshl_u32 %s, %s, %s, 7' % (v(vTch + 1), v(vt), v(vt + 1)))

TB = Asm()
TB('s_lshl2_add_u32 s%d, s%d, s%d' % (sT[0], sIDX, sW))
TB('s_mul_i32 s%d, s%d, %d' % (sT[1], sT[0], 5 * 7680))
TB('s_mul_i32 s%d, s%d, 640' % (sT[2], sXCD))
TB('s_add_u32 s%d, s%d, s%d' % (sT[1], sT[1], sT[2]))
TB('s_add_u32 s%d, s%d, 2560' % (sT[1], sT[1]))
TB('v_lshrrev_b32 %s, 3, %s' % (v(vt), v(vLane)))
TB('v_min_u32 %s, 4, %s' % (v(vt), v(vt)))
TB('v_mul_u32_u24 %s, 7680, %s' % (v(vt), v(vt)))
TB('v_and_b32 %s, 7, %s' % (v(vt + 1), v(vLane)))
TB('v_min_u32 %s, 4, %s' % (v(vt + 1), v(vt + 1)))
TB('v_lshl_add_u32 %s, %s, 7, s%d' % (v(vt + 1), v(vt + 1), sT[1]))
TB('v_add_u32 %s, %s, %s' % (v(vTch + 2), v(vt), v(vt + 1)))
TB('s_lshl2_add_u32 s%d, s%d, s%d' % (sT[0], sL, sW))
TB('s_mul_i32 s%d, s%d, %d' % (sT[0], sT[0], 15 * 128))
TB('v_min_u32 %s, 14, %s' % (v(vt), v(vLane)))
TB('v_lshl_add_u32 %s, %s, 7, s%d' % (v(vTch + 3), v(vt), sT[0]))


def trig(asm, dst, inv):
    t = V.get(6)
    asm('v_and_b32 %s, 4, %s' % (v(t), v(vLane)))
    asm('v_bfe_u32 %s, %s, 3, 1' % (v(t + 1), v(vLane)))
    asm('v_lshl_add_u32 %s, %s, 1, %s' % (v(t), v(t + 1), v(t)))
    asm('v_bfe_u32 %s, %s, 1, 1' % (v(t + 1), v(vLane)))
    asm('v_add_u32 %s, %s, %s' % (v(t), v(t), v(t + 1)))
    asm('v_and_b32 %s, 1, %s' % (v(t + 1), v(vLane)))
    asm('v_lshlrev_b32 %s, 9, %s' % (v(t + 1), v(t + 1)))
    if not inv:
        asm('v_lshl_add_u32 %s, %s, 10, s%d' % (v(t + 2), v(vH), sL))
        asm('v_mad_u32_u24 %s, %s, %s, %s' % (v(t + 2), v(t), v(t + 2), v(t + 1)))
        asm('v_lshlrev_b32 %s, 8, %s' % (v(t + 3), v(t)))
    else:
        asm('v_lshl_add_u32 %s, %s, 8, s%d' % (v(t + 3), v(t), sL))
        asm('v_lshlrev_b32 %s, 2, %s' % (v(t + 2), v(vH)))
        asm('v_mul_u32_u24 %s, %s, %s' % (v(t + 2), v(t + 2), v(t + 3)))
        asm('v_sub_u32 %s, %s, %s' % (v(t + 2), v(t + 2), v(t + 1)))
    sc = '0x5f800000' if inv else '0x1f800000'
    for q in range(4):
        asm('v_and_b32 %s, 2047, %s' % (v(t + 4), v(t + 2)))
        asm('v_cvt_f32_u32 %s, %s' % (v(t + 4), v(t + 4)))
        asm('v_mul_f32 %s, 0x3a000000, %s' % (v(t + 4), v(t + 4)))
        asm('v_sin_f32 %s, %s' % (v(t + 5), v(t + 4)))
        asm('v_cos_f32 %s, %s' % (v(t + 4), v(t + 4)))
        asm('v_add_u32 %s, %s, %s' % (v(t + 2), v(t + 2), v(t + 3)))
        asm('v_mul_f32 %s, %s, %s' % (v(t + 5), sc, v(t + 5)))
        asm('v_mul_f32 %s, %s, %s' % (v(t + 4), sc, v(t + 4)))
        asm('v_cvt_pk_bf16_f32 %s, %s, %s%s' % (v(dst + q), v(t + 4), '-' if inv else '', v(t + 5)))
    V.put(t, 6)


def j_tw(asm):
    asm('buffer_load_dword %s, %s, %s, 0 offen' % (v(vJunk + 1), v(vTch), srd(sWF_)), tag='junk')


def j_tw1(asm):
    if not OPT.get('now1'):
        asm('buffer_load_dword %s, %s, %s, 0 offen' % (v(vJunk + 2), v(vTch + 1), srd(sW1)), tag='junk')


def j_tm(asm):
    asm('buffer_load_dword %s, %s, %s, 0 offen' % (v(vTch + 2), v(vTch + 2), srd(sWM)), tag='junk')


def j_tw2(asm):
    asm('buffer_load_dword %s, %s, %s, 0 offen' % (v(vTch + 3), v(vTch + 3), srd(sW2)), tag='junk')


def j_to(asm):
    g = Asm()
    g('s_mul_i32 s%d, s%d, 10240' % (sBG[0], sG))
    g('s_mul_i32 s%d, s%d, %d' % (sBG[1], sW, 2 * 327680))
    g('s_add_u32 s%d, s%d, s%d' % (sBG[0], sBG[0], sBG[1]))
    g('v_and_b32 %s, 1, %s' % (v(vTch + 4), v(vLane)))
    g('v_mul_u32_u24 %s, 327680, %s' % (v(vTch + 4), v(vTch + 4)))
    g('v_bfe_u32 %s, %s, 1, 2' % (v(tmp), v(vLane)))
    g('v_mul_u32_u24 %s, 3392, %s' % (v(tmp), v(tmp)))
    g('v_add3_u32 %s, %s, %s, s%d' % (v(vTch + 4), v(vTch + 4), v(tmp), sBG[0]))
    g('buffer_load_dword %s, %s, %s, 0 offen' % (v(vTch + 4), v(vTch + 4), srd(sOUT)), tag='junk')
    grp(asm, g)


def j_to2(asm):
    g = Asm()
    g('v_and_b32 %s, 3, %s' % (v(vTch + 4), v(vLane)))
    g('v_mul_u32_u24 %s, 873728, %s' % (v(vTch + 4), v(vTch + 4)))
    g('buffer_load_dword %s, %s, %s, 0 offen' % (v(vTch + 4), v(vTch + 4), srd(sOUT)), tag='junk')
    grp(asm, g)


def early(asm, nm):
    for x in CFG[nm].split(','):
        if x:
            globals()['j_' + x](asm)


TBE = any(x in CFG['PRE'] + CFG['SIL'] for x in ('tm', 'tw2'))
if TBE:
    B.add(TB)
early(B, 'PRE')
vA8, vA8i = V.get(4), V.get(4)
if OPT.get('trig0', 0):
    trig(B, vA8, False)
B('s_mul_i32 s%d, s%d, 0x9e3779b1' % (sT[0], sNONCE))
B('s_add_u32 s%d, s%d, 0x7f4a7c15' % (sT[0], sT[0]))
B('s_lshr_b32 s%d, s%d, 15' % (sT[1], sT[0]))
B('s_xor_b32 s%d, s%d, s%d' % (sT[0], sT[0], sT[1]))
B('s_mul_i32 s%d, s%d, 0x85ebca6b' % (sT[0], sT[0]))
B('s_lshr_b32 s%d, s%d, 13' % (sT[1], sT[0]))
B('s_xor_b32 s%d, s%d, s%d' % (sT[0], sT[0], sT[1]))
B('s_mov_b32 s%d, 0x55555555' % sT[5])
B('s_or_b32 s%d, s%d, 16' % (sT[0], sT[0]))
B('s_lshr_b32 s%d, s%d, 1' % (sT[1], sNONCE))
B('s_and_b32 s%d, s%d, s%d' % (sT[1], sT[1], sT[5]))
B('s_orn2_b32 s%d, s%d, s%d' % (sT[2], sNONCE, sT[1]))
B('s_and_b32 s%d, s%d, s%d' % (sT[2], sT[2], sT[5]))
B('s_and_b32 s%d, s%d, s%d' % (sT[3], sT[0], sT[1]))
B('s_xor_b32 s%d, s%d, s%d' % (sT[3], sT[3], sT[2]))
B('s_andn2_b32 s%d, s%d, s%d' % (sT[4], sT[2], sT[0]))
B('s_xor_b32 s%d, s%d, s%d' % (sT[4], sT[4], sT[1]))
B('s_lshl1_add_u32 s%d, s%d, s%d' % (sNONCE, sT[3], sT[4]))
B('s_lshl1_add_u32 s%d, s%d, s%d' % (sT[1], sT[1], sT[2]))
B('s_and_b32 s%d, s%d, 3' % (sT[1], sT[1]))
B('s_lshr_b32 s%d, s%d, 2' % (sT[2], sNONCE))
B('s_xor_b32 s%d, s%d, s%d' % (sT[2], sT[2], sNONCE))
B('s_lshl_b32 s%d, s%d, 2' % (sT[2], sT[2]))
B('s_cselect_b32 s%d, 0, s%d' % (sT[1], sT[1]))
B('s_xor_b32 s%d, s%d, s%d' % (sNONCE, sNONCE, sT[1]))
B('s_lshr_b32 s%d, s%d, 1' % (sT[1], sNONCE))
B('s_xor_b32 s%d, s%d, s%d' % (sT[2], sT[1], sNONCE))
B('s_and_b32 s%d, s%d, s%d' % (sT[1], sT[1], sT[5]))
B('s_and_b32 s%d, s%d, s%d' % (sT[2], sT[2], sT[5]))
B('s_lshl1_add_u32 s%d, s%d, s%d' % (sTAGZ, sT[2], sT[1]))
B('s_mov_b32 s%d, 0x40004000' % sTM)
A.add(B)
stamp('pre_wm', lvl=3)


def silu(asm, x, t, n):
    for i in range(n):
        asm('v_mul_f32 %s, 0xbfb8aa3b, %s' % (v(t + i), v(x + i)))
    for i in range(n):
        asm('v_exp_f32 %s, %s' % (v(t + i), v(t + i)))
    for i in range(n):
        asm('v_add_f32 %s, 1.0, %s' % (v(t + i), v(t + i)))
    for i in range(n):
        asm('v_rcp_f32 %s, %s' % (v(t + i), v(t + i)))
    for i in range(n):
        asm('v_mul_f32 %s, %s, %s' % (v(x + i), v(x + i), v(t + i)))


def w2_reformat(LW, tag, mid=None):
    ad, f = V.get(2, 'mh', 1), V.get(24)
    sD = [6, 7]
    A('s_mul_i32 s%d, s%d, 205' % (sT[1], sNU))
    A('s_lshr_b32 s%d, s%d, 10' % (sT[1], sT[1]))
    A('s_mul_i32 s%d, s%d, 5' % (sT[2], sT[1]))
    A('s_sub_u32 s%d, s%d, s%d' % (sT[0], sNU, sT[2]))
    A('s_lshl2_add_u32 s%d, s%d, s%d' % (sT[0], sT[0], sW))
    A('s_lshr_b32 s%d, s%d, 1' % (sT[2], sT[0]))
    A('s_mul_i32 s%d, s%d, 238' % (sT[2], sT[2]))
    A('s_and_b32 s%d, s%d, 1' % (sT[3], sT[0]))
    A('s_add_u32 s%d, s%d, s%d' % (sT[2], sT[2], sT[3]))
    A('s_add_u32 s%d, s%d, s%d' % (sT[2], sT[2], sT[0]))
    A('s_mul_i32 s%d, s%d, 480' % (sT[3], sT[0]))
    A('s_sub_u32 s%d, s%d, %d' % (sT[3], sT[3], 480 * 16 - 4))
    A('s_cmp_lt_u32 s%d, 16' % sT[0])
    A('s_cselect_b32 s%d, s%d, s%d' % (sT[2], sT[2], sT[3]))
    A('s_cselect_b32 s%d, 1, 240' % sT[3])
    A('s_mul_i32 s%d, s%d, 15' % (sT[4], sT[1]))
    A('s_add_u32 s%d, s%d, s%d' % (sT[2], sT[2], sT[4]))
    A('s_add_u32 s%d, s%d, s%d' % (sT[3], sT[3], sT[2]))
    for k in range(2):
        A('s_lshl_b32 s%d, s%d, 10' % (sD[k], sT[2 + k]))
    A('s_lshr_b32 s%d, s%d, 1' % (sT[2], sT[1]))
    A('s_mul_i32 s%d, s%d, %d' % (sT[2], sT[2], 192 * 1280))
    A('s_lshl_b32 s%d, s%d, 6' % (sT[0], sT[0]))
    A('s_add_u32 s%d, s%d, s%d' % (sT[0], sT[0], sT[2]))
    A('s_and_b32 s%d, s%d, 1' % (sT[1], sT[1]))
    A('v_mul_u32_u24 %s, 1280, %s' % (v(ad), v(vQ)))
    A('v_lshl_add_u32 %s, %s, 4, %s' % (v(ad), v(vC8), v(ad)))
    A('v_add_u32 %s, s%d, %s' % (v(ad), sT[0], v(ad)))
    A('s_mul_i32 s%d, s%d, %d' % (sT[2], sT[1], 40 * 1280))
    A('v_mul_u32_u24 %s, s%d, %s' % (v(ad + 1), sT[2], v(vH)))
    A('v_add_u32 %s, %s, %s' % (v(ad + 1), v(ad + 1), v(ad)))
    A('s_lshl1_add_u32 s%d, s%d, %d' % (sT[0], sRING, LW))
    for e in range(3):
        for rd in range(2):
            r0 = 48 * e + 16 * rd
            r1 = 144 + 16 * rd if e == 0 else 96 * (e - 1) + 32 + 8 * rd
            A('s_mul_i32 s%d, s%d, %d' % (sT[2], sT[1], (r1 - r0) * 1280))
            A('s_add_u32 s%d, s%d, %d' % (sT[2], sT[2], r0 * 1280))
            A('s_add_u32 m0, s%d, %d' % (sT[0], 2048 * e + 1024 * rd))
            A('buffer_load_dwordx4 %s, %s, s%d offen lds' % (v(ad + (e > 0)), srd(sW2), sT[2]), tag='w2raw')
    A('v_add_u32 %s, s%d, %s' % (v(ad), sT[0], v(vT64)))
    if mid:
        mid()
    A.wait_tag('w2raw')
    for e in range(3):
        for tt_ in range(2):
            for rd in range(2):
                A('ds_read_b64_tr_b16 %s, %s offset:%d' % (v(f + 8 * e + 4 * tt_ + 2 * rd, 2), v(ad), 2048 * e + 1024 * rd + 32 * tt_))
    for e in range(3):
        for tt_ in range(2):
            A('s_add_u32 s%d, s%d, %d' % (sT[2], sD[tt_], WS_W2F + 5120 * e))
            A('buffer_store_dwordx4 %s, %s, %s, s%d offen sc1' % (v(f + 8 * e + 4 * tt_, 4), v(vL16), srd(sWS), sT[2]), tag=tag)
    A('s_nop 1')
    V.put(ad, 2)
    V.put(f, 24)


lfar, lback = out_of_line('s_cmp_ge_u32 s%d, 20' % sIDX)
A.opt_begin()
t = V.get(8)
A('s_lshl_b32 s%d, s%d, 8' % (sT[0], sW))
A('v_add_u32 %s, s%d, %s' % (v(t + 4), sT[0], v(vL4)))
A('s_add_u32 s%d, s%d, %d' % (sT[0], sT[0], L_SILU))
A('v_lshl_add_u32 %s, %s, 3, s%d' % (v(t + 5), v(vG), sT[0]))
A('s_lshl_b32 s%d, s%d, 10' % (sT[0], sW))
A('v_add_u32 %s, s%d, %s' % (v(t + 6), sT[0], v(vL8)))
A('s_lshl_b32 s%d, s%d, 6' % (sT[0], sW))
A('v_lshl_add_u32 %s, %s, 4, s%d' % (v(t + 7), v(vG), sT[0]))
A('v_lshlrev_b32 %s, 16, %s' % (v(t), v(vC)))
A('v_and_b32 %s, s%d, %s' % (v(t + 1), sMASK, v(vC)))
silu(A, t, t + 2, 2)
A('v_cvt_pk_bf16_f32 %s, %s, %s' % (v(t), v(t), v(t + 1)))
A('ds_write_b32 %s, %s offset:%d' % (v(t + 4), v(t), L_SILU))
vSB, f, d, p = V.get(12), V.get(12), V.get(4), V.get(8)
for i in range(3):
    A('ds_read2_b64 %s, %s offset0:%d offset1:%d' % (v(vSB + 4 * i, 4), v(t + 5), 8 * i, 8 * i + 4))
A('s_lshl_b32 s%d, s%d, 7' % (sT[0], sTAU))
A('s_add_u32 s%d, s%d, %d' % (sT[0], sT[0], WS_MODX))
A('v_mov_b32 %s, s%d' % (v(t + 1), sNONCE))
A('v_mov_b32 %s, s%d' % (v(t + 3), sNONCE))
if XPOS == 1:
    A.add(XL)
early(A, 'SIL')
stamp('silu', lvl=2)
A.wait_tag('wm')
stamp('wm_land', lvl=2)
for i in range(3):
    for rd in range(2):
        A('ds_read_b64_tr_b16 %s, %s offset:%d' % (v(f + 4 * i + 2 * rd, 2), v(t + 6), L_EX + 4096 * i + 512 * rd))
A('%s %s, %s, %s, 0' % (MF16, v(d, 4), v(f, 4), v(vSB, 4)))
A('%s %s, %s, %s, %s' % (MF16, v(d, 4), v(f + 4, 4), v(vSB + 4, 4), v(d, 4)))
lb2 = opt('s_cmp_ge_u32 s%d, 2' % sW)
A('%s %s, %s, %s, %s' % (MF16, v(d, 4), v(f + 8, 4), v(vSB + 8, 4), v(d, 4)))
opt_end(lb2)
A('ds_write_b128 %s, %s offset:%d' % (v(t + 7), v(d, 4), L_RED))
barrier()
lb = opt('s_cmp_lg_u32 s%d, 3' % sW)
for i in range(4):
    A('ds_read_b64 %s, %s offset:%d' % (v(p + 2 * i, 2), v(vL8), L_RED + 64 * i))
A('s_mov_b64 exec, 0xff')
A('v_pk_add_f32 %s, %s, %s' % (v(p, 2), v(p, 2), v(p + 2, 2)))
A('v_pk_add_f32 %s, %s, %s' % (v(p + 4, 2), v(p + 4, 2), v(p + 6, 2)))
A('v_add_f32 %s, %s, %s' % (v(t + 2), v(p + 1), v(p + 5)))
A('v_add_f32 %s, %s, %s' % (v(t), v(p), v(p + 4)))
A('buffer_store_dwordx4 %s, %s, %s, s%d offen sc1' % (v(t, 4), v(vL16), srd(sWS), sT[0]), tag='pub')
A('s_mov_b64 exec, -1')
A('s_nop 1')
opt_end(lb)
for x, n in ((t, 8), (vSB, 12), (f, 12), (d, 4), (p, 8), (vC, 1)):
    V.put(x, n)
A.opt_end()
A.far_begin(lfar)
if XPOS == 1:
    A.add(XL2)
A('s_mul_i32 s%d, s%d, 10' % (sT[0], sXCD))
A('s_max_u32 s%d, s%d, 22' % (sT[1], sIDX))
A('s_add_u32 s%d, s%d, s%d' % (sT[0], sT[0], sT[1]))
A('s_sub_u32 s%d, s%d, 22' % (sNU, sT[0]))
if OPT.get('w2at', 1) == 0:
    assert 0
early(A, 'SIL')
FAR0 = len(A.l)
A.far_end(lback)
stamp('pub0', lvl=3)

vW1 = V.get(6, 'l', 1)
vW1r = V.get(1, 'l')
vWD = V.get(1)
vb2, vb1 = V.get(4, 'l'), V.get(6, 'l')
W1S = dict(iss=0, drn=0, lim=20)


def w1_addr(asm, late):
    asm('s_mul_i32 s%d, s%d, 384' % (sT[0], sJ1))
    asm('s_mul_i32 s%d, s%d, 96' % (sT[1], sW))
    asm('s_add_u32 s%d, s%d, s%d' % (sT[0], sT[0], sT[1]))
    for i in range(3):
        asm('v_add_u32 %s, %d, %s' % (v(vt), 64 * i, v(vLane)))
        asm('v_mul_u32_u24 %s, 10923, %s' % (v(vt), v(vt)))
        asm('v_lshrrev_b32 %s, 16, %s' % (v(vt + 1), v(vt)))
        if not late:
            asm('v_lshrrev_b32 %s, 4, %s' % (v(vt + 2), v(vt + 1)))
            asm('v_bfe_u32 %s, %s, 1, 1' % (v(vt + 3), v(vt + 1)))
            asm('v_lshl_add_u32 %s, %s, 1, %s' % (v(vt + 2), v(vt + 2), v(vt + 3)))
            asm('v_bfe_u32 %s, %s, 2, 2' % (v(vt + 3), v(vt + 1)))
            asm('v_lshl_add_u32 %s, %s, 6, %s' % (v(vt + 2), v(vt + 2), v(vt + 3)))
            asm('v_and_b32 %s, 1, %s' % (v(vt + 3), v(vt + 1)))
            asm('v_lshl_add_u32 %s, %s, 1, %s' % (v(vt + 2), v(vt + 2), v(vt + 3)))
        else:
            asm('v_bfe_u32 %s, %s, 2, 2' % (v(vt + 2), v(vt + 1)))
            asm('v_lshrrev_b32 %s, 4, %s' % (v(vt + 3), v(vt + 1)))
            asm('v_lshl_add_u32 %s, %s, 1, %s' % (v(vt + 2), v(vt + 2), v(vt + 3)))
            asm('v_and_b32 %s, 3, %s' % (v(vt + 3), v(vt + 1)))
            asm('v_lshl_add_u32 %s, %s, 2, %s' % (v(vt + 2), v(vt + 2), v(vt + 3)))
        asm('v_lshlrev_b32 %s, 5, %s' % (v(vt + 2), v(vt + 2)))
        asm('v_sub_u32 %s, %s, %s' % (v(vt + 2), v(vt + 2), v(vt + 1)))
        asm('v_mul_u32_u24 %s, 96, %s' % (v(vt + 2), v(vt + 2)))
        asm('v_add3_u32 %s, %s, %s, s%d' % (v(vW1 + 3 * late + i), v(vt + 2), v(vL16), sT[0]))
    W1S['late'] = late


def slot(q):
    return (q + 4) % 8


def j_w1(asm, n):
    for q in range(W1S['iss'], min(20, W1S['iss'] + n)):
        W1S['iss'] = q + 1
        prev = q - 8
        assert prev < W1S['drn'] and q < W1S['lim'] and (W1S['late'] or q < 16), (q, W1S)
        if OPT.get('now1'):
            continue
        row = 8 * q if q < 16 else 512 + 32 * (q - 16)
        for i in range(3):
            g = Asm()
            if i == 0:
                g('s_add_u32 m0, s%d, %d' % (sRING, L_RING + 12288 * slot(q)))
                g('s_mov_b32 s%d, %d' % (sBG[0], row * 3072))
            g('buffer_load_dwordx4 %s, %s, s%d offen offset:%d lds' % (v(vW1 + 3 * (q >= 16) + i), srd(sW1), sBG[0], 1024 * i), tag='w1_%d' % q)
            grp(asm, g)


def w1_drain(asm, q1):
    q0 = W1S['drn']
    if q1 <= q0:
        return
    W1S['drn'] = q1
    asm.wait_tag(['w1_%d' % q for q in range(q0, q1)])
    hi = None
    for q in range(q0, q1):
        s = slot(q)
        if hi != s // 4:
            hi = s // 4
            asm('v_add_u32 %s, %d, %s' % (v(tmp), L_RING + 49152 * hi, v(vW1r)))
        for c in range(3):
            for rd in range(2):
                asm('ds_read_b64_tr_b16 %s, %s offset:%d' % (a((3 * q + c) * 4 + 2 * rd, 2), v(tmp), 12288 * (s % 4) + 1536 * rd + 32 * c))
    asm.wait_lds()


def j_const(asm):
    for hlf in range(2):
        g = Asm()
        if hlf == 1:
            g('v_add_co_u32 %s, vcc, 4096, %s' % (v(vPC), v(vPC)))
        g('s_lshl_b32 s%d, s%d, 13' % (sBG[0], sW))
        g('s_add_u32 m0, s%d, %d' % (sBG[0], L_CONST + 4096 * hlf))
        if hlf == 1:
            g('v_addc_co_u32 %s, vcc, 0, %s, vcc' % (v(vPC + 1), v(vPC + 1)))
        for i in range(4):
            g('global_load_lds_dwordx4 %s, off offset:%d' % (v(vPC, 2), 1024 * i), tag='const')
            grp(asm, g)
            g = Asm()


def j_warmp(asm):
    g = Asm()
    g('s_mul_i32 s%d, s%d, 2816' % (sBG[1], sW))
    g('s_add_u32 s%d, s%d, s%d' % (sBG[1], sBG[1], sPB))
    for i in range(3):
        if i == 2:
            g('s_mov_b32 exec_hi, 0xffff')
        g('buffer_store_dwordx4 %s, %s, %s, s%d offen offset:%d sc1' % (v(vFILL, 4), v(vL16), srd(sWS), sBG[1], 1024 * i), tag='warmp')
        if i == 2:
            g('s_mov_b64 exec, -1')
        grp(asm, g)
        g = Asm()


HC = [0]


def j_hclr(asm, n):
    for i in range(HC[0], HC[0] + n):
        g = Asm()
        if i % 3 == 0 or i == HC[0]:
            g('s_lshl2_add_u32 s%d, s%d, s%d' % (sBG[1], sL, sW))
            g('s_mul_i32 s%d, s%d, 6144' % (sBG[1], sBG[1]))
            g('s_add_u32 s%d, s%d, %d' % (sBG[1], sBG[1], WS_H + 3072 * (i // 3)))
        g('buffer_store_dwordx4 %s, %s, %s, s%d offen offset:%d sc1' % (v(vFILL, 4), v(vL16), srd(sWS), sBG[1], 1024 * (i % 3)), tag='clrh')
        grp(asm, g)
    HC[0] += n


WFC = [0]


def j_wf(asm, n):
    for i in range(WFC[0], WFC[0] + n):
        g = Asm()
        g('s_lshl_b32 s%d, s%d, 12' % (sBG[1], sW))
        g('s_add_u32 m0, s%d, %d' % (sBG[1], L_GW + 1024 * i))
        g('s_mov_b32 s%d, %d' % (sBG[1], 32 * 5136 * i))
        g('buffer_load_dwordx4 %s, %s, s%d offen lds' % (v(vWD), srd(sWF_), sBG[1]), tag='wf')
        grp(asm, g)
    WFC[0] += n


def j_bias(asm):
    g = Asm()
    g('s_lshl_b32 s%d, s%d, 7' % (sBG[1], sJ))
    g('v_lshlrev_b32 %s, 3, %s' % (v(vb2), v(vN)))
    g('buffer_load_dwordx2 %s, %s, %s, s%d offen' % (v(vb2, 2), v(vb2), srd(sB2), sBG[1]))
    grp(asm, g)
    g = Asm()
    g('s_lshl_b32 s%d, s%d, 5' % (sBG[1], sJ))
    g('v_lshlrev_b32 %s, 3, %s' % (v(vb2 + 2), v(vC8)))
    g('buffer_load_dwordx2 %s, %s, %s, s%d offen offset:1024' % (v(vb2 + 2, 2), v(vb2 + 2), srd(sB2), sBG[1]))
    grp(asm, g)
    g = Asm()
    g('s_lshl2_add_u32 s%d, s%d, s%d' % (sBG[1], sJ1, sW))
    g('s_mul_i32 s%d, s%d, 96' % (sBG[1], sBG[1]))
    g('v_lshlrev_b32 %s, 3, %s' % (v(vb1 + 4), v(vG)))
    for c in range(3):
        g('buffer_load_dwordx2 %s, %s, %s, s%d offen offset:%d' % (v(vb1 + 2 * c, 2), v(vb1 + 4), srd(sB1), sBG[1], 32 * c))
        grp(asm, g)
        g = Asm()


W2C = [0]


def j_w2(asm, n):
    w2_loads(asm, W2C[0], W2C[0] + n)
    W2C[0] += n


WEIGHT = dict(wf=5, hclr=3, warmp=3, tw=2, tw1=2, tm=2, tw2=2)


def jobs(slot_name, weights=False):
    out = []
    for js in [x for x in CFG.get(slot_name, '').split(',') if x]:
        nm, _, n = js.partition(':')
        x = Asm()
        globals()['j_' + nm](x, *([int(n)] if n else []))
        out += [(y, WEIGHT.get(nm, 1)) if weights else y for y in x.l]
    return out


if not TBE:
    A.add(TB)
B = Asm()
if not OPT.get('trig0', 0):
    trig(B, vA8, False)
w1_addr(B, False)
B('v_mul_u32_u24 %s, 96, %s' % (v(vW1r), v(vQ)))
B('v_lshl_add_u32 %s, %s, 3, %s' % (v(vW1r), v(vC8), v(vW1r)))
B('v_add_u32 %s, s%d, %s' % (v(vW1r), sRING, v(vW1r)))
A.l += interleave(B, jobs('PUB'))
B = Asm()
vXF = [V.get(10, 'l'), V.get(10, 'l')]
for r in range(2):
    for j in range(5):
        lo, hi = (j, 4 + j) if j < 4 else (8, 9)
        B('v_lshlrev_b32 %s, 16, %s' % (v(vXF[r] + lo), v(vXR + 5 * r + j)))
        B('v_and_b32 %s, s%d, %s' % (v(vXF[r] + hi), sMASK, v(vXR + 5 * r + j)))
V.put(vXR, 10)
ln_stats(B, vXF)
vNn = [V.get(10), V.get(10)]
ln_apply(B, vNn, vXF)
A.l += interleave(B, jobs('PUB2'))
V.put(vPC, 2)
warm(A, ['pg1', 's0r0', 'pg2', 's0r2'])
stamp('ln1', lvl=2)
ACK = OPT.get('ack', 1)
if ACK & 1:
    A.wait_tag(['pub', 'const'])
if OPT.setdefault('wj', 1):
    lb = opt('s_cmp_lt_u32 s%d, 20' % sIDX)
    A('s_waitcnt vmcnt(0)')
    if OPT['wj'] > 1:
        A('s_sleep %d' % OPT['wj'])
    opt_end(lb)
if ACK & 1:
    barrier()
stamp('b0b', lvl=3)


def mod_gather_loads(asm, d, i0, i1):
    for i in range(i0, i1):
        if i < 2:
            asm('s_mov_b32 s%d, %d' % (sT[5], WS_MODX + 10240 * i))
        for kh in range(2):
            asm('buffer_load_dwordx4 %s, %s, %s, s%d offen offset:%d sc1' % (v(d + 8 * i + 4 * kh, 4), v(vMG), srd(sWS), sT[5] if i < 2 else sADD + 1, 128 * kh))


vMD = V.get(24)
mod_gather_loads(A, vMD, 0, 2)
lb = opt('s_cmp_ge_u32 s%d, 2' % sW)
mod_gather_loads(A, vMD, 2, 3)
opt_end(lb)
K, KA = {}, {}
B = Asm()
if not ACK & 1:
    B.wait_tag('const')
    B('s_barrier')
na, nb = 0, 0
ca_ = V.get(1)
B('v_add_u32 %s, %d, %s' % (v(ca_), L_CONST, v(vL16)))
for i, n in enumerate(TN):
    if n.startswith('TW'):
        K[n] = V.get(4, 'l' if n.startswith('TW3') else 'mh')
        B('ds_read_b128 %s, %s offset:%d' % (v(K[n], 4), v(ca_), 1024 * i))
    else:
        if i < 10:
            KA[n] = a(96 + 4 * na, 4)
            na += 1
        else:
            KA[n] = a(192 + 4 * nb, 4)
            nb += 1
        B('ds_read_b128 %s, %s offset:%d' % (KA[n], v(ca_), 1024 * i))
assert 192 + 4 * nb <= 256
BC, B = B, Asm()
vAF = V.get(16)
for i in range(4):
    B('v_mov_b32 %s, 0' % v(vAF + 4 * i + 3))
vEXlo, vEXhi = [V.get(1), V.get(1)], [V.get(1), V.get(1)]
vEXa, vEXb = V.get(1), V.get(1)
B('v_mul_u32_u24 %s, 84, %s' % (v(vEXa), v(vC8)))
B('v_lshrrev_b32 %s, 2, %s' % (v(vt), v(vN)))
B('v_add_u32 %s, %s, %s' % (v(vEXa), v(vEXa), v(vt)))
B('v_sub_u32 %s, 0, %s' % (v(vt), v(vN)))
B('v_and_b32 %s, 3, %s' % (v(vt + 1), v(vt)))
B('v_ashrrev_i32 %s, 2, %s' % (v(vt), v(vt)))
B('v_mul_u32_u24 %s, 84, %s' % (v(vEXb), v(vt + 1)))
B('v_add_u32 %s, %s, %s' % (v(vEXb), v(vEXb), v(vt)))


def ex_addr(asm, lo, hi, gs, hb):
    asm('v_mul_u32_u24 %s, %d, %s' % (v(vt), gs, v(vG)))
    asm('s_add_u32 s%d, s%d, %d' % (sT[0], sRING, L_EX))
    asm('v_add_u32 %s, %s, %s' % (v(vt + 1), v(vEXa), v(vt)))
    asm('v_lshl_add_u32 %s, %s, 2, s%d' % (v(lo[0]), v(vt + 1), sT[0]))
    asm('v_add_u32 %s, 1536, %s' % (v(lo[1]), v(lo[0])))
    asm('s_add_u32 s%d, s%d, %d' % (sT[0], sT[0], 4 * hb))
    asm('v_sub_u32 %s, %s, %s' % (v(vt + 1), v(vEXb), v(vt)))
    asm('v_lshl_add_u32 %s, %s, 2, s%d' % (v(hi[0]), v(vt + 1), sT[0]))
    asm('v_add_u32 %s, 1536, %s' % (v(hi[1]), v(hi[0])))


ex_addr(B, vEXlo, vEXhi, 10, 35)
vEX8 = V.get(4, 'mh', 1)
B('v_mul_u32_u24 %s, 6144, %s' % (v(vt), v(vH)))
B('v_cmp_gt_u32 vcc, 84, %s' % v(vKW))
B('v_lshl_add_u32 %s, %s, 2, %s' % (v(vt), v(vKW), v(vt)))
B('v_mov_b32 %s, 336' % v(vt + 1))
B('v_add_u32 %s, 1008, %s' % (v(vEX8 + 3), v(vt)))
B('v_cndmask_b32 %s, 0, %s, vcc' % (v(vt + 1), v(vt + 1)))
for c in (2, 1, 0):
    B('v_sub_u32 %s, %s, %s' % (v(vEX8 + c), v(vEX8 + c + 1), v(vt + 1)))
EXO = L_EX // 256
vP = V.get(1)
B('v_mul_u32_u24 %s, 5632, %s' % (v(vP), v(vH)))
B('v_cmp_gt_u32 vcc, 88, %s' % v(vKW))
B('v_lshl_add_u32 %s, %s, 4, %s' % (v(vP), v(vKW), v(vP)))
B('v_lshlrev_b32 %s, 3, %s' % (v(vt), v(vC8)))
B('v_cndmask_b32 %s, %s, %s, vcc' % (v(vP), v(vOOB), v(vP)))
vTG = V.get(4, 'mh', 1)


def tag_masks(asm, dst, sreg):
    asm('v_lshrrev_b32_e64 %s, %s, s%d' % (v(vt), v(vt), sreg))
    asm('v_and_b32 %s, 0xff, %s' % (v(vt), v(vt)))
    asm('v_lshl_or_b32 %s, %s, 15, %s' % (v(vt), v(vt), v(vt)))
    for d in range(4):
        asm('v_lshlrev_b32 %s, %d, %s' % (v(dst + d), 14 - 2 * d, v(vt)))
        asm('v_and_b32 %s, s%d, %s' % (v(dst + d), sTM, v(dst + d)))


tag_masks(B, vTG, sNONCE)
g = Asm()
g('s_mul_i32 s%d, s%d, 642' % (sT[0], sXCD))
g('s_lshl_b32 s%d, s%d, 5' % (sT[1], sIDX))
g('s_min_u32 s%d, s%d, 610' % (sT[1], sT[1]))
g('s_add_u32 s%d, s%d, s%d' % (sT[0], sT[0], sT[1]))
g('s_and_b32 s%d, s%d, 1' % (sT[1], sW))
g('s_mul_i32 s%d, s%d, %d' % (sT[1], sT[1], 128 * 5136))
g('s_add_u32 s%d, s%d, s%d' % (sT[0], sT[0], sT[1]))
g('s_cmp_lt_u32 s%d, 21' % sIDX)
g('s_cselect_b32 s%d, s%d, %d' % (sT[0], sT[0], 0x40000000))
grp(B, g)
B('v_lshrrev_b32 %s, 1, %s' % (v(vWD), v(vLane)))
B('v_mul_u32_u24 %s, 5136, %s' % (v(vWD), v(vWD)))
B('v_and_b32 %s, 1, %s' % (v(vt), v(vLane)))
B('v_lshl_add_u32 %s, %s, 4, s%d' % (v(vt), v(vt), sT[0]))
B('v_add_u32 %s, %s, %s' % (v(vWD), v(vWD), v(vt)))
A.l += interleave(BC.l + B.l if ACK & 1 else B.l + BC.l, jobs('G0'))
stamp('s0_wait', lvl=3)
V.put(ca_)


def mod_finish(i0, i1):
    verify(A, lambda c: mod_gather_loads(c, vMD, i0, i1), lambda c: check_tags(c, [vMD + 4 * k + 3 for k in range(2 * i0, 2 * i1)], tmp), name='s0r%d' % i0)
    for i in range(i0, i1):
        b = vMD + 8 * i
        A('v_add_f32 %s, %s, %s' % (v(b), v(b), v(b + 4)))
        A('v_add_f32 %s, %s, %s' % (v(b + 2), v(b + 2), v(b + 6)))
    for i in range(i0, i1):
        b = vMD + 8 * i
        A('v_cvt_pk_bf16_f32 %s, %s, %s' % (v(b), v(b), v(b + 2)))
    for i in range(i0, i1):
        b = vMD + 8 * i
        A('v_and_b32 %s, s%d, %s' % (v(b + 1), sMASK, v(b)))
        A('v_lshlrev_b32 %s, 16, %s' % (v(b), v(b)))
        if i:
            ad_ = '1.0' if i == 1 else 's%d' % sADD
            A('v_add_f32 %s, %s, %s' % (v(b + 1), ad_, v(b + 1)))
            A('v_add_f32 %s, %s, %s' % (v(b), ad_, v(b)))
        o = L_MOD // 256 + [0, 10, 4][i]
        A('ds_write2st64_b32 %s, %s, %s offset0:%d offset1:%d' % (v(vMA + (i == 2)), v(b), v(b + 1), o, o + 5))


mod_finish(0, 2)
lb = opt('s_cmp_ge_u32 s%d, 2' % sW)
mod_finish(2, 3)
opt_end(lb)
V.put(vMD, 24)
V.put(vMG)
V.put(vMA, 2)
barrier()
W1S['lim'] = 20
stamp('s0_done', lvl=3)
GAP = OPT.get('gap', 72)
P = Asm()
vM0, vM1 = V.get(10), V.get(10)
read_mod(P, vM1, 1, vL16, vL4)
read_mod(P, vM0, 0, vL16, vL4)
for r in range(2):
    for p in range(5):
        P('v_pk_fma_f32 %s, %s, %s, %s' % (v(vNn[r] + 2 * p, 2), v(vNn[r] + 2 * p, 2), v(vM1 + 2 * p, 2), v(vM0 + 2 * p, 2)))
V.put(vM0, 10)
V.put(vM1, 10)
vD = [V.get(16), V.get(16)]
RT = [(r, t_) for r in range(2) for t_ in range(2)]
cv, mf = {}, {}
for r, t_ in RT:
    f, h, d = vAF + 8 * r + 4 * t_, vNn[r], vD[r] + 8 * t_
    cv[r, t_], mf[r, t_] = Asm(), Asm()
    cv[r, t_]('v_cvt_pk_bf16_f32 %s, %s, %s' % (v(f), v(h + 4 * t_), v(h + 4 * t_ + 1)))
    cv[r, t_]('v_cvt_pk_bf16_f32 %s, %s, %s' % (v(f + 1), v(h + 4 * t_ + 2), v(h + 4 * t_ + 3)))
    cv[r, t_]('v_cvt_pk_bf16_f32 %s, %s, %s' % (v(f + 2), v(h + 8 + t_), v(h + 8 + t_)))
    mf[r, t_]('%s %s, %s, %s, 0' % (MF16, v(d, 4), v(f, 4), KA['C1c']))
    mf[r, t_]('%s %s, %s, %s, 0' % (MF16, v(d + 4, 4), v(f, 4), KA['C1s']))
allc = sum((cv[k].l for k in RT), [])
P.l += allc[:5] + under(sum((mf[k].l for k in RT), []), allc[5:])
V.put(vNn[0], 10)
V.put(vNn[1], 10)
tts = [V.get(8) for _ in range(4)]
vBn = [V.get(4), V.get(4)]
for r, t_ in RT:
    d, tt = vD[r] + 8 * t_, tts[2 * r + t_]
    cmul(P, d, d + 4, K['TW1c%d' % t_], K['TW1s%d' % t_], tt, tt + 4, -1)
C, Mx, O = Asm(), Asm(), [Asm(), Asm()]
for r in range(2):
    vB, vE, d = vAF + 8 * r, tts[2 * r], vD[r]
    for t_ in range(2):
        tt = tts[2 * r + t_]
        for i in range(4):
            C('v_cvt_pk_bf16_f32 %s, %s, %s' % (v(vB + 4 * t_ + i), v(tt + i), v(tt + 4 + i)))
    for i in range(4):
        C('v_cvt_pk_bf16_f32 %s, -%s, -%s' % (v(vBn[r] + i), v(tt + i), v(tt + 4 + i)))
    for mt in range(2):
        Mx('%s %s, %s, %s, 0' % (MF16, v(vE + 4 * mt, 4), KA['A2_%d0' % mt], v(vB, 4)))
    for mt in range(2):
        Mx('%s %s, %s, %s, %s' % (MF16, v(d + 4 * mt, 4), KA['A2_%d1' % mt], v(vB + 4, 4), v(vE + 4 * mt, 4)))
    for mt in range(2):
        Mx('%s %s, %s, %s, %s' % (MF16, v(d + 8 + 4 * mt, 4), KA['A2_%d1' % mt], v(vBn[r], 4), v(vE + 4 * mt, 4)))
    o = tts[2 * r + 1]
    for hi in range(2):
        for mt in range(2):
            for e in range(2):
                O[r]('v_cvt_pk_bf16_f32 %s, %s, %s%s' % (v(o + 4 * hi + 2 * mt + e), v(d + 8 * hi + 4 * mt + 2 * e), '-' if hi else '', v(d + 8 * hi + 4 * mt + 2 * e + 1)))
    for mt in range(2):
        O[r]('ds_write2_b32 %s, %s, %s offset0:%d offset1:%d' % (v(vEXlo[r]), v(o + 2 * mt), v(o + 2 * mt + 1), 40 * mt, 40 * mt + 5))
    for mt in range(2):
        O[r]('ds_write2_b32 %s, %s, %s offset0:%d offset1:%d' % (v(vEXhi[r]), v(o + 4 + 2 * mt), v(o + 4 + 2 * mt + 1), 45 - 40 * mt, 40 - 40 * mt))
P.l += C.l[:6] + under(Mx, C.l[6:] + O[0].l) + O[1].l
for x, n in [(x, 8) for x in tts] + [(x, 4) for x in vBn] + [(x, 16) for x in vD] + [(x, 1) for x in vEXlo + vEXhi]:
    V.put(x, n)
for n in TN[:10]:
    if n in K:
        V.put(K[n], 4)
A.l += schedule(P, jobs('P1', True), 30, GAP, 'P1a', True)
A.wait_tag('warmp')
barrier()
stamp('b1', lvl=8)
lb = opt('s_cmp_eq_u32 s%d, 3' % sW)
vD8 = [V.get(16) for _ in range(4)]
vB = V.get(16)
P = Asm()
for c in range(4):
    P('ds_read2st64_b32 %s, %s offset0:%d offset1:%d' % (v(vB + 4 * c, 2), v(vEX8 + c), EXO, EXO + 6))
    P('ds_read2st64_b32 %s, %s offset0:%d offset1:%d' % (v(vB + 4 * c + 2, 2), v(vEX8 + c), EXO + 12, EXO + 18))
P('s_add_u32 s%d, s%d, %d' % (sT[1], sPB, 2816))
for c in range(4):
    P('%s %s, %s, %s, 0' % (MF32, v(vD8[c], 16), v(vA8, 4), v(vB + 4 * c, 4)))
for c in range(4):
    for q in range(4):
        P('v_cvt_pk_bf16_f32 %s, %s, %s' % (v(vAF + 4 * q + c), v(vD8[c] + 2 * q), v(vD8[c] + 2 * q + 1)))
        P('v_bfi_b32 %s, s%d, %s, %s' % (v(vAF + 4 * q + c), sTM, v(vTG + c), v(vAF + 4 * q + c)))
for q in range(4):
    P('buffer_store_dwordx4 %s, %s, %s, s%d offen offset:%d sc1' % (v(vAF + 4 * q, 4), v(vP), srd(sWS), sT[1] if q > 1 else sPB, 1408 * (q & 1)), tag='pst')
A.l += schedule(P, verbose='P1b')
A('s_nop 1')
opt_end(lb)
for x in vD8:
    V.put(x, 16)
V.put(vB, 16)
V.put(vA8, 4)
stamp('p1_done', lvl=9)
V.put(vAF, 16)
warm(A, ['s1r', 'pg3', 's2r', 'm2a+pg4'])
SAVE = (dict(W1S), list(HC), list(WFC))
lfar, lback = out_of_line('s_cmp_ge_u32 s%d, 21' % sIDX)
A.opt_begin()
vPG, vGR, vZB, vWR = V.get(1), V.get(1), V.get(1), V.get(1)
B = Asm()
B('s_mul_i32 s%d, s%d, 1408' % (sT[1], sXCD))
B('s_lshl_b32 s%d, s%d, 6' % (sT[0], sIDX))
B('s_add_u32 s%d, s%d, s%d' % (sPG, sT[0], sT[1]))
B('s_lshl_b32 s%d, s%d, 6' % (sT[0], sW))
B('v_add_u32 %s, s%d, %s' % (v(vPG), sT[0], v(vQ)))
B('v_mul_u32_u24 %s, %d, %s' % (v(vPG), PBLK, v(vPG)))
B('v_lshl_add_u32 %s, %s, 4, %s' % (v(vPG), v(vC8), v(vPG)))
B('v_xor_b32 %s, %s, %s' % (v(vt), v(vC8), v(vG)))
B('s_lshl_b32 s%d, s%d, 12' % (sT[0], sW))
B('v_lshl_add_u32 %s, %s, 4, s%d' % (v(vZB), v(vt), sT[0]))
B('v_lshl_add_u32 %s, %s, 6, %s' % (v(vZB), v(vQ), v(vZB)))
B('v_lshrrev_b32 %s, 2, %s' % (v(vt), v(vN)))
B('v_xor_b32 %s, s%d, %s' % (v(vt), sW, v(vt)))
B('v_lshlrev_b32 %s, 4, %s' % (v(vt), v(vt)))
B('v_lshl_add_u32 %s, %s, 6, %s' % (v(vt), v(vN), v(vt)))
B('v_lshl_add_u32 %s, %s, 12, %s' % (v(vGR), v(vG), v(vt)))
g = Asm()
g('s_lshl_b32 s%d, s%d, 3' % (sT[1], sW))
g('s_cmp_eq_u32 s%d, 20' % sIDX)
g('s_cselect_b32 s%d, 30, s%d' % (sT[0], sT[1]))
grp(B, g)
B('v_lshl_add_u32 %s, %s, 6, %s' % (v(vWR), v(vG), v(vN)))
B('v_lshl_add_u32 %s, %s, 5, s%d' % (v(vWR), v(vWR), sT[0]))
vTW = V.get(4, 'mh', 1)
B('v_mov_b32 %s, s%d' % (v(vt), sT[1]))
tag_masks(B, vTW, sTAGZ)
trig(B, vA8i, True)
q_pub = W1S['iss']
A.l += interleave(B, jobs('A1'))


def p_gather(asm, d):
    for i in range(4):
        asm('s_add_u32 s%d, s%d, %d' % (sT[5], sPG, WS_P + i * 16 * PBLK))
        asm('buffer_load_dwordx4 %s, %s, %s, s%d offen sc1' % (v(d + 4 * i, 4), v(vPG), srd(sWS), sT[5]))


vPD, vWG, vWr, vWi = V.get(16), V.get(16), V.get(16), V.get(16)
WFEARLY = 'wf' not in CFG.get('A1', '') and ACK & 2
if ACK & 2:
    A.wait_tag(['pst', 'wf'] if WFEARLY else 'pst')
A('s_barrier')
stamp('s1_acked', lvl=9)
p_gather(A, vPD)
q_g = W1S['iss']
assert WFC[0] == 4
if not WFEARLY:
    A.wait_tag('wf')
    A('s_barrier')
for k in range(2):
    for i in range(4):
        A('ds_read_b64 %s, %s offset:%d' % (v(vWG + 8 * k + 2 * i, 2), v(vWR), L_GW + 8192 * k + 512 * i))
B = Asm()
for k, dst in enumerate((vWr, vWi)):
    for i in range(4):
        for p in range(2):
            B('v_lshlrev_b32 %s, 16, %s' % (v(dst + 8 * p + i), v(vWG + 8 * k + 2 * i + p)))
            B('v_and_b32 %s, s%d, %s' % (v(dst + 8 * p + 4 + i), sMASK, v(vWG + 8 * k + 2 * i + p)))
A.l += interleave(B, jobs('G1'))
w1_drain(A, q_g)
A.l += jobs('G1b')
stamp('s1_wait', lvl=8)
verify(A, lambda c: p_gather(c, vPD), lambda c: check_bits(c, range(vPD, vPD + 16), vTG, tmp), False, 's1r')
stamp('s1_ok', lvl=8)
for i in range(4):
    A('ds_write_b128 %s, %s offset:%d' % (v(vZB), v(vPD + 4 * i, 4), L_GP + 1024 * i))
barrier()
stamp('s1_done', lvl=9)
P = Asm()
for i in range(4):
    P('ds_read_b128 %s, %s offset:%d' % (v(vPD + 4 * i, 4), v(vGR), L_GP + 1024 * i))
X = Asm()
for i in range(4):
    for c in range(i + 1, 4):
        X('v_swap_b32 %s, %s' % (v(vPD + 4 * i + c), v(vPD + 4 * c + i)))
vD = [V.get(8) for _ in range(4)]
tts = [vWG, vWG + 8, V.get(8), V.get(8)]
TWc, TWs = K['TW2c'], K['TW2s']


def st(stage):
    m = Asm()
    for c in range(4):
        d, x = vD[c], v(vPD + 4 * c, 4)
        fr, fi = KA['Fre'], KA['Fim']
        ops = [((x, fr), (x, fi)), ((fr, x), (fi, x)), ((x, fi), (x, fr)), ((fi, x), (fr, x))][stage]
        for k in range(2):
            m('%s %s, %s, %s, 0' % (MF16, v(d + 4 * k, 4), ops[k][0], ops[k][1]))
    return m


P.l += X.l[:5] + under(st(0), X.l[5:])
vO = vWr
for stage in range(3):
    C = Asm()
    for c in range(4):
        d, tt = vD[c], tts[c]
        if stage == 0:
            cmul(P, d, d + 4, TWc, TWs, tt, tt + 4, -1)
        elif stage == 1:
            cmul(P, d, d + 4, vWr + 4 * c, vWi + 4 * c, tt, tt + 4, +1)
        else:
            cmul(P, d, d + 4, TWc, TWs, tt, tt + 4, +1)
        for i in range(4):
            lo, hi = (tt + i, tt + 4 + i) if stage == 0 else (tt + 4 + i, tt + i)
            C('v_cvt_pk_bf16_f32 %s, %s, %s' % (v(vPD + 4 * c + i), v(lo), v(hi)))
    if stage == 2:
        for c in range(4):
            for i in range(4):
                C('v_cvt_pk_bf16_f32 %s, %s, %s' % (v(vO + 4 * i + c), v(vD[c] + i), v(vD[c] + 4 + i)))
            for i in range(4):
                C('v_bfi_b32 %s, s%d, %s, %s' % (v(vO + 4 * i + c), sTM, v(vTW + c), v(vO + 4 * i + c)))
    P.l += C.l[:6] + under(st(stage + 1), C.l[6:])
for i in range(4):
    P('ds_write_b128 %s, %s offset:%d' % (v(vGR), v(vO + 4 * i, 4), L_GW + 1024 * i))
A.l += schedule(P, jobs('P2', True), 20, GAP, 'P2', True)
HEARLY = HC[0] == 6
if HEARLY:
    A.wait_tag('clrh')
barrier()
stamp('bd', lvl=8)
for i in range(4):
    A('ds_read_b128 %s, %s offset:%d' % (v(vPD + 4 * i, 4), v(vZB), L_GW + 1024 * i))
for i in range(4):
    A('s_add_u32 s%d, s%d, %d' % (sT[2 + i], sPG, WS_P + i * 16 * PBLK))
for i in range(4):
    A('buffer_store_dwordx4 %s, %s, %s, s%d offen sc1' % (v(vPD + 4 * i, 4), v(vPG), srd(sWS), sT[2 + i]), tag='zst')
stamp('p2_done', lvl=9)
w1_drain(A, max(W1S['drn'], W1S['iss'] - OPT.get('lag', 2)))
for x, n in [(x, 8) for x in vD + tts[2:]] + [(x, 16) for x in (vWG, vPD, vWr, vWi)] + [(vTW, 4)] + [(x, 1) for x in (vPG, vWR, vGR, vZB)]:
    V.put(x, n)
A.opt_end()
for n in TN[10:14]:
    if n in K:
        V.put(K[n], 4)
END = (dict(W1S), list(HC))
W1S.update(SAVE[0])
HC[:] = SAVE[1]
A.far_begin(lfar)
A.wait_tag('wf')
barrier()
x_, t, ad = V.get(4), V.get(4), V.get(4)
A('s_mul_i32 s%d, s%d, 320' % (sT[0], sW))
A('v_add_u32 %s, s%d, %s' % (v(ad + 1), sT[0], v(vL8)))
A('buffer_load_dwordx2 %s, %s, %s, 0 offen' % (v(t, 2), v(ad + 1), srd(sC)))
A('s_lshl_b32 s%d, s%d, 6' % (sT[2], sNU))
A('s_mul_i32 s%d, s%d, %d' % (sT[3], sW, 160 * 7680))
A('s_add_u32 s%d, s%d, s%d' % (sT[2], sT[2], sT[3]))
A('s_add_u32 s%d, s%d, 2560' % (sT[2], sT[2]))
A('v_mul_u32_u24 %s, 7680, %s' % (v(ad), v(vQ)))
A('v_lshl_add_u32 %s, %s, 4, %s' % (v(ad), v(vC8), v(ad)))
A('s_mul_i32 s%d, s%d, 10240' % (sT[3], sW))
for b in range(10):
    A('s_add_u32 m0, s%d, %d' % (sT[3], L_EX + 1024 * b))
    A('s_add_u32 s%d, s%d, %d' % (sT[4], sT[2], b * 16 * 7680))
    A('buffer_load_dwordx4 %s, %s, s%d offen lds' % (v(ad), srd(sWM), sT[4]), tag='wm2')
A('v_add_u32 %s, s%d, %s' % (v(ad), sT[3], v(vT64)))
A('s_add_u32 s%d, s%d, %d' % (sT[0], sT[0], L_SILU))
A('v_lshl_add_u32 %s, %s, 3, s%d' % (v(ad + 2), v(vG), sT[0]))
A('s_lshl_b32 s%d, s%d, 7' % (sT[0], sW))
A('v_lshl_add_u32 %s, %s, 4, s%d' % (v(ad + 3), v(vG), sT[0]))
A('s_mul_i32 s%d, s%d, 205' % (sT[1], sNU))
A('s_lshr_b32 s%d, s%d, 12' % (sT[1], sT[1]))
A('s_cmp_eq_u32 s%d, 2' % sT[1])
A('s_cselect_b32 s%d, 1.0, 0' % sCOL)
A('s_mul_i32 s%d, s%d, 20' % (sT[2], sT[1]))
A('s_sub_u32 s%d, s%d, s%d' % (sT[2], sNU, sT[2]))
A('s_lshl4_add_u32 s%d, s%d, s%d' % (sT[3], sT[1], sT[2]))
A('s_lshl2_add_u32 s%d, s%d, s%d' % (sT[4], sT[1], sT[2]))
A('s_add_u32 s%d, s%d, 48' % (sT[4], sT[4]))
A('s_cmp_lt_u32 s%d, 16' % sT[2])
A('s_cselect_b32 s%d, s%d, s%d' % (sT[3], sT[3], sT[4]))
A('s_add_u32 s%d, s%d, 80' % (sT[4], sXCD))
A('s_cmp_ge_u32 s%d, 22' % sIDX)
A('s_cselect_b32 s%d, s%d, s%d' % (sT[1], sT[3], sT[4]))
A('s_lshl_b32 s%d, s%d, 7' % (sT[1], sT[1]))
A('s_add_u32 s%d, s%d, %d' % (sPG, sT[1], WS_MOD2))
trig(A, vA8i, True)
w1_drain(A, W1S['iss'])


def ii_rest():
    j_hclr(A, END[1][0] - HC[0])
    if any('bias' in CFG.get(x, '') for x in ('A1', 'G1', 'G1b', 'P2')):
        j_bias(A)


if OPT.get('w2at', 1) == 1:
    if W1S['iss'] > 6:
        A('s_barrier')
    w2_reformat(L_RING + 2 * 12288, 'w2st', ii_rest)
    A.wait_lds()
else:
    ii_rest()
for p in range(2):
    A('v_lshlrev_b32 %s, 16, %s' % (v(x_ + 2 * p), v(t + p)))
    A('v_and_b32 %s, s%d, %s' % (v(x_ + 2 * p + 1), sMASK, v(t + p)))
silu(A, x_, t, 4)
for p in range(2):
    A('v_cvt_pk_bf16_f32 %s, %s, %s' % (v(x_ + p), v(x_ + 2 * p), v(x_ + 2 * p + 1)))
A('s_mov_b32 exec_hi, 0xff')
A('ds_write_b64 %s, %s offset:%d' % (v(ad + 1), v(x_, 2), L_SILU))
A('s_mov_b64 exec, -1')
f, sb, d = [V.get(8) for _ in range(5)], V.get(20), V.get(8)
for k in range(5):
    A('ds_read2_b64 %s, %s offset0:%d offset1:%d' % (v(sb + 4 * k, 4), v(ad + 2), 8 * k, 8 * k + 4))
A.wait_tag('wm2')
for k in range(5):
    for tt_ in range(2):
        for rd in range(2):
            A('ds_read_b64_tr_b16 %s, %s offset:%d' % (v(f[k] + 4 * tt_ + 2 * rd, 2), v(ad), L_EX + 2048 * k + 1024 * rd + 32 * tt_))
for k in range(5):
    for tt_ in range(2):
        A('%s %s, %s, %s, %s' % (MF16, v(d + 4 * tt_, 4), v(f[k] + 4 * tt_, 4), v(sb + 4 * k, 4), v(d + 4 * tt_, 4) if k else '0'))
for tt_ in range(2):
    A('ds_write_b128 %s, %s offset:%d' % (v(ad + 3), v(d + 4 * tt_, 4), L_RED + 64 * tt_))
A.wait_tag(['clrh', 'w2st'] if HEARLY else 'w2st')
barrier()
lb = opt('s_cmp_lg_u32 s%d, 0' % sW)
for i in range(4):
    A('ds_read_b128 %s, %s offset:%d' % (v(sb + 4 * i, 4), v(vL16), L_RED + 128 * i))
A('s_mov_b64 exec, 0xff')
for p in (0, 2):
    A('v_pk_add_f32 %s, %s, %s' % (v(sb + p, 2), v(sb + p, 2), v(sb + 4 + p, 2)))
    A('v_pk_add_f32 %s, %s, %s' % (v(sb + 8 + p, 2), v(sb + 8 + p, 2), v(sb + 12 + p, 2)))
    A('v_pk_add_f32 %s, %s, %s' % (v(sb + p, 2), v(sb + p, 2), v(sb + 8 + p, 2)))
    A('v_cvt_pk_bf16_f32 %s, %s, %s' % (v(sb + p), v(sb + p), v(sb + p + 1)))
    A('v_and_b32 %s, s%d, %s' % (v(sb + p + 1), sMASK, v(sb + p)))
    A('v_lshlrev_b32 %s, 16, %s' % (v(sb + p), v(sb + p)))
    A('v_add_f32 %s, s%d, %s' % (v(sb + p + 1), sCOL, v(sb + p + 1)))
    A('v_add_f32 %s, s%d, %s' % (v(sb + p), sCOL, v(sb + p)))
    A('v_cvt_pk_bf16_f32 %s, %s, %s' % (v(sb + p), v(sb + p), v(sb + p + 1)))
    A('v_mov_b32 %s, s%d' % (v(sb + p + 1), sNONCE))
A('buffer_store_dwordx4 %s, %s, %s, s%d offen sc1' % (v(sb, 4), v(vL16), srd(sWS), sPG), tag='zst')
A('s_mov_b64 exec, -1')
A('s_nop 1')
opt_end(lb)
stamp('p2_done', lvl=9, again=True)
j_w1(A, min(8, END[0]['iss'] - W1S['iss']))
if W1S['iss'] < END[0]['iss']:
    w1_drain(A, min(W1S['iss'], END[0]['drn']))
    j_w1(A, END[0]['iss'] - W1S['iss'])
w1_drain(A, END[0]['drn'])
assert W1S == END[0], (W1S, END[0])
for x, n in [(x_, 4), (t, 4), (ad, 4), (sb, 20), (d, 8)] + [(x, 8) for x in f]:
    V.put(x, n)
A.far_end(lback)
for x, n in ((vT64, 1), (vWD, 1), (vTch, 5), (vJunk, 3)):
    V.put(x, n)
vZ, vTZ = vP, vTG


def z_gather(asm, d):
    asm('s_add_u32 s%d, s%d, 2816' % (sT[5], sPB))
    for q in range(4):
        asm('buffer_load_dwordx4 %s, %s, %s, s%d offen offset:%d sc1' % (v(d + 4 * q, 4), v(vZ), srd(sWS), sT[5] if q > 1 else sPB, 1408 * (q & 1)))


def mod2_gather(asm):
    for i in range(11):
        if i % 4 == 0:
            asm('s_mov_b32 s%d, %d' % (sT[5], WS_MOD2 + 1024 * i))
        asm('buffer_load_dwordx4 %s, %s, %s, s%d offen offset:%d sc1' % (v(vMD[i], 4), v(vL16), srd(sWS), sT[5], 1024 * (i % 4)))


vD8 = [V.get(16) for _ in range(4)]
vZD = V.get(16)
vMD = [vD8[i // 4] + 4 * (i % 4) for i in range(11)]
vMA = vD8[3]
lfar, lback = out_of_line('s_cmp_eq_u32 s%d, 3' % sW)
A.far_begin(lfar)
pad(A, 'm2a')
mod2_gather(A)
A('v_lshlrev_b32 %s, 5, %s' % (v(vMA), v(vKD)))
A('v_lshl_add_u32 %s, %s, 2, %s' % (v(vMA), v(vH), v(vMA)))
for k, o in ((1, 16), (2, 8), (3, 24)):
    A('v_add_u32 %s, %d, %s' % (v(vMA + k), o, v(vMA)))
A('v_mul_u32_u24 %s, 2560, %s' % (v(vMA + 4), v(vH)))
A('v_lshl_add_u32 %s, %s, 3, %s' % (v(vMA + 4), v(vKD), v(vMA + 4)))
A('v_add_u32 %s, 4, %s' % (v(vMA + 5), v(vMA + 4)))
A.far_end(lback)
B = Asm()
vZ, vTZ = vP, vTG
B('v_lshlrev_b32 %s, 3, %s' % (v(vt), v(vC8)))
tag_masks(B, vTZ, sTAGZ)
g = Asm()
g('v_cmp_gt_u32 vcc, 84, %s' % v(vKW))
g('s_mul_i32 s%d, s%d, 2560' % (sT[0], sW))
g('s_add_u32 s%d, s%d, s%d' % (sYX, sPB, sT[0]))
g('v_cndmask_b32 %s, %s, %s, vcc' % (v(vZ), v(vOOB), v(vZ)))
for d in range(4):
    g('v_cndmask_b32 %s, 0, %s, vcc' % (v(vTZ + d), v(vTZ + d)))
grp(B, g)
V.put(vKW)
vU0, vU1 = [V.get(1, 'h'), V.get(1, 'h')], [V.get(1, 'h'), V.get(1, 'h')]
ex_addr(B, vU0, vU1, 20, 65)
V.put(vEXa)
V.put(vEXb)
sHS, sW2F = sPG, sZS
B('s_mul_i32 s%d, s%d, 196608' % (sT[0], sG1))
B('s_mul_i32 s%d, s%d, 6144' % (sT[1], sJ1))
B('s_add_u32 s%d, s%d, s%d' % (sHS, sT[0], sT[1]))
B('s_add_u32 s%d, s%d, %d' % (sHS, sHS, WS_H))
B('s_lshl2_add_u32 s%d, s%d, s%d' % (sT[0], sJ, sW))
B('s_mul_i32 s%d, s%d, 61440' % (sW2F, sT[0]))
B('s_add_u32 s%d, s%d, %d' % (sW2F, sW2F, WS_W2F))
sROT = [3, 6, 7, 50, 71, 72]
sHL = sTAU
B('s_lshl4_add_u32 s%d, s%d, s%d' % (sT[0], sG, sW))
B('s_mul_i32 s%d, s%d, 12288' % (sHL, sT[0]))
B('s_add_u32 s%d, s%d, %d' % (sHL, sHL, WS_H))
B('s_mul_i32 s%d, s%d, 5' % (sT[0], sHL))
B('s_sub_u32 s%d, s%d, s%d' % (sW2F, sW2F, sT[0]))
B('s_and_b32 s%d, s%d, %d' % (sT[0], sG, OPT.get('rot', 0)))
for k in range(6):
    g = Asm()
    if k:
        g('s_add_u32 s%d, s%d, 1' % (sT[0], sT[0]))
    g('s_cmp_ge_u32 s%d, 6' % sT[0])
    g('s_cselect_b32 s%d, 6, 0' % sT[1])
    g('s_sub_u32 s%d, s%d, s%d' % (sT[0], sT[0], sT[1]))
    g('s_lshl_b32 s%d, s%d, 11' % (sT[1], sT[0]))
    g('s_add_u32 s%d, s%d, s%d' % (sROT[k], sT[1], sHL))
    grp(B, g)
A.l += interleave(B, jobs('A2'))


if ACK & 4:
    A.wait_tag('zst')
if OPT.get('b2b', 1):
    barrier()
stamp('s2_acked', lvl=9)
lfar, lback = out_of_line('s_cmp_eq_u32 s%d, 3' % sW)
A.opt_begin()
z_gather(A, vZD)
A.opt_end()
A.far_begin(lfar)
verify(A, mod2_gather, lambda c: check_tags(c, [x + 3 for x in vMD], tmp))
for i in range(10):
    for k in range(2):
        b = vMD[i] + 2 * k
        A('v_and_b32 %s, s%d, %s' % (v(b + 1), sMASK, v(b)))
        A('v_lshlrev_b32 %s, 16, %s' % (v(b), v(b)))
    for k in range(2):
        b = vMD[i] + 2 * k
        ad_, o = (vMA + 2 * (i & 1) + k, 10 * (2 + i // 2)) if i < 8 else (vMA + 4 + k, 10 * (2 + 2 * (i - 8)) + 4)
        A('ds_write2st64_b32 %s, %s, %s offset0:%d offset1:%d' % (v(ad_), v(b), v(b + 1), L_MOD // 256 + o, L_MOD // 256 + o + 5))
A.far_end(lback)
q_g = W1S['iss']
A.l += jobs('G2')
assert W1S['iss'] <= 16
w1_addr(A, True)
w1_drain(A, q_g)
A.l += jobs('G2b')
warm(A, ['pg5', 'pg6', 's3r0', 's3r1'])
stamp('s2_wait', lvl=8)
lb = opt('s_cmp_eq_u32 s%d, 3' % sW)
verify(A, lambda c: z_gather(c, vZD), lambda c: check_bits(c, range(vZD, vZD + 16), vTZ, tmp), False, 's2r')
stamp('s2_done', lvl=9)
P = Asm()
for i in range(4):
    for c in range(i + 1, 4):
        P('v_swap_b32 %s, %s' % (v(vZD + 4 * i + c), v(vZD + 4 * c + i)))
for c in range(4):
    P('%s %s, %s, %s, 0' % (MF32, v(vD8[c], 16), v(vA8i, 4), v(vZD + 4 * c, 4)))
for c in range(4):
    for q in range(4):
        P('v_cvt_pk_bf16_f32 %s, %s, %s' % (v(vZD + 4 * c + q), v(vD8[c] + 2 * q), v(vD8[c] + 2 * q + 1)))
    P('ds_write2st64_b32 %s, %s, %s offset0:%d offset1:%d' % (v(vEX8 + c), v(vZD + 4 * c), v(vZD + 4 * c + 1), EXO, EXO + 6))
    P('ds_write2st64_b32 %s, %s, %s offset0:%d offset1:%d' % (v(vEX8 + c), v(vZD + 4 * c + 2), v(vZD + 4 * c + 3), EXO + 12, EXO + 18))
A.l += schedule(P, verbose='P3a')
opt_end(lb)
barrier()
stamp('b3', lvl=8)
for x, n in [(x, 16) for x in vD8] + [(vA8i, 4), (vZ, 1), (vTZ, 4), (vZD, 16), (vEX8, 4)]:
    V.put(x, n)
W2V = 96
W2A = 144
V.take(W2V, 64)


def w2frag(k, t_, c=4, o=0):
    if k < 8:
        return v(W2V + 20 * k + 4 * t_ + o, c)
    return a(W2A + 20 * (k - 8) + 4 * t_ + o, c)


def w2_base(g, n, first):
    m = n % 10
    if m == 0 or first:
        g('s_mul_i32 s%d, s%d, 5' % (sBG[1], sROT[n // 10]))
        g('s_add_u32 s%d, s%d, s%d' % (sBG[1], sBG[1], sW2F))
        if m >= 4:
            g('s_add_u32 s%d, s%d, %d' % (sBG[1], sBG[1], 4096 * (m // 4)))
    elif m % 4 == 0:
        g('s_add_u32 s%d, s%d, 4096' % (sBG[1], sBG[1]))


def w2_loads(asm, n0, n1):
    if OPT.get('now2'):
        return
    for n in range(n0, n1):
        g = Asm()
        w2_base(g, n, n == n0)
        g('buffer_load_dwordx4 %s, %s, %s, s%d offen offset:%d sc1' % (w2frag(n // 5, n % 5), v(vL16), srd(sWS), sBG[1], 1024 * (n % 10 % 4)), tag='w2l')
        grp(asm, g)


P = Asm()
vUF = V.get(16, 'xl')
for r in range(2):
    P('ds_read2_b32 %s, %s offset0:0 offset1:5' % (v(vUF + 8 * r, 2), v(vU0[r])))
    P('ds_read2_b32 %s, %s offset0:10 offset1:15' % (v(vUF + 8 * r + 2, 2), v(vU0[r])))
    P('ds_read2_b32 %s, %s offset0:15 offset1:10' % (v(vUF + 8 * r + 4, 2), v(vU1[r])))
    P('ds_read2_b32 %s, %s offset0:5 offset1:0' % (v(vUF + 8 * r + 6, 2), v(vU1[r])))
vGA = V.get(10, 'lx')
read_mod(P, vGA, 2, vL16, vL4)
vD = [V.get(16, 'xl'), V.get(16, 'xl')]
for r in range(2):
    for u in range(2):
        for t_ in range(2):
            for ro in range(2):
                d = v(vD[r] + 8 * t_ + 4 * ro, 4)
                P('%s %s, %s, %s, %s' % (MF16, d, v(vUF + 8 * r + 4 * u, 4), KA['G%d%d%d' % (u, t_, ro)], d if u else '0'))
tts = [V.get(8, 'xl'), V.get(8, 'xl')]
vY = [V.get(12, 'xl'), V.get(12, 'xl')]
C, Mx = Asm(), Asm()
for r, t_ in RT:
    d, b, tt = vD[r] + 8 * t_, vUF + 8 * r + 4 * t_, tts[t_]
    cmul(P, d, d + 4, K['TW3c%d' % t_], K['TW3s%d' % t_], tt, tt + 4, +1, True)
    for i in range(4):
        C('v_cvt_pk_bf16_f32 %s, %s, %s' % (v(b + i), v(d + i), v(d + 4 + i)))
    Mx('%s %s, %s, %s, 0' % (MF16, v(vY[r] + 4 * t_, 4), KA['A3_0'], v(b, 4)))
    Mx('%s %s, %s, %s, %s' % (MF16, v(vY[r] + 8, 4), KA['A3_%d' % (1 + t_)], v(b, 4), v(vY[r] + 8, 4) if t_ else '0'))
vG2, vSb = vD
read_mod(C, vG2, 4, vL16, vL4)
read_mod(C, vSb, 3, vL16, vL4)
P.l += C.l[:6] + under(Mx, C.l[6:])
for x, n in [(x, 8) for x in tts] + [(x, 1) for x in vU0 + vU1]:
    V.put(x, n)
for n in TN[14:]:
    if n in K:
        V.put(K[n], 4)
PA, P = P, Asm()
for r in range(2):
    for p in range(5):
        P('v_pk_fma_f32 %s, %s, %s, %s' % (v(vXF[r] + 2 * p, 2), v(vY[r] + 2 * p, 2), v(vGA + 2 * p, 2), v(vXF[r] + 2 * p, 2)))
ln_stats(P, vXF)
ln_apply(P, vY, vXF)
for r in range(2):
    for p in range(5):
        P('v_pk_fma_f32 %s, %s, %s, %s' % (v(vY[r] + 2 * p, 2), v(vY[r] + 2 * p, 2), v(vG2 + 2 * p, 2), v(vSb + 2 * p, 2)))
ln_stats(P, vY, '0x37800000')
ln_apply(P, vY, vY)
vXP = vGA
for r in range(2):
    for j in range(5):
        lo, hi = (j, 4 + j) if j < 4 else (8, 9)
        P('v_cvt_pk_bf16_f32 %s, %s, %s' % (v(vXP + 5 * r + j), v(vXF[r] + lo), v(vXF[r] + hi)))
for r in range(2):
    o = vUF + 8 * r
    for j in range(5):
        lo, hi = (j, 4 + j) if j < 4 else (8, 9)
        P('v_cvt_pk_bf16_f32 %s, %s, %s' % (v(o + j), v(vY[r] + lo), v(vY[r] + hi)))
A.l += schedule(PA.l + schedule(P), jobs('P3', True), 20, GAP, 'P3b', True)
assert W2C[0] <= 16 and HC[0] == 6
A.wait_tag('clrh')
for r in range(2):
    o = vUF + 8 * r
    A('buffer_store_dwordx4 %s, %s, %s, s%d offen offset:%d sc1' % (v(o, 4), v(vL16), srd(sWS), sYX, 1280 * r), tag='yst')
    A('buffer_store_dword %s, %s, %s, s%d offen offset:%d sc1' % (v(o + 4), v(vL4), srd(sWS), sYX, 1280 * r + 1024), tag='yst')
stamp('p3_done', lvl=9)
A('s_nop 0')
for x, n in ((vD[0], 16), (vD[1], 16), (vXF[0], 10), (vXF[1], 10), (vY[0], 12), (vY[1], 12), (vUF, 16), (vFILL, 4)):
    V.put(x, n)
assert vXP < 96
V.take(W2V + 64, 96)


def j_x1(asm):
    g = Asm()
    g('s_lshl2_add_u32 s%d, s%d, s%d' % (sBG[0], sL, sW))
    g('s_mul_i32 s%d, s%d, 2560' % (sBG[0], sBG[0]))
    g('s_add_u32 s%d, s%d, %d' % (sBG[0], sBG[0], WS_X1))
    for k in range(10):
        g('buffer_store_dword %s, %s, %s, s%d offen offset:%d sc1' % (v(vXP + k), v(vL4), srd(sWS), sBG[0], 256 * k), tag='xst')
        grp(asm, g)
        g = Asm()


B = Asm()
vgb = V.get(8, 'l')
o = (L_MOD + 5 * 2560) // 256
B('s_and_b32 s%d, s%d, 1' % (sT[2], sJ))
B('s_lshl_b32 s%d, s%d, 9' % (sT[2], sT[2]))
B('s_lshr_b32 s%d, s%d, 1' % (sT[3], sJ))
B('s_lshl2_add_u32 s%d, s%d, s%d' % (sT[2], sT[3], sT[2]))
B('v_lshl_add_u32 %s, %s, 5, s%d' % (v(vt), v(vN), sT[2]))
B('v_add_u32 %s, 16, %s' % (v(vt + 1), v(vt)))
B('s_lshl_b32 s%d, s%d, 5' % (sT[3], sJ))
B('v_lshl_add_u32 %s, %s, 3, s%d' % (v(vt + 2), v(vC8), sT[3]))
B('v_add_u32 %s, 4, %s' % (v(vt + 3), v(vt + 2)))
for q in range(4):
    B('ds_read2st64_b32 %s, %s offset0:%d offset1:%d' % (v(vgb + 2 * q, 2), v(vt + q), o + 4 * (q >> 1), o + 5 + 4 * (q >> 1)))
vYG, vYW = V.get(1, 'l'), V.get(1, 'l')
sYL = sPB
B('v_lshrrev_b32 %s, 3, %s' % (v(vt), v(vLane)))
B('v_and_b32 %s, 7, %s' % (v(vt + 1), v(vLane)))
B('s_and_b32 s%d, s%d, 1' % (sT[2], sW))
B('s_lshr_b32 s%d, s%d, 1' % (sT[3], sW))
B('s_lshl_b32 s%d, s%d, 2' % (sT[4], sT[2]))
B('v_add_u32 %s, s%d, %s' % (v(vt + 2), sT[4], v(vG)))
B('v_xor_b32 %s, %s, %s' % (v(vt + 1), v(vt + 2), v(vt + 1)))
B('v_mul_u32_u24 %s, 1280, %s' % (v(vYG), v(vt)))
B('v_lshl_add_u32 %s, %s, 4, %s' % (v(vYG), v(vt + 1), v(vYG)))
B('s_lshl3_add_u32 s%d, s%d, s%d' % (sT[4], sG1, sT[2]))
B('s_mul_i32 s%d, s%d, %d' % (sT[4], sT[4], PBLK))
B('s_mul_i32 s%d, s%d, 640' % (sT[5], sT[3]))
B('s_add_u32 s%d, s%d, s%d' % (sT[4], sT[4], sT[5]))
B('v_add_u32 %s, s%d, %s' % (v(vYG), sT[4], v(vYG)))
B('s_mul_i32 s%d, s%d, 10240' % (sT[3], sT[3]))
B('s_lshl_b32 s%d, s%d, 10' % (sT[2], sT[2]))
B('s_add_u32 s%d, s%d, s%d' % (sYL, sT[2], sT[3]))
B('v_add_u32 %s, s%d, %s' % (v(vYW), sYL, v(vL16)))
q_pub = W1S['iss']
ja = jobs('A3')
assert W1S['iss'] == 20
w1_drain(B, max(14, q_pub - OPT.get('lag3', 2)))
A.l += interleave(B, ja)
A('s_or_b32 s%d, s%d, s%d' % (sT[0], sL, sW))
lfar, lback = out_of_line('s_cmp_eq_u32 s%d, 0' % sT[0])
A.far_begin(lfar)
A('v_mov_b32 %s, s%d' % (v(vt), sTAGZ))
A('s_mov_b64 exec, 1')
A('buffer_store_dword %s, %s, %s, 0 offen offset:%d sc1' % (v(vt), v(vL4), srd(sWS), WS_EPOCH), tag='ep')
A('s_mov_b64 exec, -1')
A.far_end(lback)
vCK = V.get(20, 'l')
CKB = [vCK, vCK, vCK, W2V + 140]


def y_dma(asm, rt, so=sT[5]):
    for u in range(5):
        g = Asm()
        if u == 0:
            g('s_mov_b32 s%d, %d' % (so, WS_P + 2 * PBLK * rt))
        g('s_add_u32 m0, s%d, %d' % (sYL, 20480 * rt + 1920 * u))
        g('buffer_load_dwordx4 %s, %s, s%d offen offset:%d sc1 lds' % (v(vYG), srd(sWS), so, 128 * u), tag='yg%d' % rt)
        grp(asm, g)


def y_back(asm, rt):
    for u in range(5):
        asm('ds_read_b128 %s, %s offset:%d' % (v(CKB[rt] + 4 * u, 4), v(vYW), 20480 * min(rt, 2) + 2048 * u))


def y_check1(asm, rt):
    if rt == 3:
        asm('v_add_u32 %s, %d, %s' % (v(vYW), 20480, v(vYW)))
    asm.wait_tag('yg%d' % rt)
    y_back(asm, rt)


def y_check2(asm, rt):
    def again(c):
        c('s_mov_b32 s%d, m0' % sVER)
        y_dma(c, rt)
        c('s_mov_b32 m0, s%d' % sVER)
        c('s_waitcnt vmcnt(0)')
        y_back(c, rt)
    verify(asm, again, lambda c: check_bits(c, range(CKB[rt], CKB[rt] + 20), None, tmp), name='s3r%d' % rt)


if ACK & 8:
    A.wait_tag('yst')
barrier()
stamp('s3_acked', lvl=9)
NY = OPT.get('ny', 3)
M = Asm()
y_dma(A, 0)
for rt in range(1, NY):
    y_dma(M, rt)
B = Asm()
w1_drain(B, 20)
V.put(vW1, 6)
V.put(vW1r)
for i in range(8):
    B('v_mul_f32 %s, 0x47800000, %s' % (v(vgb + i), v(vgb + i)))
for i in range(8):
    B('v_accvgpr_write_b32 %s, %s' % (a(240 + i), v(vgb + i)))
V.put(vgb, 8)
vYR = [V.get(1, 'l'), V.get(1, 'l')]
B('v_lshrrev_b32 %s, 1, %s' % (v(vt + 2), v(vN)))
B('v_xor_b32 %s, %s, %s' % (v(vt + 2), v(vt + 2), v(vG)))
B('v_lshlrev_b32 %s, 4, %s' % (v(vt + 2), v(vt + 2)))
B('v_lshl_add_u32 %s, %s, 7, %s' % (v(vYR[0]), v(vN), v(vt + 2)))
B('v_xor_b32 %s, 64, %s' % (v(vYR[1]), v(vYR[0])))
vBI = V.get(12, 'l')
for c in range(3):
    for p in range(2):
        B('v_lshlrev_b32 %s, 16, %s' % (v(vBI + 4 * c + 2 * p), v(vb1 + 2 * c + p)))
        B('v_and_b32 %s, s%d, %s' % (v(vBI + 4 * c + 2 * p + 1), sMASK, v(vb1 + 2 * c + p)))
for i in range(12):
    B('v_mul_f32 %s, 0x37800000, %s' % (v(vBI + i), v(vBI + i)))
for p in range(4):
    B('v_lshlrev_b32 %s, 16, %s' % (v(vt), v(vb2 + p)))
    B('v_and_b32 %s, s%d, %s' % (v(vt + 1), sMASK, v(vb2 + p)))
    B('v_mul_f32 %s, 0x37800000, %s' % (v(vt), v(vt)))
    B('v_mul_f32 %s, 0x37800000, %s' % (v(vt + 1), v(vt + 1)))
    B('v_accvgpr_write_b32 %s, %s' % (a(248 + 2 * p), v(vt)))
    B('v_accvgpr_write_b32 %s, %s' % (a(249 + 2 * p), v(vt + 1)))
A.l += interleave(B, M)
A.l += jobs('G3')
for x, n in ((vb1, 6), (vb2, 4), (vKD, 1), (vH, 1)):
    V.put(x, n)
stamp('s3_wait', lvl=8)
y_check1(A, 0)
y_check2(A, 0)
barrier()
stamp('s3_done', lvl=13)
T0 = Asm()
vHs4, vHs2 = V.get(1, 'l'), V.get(1, 'l')
T0('s_lshl_b32 s%d, s%d, 10' % (sT[0], sW))
T0('v_add_u32 %s, s%d, %s' % (v(vHs4), sT[0], v(vL16)))
T0('s_lshl_b32 s%d, s%d, 9' % (sT[0], sW))
T0('s_add_u32 s%d, s%d, 4096' % (sT[0], sT[0]))
T0('v_cmp_gt_u32 vcc, 32, %s' % v(vLane))
T0('v_add_u32 %s, s%d, %s' % (v(vHs2), sT[0], v(vL16)))
T0('v_cndmask_b32 %s, %s, %s, vcc' % (v(vHs2), v(vOOB), v(vHs2)))
sW2L = sRING
T0('s_mul_i32 s%d, s%d, 20480' % (sW2L, sW))
T0('s_add_u32 s%d, s%d, %d' % (sW2L, sW2L, L_W2))
GC0 = -2.302208198
GC1 = GC0 * 0.044715 * 2.0 ** 48
GC0 *= 2.0 ** 16
import struct
fhex = lambda x: '0x%08x' % struct.unpack('<I', struct.pack('<f', x))[0]
sGC1 = sADD
vGC0 = V.get(1, 'l')
T0('s_mov_b32 s%d, %s' % (sGC1, fhex(GC1)))
T0('v_mov_b32 %s, %s' % (v(vGC0), fhex(GC0)))
NB = OPT.get('nb', 4)
vAC = [V.get(12, 'l'), vCK]
vBFl = [V.get(4, 'l') for _ in range(NB)]
print('free low in GEMM1:', sorted(x for x in V.free))
vGT = vCK + 12
vHP = vXP


def h_store(asm, rt):
    g = Asm()
    g('s_add_u32 s%d, s%d, %d' % (sT[2], sHS, 49152 * rt))
    g('buffer_store_dwordx4 %s, %s, %s, s%d offen sc1' % (v(vHP, 4), v(vHs4), srd(sWS), sT[2]), tag='hst%d' % rt)
    grp(asm, g)


def gelu(rt):
    g = Asm()
    ac = vAC[rt & 1]
    for c in range(3):
        x = ac + 4 * c
        tb = vGT + 4 * (c & 1)
        for i in range(4):
            g('v_mul_f32 %s, %s, %s' % (v(tb + i), v(x + i), v(x + i)))
        for i in range(4):
            g('v_fma_f32 %s, %s, s%d, %s' % (v(tb + i), v(tb + i), sGC1, v(vGC0)))
        for i in range(4):
            g('v_mul_f32 %s, %s, %s' % (v(tb + i), v(tb + i), v(x + i)))
        for i in range(4):
            g('v_exp_f32 %s, %s' % (v(tb + i), v(tb + i)))
        for i in range(4):
            g('v_add_f32 %s, 1.0, %s' % (v(tb + i), v(tb + i)))
        for i in range(4):
            g('v_rcp_f32 %s, %s' % (v(tb + i), v(tb + i)))
        for i in range(4):
            g('v_mul_f32 %s, %s, %s' % (v(tb + i), v(tb + i), v(x + i)))
        for p in range(2):
            g('v_cvt_pk_bf16_f32 %s, %s, %s' % (v(vHP + 2 * c + p), v(tb + 2 * p), v(tb + 2 * p + 1)))
        if c == 1:
            h_store(g, rt)
    for p in range(2):
        g('v_permlane32_swap_b32 %s, %s' % (v(vHP + 4 + p), v(vHP + 6 + p)))
    g('buffer_store_dwordx4 %s, %s, %s, s%d offen sc1' % (v(vHP + 4, 4), v(vHs2), srd(sWS), sT[2]), tag='hst%d' % rt)
    return g


def yread(rt, q):
    base = 20480 * (rt & 1)
    return Ins('ds_read_b128 %s, %s offset:%d' % (v(vBFl[(20 * rt + q) % NB], 4), v(vYR[q & 1]), base + 2048 * (q >> 1)))


def g1_main(rt):
    out = []
    for q in range(20):
        for c in range(3):
            d = v(vAC[rt & 1] + 4 * c, 4)
            gr = [Ins('%s %s, %s, %s, %s' % (MF16, d, a((3 * q + c) * 4, 4), v(vBFl[(20 * rt + q) % NB], 4), d if q else v(vBI + 4 * c, 4)))]
            if c == 0:
                nq = q + NB - 1
                if nq < 20:
                    gr.append(yread(rt, nq))
                elif rt < 3:
                    if rt in (0, 2) and nq == 20:
                        gr.append(Ins('s_barrier'))
                    if rt == 1 and nq < 22:
                        gr.append(Ins('v_add_u32 %s, 40960, %s' % (v(vYR[nq & 1]), v(vYR[nq & 1]))))
                    gr.append(yread(rt + 1, nq - 20))
            out.append(gr)
    return out


HB = [0, 48, 96, 0]


def probe(asm, rt):
    g = Asm()
    g('s_add_u32 s%d, s%d, %d' % (sT[5], sHL, 49152 * rt + 4096))
    g('buffer_load_dword %s, %s, %s, s%d offen offset:448 sc1' % (v(tmp), v(vPB), srd(sWS), sT[5]))
    asm.l.append([Ins('; probe')] + g.l)


def h_loads(asm, rt, so=sBG[0], k0=0, k1=12):
    if k0 == 0 and asm is not COLD and not OPT.get('probeh'):
        asm.wait_tag('hst%d' % rt)
    if k0 == 0 and asm is not COLD and OPT.get('probeh'):
        g = Asm()
        verify(g, lambda c: probe(c, rt), lambda c: c('v_cmp_eq_u32 vcc, -1, %s' % v(tmp)))
        grp(asm, g)
    for k in range(k0, k1):
        g = Asm()
        if k % 2 == 0:
            g('s_add_u32 s%d, s%d, %d' % (so, sROT[k // 2], 49152 * rt))
        g('buffer_load_dwordx4 %s, %s, %s, s%d offen offset:%d sc1' % (a(HB[rt] + 4 * k, 4), v(vL16), srd(sWS), so, 1024 * (k % 2)), tag='hld')
        grp(asm, g)


def w2_dma(asm, n0, n1):
    if OPT.get('now2'):
        return
    for n in range(n0, n1):
        g = Asm()
        w2_base(g, n, n == n0)
        if n % 10 % 4 == 0 or n == n0:
            g('s_add_u32 m0, s%d, %d' % (sW2L, 1024 * (n - 40 - n % 10 % 4)))
        g('buffer_load_dwordx4 %s, %s, s%d offen offset:%d sc1 lds' % (v(vL16), srd(sWS), sBG[1], 1024 * (n % 10 % 4)), tag='w2d')
        grp(asm, g)


for q in range(NB - 1):
    A.l.append(yread(0, q))


def emit(name, main, fixed=(), flex=()):
    out, est = weave(main, fixed, flex, range(2, 60, 3) if name[1] == '1' else range(4, 60, 5))
    A.l += out
    print(name, 'est cycles', est)
    stamp(name, lvl=4)


def flag_store(asm):
    asm('v_mov_b32 %s, s%d' % (v(vt + 1), sNONCE))
    asm.wait_tag('xst')
    g = Asm()
    g('s_lshl2_add_u32 s%d, s%d, s%d' % (sT[1], sL, sW))
    g('s_lshl_b32 s%d, s%d, 6' % (sT[1], sT[1]))
    g('s_add_u32 s%d, s%d, %d' % (sT[1], sT[1], WS_FLAG))
    g('; flag')
    g('s_mov_b64 exec, 0xffff')
    g('buffer_store_dword %s, %s, %s, s%d offen sc1' % (v(vt + 1), v(vL4), srd(sWS), sT[1]), tag='flag')
    g('s_mov_b64 exec, -1')
    grp(asm, g)


def flag_load(asm):
    g = Asm()
    g('s_lshl_b32 s%d, s%d, 11' % (sT[1], sG))
    g('s_add_u32 s%d, s%d, %d' % (sT[1], sT[1], WS_FLAG))
    g('buffer_load_dword %s, %s, %s, s%d offen sc1' % (v(vt), v(vL8), srd(sWS), sT[1]))
    grp(asm, g)


T0('v_lshlrev_b32 %s, 2, %s' % (v(vL8), v(vL8)))
X1T0 = not any('x1' in x for x in CFG.values())
W2SEQ = mk(w2_loads, W2C[0], 35).l + mk(w2_dma, 40, 60).l + mk(w2_loads, 35, 40).l
n0, n1, n2 = OPT.get('n0', 8), OPT.get('n1', 18), OPT.get('n2', 18)
assert n0 <= 35 - W2C[0]
fx = []
g0 = 0
for rt in range(NY, 4):
    fx.append((mk(y_dma, rt, sT[1]), g0, g0 + 18))
    g0 += 18
if X1T0:
    fx.append((mk(j_x1), g0, g0 + 20))
    g0 += 20
fx.append((W2SEQ[:n0], g0, 60))
Y3 = OPT.get('y3', 1)
ywin = [(1, 2), (2, 24)] + ([(3, 44)] if Y3 == 0 else [])
emit('g1_t0', g1_main(0), [(mk(y_check1, rt), g, g + 4) for rt, g in ywin] + fx,
     [(T0, 0, 12)] + [(mk(y_check2, rt), g + 11, min(60, g + 20)) for rt, g in ywin])
fx = [(W2SEQ[n0:n0 + n1], 0, 60), (mk(flag_store), 22, 25)]
ge = gelu(0).l
if Y3:
    fx = [(mk(y_check1, 3), 0, 4)] + fx
    ge = ge[:30] + mk(y_check2, 3).l + ge[30:]
emit('g1_t1', g1_main(1), fx, [(ge, 2, 60)])
HE, H0 = OPT.get('he', 50), OPT.get('h0', 1)
pr = lambda rt: ([], 0, 1)
hl = lambda rt: (mk(h_loads, rt), H0, HE)
for rt in (2, 3):
    f = gelu(rt - 1)
    fx = [(W2SEQ[n0 + n1:n0 + n1 + n2], 0, 60)] if rt == 2 else [hl(0), (W2SEQ[n0 + n1 + n2:], 0, 60)]
    if rt == (3 if HEARLY or OPT.get('pair', 2) != 1 else 2):
        fx = [(mk(flag_load), 8, 11)] + fx
        verify(f, flag_load, lambda c: c('v_cmp_ne_u32 vcc, s%d, %s' % (sNONCE, v(vt))))
    emit('g1_t%d' % rt, g1_main(rt), fx, [(f, 2, 60)])
stamp('g1_done')
V.put(vAC[0], 12)
for x in vBFl:
    V.put(x, 4)
V.put(vBI, 12)
for x in [vYG, vYW] + vYR:
    V.put(x)
vA2 = [V.get(20, 'l'), vCK]
vPW = V.get(1, 'l')
vPR, vXO, vOO = [[V.get(1, 'l') for _ in range(2)] for _ in range(3)]
vX1 = V.get(10, 'l')
E = Asm()
E('v_bfe_u32 %s, %s, 1, 2' % (v(vt + 2), v(vN)))
E('v_xor_b32 %s, %s, %s' % (v(vt + 2), v(vt + 2), v(vG)))
E('s_mul_i32 s%d, s%d, 13312' % (sT[0], sW))
E('v_lshl_add_u32 %s, %s, 4, s%d' % (v(vPW), v(vt + 2), sT[0]))
E('v_lshl_add_u32 %s, %s, 6, %s' % (v(vPW), v(vN), v(vPW)))
E2 = Asm()
vRow = V.get(1, 'l')
E('s_lshl_b32 s%d, s%d, 2' % (sT[0], sW))
E('v_add_u32 %s, s%d, %s' % (v(vRow), sT[0], v(vG)))
for k in range(2):
    row = vRow if k == 0 else vQ
    if k == 0:
        E('s_lshl_b32 s%d, s%d, 7' % (sT[1], sJ))
        E('s_mul_i32 s%d, s%d, 81920' % (sT[0], sG))
    else:
        E('s_lshl_b32 s%d, s%d, 5' % (sT[1], sJ))
        E('s_add_u32 s%d, s%d, 1024' % (sT[1], sT[1]))
        E('s_lshl2_add_u32 s%d, s%d, s%d' % (sT[4], sG, sW))
        E('s_mul_i32 s%d, s%d, 20480' % (sT[0], sT[4]))
    E('v_lshl_add_u32 %s, %s, 3, s%d' % (v(vOO[k]), v(vN if k == 0 else vC8), sT[1]))
    E('v_mul_u32_u24 %s, 1280, %s' % (v(vt + 3), v(row)))
    E('v_add3_u32 %s, %s, %s, s%d' % (v(vXO[k]), v(vt + 3), v(vOO[k]), sT[0]))
    E2('v_bfe_u32 %s, %s, 1, 2' % (v(vt + 3), v(row)))
    E2('v_xor_b32 %s, %s, %s' % (v(vt + 3), v(vt + 3), v(vC8)))
    E2('v_lshlrev_b32 %s, 4, %s' % (v(vt + 3), v(vt + 3)))
    E2('v_lshl_add_u32 %s, %s, 6, %s' % (v(vPR[k]), v(row), v(vt + 3)))
    if k == 0:
        E2('v_lshrrev_b32 %s, 2, %s' % (v(vt + 3), v(vN)))
        E2('v_mul_u32_u24 %s, 1152, %s' % (v(vt + 3), v(vt + 3)))
        E2('v_add_u32 %s, %s, %s' % (v(vPR[k]), v(vt + 3), v(vPR[k])))
        E2('s_mul_i32 s%d, s%d, 10240' % (sT[4], sG))
    else:
        E2('s_lshl_b32 s%d, s%d, 10' % (sT[0], sW))
        E2('v_add_u32 %s, s%d, %s' % (v(vPR[k]), sT[0], v(vPR[k])))
        E2('s_lshl2_add_u32 s%d, s%d, s%d' % (sT[4], sG, sW))
        E2('s_mul_i32 s%d, s%d, 2560' % (sT[4], sT[4]))
    E2('v_and_b32 %s, 7, %s' % (v(vt + 3), v(row)))
    E2('v_lshrrev_b32 %s, 3, %s' % (v(vt + 2), v(row)))
    E2('v_lshl_add_u32 %s, %s, 8, %s' % (v(vt + 3), v(vt + 3), v(vt + 2)))
    E2('v_mul_u32_u24 %s, 1280, %s' % (v(vt + 3), v(vt + 3)))
    E2('v_add3_u32 %s, %s, %s, s%d' % (v(vOO[k]), v(vt + 3), v(vOO[k]), sT[4]))
    if k == 0:
        E2a, E2 = E2, Asm()
OUTF = ['', ' sc1', ' nt'][OPT.get('outf', 0)]


def x1_load(asm, rt):
    k = int(rt == 4)
    g = Asm()
    g('s_mov_b32 s%d, %d' % (sBG[1], WS_X1 + 20480 * (rt & 3)))
    g('buffer_load_dwordx2 %s, %s, %s, s%d offen sc1' % (v(vX1 + 2 * rt, 2), v(vXO[k]), srd(sWS), sBG[1]))
    grp(asm, g)


def part_write(asm, rt, tiles=range(5)):
    for t_ in tiles:
        off = 4608 * (rt & 1) + 1152 * t_ if t_ < 4 else 9216 + 1024 * rt
        asm('ds_write_b128 %s, %s offset:%d' % (v(vPW), v(vA2[rt & 1] + 4 * t_, 4), off))


def epi_read(asm, rt):
    s = vA2[rt & 1]
    for p in range(4):
        asm('ds_read_b128 %s, %s offset:%d' % (v(s + 4 * p, 4), v(vPR[int(rt == 4)]), 13312 * p + (4608 * (rt & 1) if rt < 4 else 9216)))


def epi_const(asm):
    for i in range(8):
        asm('v_accvgpr_read_b32 %s, %s' % (v(vGB[i]), a(240 + i)))
        asm('v_accvgpr_read_b32 %s, %s' % (v(vB2[i]), a(248 + i)))


def epi_pre(asm, rt):
    k = int(rt == 4)
    e = vER + 4 * k
    for p in range(2):
        asm('v_lshlrev_b32 %s, 16, %s' % (v(e + 2 * p), v(vX1 + 2 * rt + p)))
        asm('v_and_b32 %s, s%d, %s' % (v(e + 2 * p + 1), sMASK, v(vX1 + 2 * rt + p)))
    for i in range(4):
        asm('v_fmac_f32 %s, %s, %s' % (v(e + i), v(vGB[4 * k + i]), v(vB2[4 * k + i])))


def epilogue(asm, rt):
    k = int(rt == 4)
    s = vA2[rt & 1]
    e = vER + 4 * k
    for i in range(4):
        asm('v_add_f32 %s, %s, %s' % (v(s + i), v(s + i), v(s + 4 + i)))
    for i in range(4):
        asm('v_add_f32 %s, %s, %s' % (v(s + 8 + i), v(s + 8 + i), v(s + 12 + i)))
    for i in range(4):
        asm('v_add_f32 %s, %s, %s' % (v(s + i), v(s + i), v(s + 8 + i)))
    for i in range(4):
        asm('v_fmac_f32 %s, %s, %s' % (v(e + i), v(s + i), v(vGB[4 * k + i])))
    for p in range(2):
        asm('v_cvt_pk_bf16_f32 %s, %s, %s' % (v(s + 16 + p), v(e + 2 * p), v(e + 2 * p + 1)))
    g = Asm()
    g('s_mov_b32 s%d, %d' % (sT[3], 2560 * (rt & 3)))
    g('buffer_store_dwordx2 %s, %s, %s, s%d offen%s' % (v(s + 16, 2), v(vOO[k]), srd(sOUT), sT[3], OUTF), tag='out')
    grp(asm, g)


def g2_mfma(rt, k, t_):
    d = v(vA2[rt & 1] + 4 * t_, 4)
    return Ins('%s %s, %s, %s, %s' % (MF16, d, w2frag(k, t_), a(HB[rt] + 4 * k, 4), d if k else '0'))


KT = OPT.get('kt', 5)


def g2_main(rt):
    if rt == 3 and KT:
        return [g2_mfma(rt, k, t_) for k in range(12 - KT) for t_ in range(5)] + [g2_mfma(rt, k, t_) for t_ in range(5) for k in range(12 - KT, 12)]
    return [g2_mfma(rt, k, t_) for k in range(12) for t_ in range(5)]


def h_check(asm, rt):
    if OPT.get('now1') or OPT.get('now2'):
        return
    ls, lo, ll, lr = label('hslow'), label('hok'), label('hl'), label('hredo')
    g = Asm()
    g('v_cmp_u_f32 vcc, %s, %s' % (v(vA2[rt & 1]), v(vA2[rt & 1])))
    g('s_cbranch_vccnz %s' % ls)
    g('%s:' % lo)
    grp(asm, g)
    c = COLD
    c.cold_begin()
    c('%s:' % ls)
    c('s_add_u32 s%d, s%d, 1' % (sSPIN, sSPIN))
    c('s_cmp_gt_u32 s%d, %d' % (sSPIN, SPIN))
    c('s_cbranch_scc1 %s' % lr)
    h_loads(c, rt, sT[5])
    c('s_waitcnt vmcnt(0)')
    t2 = vA2[rt & 1]
    c('v_mov_b32 %s, 0' % v(t2))
    for i in range(0, 48, 2):
        c('v_accvgpr_read_b32 %s, %s' % (v(vt), a(HB[rt] + i)))
        c('v_accvgpr_read_b32 %s, %s' % (v(vt + 1), a(HB[rt] + i + 1)))
        c('v_max3_u32 %s, %s, %s, %s' % (v(t2), v(t2), v(vt), v(vt + 1)))
    c('v_cmp_eq_u32 vcc, -1, %s' % v(t2))
    c('s_cbranch_vccnz %s' % ls)
    c('%s:' % lr)
    if OPT.get('gecho'):
        c('s_add_u32 s85, s85, 25')
    c.l += g2_main(rt)
    c('s_nop 7')
    if rt == 3 and KT:
        part_write(c, 3, range(3))
    c('s_branch %s' % lo)


vW2r = vPR[0]
R = Asm()
R('v_add_u32 %s, s%d, %s' % (v(vW2r), sW2L, v(vL16)))
R.wait_tag('w2d')
for n in range(40, 60):
    R('ds_read_b128 %s, %s offset:%d' % (w2frag(n // 5, n % 5), v(vW2r), 1024 * (n - 40)))
g3 = gelu(3).l
NG = min(OPT.get('ng', 30), len(g3))
HS = OPT.get('hs', 0) if NG > 60 else 0
x1_load(E, 0)
if HS:
    A.l += interleave(g3[:NG], mk(h_loads, 1, sBG[0], 0, HS), NG - 16 * HS, NG)
else:
    A.l += g3[:NG]
stamp('g2_start', lvl=4)
emit('g2_t0', g2_main(0), [(R, 0, 30), (mk(h_loads, 1, sBG[0], HS, 12), 1 if HS else H0, HE - 4 * HS), pr(2)], [(g3[NG:] + E.l, 0, 60)])
V.put(vHP, 10)
V.put(vGC0)
for x in (vHs4, vHs2, vL4, vOOB, vLane):
    V.put(x)
vER = V.get(8, 'l')
vGB = [V.get(1, 'l') for _ in range(8)]
vB2 = [V.get(1, 'l') for _ in range(8)]
GB_, GR_, GW_ = OPT.get('gb', 27), OPT.get('gr', 28), OPT.get('gw', 40)
for rt in range(1, 4):
    f = Asm()
    if rt == 1:
        f('s_barrier')
    h_check(f, rt - 1)
    wl = Asm()
    wl.wait_lds()
    fx = [(f, 3, 4), (mk(part_write, rt - 1), 4, 14), (mk(barrier), GB_, GB_ + 1), (mk(epi_read, rt - 1), GR_, GR_ + 2), (wl, GW_, GW_ + 1)]
    if rt == 1:
        fx += [hl(2), pr(3), (mk(x1_load, 1), 15, 20)]
        epi_const(E2a)
        fl = [(E2a, 0, GB_), (mk(epi_pre, 0), GB_, GW_), (mk(epilogue, 0), GW_, 60)]
    elif rt == 2:
        fx += [hl(3), (mk(x1_load, 2).l + mk(x1_load, 4).l + mk(x1_load, 3).l, 15, 30)]
        fl = [(E2, 0, GB_), (mk(epi_pre, 1), GB_, GW_), (mk(epilogue, 1), GW_, 60)]
    else:
        fl = [(mk(epi_pre, 2).l + mk(epi_pre, 4).l, GB_, GW_), (mk(epilogue, 2).l + mk(epi_pre, 3).l, GW_, 60)]
        if KT:
            for t_ in range(3):
                g = 60 - KT * (4 - t_) + 4
                fx.append((mk(part_write, 3, [t_]), g, g + 1))
    emit('g2_t%d' % rt, g2_main(rt), fx, fl)
stamp('g2_done')
h_check(A, 3)
part_write(A, 3, range(3, 5) if KT else range(5))
barrier()
stamp('lastbar', lvl=4)
epi_read(A, 3)
epi_read(A, 4)
epilogue(A, 3)
epilogue(A, 4)
stamp('laststore', lvl=4)
if OPT['stamps']:
    A('s_waitcnt vmcnt(0)')
    stamp('end')
    A('s_memtime s[4:5]')
    A('s_sub_u32 s4, s4, s100')
    A('s_lshl_b32 s%d, s2, 2' % sT[0])
    A('s_add_u32 s%d, s%d, s%d' % (sT[0], sT[0], sW))
    A('s_lshl_b32 s%d, s%d, 7' % (sT[0], sT[0]))
    A('s_add_u32 s%d, s%d, %d' % (sT[0], sT[0], WS_STAMP))
    A('s_mov_b64 exec, 1')
    for i, s in [(i, sSTAMP + i) for i in range(nstamp[0])] + [(30, 4), (31, sSPIN)]:
        A('v_mov_b32 %s, s%d' % (v(vt), s))
        A('buffer_store_dword %s, %s, %s, s%d offen offset:%d' % (v(vt), v(vL16), srd(sWS), sT[0], 4 * i))
        A('s_waitcnt vmcnt(0)')
if OPT.get('gecho'):
    A('s_cmp_lg_u32 s%d, 0' % sW)
    A('s_cbranch_scc1 L_end')
    A('s_waitcnt vmcnt(0)')
    A('s_memrealtime s[92:93]')
    A('s_waitcnt lgkmcnt(0)')
    A('L_dly:')
    A('s_memrealtime s[86:87]')
    A('s_waitcnt lgkmcnt(0)')
    A('s_sub_u32 s94, s86, s88')
    A('s_cmp_lt_u32 s94, 4000')
    A('s_cbranch_scc1 L_dly')
    A('s_mov_b32 s98, 256')
    A('s_mov_b32 s99, 0x20000')
    A('s_mov_b64 exec, 1')
    A('s_not_b32 s94, s88')
    for o, r in ((0, 94), (4, 90), (8, 92), (16, 88), (20, 85)):
        A('v_mov_b32 %s, s%d' % (v(vt), r))
        A('buffer_atomic_%s %s, off, s[96:99], 0 offset:%d' % ('add' if o == 20 else 'umax', v(vt), o))
        A('s_nop 1')
    A('s_waitcnt vmcnt(0)')
    A('v_mov_b32 %s, 1' % v(vt))
    A('buffer_atomic_add %s, off, s[96:99], 0 offset:12 sc0' % v(vt))
    A('s_waitcnt vmcnt(0)')
    A('v_readfirstlane_b32 s94, %s' % v(vt))
    A('s_cmp_lg_u32 s94, 255')
    A('s_cbranch_scc1 L_end')
    A('buffer_load_dwordx4 %s, off, s[96:99], 0 sc1' % v(vt, 4))
    A('buffer_load_dword %s, off, s[96:99], 0 offset:%d sc1' % (v(tmp), 20 if OPT['gecho'] == 99 else 16))
    A('s_waitcnt vmcnt(0)')
    A('v_readfirstlane_b32 s94, %s' % v(vt))
    A('v_readfirstlane_b32 s95, %s' % v({1: vt + 2, 2: tmp, 99: tmp}.get(OPT['gecho'], vt + 1)))
    if OPT['gecho'] == 99:
        A('s_mov_b32 s94, 0')
    A('s_add_u32 s94, s94, s95')
    A('s_add_u32 s94, s94, 1')
    A('s_mul_i32 s94, s94, %d' % OPT.get('gk', 4))
    A('s_min_u32 s94, s94, 50000')
    A('s_memrealtime s[92:93]')
    A('L_echo:')
    A('s_memrealtime s[90:91]')
    A('s_waitcnt lgkmcnt(0)')
    A('s_sub_u32 s95, s90, s92')
    A('s_cmp_lt_u32 s95, s94')
    A('s_cbranch_scc1 L_echo')
if OPT.get('probe'):
    pr = OPT['probe']
    A('s_or_b32 s%d, s%d, s%d' % (sT[0], sL, sW))
    A('s_cmp_lg_u32 s%d, 0' % sT[0])
    A('s_cbranch_scc1 L_end')
    A('s_waitcnt vmcnt(0)')
    sr = sWS if pr >= 2 else sPRB
    if pr >= 2:
        A('s_mov_b32 s%d, 0x10000000' % (sWS + 2))
    base = {1: 0, 2: 0x1a00000, 3: 0x8000000, 4: 0xfc00000}[pr]
    for i in range(40):
        A('s_mov_b32 s%d, %d' % (sT[0], base + i * (40960 + 128)))
        A('buffer_load_dword %s, off, %s, s%d' % (v(vt), srd(sr), sT[0]))
        A('s_waitcnt vmcnt(0)')
A('L_end:')
A('s_endpgm')
A.add(COLD)

body, ins = finalize(A)
far = ''
while '; FARBEGIN' in body:
    i = body.index('; FARBEGIN')
    j = body.index('; FAREND\n', i) + 9
    far += body[i + 11:j - 9]
    body = body[:i] + body[j:]
body = body.replace('L_end:\n  s_endpgm\n', 'L_end:\n  s_endpgm\n' + far)
import subprocess, re as _re
for n, r in PADS.items():
    body = body.replace('; PAD %s\n' % n, 'L_pad_%s:\n  s_cbranch_execz %s\n' % (n, r))
pages = sorted(int(n[2:]) for n in PADS if n.startswith('pg'))
if pages:
    trial = '.amdgcn_target "amdgcn-amd-amdhsa--gfx950"\n.text\n' + body + ''.join('L_pad_pg%d:\n' % p for p in pages) + 'L_tab:\n.fill 8192,4,0\nL_tabend:\n'
    tf = sys.argv[1] + '.trial'
    open(tf, 'w').write(trial)
    subprocess.run(['clang', '-x', 'assembler', '-target', 'amdgcn-amd-amdhsa', '-mcpu=gfx950', '-c', tf, '-o', tf + '.o'], check=True)
    dis = subprocess.run(['llvm-objdump', '-d', '--mcpu=gfx950', tf + '.o'], capture_output=True, text=True).stdout
    addr = [int(x, 16) for x in _re.findall(r'// ([0-9A-F]{12}):', dis)]
    import os
    os.remove(tf)
    os.remove(tf + '.o')
    lines = body.split('\n')
    il = [k for k, x in enumerate(lines) if x.startswith('  ')]
    ins_at = {}
    for cnt, p in enumerate(pages):
        cand = [n for n in range(1, len(il)) if 0 <= addr[n] + 4 * cnt - 4096 * p <= 56]
        best = [n for n in cand if 'v_mfma' in lines[il[n - 1]] and lines[il[n]].startswith('  v_')] or cand
        ins_at[il[best[0]]] = p
        print('page', p, 'pad before', lines[il[best[0]]])
    body = '\n'.join(('L_pad_pg%d:\n  s_cbranch_execz %s\n' % (ins_at[k], PADS['pg%d' % ins_at[k]]) if k in ins_at else '') + x for k, x in enumerate(lines))
ref = open('cdna_kernels/%s.s.ref' % NAME).read()
hdr = ref[:ref.index('; Override launch')]
src = hdr + '; @launch grid=(256,1,1) block=(256,1,1) lds=163840\n'
src += '.amdgcn_target "amdgcn-amd-amdhsa--gfx950"\n.text\n.p2align 12\n.fill 832, 4, 0xbf810000\n.globl %s_kernel\n.p2align 8\n.type %s_kernel,@function\n%s_kernel:\n' % (NAME, NAME, NAME)
src += body
src += '.p2align 7\n.type L_tab,@object\nL_tab:\n'
for n in TN:
    for row in T[n].reshape(-1, 8):
        src += '.long ' + ','.join('0x%x' % x for x in row) + '\n'
src += '.fill %d, 4, 0\nL_tabend:\n.size L_tab, L_tabend-L_tab\n' % ((32 - len(TN)) * 256)
src += '''.section .rodata,"a"
.p2align 6
.amdhsa_kernel %s_kernel
  .amdhsa_next_free_vgpr 512
  .amdhsa_next_free_sgpr 102
  .amdhsa_accum_offset 256
  .amdhsa_group_segment_fixed_size 0
  .amdhsa_kernarg_size 104
  .amdhsa_user_sgpr_count 2
  .amdhsa_user_sgpr_kernarg_segment_ptr 1
  .amdhsa_system_sgpr_workgroup_id_x 1
  .amdhsa_float_denorm_mode_32 3
.end_amdhsa_kernel
''' % NAME
open(sys.argv[1], 'w').write(src)
open(sys.argv[1] + '.stamps', 'w').write('\n'.join(stamp_names))
from collections import Counter
cnt = Counter(i.cls for i in ins)
print('instr', dict(cnt), 'nop states', sum(states(i) for i in ins if i.cls == 'nop'), 'src bytes', len(src))
```

```python
import sys
sys.path.insert(0, 'work')
from asmlib import *
import tables

NAME = 'adaLN_cond__spectral_gfnet__mixer_channel_mlp__prompt'
OPT = dict(stamps=0)
CFG = dict(PRE='', SIL='tw1,tw,tm', PUB='const', PUB2='w1:3', G0='', P1='wf:3', A1='wf:1,w1:2,bias', G1='', G1b='', P2='w1:6', A2='w1:4', G2='w1:1', G2b='hclr:3',
           P3='hclr:3,w1:3', A3='w1:1,w2:8', G3='')
for arg in sys.argv[2:]:
    k, v = arg.split('=')
    if k in CFG:
        CFG[k] = v
    else:
        OPT[k] = int(v)

PBLK = 11264
WS_EPOCH = 0
WS_MODX = 0x1000
WS_MOD2 = 0x9000
WS_FLAG = 0x10000
WS_P = 0x50000
WS_X1 = WS_P + 256 * PBLK
WS_H = WS_X1 + 256 * 10240
WS_W2F = WS_H + 32 * 196608
WS_END = WS_W2F + 1920 * 1024
WS_STAMP = 0x1800000
WS_REC = 0x2000000
OOB = 0x7ff00000
assert WS_END < WS_STAMP
L_MOD = 0
L_SILU = 17920
L_RED = 19200
L_EX = 20480
L_GP = 32768
L_GW = 49152
L_RING = 65536
L_CONST = L_GP
L_WRAW = L_RING + 7 * 12288
L_W2 = 81920
L_PART = [0, 21504]
SPIN = 200000

T = tables.build()
TN = list(T)

sC, sWM, sX, sWS, sWF_, sW1, sW2, sB1, sB2, sOUT = [8 + 4 * i for i in range(10)]
sWRp, sWIp = 48, 50
sL, sW, sNONCE, sJ, sG, sSPIN, sMASK, sVER = 52, 53, 54, 55, 56, 57, 58, 59
sT = [60, 61, 62, 63, 64, 65]
sST = 66
sADD = 70
sIDX = 73
sXCD = 74
sPG = 75
sZS = 76
sPB = 77
sRING = 78
sTAU = 79
sEX = 80
sBG = [48, 49]
sCOL = 50
sYX = 51
sJ1, sG1, sTM, sTAGZ, sNU = 4, 5, 0, 1, 3
sSTAMP = 82


def srd(s):
    return 's[%d:%d]' % (s, s + 3)


def v(n, c=1):
    return 'v%d' % n if c == 1 else 'v[%d:%d]' % (n, n + c - 1)


def a(n, c=1):
    return 'a%d' % n if c == 1 else 'a[%d:%d]' % (n, n + c - 1)


class Pool:
    def __init__(self, lo, hi):
        self.free = set(range(lo, hi))
        self.hw = 0

    def get(self, n, z='mhxl', al=2):
        if n == 1:
            al = 1
        Z = dict(l=(1, 96), m=(96, 176), h=(176, 256), x=(96, 256))
        for b, hi in [(b, Z[c][1]) for c in z for b in range(*Z[c])]:
            if b % al == 0 and b + n <= hi and all(b + i in self.free for i in range(n)):
                for i in range(n):
                    self.free.remove(b + i)
                self.hw = max(self.hw, b + n)
                return b
        raise RuntimeError('out of registers (%d)' % n)

    def take(self, b, n):
        for i in range(n):
            assert b + i in self.free, 'v%d busy' % (b + i)
            self.free.remove(b + i)
        return b

    def put(self, b, n=1):
        for i in range(n):
            assert b + i not in self.free
            self.free.add(b + i)


A = Asm()
COLD = Asm()
V = Pool(1, 256)
nstamp = [0]
stamp_names = []


CLK = 's_memtime' if OPT.get('cyc') else 's_memrealtime'
ECHO = {3: 'pub0', 4: 's0_done', 5: 's1_done', 6: 's2_done', 7: 's3_done', 8: 'g1_done', 9: 'crit_iss', 10: 'g2_t0', 11: 'g2_t1', 12: 'g2_done', 13: 'laststore', 14: 'g1_t1'}


def stamp(name, asm=None, lvl=1, again=False):
    if ECHO.get(OPT.get('gecho')) == name:
        (asm or A)('s_memrealtime s[90:91]')
        (asm or A)('s_waitcnt lgkmcnt(0)')
    if not (OPT['stamps'] & lvl) and not (OPT['stamps'] and name in ('end',)):
        return
    asm = asm or A
    if again:
        i = stamp_names.index(name)
    else:
        i = nstamp[0]
        nstamp[0] += 1
        stamp_names.append(name)
    asm('%s s[%d:%d]' % (CLK, sEX, sEX + 1))
    asm('s_mov_b32 s%d, s%d' % (sSTAMP + i, sEX))
    assert sSTAMP + i < 100


MF16 = 'v_mfma_f32_16x16x32_bf16'
MF32 = 'v_mfma_f32_32x32x16_bf16'
lab = [0]


def label(p):
    lab[0] += 1
    return 'L_%s_%d' % (p, lab[0])


def barrier(asm=None):
    asm = asm or A
    asm.wait_lds()
    asm('s_barrier')


PADS = {}


def pad(asm, name):
    asm('; PAD %s' % name)


def warm(asm, names):
    if not OPT.get('warm', 1):
        return
    ret = label('wret')
    g = Asm()
    g('s_mov_b64 exec, 0')
    for w, chain in enumerate(names):
        chain = chain.split('+')
        for a_, b_ in zip(chain, chain[1:] + [None]):
            PADS[a_] = 'L_pad_' + b_ if b_ else ret
        g('s_cmp_eq_u32 s%d, %d' % (sW, w))
        g('s_cbranch_scc1 L_pad_%s' % chain[0])
    g('%s:' % ret)
    g('s_mov_b64 exec, -1')
    asm.l.append(g.l)


def check_sentinel(asm, regs, tmp):
    r = list(regs)
    first = True
    while r:
        if first:
            if len(r) >= 3:
                asm('v_max3_u32 %s, %s, %s, %s' % (v(tmp), v(r[0]), v(r[1]), v(r[2])))
                r = r[3:]
            else:
                asm('v_max_u32 %s, %s, %s' % (v(tmp), v(r[0]), v(r[-1])))
                r = []
            first = False
        elif len(r) >= 2:
            asm('v_max3_u32 %s, %s, %s, %s' % (v(tmp), v(tmp), v(r[0]), v(r[1])))
            r = r[2:]
        else:
            asm('v_max_u32 %s, %s, %s' % (v(tmp), v(tmp), v(r[0])))
            r = []
    asm('v_cmp_eq_u32 vcc, -1, %s' % v(tmp))


def check_bits(asm, regs, masks, tmp):
    r = list(regs)
    for k, x in enumerate(r if masks is not None else []):
        asm('v_xor_b32 %s, %s, %s' % (v(x), v(masks + k % 4), v(x)))
    asm('v_or3_b32 %s, %s, %s, %s' % (v(tmp), v(r[0]), v(r[1]), v(r[2])))
    for k in range(3, len(r) - 1, 2):
        asm('v_or3_b32 %s, %s, %s, %s' % (v(tmp), v(tmp), v(r[k]), v(r[k + 1])))
    asm('v_bitop3_b32 %s, %s, %s, s%d bitop3:0xa8' % (v(tmp), v(tmp), v(r[-1]), sTM))
    asm('v_cmp_ne_u32 vcc, 0, %s' % v(tmp))


def check_tags(asm, regs, tmp):
    asm('v_xor_b32 %s, s%d, %s' % (v(tmp), sNONCE, v(regs[0])))
    for r in regs[1:]:
        asm('v_bitop3_b32 %s, %s, s%d, %s bitop3:0xbe' % (v(tmp), v(r), sNONCE, v(tmp)))
    asm('v_cmp_ne_u32 vcc, 0, %s' % v(tmp))


def verify(asm, loads, checker, masked=True, name=None):
    ls, lo = label('slow'), label('ok')
    checker(asm)
    grp = Asm()
    grp('s_cbranch_vccnz %s' % ls)
    grp('%s:' % lo)
    asm.l.append(grp.l)
    c = COLD
    c.cold_begin()
    lx = label('out')
    c('%s:' % ls)
    if name:
        pad(c, name)
    c('s_add_u32 s%d, s%d, 1' % (sSPIN, sSPIN))
    c('s_cmp_gt_u32 s%d, %d' % (sSPIN, SPIN))
    c('s_cbranch_scc1 %s' % lx)
    c('s_mov_b64 exec, vcc' if masked else 's_wqm_b64 exec, vcc')
    loads(c)
    c('s_waitcnt vmcnt(0)')
    checker(c)
    c('s_cbranch_vccnz %s' % ls)
    c('%s:' % lx)
    c('s_mov_b64 exec, -1')
    c('s_nop 4')
    c('s_branch %s' % lo)


def cmul(asm, re_, im_, c_, s_, t0, t1, sign, inplace=False):
    neg = ' neg_lo:[0,0,1] neg_hi:[0,0,1]'
    for p in (0, 2):
        asm('v_pk_mul_f32 %s, %s, %s' % (v(t0 + p, 2), v(im_ + p, 2), v(s_ + p, 2)))
        asm('v_pk_mul_f32 %s, %s, %s' % (v(t1 + p, 2), v(re_ + p, 2), v(s_ + p, 2)))
    for p in (0, 2):
        asm('v_pk_fma_f32 %s, %s, %s, %s%s' % (v((re_ if inplace else t0) + p, 2), v(re_ + p, 2), v(c_ + p, 2), v(t0 + p, 2), neg if sign > 0 else ''))
        asm('v_pk_fma_f32 %s, %s, %s, %s%s' % (v((im_ if inplace else t1) + p, 2), v(im_ + p, 2), v(c_ + p, 2), v(t1 + p, 2), '' if sign > 0 else neg))


def ln_stats(asm, x, scale=None):
    t = V.get(8, 'hxl')
    for r in range(2):
        asm('v_pk_add_f32 %s, %s, %s' % (v(t + 2 * r, 2), v(x[r], 2), v(x[r] + 2, 2)))
        asm('v_pk_mul_f32 %s, %s, %s' % (v(t + 4 + 2 * r, 2), v(x[r], 2), v(x[r], 2)))
    for p in range(1, 5):
        for r in range(2):
            if p >= 2:
                asm('v_pk_add_f32 %s, %s, %s' % (v(t + 2 * r, 2), v(t + 2 * r, 2), v(x[r] + 2 * p, 2)))
            asm('v_pk_fma_f32 %s, %s, %s, %s' % (v(t + 4 + 2 * r, 2), v(x[r] + 2 * p, 2), v(x[r] + 2 * p, 2), v(t + 4 + 2 * r, 2)))
    for q in range(4):
        asm('v_add_f32 %s, %s, %s' % (v(t + 2 * q), v(t + 2 * q), v(t + 2 * q + 1)))
    asm('v_permlane32_swap_b32 %s, %s' % (v(t), v(t + 2)))
    asm('v_permlane32_swap_b32 %s, %s' % (v(t + 4), v(t + 6)))
    asm('v_add_f32 %s, %s, %s' % (v(t), v(t), v(t + 2)))
    asm('v_add_f32 %s, %s, %s' % (v(t + 4), v(t + 4), v(t + 6)))
    asm('v_permlane16_swap_b32 %s, %s' % (v(t), v(t + 4)))
    asm('v_add_f32 %s, %s, %s' % (v(t), v(t), v(t + 4)))
    for sh in (8, 4, 2, 1):
        asm('v_add_f32_dpp %s, %s, %s row_ror:%d row_mask:0xf bank_mask:0xf' % (v(t), v(t), v(t), sh))
    asm('v_mul_f32 %s, 0x3acccccd, %s' % (v(t + 1), v(t)))
    asm('v_mul_f32 %s, 0x3acccccd, %s' % (v(t), v(t)))
    asm('v_permlane16_swap_b32 %s, %s' % (v(t), v(t + 1)))
    asm('v_fma_f32 %s, -%s, %s, %s' % (v(t + 1), v(t), v(t), v(t + 1)))
    asm('v_max_f32 %s, 0, %s' % (v(t + 1), v(t + 1)))
    asm('v_add_f32 %s, 0x3727c5ac, %s' % (v(t + 1), v(t + 1)))
    asm('v_rsq_f32 %s, %s' % (v(t + 1), v(t + 1)))
    if scale:
        asm('v_mul_f32 %s, %s, %s' % (v(t + 1), scale, v(t + 1)))
    asm('v_mul_f32_e64 %s, -%s, %s' % (v(t), v(t), v(t + 1)))
    for r in range(2):
        asm('v_readlane_b32 s%d, %s, %d' % (sST + 2 * r, v(t + 1), 32 * r))
    for r in range(2):
        asm('v_readlane_b32 s%d, %s, %d' % (sST + 2 * r + 1, v(t), 32 * r))
    V.put(t, 8)


def ln_apply(asm, dst, x):
    for p in range(5):
        for r in range(2):
            s = 's[%d:%d]' % (sST + 2 * r, sST + 2 * r + 1)
            asm('v_pk_fma_f32 %s, %s, %s, %s op_sel:[0,0,1] op_sel_hi:[1,0,1]' % (v(dst[r] + 2 * p, 2), v(x[r] + 2 * p, 2), s, s))


def read_mod(asm, dst, vec, vL16, vL4):
    b = L_MOD + vec * 2560
    asm('ds_read_b128 %s, %s offset:%d' % (v(dst, 4), v(vL16), b))
    asm('ds_read_b128 %s, %s offset:%d' % (v(dst + 4, 4), v(vL16), b + 1280))
    o = (b + 1024) // 256
    assert (b + 1024) % 256 == 0
    asm('ds_read2st64_b32 %s, %s offset0:%d offset1:%d' % (v(dst + 8, 2), v(vL4), o, o + 5))


def S(asm, fmt, *args):
    asm(fmt % args)


def opt(cond, asm=None):
    asm = asm or A
    lb = label('skip')
    asm(cond)
    asm('s_cbranch_scc1 %s' % lb)
    asm.opt_begin()
    return lb


def opt_end(lb, asm=None):
    asm = asm or A
    asm.opt_end()
    asm('%s:' % lb)


def grp(asm, g):
    asm.l.append(g.l)


A('s_cmp_ge_u32 s2, 256')
A('s_cbranch_scc1 L_end')
for s, off in ((sC, 64), (sWM, 72), (sX, 0), (sWS, 96), (sWRp, 8), (sWIp, 16), (sW1, 32)):
    A('s_load_dwordx2 s[%d:%d], s[0:1], %d' % (s, s + 1, off))
if OPT['stamps']:
    A('%s s[%d:%d]' % (CLK, sSTAMP, sSTAMP + 1))
    A('s_memtime s[100:101]')
if OPT.get('gecho'):
    A('s_memrealtime s[88:89]')
    A('s_load_dwordx2 s[96:97], s[0:1], 88')
    A('s_mov_b32 s90, 0')
    A('s_mov_b32 s85, 0')
vLane = V.get(1, 'l')
vt = V.get(4, 'l')
tmp = V.get(1, 'l')
A('v_lshrrev_b32 %s, 6, v0' % v(vt))
A('v_and_b32 %s, 63, v0' % v(vLane))
A('v_readfirstlane_b32 s%d, %s' % (sW, v(vt)))
A('s_lshr_b32 s%d, s2, 3' % sIDX)
vPC = V.get(2)
A('s_getpc_b64 s[6:7]')
A('L_pc:')
A('s_lshl_b32 s%d, s%d, 7' % (sT[1], sIDX))
A('v_lshl_add_u32 %s, v0, 12, s%d' % (v(vt + 1), sT[1]))
A('v_mov_b32 %s, s7' % v(vPC + 1))
A('v_add_co_u32 %s, vcc, s6, %s' % (v(vt + 2), v(vt + 1)))
A('s_and_b32 s%d, s2, 7' % sT[0])
A('s_mul_i32 s%d, s%d, 20' % (sTAU, sT[0]))
A('v_addc_co_u32 %s, vcc, 0, %s, vcc' % (v(vt + 3), v(vPC + 1)))
A('v_cmp_gt_u32 vcc, (L_tabend-L_pc-4), %s' % v(vt + 1))
A('s_add_u32 s%d, s%d, s%d' % (sTAU, sTAU, sIDX))
A('s_and_saveexec_b64 s[%d:%d], vcc' % (sEX, sEX + 1))
A('s_cbranch_execz L_nopf')
A.opt_begin()
vJunk = V.get(3, 'h', 1)
A('global_load_dword %s, %s, off' % (v(vJunk), v(vt + 2, 2)), tag='junk')
A.opt_end()
A('L_nopf:')
A('s_mov_b64 exec, -1')
A('s_lshl_b32 s%d, s%d, 5' % (sL, sT[0]))
A('s_add_u32 s%d, s%d, s%d' % (sL, sL, sIDX))
vL16, vL4, vL8 = V.get(1, 'l'), V.get(1, 'l'), V.get(1, 'l')
vN, vG, vKD, vH = V.get(1, 'l'), V.get(1, 'l'), V.get(1, 'l'), V.get(1, 'l')
A('v_and_b32 %s, 15, %s' % (v(vN), v(vLane)))
A('v_lshrrev_b32 %s, 4, %s' % (v(vG), v(vLane)))
vCo = V.get(1)
A('s_and_b32 s%d, s%d, 1' % (sT[2], sTAU))
A('s_mul_i32 s%d, s%d, 640' % (sT[0], sT[2]))
A('s_lshl_b32 s%d, s%d, 6' % (sT[1], sW))
A('s_add_u32 s%d, s%d, s%d' % (sT[0], sT[0], sT[1]))
A('v_lshl_add_u32 %s, %s, 8, s%d' % (v(vCo), v(vG), sT[0]))
A('v_lshl_add_u32 %s, %s, 2, %s' % (v(vCo), v(vN), v(vCo)))
vWM = V.get(1)
A('v_lshrrev_b32 %s, 1, %s' % (v(vWM), v(vLane)))
A('v_mul_u32_u24 %s, 7680, %s' % (v(vWM), v(vWM)))
A('v_and_b32 %s, 1, %s' % (v(vt), v(vLane)))
A('v_lshl_add_u32 %s, %s, 4, %s' % (v(vWM), v(vt), v(vWM)))
A('s_mul_i32 s%d, s%d, 3840' % (sT[0], sT[0]))
A('s_lshr_b32 s%d, s%d, 1' % (sT[1], sTAU))
A('s_lshl_b32 s%d, s%d, 5' % (sT[1], sT[1]))
A('s_add_u32 s%d, s%d, s%d' % (sT[0], sT[0], sT[1]))
A('s_lshl_b32 s%d, s%d, 10' % (sT[1], sW))
for s, n in ((sC, 1280), (sWM, 640 * 7680), (sX, 2621440), (sWS, WS_REC)):
    A('s_mov_b32 s%d, %d' % (s + 2, n))
    A('s_mov_b32 s%d, 0x20000' % (s + 3))
A('v_lshlrev_b32 %s, 2, %s' % (v(vL4), v(vLane)))
A('s_lshl_b32 s%d, s%d, 9' % (sT[2], sW))
A('s_add_u32 s%d, s%d, s%d' % (sT[2], sT[2], sL))
A('s_mul_i32 s%d, s%d, 1280' % (sPG, sT[2]))
A('s_add_u32 s%d, s%d, %d' % (sZS, sPG, 256 * 1280))
A('s_add_u32 m0, s%d, %d' % (sT[1], L_EX))
A('s_waitcnt lgkmcnt(0)')
XPOS = OPT.get('xpos', 2)
vXR = V.get(10)
XL, XL2 = Asm(), Asm()
for r in range(2):
    for j in range(5):
        for X in (XL, XL2):
            X('buffer_load_dword %s, %s, %s, s%d offen offset:%d' % (v(vXR + 5 * r + j), v(vL4), srd(sX), (sPG, sZS)[r], 256 * j))
if XPOS == 0:
    A.add(XL)
vC = V.get(1)
lb = opt('s_cmp_ge_u32 s%d, 20' % sIDX)
A('buffer_load_dword %s, %s, %s, 0 offen' % (v(vC), v(vCo), srd(sC)))
for i in range(3):
    if i == 2:
        lb2 = opt('s_cmp_ge_u32 s%d, 2' % sW)
    if i:
        A('s_add_u32 m0, s%d, %d' % (sT[1], L_EX + 4096 * i))
        A('s_add_u32 s%d, s%d, %d' % (sT[0], sT[0], 128 * 7680))
    A('buffer_load_dwordx4 %s, %s, s%d offen lds' % (v(vWM), srd(sWM), sT[0]), tag='wm')
opt_end(lb2)
opt_end(lb)
V.put(vCo)
V.put(vWM)
if OPT['stamps']:
    nstamp[0] = 1
    stamp_names.append('start')
A('s_load_dword s%d, s[%d:%d], %d' % (sNONCE, sWS, sWS + 1, WS_EPOCH))
for s, off in ((sW2, 48), (sB1, 40), (sB2, 56), (sOUT, 80)):
    A('s_load_dwordx2 s[%d:%d], s[0:1], %d' % (s, s + 1, off))
stamp('crit_iss', lvl=2)
if XPOS == 2:
    A.add(XL)


def mk(fn, *args):
    x = Asm()
    fn(x, *args)
    return x


def out_of_line(cond, asm=None):
    asm = asm or A
    lb, lj = label('far'), label('back')
    asm(cond)
    asm('s_cbranch_scc1 %s' % lb)
    return lb, lj


B = Asm()
for s, n in ((sWF_, 2048 * 642), (sW1, 640 * 3072), (sW2, 1536 * 1280), (sB1, 3072), (sB2, 1280), (sOUT, 2621440)):
    B('s_mov_b32 s%d, %d' % (s + 2, n))
    B('s_mov_b32 s%d, 0x20000' % (s + 3))
B('v_lshlrev_b32 %s, 4, %s' % (v(vL16), v(vLane)))
B('v_lshlrev_b32 %s, 3, %s' % (v(vL8), v(vLane)))
B('v_and_b32 %s, 31, %s' % (v(vKD), v(vLane)))
B('v_lshrrev_b32 %s, 5, %s' % (v(vH), v(vLane)))
B('s_mov_b32 s%d, 0' % sSPIN)
B('s_mov_b32 s%d, 0xffff0000' % sMASK)
B('s_and_b32 s%d, s%d, 7' % (sJ, sL))
B('s_lshr_b32 s%d, s%d, 3' % (sG, sL))
B('s_mul_i32 s%d, s%d, %d' % (sPB, sL, PBLK))
B('s_add_u32 s%d, s%d, %d' % (sPB, sPB, WS_P))
vOOB = V.get(1, 'l')
vKW = V.get(1)
vQ = V.get(1, 'l')
vC8 = V.get(1, 'l')
vT64 = V.get(1)
B('v_lshrrev_b32 %s, 2, %s' % (v(vQ), v(vLane)))
B('v_and_b32 %s, 3, %s' % (v(vC8), v(vLane)))
B('s_lshl_b32 s%d, s%d, 5' % (sT[0], sW))
B('v_add_u32 %s, s%d, %s' % (v(vKW), sT[0], v(vKD)))
B('v_mov_b32 %s, %d' % (v(vOOB), OOB))
B('s_mul_i32 s%d, s%d, 3072' % (sRING, sW))
B('s_lshr_b32 s%d, s%d, 5' % (sXCD, sL))
B('s_andn2_b32 s%d, s%d, 7' % (sT[0], sG))
B('s_lshr_b32 s%d, s%d, 2' % (sT[1], sIDX))
B('s_add_u32 s%d, s%d, s%d' % (sG1, sT[0], sT[1]))
B('s_and_b32 s%d, s%d, 4' % (sT[0], sG))
B('s_and_b32 s%d, s%d, 3' % (sT[1], sIDX))
B('s_add_u32 s%d, s%d, s%d' % (sJ1, sT[0], sT[1]))
if not OPT.get('pair', 1):
    B('s_mov_b32 s%d, s%d' % (sG1, sG))
    B('s_mov_b32 s%d, s%d' % (sJ1, sJ))
if OPT.get('pair', 2) == 2:
    B('s_mov_b32 s%d, s%d' % (sG, sG1))
    B('s_mov_b32 s%d, s%d' % (sJ, sJ1))
vFILL = V.get(4, 'l')
for i in range(4):
    B('v_mov_b32 %s, -1' % v(vFILL + i))
B('s_cmp_ge_u32 s%d, 2' % sW)
B('s_cselect_b32 s%d, s%d, s%d' % (sWF_, sWIp, sWRp))
B('s_cselect_b32 s%d, s%d, s%d' % (sWF_ + 1, sWIp + 1, sWRp + 1))
B('s_lshl_b32 s%d, s%d, 13' % (sT[0], sW))
B('s_add_u32 s%d, s%d, (L_tab-L_pc)' % (sT[1], sT[0]))
B('v_add_u32 %s, s%d, %s' % (v(vt + 2), sT[1], v(vL16)))
B('v_add_co_u32 %s, vcc, s6, %s' % (v(vPC), v(vt + 2)))
B('v_lshlrev_b32 %s, 6, %s' % (v(vT64), v(vQ)))
B('v_lshl_add_u32 %s, %s, 3, %s' % (v(vT64), v(vC8), v(vT64)))
B('v_addc_co_u32 %s, vcc, 0, %s, vcc' % (v(vPC + 1), v(vPC + 1)))
vTch = V.get(5, 'mh', 1)
B('s_mul_i32 s%d, s%d, 642' % (sT[0], sXCD))
B('s_and_b32 s%d, s%d, 1' % (sT[1], sW))
B('s_lshl1_add_u32 s%d, s%d, s%d' % (sT[1], sIDX, sT[1]))
B('s_mul_i32 s%d, s%d, %d' % (sT[1], sT[1], 4 * 5136))
B('s_add_u32 s%d, s%d, s%d' % (sT[0], sT[0], sT[1]))
B('s_and_b32 s%d, s%d, -4' % (sT[0], sT[0]))
B('v_bfe_u32 %s, %s, 3, 2' % (v(vt), v(vLane)))
B('v_and_b32 %s, 7, %s' % (v(vt + 3), v(vLane)))
B('v_min_u32 %s, 5, %s' % (v(vt + 1), v(vt + 3)))
B('v_mul_u32_u24 %s, 5136, %s' % (v(vt), v(vt)))
B('v_lshl_add_u32 %s, %s, 7, s%d' % (v(vt + 1), v(vt + 1), sT[0]))
B('v_add_u32 %s, %s, %s' % (v(vTch), v(vt), v(vt + 1)))
vMG, vMA = V.get(1), V.get(2, 'mh', 1)
B('v_lshrrev_b32 %s, 3, %s' % (v(vMG), v(vLane)))
B('s_lshl_b32 s%d, s%d, 11' % (sT[0], sW))
B('v_lshl_add_u32 %s, %s, 8, s%d' % (v(vMG), v(vMG), sT[0]))
B('v_lshl_add_u32 %s, %s, 4, %s' % (v(vMG), v(vt + 3), v(vMG)))
B('s_lshl_b32 s%d, s%d, 2' % (sT[0], sW))
B('v_add_u32 %s, s%d, %s' % (v(vMA), sT[0], v(vL16)))
B('s_mul_i32 s%d, s%d, 2560' % (sT[0], sW))
B('v_add_u32 %s, s%d, %s' % (v(vMA + 1), sT[0], v(vL4)))
B('s_mul_i32 s%d, s%d, 1.0' % (sADD, sW))
B('s_lshl_b32 s%d, s%d, 13' % (sADD + 1, sW))
B('s_add_u32 s%d, s%d, %d' % (sADD + 1, sADD + 1, WS_MODX + 8192))
B('s_lshr_b32 s%d, s%d, 6' % (sT[0], sL))
B('s_lshl_b32 s%d, s%d, 5' % (sT[0], sT[0]))
B('s_add_u32 s%d, s%d, s%d' % (sT[0], sT[0], sIDX))
B('s_lshl2_add_u32 s%d, s%d, s%d' % (sT[0], sT[0], sW))
B('s_mul_i32 s%d, s%d, 15' % (sT[0], sT[0]))
B('v_min_u32 %s, 14, %s' % (v(vt), v(vLane)))
B('v_add_u32 %s, s%d, %s' % (v(vt), sT[0], v(vt)))
B('v_mul_u32_u24 %s, 43691, %s' % (v(vt + 1), v(vt)))
B('v_lshrrev_b32 %s, 19, %s' % (v(vt + 1), v(vt + 1)))
B('s_and_b32 s%d, s%d, 1' % (sT[0], sXCD))
B('v_add_u32 %s, s%d, %s' % (v(vt + 1), sT[0], v(vt + 1)))
B('v_mul_u32_u24 %s, 12, %s' % (v(vt + 1), v(vt + 1)))
B('v_add_lshl_u32 %s, %s, %s, 7' % (v(vTch + 1), v(vt), v(vt + 1)))

TB = Asm()
TB('s_lshl2_add_u32 s%d, s%d, s%d' % (sT[0], sIDX, sW))
TB('s_mul_i32 s%d, s%d, %d' % (sT[1], sT[0], 5 * 7680))
TB('s_mul_i32 s%d, s%d, 640' % (sT[2], sXCD))
TB('s_add_u32 s%d, s%d, s%d' % (sT[1], sT[1], sT[2]))
TB('s_add_u32 s%d, s%d, 2560' % (sT[1], sT[1]))
TB('v_lshrrev_b32 %s, 3, %s' % (v(vt), v(vLane)))
TB('v_min_u32 %s, 4, %s' % (v(vt), v(vt)))
TB('v_mul_u32_u24 %s, 7680, %s' % (v(vt), v(vt)))
TB('v_and_b32 %s, 7, %s' % (v(vt + 1), v(vLane)))
TB('v_min_u32 %s, 4, %s' % (v(vt + 1), v(vt + 1)))
TB('v_lshl_add_u32 %s, %s, 7, s%d' % (v(vt + 1), v(vt + 1), sT[1]))
TB('v_add_u32 %s, %s, %s' % (v(vTch + 2), v(vt), v(vt + 1)))
TB('s_lshl2_add_u32 s%d, s%d, s%d' % (sT[0], sL, sW))
TB('s_mul_i32 s%d, s%d, %d' % (sT[0], sT[0], 15 * 128))
TB('v_min_u32 %s, 14, %s' % (v(vt), v(vLane)))
TB('v_lshl_add_u32 %s, %s, 7, s%d' % (v(vTch + 3), v(vt), sT[0]))


def trig(asm, dst, inv):
    t = V.get(6)
    asm('v_and_b32 %s, 4, %s' % (v(t), v(vLane)))
    asm('v_bfe_u32 %s, %s, 3, 1' % (v(t + 1), v(vLane)))
    asm('v_lshl_add_u32 %s, %s, 1, %s' % (v(t), v(t + 1), v(t)))
    asm('v_bfe_u32 %s, %s, 1, 1' % (v(t + 1), v(vLane)))
    asm('v_add_u32 %s, %s, %s' % (v(t), v(t), v(t + 1)))
    asm('v_and_b32 %s, 1, %s' % (v(t + 1), v(vLane)))
    asm('v_lshlrev_b32 %s, 9, %s' % (v(t + 1), v(t + 1)))
    if not inv:
        asm('v_lshl_add_u32 %s, %s, 10, s%d' % (v(t + 2), v(vH), sL))
        asm('v_mad_u32_u24 %s, %s, %s, %s' % (v(t + 2), v(t), v(t + 2), v(t + 1)))
        asm('v_lshlrev_b32 %s, 8, %s' % (v(t + 3), v(t)))
    else:
        asm('v_lshl_add_u32 %s, %s, 8, s%d' % (v(t + 3), v(t), sL))
        asm('v_lshlrev_b32 %s, 2, %s' % (v(t + 2), v(vH)))
        asm('v_mul_u32_u24 %s, %s, %s' % (v(t + 2), v(t + 2), v(t + 3)))
        asm('v_sub_u32 %s, %s, %s' % (v(t + 2), v(t + 2), v(t + 1)))
    sc = '0x5f800000' if inv else '0x1f800000'
    for q in range(4):
        asm('v_and_b32 %s, 2047, %s' % (v(t + 4), v(t + 2)))
        asm('v_cvt_f32_u32 %s, %s' % (v(t + 4), v(t + 4)))
        asm('v_mul_f32 %s, 0x3a000000, %s' % (v(t + 4), v(t + 4)))
        asm('v_sin_f32 %s, %s' % (v(t + 5), v(t + 4)))
        asm('v_cos_f32 %s, %s' % (v(t + 4), v(t + 4)))
        asm('v_add_u32 %s, %s, %s' % (v(t + 2), v(t + 2), v(t + 3)))
        asm('v_mul_f32 %s, %s, %s' % (v(t + 5), sc, v(t + 5)))
        asm('v_mul_f32 %s, %s, %s' % (v(t + 4), sc, v(t + 4)))
        asm('v_cvt_pk_bf16_f32 %s, %s, %s%s' % (v(dst + q), v(t + 4), '-' if inv else '', v(t + 5)))
    V.put(t, 6)


def j_tw(asm):
    asm('buffer_load_dword %s, %s, %s, 0 offen' % (v(vJunk + 1), v(vTch), srd(sWF_)), tag='junk')


def j_tw1(asm):
    if not OPT.get('now1'):
        asm('buffer_load_dword %s, %s, %s, 0 offen' % (v(vJunk + 2), v(vTch + 1), srd(sW1)), tag='junk')


def j_tm(asm):
    asm('buffer_load_dword %s, %s, %s, 0 offen' % (v(vTch + 2), v(vTch + 2), srd(sWM)), tag='junk')


def j_tw2(asm):
    asm('buffer_load_dword %s, %s, %s, 0 offen' % (v(vTch + 3), v(vTch + 3), srd(sW2)), tag='junk')


def j_to(asm):
    g = Asm()
    g('s_mul_i32 s%d, s%d, 10240' % (sBG[0], sG))
    g('s_mul_i32 s%d, s%d, %d' % (sBG[1], sW, 2 * 327680))
    g('s_add_u32 s%d, s%d, s%d' % (sBG[0], sBG[0], sBG[1]))
    g('v_and_b32 %s, 1, %s' % (v(vTch + 4), v(vLane)))
    g('v_mul_u32_u24 %s, 327680, %s' % (v(vTch + 4), v(vTch + 4)))
    g('v_bfe_u32 %s, %s, 1, 2' % (v(tmp), v(vLane)))
    g('v_mul_u32_u24 %s, 3392, %s' % (v(tmp), v(tmp)))
    g('v_add3_u32 %s, %s, %s, s%d' % (v(vTch + 4), v(vTch + 4), v(tmp), sBG[0]))
    g('buffer_load_dword %s, %s, %s, 0 offen' % (v(vTch + 4), v(vTch + 4), srd(sOUT)), tag='junk')
    grp(asm, g)


def j_to2(asm):
    g = Asm()
    g('v_and_b32 %s, 3, %s' % (v(vTch + 4), v(vLane)))
    g('v_mul_u32_u24 %s, 873728, %s' % (v(vTch + 4), v(vTch + 4)))
    g('buffer_load_dword %s, %s, %s, 0 offen' % (v(vTch + 4), v(vTch + 4), srd(sOUT)), tag='junk')
    grp(asm, g)


def early(asm, nm):
    for x in CFG[nm].split(','):
        if x:
            globals()['j_' + x](asm)


TBE = any(x in CFG['PRE'] + CFG['SIL'] for x in ('tm', 'tw2'))
if TBE:
    B.add(TB)
early(B, 'PRE')
vA8, vA8i = V.get(4), V.get(4)
if OPT.get('trig0', 0):
    trig(B, vA8, False)
B('s_mul_i32 s%d, s%d, 0x9e3779b1' % (sT[0], sNONCE))
B('s_add_u32 s%d, s%d, 0x7f4a7c15' % (sT[0], sT[0]))
B('s_lshr_b32 s%d, s%d, 15' % (sT[1], sT[0]))
B('s_xor_b32 s%d, s%d, s%d' % (sT[0], sT[0], sT[1]))
B('s_mul_i32 s%d, s%d, 0x85ebca6b' % (sT[0], sT[0]))
B('s_lshr_b32 s%d, s%d, 13' % (sT[1], sT[0]))
B('s_xor_b32 s%d, s%d, s%d' % (sT[0], sT[0], sT[1]))
B('s_mov_b32 s%d, 0x55555555' % sT[5])
B('s_or_b32 s%d, s%d, 16' % (sT[0], sT[0]))
B('s_lshr_b32 s%d, s%d, 1' % (sT[1], sNONCE))
B('s_and_b32 s%d, s%d, s%d' % (sT[1], sT[1], sT[5]))
B('s_orn2_b32 s%d, s%d, s%d' % (sT[2], sNONCE, sT[1]))
B('s_and_b32 s%d, s%d, s%d' % (sT[2], sT[2], sT[5]))
B('s_and_b32 s%d, s%d, s%d' % (sT[3], sT[0], sT[1]))
B('s_xor_b32 s%d, s%d, s%d' % (sT[3], sT[3], sT[2]))
B('s_andn2_b32 s%d, s%d, s%d' % (sT[4], sT[2], sT[0]))
B('s_xor_b32 s%d, s%d, s%d' % (sT[4], sT[4], sT[1]))
B('s_lshl1_add_u32 s%d, s%d, s%d' % (sNONCE, sT[3], sT[4]))
B('s_lshl1_add_u32 s%d, s%d, s%d' % (sT[1], sT[1], sT[2]))
B('s_and_b32 s%d, s%d, 3' % (sT[1], sT[1]))
B('s_lshr_b32 s%d, s%d, 2' % (sT[2], sNONCE))
B('s_xor_b32 s%d, s%d, s%d' % (sT[2], sT[2], sNONCE))
B('s_lshl_b32 s%d, s%d, 2' % (sT[2], sT[2]))
B('s_cselect_b32 s%d, 0, s%d' % (sT[1], sT[1]))
B('s_xor_b32 s%d, s%d, s%d' % (sNONCE, sNONCE, sT[1]))
B('s_lshr_b32 s%d, s%d, 1' % (sT[1], sNONCE))
B('s_xor_b32 s%d, s%d, s%d' % (sT[2], sT[1], sNONCE))
B('s_and_b32 s%d, s%d, s%d' % (sT[1], sT[1], sT[5]))
B('s_and_b32 s%d, s%d, s%d' % (sT[2], sT[2], sT[5]))
B('s_lshl1_add_u32 s%d, s%d, s%d' % (sTAGZ, sT[2], sT[1]))
B('s_mov_b32 s%d, 0x40004000' % sTM)
A.add(B)
stamp('pre_wm', lvl=3)


def silu(asm, x, t, n):
    for i in range(n):
        asm('v_mul_f32 %s, 0xbfb8aa3b, %s' % (v(t + i), v(x + i)))
    for i in range(n):
        asm('v_exp_f32 %s, %s' % (v(t + i), v(t + i)))
    for i in range(n):
        asm('v_add_f32 %s, 1.0, %s' % (v(t + i), v(t + i)))
    for i in range(n):
        asm('v_rcp_f32 %s, %s' % (v(t + i), v(t + i)))
    for i in range(n):
        asm('v_mul_f32 %s, %s, %s' % (v(x + i), v(x + i), v(t + i)))


def w2_reformat(LW, tag, mid=None):
    ad, f = V.get(2, 'mh', 1), V.get(24)
    sD = [6, 7]
    A('s_mul_i32 s%d, s%d, 205' % (sT[1], sNU))
    A('s_lshr_b32 s%d, s%d, 10' % (sT[1], sT[1]))
    A('s_mul_i32 s%d, s%d, 5' % (sT[2], sT[1]))
    A('s_sub_u32 s%d, s%d, s%d' % (sT[0], sNU, sT[2]))
    A('s_lshl2_add_u32 s%d, s%d, s%d' % (sT[0], sT[0], sW))
    A('s_lshr_b32 s%d, s%d, 1' % (sT[2], sT[0]))
    A('s_mul_i32 s%d, s%d, 238' % (sT[2], sT[2]))
    A('s_and_b32 s%d, s%d, 1' % (sT[3], sT[0]))
    A('s_add_u32 s%d, s%d, s%d' % (sT[2], sT[2], sT[3]))
    A('s_add_u32 s%d, s%d, s%d' % (sT[2], sT[2], sT[0]))
    A('s_mul_i32 s%d, s%d, 480' % (sT[3], sT[0]))
    A('s_sub_u32 s%d, s%d, %d' % (sT[3], sT[3], 480 * 16 - 4))
    A('s_cmp_lt_u32 s%d, 16' % sT[0])
    A('s_cselect_b32 s%d, s%d, s%d' % (sT[2], sT[2], sT[3]))
    A('s_cselect_b32 s%d, 1, 240' % sT[3])
    A('s_mul_i32 s%d, s%d, 15' % (sT[4], sT[1]))
    A('s_add_u32 s%d, s%d, s%d' % (sT[2], sT[2], sT[4]))
    A('s_add_u32 s%d, s%d, s%d' % (sT[3], sT[3], sT[2]))
    for k in range(2):
        A('s_lshl_b32 s%d, s%d, 10' % (sD[k], sT[2 + k]))
    A('s_lshr_b32 s%d, s%d, 1' % (sT[2], sT[1]))
    A('s_mul_i32 s%d, s%d, %d' % (sT[2], sT[2], 192 * 1280))
    A('s_lshl_b32 s%d, s%d, 6' % (sT[0], sT[0]))
    A('s_add_u32 s%d, s%d, s%d' % (sT[0], sT[0], sT[2]))
    A('s_and_b32 s%d, s%d, 1' % (sT[1], sT[1]))
    A('v_mul_u32_u24 %s, 1280, %s' % (v(ad), v(vQ)))
    A('v_lshl_add_u32 %s, %s, 4, %s' % (v(ad), v(vC8), v(ad)))
    A('v_add_u32 %s, s%d, %s' % (v(ad), sT[0], v(ad)))
    A('s_mul_i32 s%d, s%d, %d' % (sT[2], sT[1], 40 * 1280))
    A('v_mul_u32_u24 %s, s%d, %s' % (v(ad + 1), sT[2], v(vH)))
    A('v_add_u32 %s, %s, %s' % (v(ad + 1), v(ad + 1), v(ad)))
    A('s_lshl1_add_u32 s%d, s%d, %d' % (sT[0], sRING, LW))
    for e in range(3):
        for rd in range(2):
            r0 = 48 * e + 16 * rd
            r1 = 144 + 16 * rd if e == 0 else 96 * (e - 1) + 32 + 8 * rd
            A('s_mul_i32 s%d, s%d, %d' % (sT[2], sT[1], (r1 - r0) * 1280))
            A('s_add_u32 s%d, s%d, %d' % (sT[2], sT[2], r0 * 1280))
            A('s_add_u32 m0, s%d, %d' % (sT[0], 2048 * e + 1024 * rd))
            A('buffer_load_dwordx4 %s, %s, s%d offen lds' % (v(ad + (e > 0)), srd(sW2), sT[2]), tag='w2raw')
    A('v_add_u32 %s, s%d, %s' % (v(ad), sT[0], v(vT64)))
    if mid:
        mid()
    A.wait_tag('w2raw')
    for e in range(3):
        for tt_ in range(2):
            for rd in range(2):
                A('ds_read_b64_tr_b16 %s, %s offset:%d' % (v(f + 8 * e + 4 * tt_ + 2 * rd, 2), v(ad), 2048 * e + 1024 * rd + 32 * tt_))
    for e in range(3):
        for tt_ in range(2):
            A('s_add_u32 s%d, s%d, %d' % (sT[2], sD[tt_], WS_W2F + 5120 * e))
            A('buffer_store_dwordx4 %s, %s, %s, s%d offen sc1' % (v(f + 8 * e + 4 * tt_, 4), v(vL16), srd(sWS), sT[2]), tag=tag)
    A('s_nop 1')
    V.put(ad, 2)
    V.put(f, 24)


lfar, lback = out_of_line('s_cmp_ge_u32 s%d, 20' % sIDX)
A.opt_begin()
t = V.get(8)
A('s_lshl_b32 s%d, s%d, 8' % (sT[0], sW))
A('v_add_u32 %s, s%d, %s' % (v(t + 4), sT[0], v(vL4)))
A('s_add_u32 s%d, s%d, %d' % (sT[0], sT[0], L_SILU))
A('v_lshl_add_u32 %s, %s, 3, s%d' % (v(t + 5), v(vG), sT[0]))
A('s_lshl_b32 s%d, s%d, 10' % (sT[0], sW))
A('v_add_u32 %s, s%d, %s' % (v(t + 6), sT[0], v(vL8)))
A('s_lshl_b32 s%d, s%d, 6' % (sT[0], sW))
A('v_lshl_add_u32 %s, %s, 4, s%d' % (v(t + 7), v(vG), sT[0]))
A('v_lshlrev_b32 %s, 16, %s' % (v(t), v(vC)))
A('v_and_b32 %s, s%d, %s' % (v(t + 1), sMASK, v(vC)))
silu(A, t, t + 2, 2)
A('v_cvt_pk_bf16_f32 %s, %s, %s' % (v(t), v(t), v(t + 1)))
A('ds_write_b32 %s, %s offset:%d' % (v(t + 4), v(t), L_SILU))
vSB, f, d, p = V.get(12), V.get(12), V.get(4), V.get(8)
for i in range(3):
    A('ds_read2_b64 %s, %s offset0:%d offset1:%d' % (v(vSB + 4 * i, 4), v(t + 5), 8 * i, 8 * i + 4))
A('s_lshl_b32 s%d, s%d, 7' % (sT[0], sTAU))
A('s_add_u32 s%d, s%d, %d' % (sT[0], sT[0], WS_MODX))
A('v_mov_b32 %s, s%d' % (v(t + 1), sNONCE))
A('v_mov_b32 %s, s%d' % (v(t + 3), sNONCE))
if XPOS == 1:
    A.add(XL)
early(A, 'SIL')
stamp('silu', lvl=2)
A.wait_tag('wm')
stamp('wm_land', lvl=2)
for i in range(3):
    for rd in range(2):
        A('ds_read_b64_tr_b16 %s, %s offset:%d' % (v(f + 4 * i + 2 * rd, 2), v(t + 6), L_EX + 4096 * i + 512 * rd))
A('%s %s, %s, %s, 0' % (MF16, v(d, 4), v(f, 4), v(vSB, 4)))
A('%s %s, %s, %s, %s' % (MF16, v(d, 4), v(f + 4, 4), v(vSB + 4, 4), v(d, 4)))
lb2 = opt('s_cmp_ge_u32 s%d, 2' % sW)
A('%s %s, %s, %s, %s' % (MF16, v(d, 4), v(f + 8, 4), v(vSB + 8, 4), v(d, 4)))
opt_end(lb2)
A('ds_write_b128 %s, %s offset:%d' % (v(t + 7), v(d, 4), L_RED))
barrier()
lb = opt('s_cmp_lg_u32 s%d, 3' % sW)
for i in range(4):
    A('ds_read_b64 %s, %s offset:%d' % (v(p + 2 * i, 2), v(vL8), L_RED + 64 * i))
A('s_mov_b64 exec, 0xff')
A('v_pk_add_f32 %s, %s, %s' % (v(p, 2), v(p, 2), v(p + 2, 2)))
A('v_pk_add_f32 %s, %s, %s' % (v(p + 4, 2), v(p + 4, 2), v(p + 6, 2)))
A('v_add_f32 %s, %s, %s' % (v(t + 2), v(p + 1), v(p + 5)))
A('v_add_f32 %s, %s, %s' % (v(t), v(p), v(p + 4)))
A('buffer_store_dwordx4 %s, %s, %s, s%d offen sc1' % (v(t, 4), v(vL16), srd(sWS), sT[0]), tag='pub')
A('s_mov_b64 exec, -1')
A('s_nop 1')
opt_end(lb)
for x, n in ((t, 8), (vSB, 12), (f, 12), (d, 4), (p, 8), (vC, 1)):
    V.put(x, n)
A.opt_end()
A.far_begin(lfar)
if XPOS == 1:
    A.add(XL2)
A('s_mul_i32 s%d, s%d, 10' % (sT[0], sXCD))
A('s_max_u32 s%d, s%d, 22' % (sT[1], sIDX))
A('s_add_u32 s%d, s%d, s%d' % (sT[0], sT[0], sT[1]))
A('s_sub_u32 s%d, s%d, 22' % (sNU, sT[0]))
if OPT.get('w2at', 1) == 0:
    assert 0
early(A, 'SIL')
FAR0 = len(A.l)
A.far_end(lback)
stamp('pub0', lvl=3)

vW1 = V.get(6, 'l', 1)
vW1r = V.get(1, 'l')
vWD = V.get(1)
vb2, vb1 = V.get(4, 'l'), V.get(6, 'l')
W1S = dict(iss=0, drn=0, lim=20)


def w1_addr(asm, late):
    asm('s_mul_i32 s%d, s%d, 384' % (sT[0], sJ1))
    asm('s_mul_i32 s%d, s%d, 96' % (sT[1], sW))
    asm('s_add_u32 s%d, s%d, s%d' % (sT[0], sT[0], sT[1]))
    for i in range(3):
        asm('v_add_u32 %s, %d, %s' % (v(vt), 64 * i, v(vLane)))
        asm('v_mul_u32_u24 %s, 10923, %s' % (v(vt), v(vt)))
        asm('v_lshrrev_b32 %s, 16, %s' % (v(vt + 1), v(vt)))
        if not late:
            asm('v_lshrrev_b32 %s, 4, %s' % (v(vt + 2), v(vt + 1)))
            asm('v_bfe_u32 %s, %s, 1, 1' % (v(vt + 3), v(vt + 1)))
            asm('v_lshl_add_u32 %s, %s, 1, %s' % (v(vt + 2), v(vt + 2), v(vt + 3)))
            asm('v_bfe_u32 %s, %s, 2, 2' % (v(vt + 3), v(vt + 1)))
            asm('v_lshl_add_u32 %s, %s, 6, %s' % (v(vt + 2), v(vt + 2), v(vt + 3)))
            asm('v_and_b32 %s, 1, %s' % (v(vt + 3), v(vt + 1)))
            asm('v_lshl_add_u32 %s, %s, 1, %s' % (v(vt + 2), v(vt + 2), v(vt + 3)))
        else:
            asm('v_bfe_u32 %s, %s, 2, 2' % (v(vt + 2), v(vt + 1)))
            asm('v_lshrrev_b32 %s, 4, %s' % (v(vt + 3), v(vt + 1)))
            asm('v_lshl_add_u32 %s, %s, 1, %s' % (v(vt + 2), v(vt + 2), v(vt + 3)))
            asm('v_and_b32 %s, 3, %s' % (v(vt + 3), v(vt + 1)))
            asm('v_lshl_add_u32 %s, %s, 2, %s' % (v(vt + 2), v(vt + 2), v(vt + 3)))
        asm('v_lshlrev_b32 %s, 5, %s' % (v(vt + 2), v(vt + 2)))
        asm('v_sub_u32 %s, %s, %s' % (v(vt + 2), v(vt + 2), v(vt + 1)))
        asm('v_mul_u32_u24 %s, 96, %s' % (v(vt + 2), v(vt + 2)))
        asm('v_add3_u32 %s, %s, %s, s%d' % (v(vW1 + 3 * late + i), v(vt + 2), v(vL16), sT[0]))
    W1S['late'] = late


def slot(q):
    return (q + 4) % 8


def j_w1(asm, n):
    for q in range(W1S['iss'], min(20, W1S['iss'] + n)):
        W1S['iss'] = q + 1
        prev = q - 8
        assert prev < W1S['drn'] and q < W1S['lim'] and (W1S['late'] or q < 16), (q, W1S)
        if OPT.get('now1'):
            continue
        row = 8 * q if q < 16 else 512 + 32 * (q - 16)
        for i in range(3):
            g = Asm()
            if i == 0:
                g('s_add_u32 m0, s%d, %d' % (sRING, L_RING + 12288 * slot(q)))
                g('s_mov_b32 s%d, %d' % (sBG[0], row * 3072))
            g('buffer_load_dwordx4 %s, %s, s%d offen offset:%d lds' % (v(vW1 + 3 * (q >= 16) + i), srd(sW1), sBG[0], 1024 * i), tag='w1_%d' % q)
            grp(asm, g)


def w1_drain(asm, q1):
    q0 = W1S['drn']
    if q1 <= q0:
        return
    W1S['drn'] = q1
    asm.wait_tag(['w1_%d' % q for q in range(q0, q1)])
    hi = None
    for q in range(q0, q1):
        s = slot(q)
        if hi != s // 4:
            hi = s // 4
            asm('v_add_u32 %s, %d, %s' % (v(tmp), L_RING + 49152 * hi, v(vW1r)))
        for c in range(3):
            for rd in range(2):
                asm('ds_read_b64_tr_b16 %s, %s offset:%d' % (a((3 * q + c) * 4 + 2 * rd, 2), v(tmp), 12288 * (s % 4) + 1536 * rd + 32 * c))
    asm.wait_lds()


def j_const(asm):
    for hlf in range(2):
        g = Asm()
        if hlf == 1:
            g('v_add_co_u32 %s, vcc, 4096, %s' % (v(vPC), v(vPC)))
        g('s_lshl_b32 s%d, s%d, 13' % (sBG[0], sW))
        g('s_add_u32 m0, s%d, %d' % (sBG[0], L_CONST + 4096 * hlf))
        if hlf == 1:
            g('v_addc_co_u32 %s, vcc, 0, %s, vcc' % (v(vPC + 1), v(vPC + 1)))
        for i in range(4):
            g('global_load_lds_dwordx4 %s, off offset:%d' % (v(vPC, 2), 1024 * i), tag='const')
            grp(asm, g)
            g = Asm()


def j_warmp(asm):
    g = Asm()
    g('s_mul_i32 s%d, s%d, 2816' % (sBG[1], sW))
    g('s_add_u32 s%d, s%d, s%d' % (sBG[1], sBG[1], sPB))
    for i in range(3):
        if i == 2:
            g('s_mov_b32 exec_hi, 0xffff')
        g('buffer_store_dwordx4 %s, %s, %s, s%d offen offset:%d sc1' % (v(vFILL, 4), v(vL16), srd(sWS), sBG[1], 1024 * i), tag='warmp')
        if i == 2:
            g('s_mov_b64 exec, -1')
        grp(asm, g)
        g = Asm()


HC = [0]


def j_hclr(asm, n):
    for i in range(HC[0], HC[0] + n):
        g = Asm()
        if i % 3 == 0 or i == HC[0]:
            g('s_lshl2_add_u32 s%d, s%d, s%d' % (sBG[1], sL, sW))
            g('s_mul_i32 s%d, s%d, 6144' % (sBG[1], sBG[1]))
            g('s_add_u32 s%d, s%d, %d' % (sBG[1], sBG[1], WS_H + 3072 * (i // 3)))
        g('buffer_store_dwordx4 %s, %s, %s, s%d offen offset:%d sc1' % (v(vFILL, 4), v(vL16), srd(sWS), sBG[1], 1024 * (i % 3)), tag='clrh')
        grp(asm, g)
    HC[0] += n


WFC = [0]


def j_wf(asm, n):
    for i in range(WFC[0], WFC[0] + n):
        g = Asm()
        g('s_lshl_b32 s%d, s%d, 12' % (sBG[1], sW))
        g('s_add_u32 m0, s%d, %d' % (sBG[1], L_GW + 1024 * i))
        g('s_mov_b32 s%d, %d' % (sBG[1], 32 * 5136 * i))
        g('buffer_load_dwordx4 %s, %s, s%d offen lds' % (v(vWD), srd(sWF_), sBG[1]), tag='wf')
        grp(asm, g)
    WFC[0] += n


def j_bias(asm):
    g = Asm()
    g('s_lshl_b32 s%d, s%d, 7' % (sBG[1], sJ))
    g('v_lshlrev_b32 %s, 3, %s' % (v(vb2), v(vN)))
    g('buffer_load_dwordx2 %s, %s, %s, s%d offen' % (v(vb2, 2), v(vb2), srd(sB2), sBG[1]))
    grp(asm, g)
    g = Asm()
    g('s_lshl_b32 s%d, s%d, 5' % (sBG[1], sJ))
    g('v_lshlrev_b32 %s, 3, %s' % (v(vb2 + 2), v(vC8)))
    g('buffer_load_dwordx2 %s, %s, %s, s%d offen offset:1024' % (v(vb2 + 2, 2), v(vb2 + 2), srd(sB2), sBG[1]))
    grp(asm, g)
    g = Asm()
    g('s_lshl2_add_u32 s%d, s%d, s%d' % (sBG[1], sJ1, sW))
    g('s_mul_i32 s%d, s%d, 96' % (sBG[1], sBG[1]))
    g('v_lshlrev_b32 %s, 3, %s' % (v(vb1 + 4), v(vG)))
    for c in range(3):
        g('buffer_load_dwordx2 %s, %s, %s, s%d offen offset:%d' % (v(vb1 + 2 * c, 2), v(vb1 + 4), srd(sB1), sBG[1], 32 * c))
        grp(asm, g)
        g = Asm()


W2C = [0]


def j_w2(asm, n):
    w2_loads(asm, W2C[0], W2C[0] + n)
    W2C[0] += n


WEIGHT = dict(wf=5, hclr=3, warmp=3, tw=2, tw1=2, tm=2, tw2=2)


def jobs(slot_name, weights=False):
    out = []
    for js in [x for x in CFG.get(slot_name, '').split(',') if x]:
        nm, _, n = js.partition(':')
        x = Asm()
        globals()['j_' + nm](x, *([int(n)] if n else []))
        out += [(y, WEIGHT.get(nm, 1)) if weights else y for y in x.l]
    return out


if not TBE:
    A.add(TB)
B = Asm()
if not OPT.get('trig0', 0):
    trig(B, vA8, False)
w1_addr(B, False)
B('v_mul_u32_u24 %s, 96, %s' % (v(vW1r), v(vQ)))
B('v_lshl_add_u32 %s, %s, 3, %s' % (v(vW1r), v(vC8), v(vW1r)))
B('v_add_u32 %s, s%d, %s' % (v(vW1r), sRING, v(vW1r)))
A.l += interleave(B, jobs('PUB'))
B = Asm()
vXF = [V.get(10, 'l'), V.get(10, 'l')]
for r in range(2):
    for j in range(5):
        lo, hi = (j, 4 + j) if j < 4 else (8, 9)
        B('v_lshlrev_b32 %s, 16, %s' % (v(vXF[r] + lo), v(vXR + 5 * r + j)))
        B('v_and_b32 %s, s%d, %s' % (v(vXF[r] + hi), sMASK, v(vXR + 5 * r + j)))
V.put(vXR, 10)
ln_stats(B, vXF)
vNn = [V.get(10), V.get(10)]
ln_apply(B, vNn, vXF)
A.l += interleave(B, jobs('PUB2'))
V.put(vPC, 2)
warm(A, ['pg1', 's0r0', 'pg2', 's0r2'])
stamp('ln1', lvl=2)
ACK = OPT.get('ack', 1)
if ACK & 1:
    A.wait_tag(['pub', 'const'])
if OPT.setdefault('wj', 1):
    lb = opt('s_cmp_lt_u32 s%d, 20' % sIDX)
    A('s_waitcnt vmcnt(0)')
    if OPT['wj'] > 1:
        A('s_sleep %d' % OPT['wj'])
    opt_end(lb)
if ACK & 1:
    barrier()
stamp('b0b', lvl=3)


def mod_gather_loads(asm, d, i0, i1):
    for i in range(i0, i1):
        if i < 2:
            asm('s_mov_b32 s%d, %d' % (sT[5], WS_MODX + 10240 * i))
        for kh in range(2):
            asm('buffer_load_dwordx4 %s, %s, %s, s%d offen offset:%d sc1' % (v(d + 8 * i + 4 * kh, 4), v(vMG), srd(sWS), sT[5] if i < 2 else sADD + 1, 128 * kh))


vMD = V.get(24)
mod_gather_loads(A, vMD, 0, 2)
lb = opt('s_cmp_ge_u32 s%d, 2' % sW)
mod_gather_loads(A, vMD, 2, 3)
opt_end(lb)
K, KA = {}, {}
B = Asm()
if not ACK & 1:
    B.wait_tag('const')
    B('s_barrier')
na, nb = 0, 0
ca_ = V.get(1)
B('v_add_u32 %s, %d, %s' % (v(ca_), L_CONST, v(vL16)))
for i, n in enumerate(TN):
    if n.startswith('TW'):
        K[n] = V.get(4, 'l' if n.startswith('TW3') else 'mh')
        B('ds_read_b128 %s, %s offset:%d' % (v(K[n], 4), v(ca_), 1024 * i))
    else:
        if i < 10:
            KA[n] = a(96 + 4 * na, 4)
            na += 1
        else:
            KA[n] = a(192 + 4 * nb, 4)
            nb += 1
        B('ds_read_b128 %s, %s offset:%d' % (KA[n], v(ca_), 1024 * i))
assert 192 + 4 * nb <= 256
BC, B = B, Asm()
vAF = V.get(16)
for i in range(4):
    B('v_mov_b32 %s, 0' % v(vAF + 4 * i + 3))
vEXlo, vEXhi = [V.get(1), V.get(1)], [V.get(1), V.get(1)]
vEXa, vEXb = V.get(1), V.get(1)
B('v_mul_u32_u24 %s, 84, %s' % (v(vEXa), v(vC8)))
B('v_lshrrev_b32 %s, 2, %s' % (v(vt), v(vN)))
B('v_add_u32 %s, %s, %s' % (v(vEXa), v(vEXa), v(vt)))
B('v_sub_u32 %s, 0, %s' % (v(vt), v(vN)))
B('v_and_b32 %s, 3, %s' % (v(vt + 1), v(vt)))
B('v_ashrrev_i32 %s, 2, %s' % (v(vt), v(vt)))
B('v_mul_u32_u24 %s, 84, %s' % (v(vEXb), v(vt + 1)))
B('v_add_u32 %s, %s, %s' % (v(vEXb), v(vEXb), v(vt)))


def ex_addr(asm, lo, hi, gs, hb):
    asm('v_mul_u32_u24 %s, %d, %s' % (v(vt), gs, v(vG)))
    asm('s_add_u32 s%d, s%d, %d' % (sT[0], sRING, L_EX))
    asm('v_add_u32 %s, %s, %s' % (v(vt + 1), v(vEXa), v(vt)))
    asm('v_lshl_add_u32 %s, %s, 2, s%d' % (v(lo[0]), v(vt + 1), sT[0]))
    asm('v_add_u32 %s, 1536, %s' % (v(lo[1]), v(lo[0])))
    asm('s_add_u32 s%d, s%d, %d' % (sT[0], sT[0], 4 * hb))
    asm('v_sub_u32 %s, %s, %s' % (v(vt + 1), v(vEXb), v(vt)))
    asm('v_lshl_add_u32 %s, %s, 2, s%d' % (v(hi[0]), v(vt + 1), sT[0]))
    asm('v_add_u32 %s, 1536, %s' % (v(hi[1]), v(hi[0])))


ex_addr(B, vEXlo, vEXhi, 10, 35)
vEX8 = V.get(4, 'mh', 1)
B('v_mul_u32_u24 %s, 6144, %s' % (v(vt), v(vH)))
B('v_cmp_gt_u32 vcc, 84, %s' % v(vKW))
B('v_lshl_add_u32 %s, %s, 2, %s' % (v(vt), v(vKW), v(vt)))
B('v_mov_b32 %s, 336' % v(vt + 1))
B('v_add_u32 %s, 1008, %s' % (v(vEX8 + 3), v(vt)))
B('v_cndmask_b32 %s, 0, %s, vcc' % (v(vt + 1), v(vt + 1)))
for c in (2, 1, 0):
    B('v_sub_u32 %s, %s, %s' % (v(vEX8 + c), v(vEX8 + c + 1), v(vt + 1)))
EXO = L_EX // 256
vP = V.get(1)
B('v_mul_u32_u24 %s, 5632, %s' % (v(vP), v(vH)))
B('v_cmp_gt_u32 vcc, 88, %s' % v(vKW))
B('v_lshl_add_u32 %s, %s, 4, %s' % (v(vP), v(vKW), v(vP)))
B('v_lshlrev_b32 %s, 3, %s' % (v(vt), v(vC8)))
B('v_cndmask_b32 %s, %s, %s, vcc' % (v(vP), v(vOOB), v(vP)))
vTG = V.get(4, 'mh', 1)


def tag_masks(asm, dst, sreg):
    asm('v_lshrrev_b32_e64 %s, %s, s%d' % (v(vt), v(vt), sreg))
    asm('v_and_b32 %s, 0xff, %s' % (v(vt), v(vt)))
    asm('v_lshl_or_b32 %s, %s, 15, %s' % (v(vt), v(vt), v(vt)))
    for d in range(4):
        asm('v_lshlrev_b32 %s, %d, %s' % (v(dst + d), 14 - 2 * d, v(vt)))
        asm('v_and_b32 %s, s%d, %s' % (v(dst + d), sTM, v(dst + d)))


tag_masks(B, vTG, sNONCE)
g = Asm()
g('s_mul_i32 s%d, s%d, 642' % (sT[0], sXCD))
g('s_lshl_b32 s%d, s%d, 5' % (sT[1], sIDX))
g('s_min_u32 s%d, s%d, 610' % (sT[1], sT[1]))
g('s_add_u32 s%d, s%d, s%d' % (sT[0], sT[0], sT[1]))
g('s_and_b32 s%d, s%d, 1' % (sT[1], sW))
g('s_mul_i32 s%d, s%d, %d' % (sT[1], sT[1], 128 * 5136))
g('s_add_u32 s%d, s%d, s%d' % (sT[0], sT[0], sT[1]))
g('s_cmp_lt_u32 s%d, 21' % sIDX)
g('s_cselect_b32 s%d, s%d, %d' % (sT[0], sT[0], 0x40000000))
grp(B, g)
B('v_lshrrev_b32 %s, 1, %s' % (v(vWD), v(vLane)))
B('v_mul_u32_u24 %s, 5136, %s' % (v(vWD), v(vWD)))
B('v_and_b32 %s, 1, %s' % (v(vt), v(vLane)))
B('v_lshl_add_u32 %s, %s, 4, s%d' % (v(vt), v(vt), sT[0]))
B('v_add_u32 %s, %s, %s' % (v(vWD), v(vWD), v(vt)))
A.l += interleave(BC.l + B.l if ACK & 1 else B.l + BC.l, jobs('G0'))
stamp('s0_wait', lvl=3)
V.put(ca_)


def mod_finish(i0, i1):
    verify(A, lambda c: mod_gather_loads(c, vMD, i0, i1), lambda c: check_tags(c, [vMD + 4 * k + 3 for k in range(2 * i0, 2 * i1)], tmp), name='s0r%d' % i0)
    for i in range(i0, i1):
        b = vMD + 8 * i
        A('v_add_f32 %s, %s, %s' % (v(b), v(b), v(b + 4)))
        A('v_add_f32 %s, %s, %s' % (v(b + 2), v(b + 2), v(b + 6)))
    for i in range(i0, i1):
        b = vMD + 8 * i
        A('v_cvt_pk_bf16_f32 %s, %s, %s' % (v(b), v(b), v(b + 2)))
    for i in range(i0, i1):
        b = vMD + 8 * i
        A('v_and_b32 %s, s%d, %s' % (v(b + 1), sMASK, v(b)))
        A('v_lshlrev_b32 %s, 16, %s' % (v(b), v(b)))
        if i:
            ad_ = '1.0' if i == 1 else 's%d' % sADD
            A('v_add_f32 %s, %s, %s' % (v(b + 1), ad_, v(b + 1)))
            A('v_add_f32 %s, %s, %s' % (v(b), ad_, v(b)))
        o = L_MOD // 256 + [0, 10, 4][i]
        A('ds_write2st64_b32 %s, %s, %s offset0:%d offset1:%d' % (v(vMA + (i == 2)), v(b), v(b + 1), o, o + 5))


mod_finish(0, 2)
lb = opt('s_cmp_ge_u32 s%d, 2' % sW)
mod_finish(2, 3)
opt_end(lb)
V.put(vMD, 24)
V.put(vMG)
V.put(vMA, 2)
barrier()
W1S['lim'] = 20
stamp('s0_done', lvl=3)
GAP = OPT.get('gap', 72)
P = Asm()
vM0, vM1 = V.get(10), V.get(10)
read_mod(P, vM1, 1, vL16, vL4)
read_mod(P, vM0, 0, vL16, vL4)
for r in range(2):
    for p in range(5):
        P('v_pk_fma_f32 %s, %s, %s, %s' % (v(vNn[r] + 2 * p, 2), v(vNn[r] + 2 * p, 2), v(vM1 + 2 * p, 2), v(vM0 + 2 * p, 2)))
V.put(vM0, 10)
V.put(vM1, 10)
vD = [V.get(16), V.get(16)]
RT = [(r, t_) for r in range(2) for t_ in range(2)]
cv, mf = {}, {}
for r, t_ in RT:
    f, h, d = vAF + 8 * r + 4 * t_, vNn[r], vD[r] + 8 * t_
    cv[r, t_], mf[r, t_] = Asm(), Asm()
    cv[r, t_]('v_cvt_pk_bf16_f32 %s, %s, %s' % (v(f), v(h + 4 * t_), v(h + 4 * t_ + 1)))
    cv[r, t_]('v_cvt_pk_bf16_f32 %s, %s, %s' % (v(f + 1), v(h + 4 * t_ + 2), v(h + 4 * t_ + 3)))
    cv[r, t_]('v_cvt_pk_bf16_f32 %s, %s, %s' % (v(f + 2), v(h + 8 + t_), v(h + 8 + t_)))
    mf[r, t_]('%s %s, %s, %s, 0' % (MF16, v(d, 4), v(f, 4), KA['C1c']))
    mf[r, t_]('%s %s, %s, %s, 0' % (MF16, v(d + 4, 4), v(f, 4), KA['C1s']))
allc = sum((cv[k].l for k in RT), [])
P.l += allc[:5] + under(sum((mf[k].l for k in RT), []), allc[5:])
V.put(vNn[0], 10)
V.put(vNn[1], 10)
tts = [V.get(8) for _ in range(4)]
vBn = [V.get(4), V.get(4)]
for r, t_ in RT:
    d, tt = vD[r] + 8 * t_, tts[2 * r + t_]
    cmul(P, d, d + 4, K['TW1c%d' % t_], K['TW1s%d' % t_], tt, tt + 4, -1)
C, Mx, O = Asm(), Asm(), [Asm(), Asm()]
for r in range(2):
    vB, vE, d = vAF + 8 * r, tts[2 * r], vD[r]
    for t_ in range(2):
        tt = tts[2 * r + t_]
        for i in range(4):
            C('v_cvt_pk_bf16_f32 %s, %s, %s' % (v(vB + 4 * t_ + i), v(tt + i), v(tt + 4 + i)))
    for i in range(4):
        C('v_cvt_pk_bf16_f32 %s, -%s, -%s' % (v(vBn[r] + i), v(tt + i), v(tt + 4 + i)))
    for mt in range(2):
        Mx('%s %s, %s, %s, 0' % (MF16, v(vE + 4 * mt, 4), KA['A2_%d0' % mt], v(vB, 4)))
    for mt in range(2):
        Mx('%s %s, %s, %s, %s' % (MF16, v(d + 4 * mt, 4), KA['A2_%d1' % mt], v(vB + 4, 4), v(vE + 4 * mt, 4)))
    for mt in range(2):
        Mx('%s %s, %s, %s, %s' % (MF16, v(d + 8 + 4 * mt, 4), KA['A2_%d1' % mt], v(vBn[r], 4), v(vE + 4 * mt, 4)))
    o = tts[2 * r + 1]
    for hi in range(2):
        for mt in range(2):
            for e in range(2):
                O[r]('v_cvt_pk_bf16_f32 %s, %s, %s%s' % (v(o + 4 * hi + 2 * mt + e), v(d + 8 * hi + 4 * mt + 2 * e), '-' if hi else '', v(d + 8 * hi + 4 * mt + 2 * e + 1)))
    for mt in range(2):
        O[r]('ds_write2_b32 %s, %s, %s offset0:%d offset1:%d' % (v(vEXlo[r]), v(o + 2 * mt), v(o + 2 * mt + 1), 40 * mt, 40 * mt + 5))
    for mt in range(2):
        O[r]('ds_write2_b32 %s, %s, %s offset0:%d offset1:%d' % (v(vEXhi[r]), v(o + 4 + 2 * mt), v(o + 4 + 2 * mt + 1), 45 - 40 * mt, 40 - 40 * mt))
P.l += C.l[:6] + under(Mx, C.l[6:] + O[0].l) + O[1].l
for x, n in [(x, 8) for x in tts] + [(x, 4) for x in vBn] + [(x, 16) for x in vD] + [(x, 1) for x in vEXlo + vEXhi]:
    V.put(x, n)
for n in TN[:10]:
    if n in K:
        V.put(K[n], 4)
A.l += schedule(P, jobs('P1', True), 30, GAP, 'P1a', True)
A.wait_tag('warmp')
barrier()
stamp('b1', lvl=8)
lb = opt('s_cmp_eq_u32 s%d, 3' % sW)
vD8 = [V.get(16) for _ in range(4)]
vB = V.get(16)
P = Asm()
for c in range(4):
    P('ds_read2st64_b32 %s, %s offset0:%d offset1:%d' % (v(vB + 4 * c, 2), v(vEX8 + c), EXO, EXO + 6))
    P('ds_read2st64_b32 %s, %s offset0:%d offset1:%d' % (v(vB + 4 * c + 2, 2), v(vEX8 + c), EXO + 12, EXO + 18))
P('s_add_u32 s%d, s%d, %d' % (sT[1], sPB, 2816))
for c in range(4):
    P('%s %s, %s, %s, 0' % (MF32, v(vD8[c], 16), v(vA8, 4), v(vB + 4 * c, 4)))
for c in range(4):
    for q in range(4):
        P('v_cvt_pk_bf16_f32 %s, %s, %s' % (v(vAF + 4 * q + c), v(vD8[c] + 2 * q), v(vD8[c] + 2 * q + 1)))
        P('v_bfi_b32 %s, s%d, %s, %s' % (v(vAF + 4 * q + c), sTM, v(vTG + c), v(vAF + 4 * q + c)))
for q in range(4):
    P('buffer_store_dwordx4 %s, %s, %s, s%d offen offset:%d sc1' % (v(vAF + 4 * q, 4), v(vP), srd(sWS), sT[1] if q > 1 else sPB, 1408 * (q & 1)), tag='pst')
A.l += schedule(P, verbose='P1b')
A('s_nop 1')
opt_end(lb)
for x in vD8:
    V.put(x, 16)
V.put(vB, 16)
V.put(vA8, 4)
stamp('p1_done', lvl=9)
V.put(vAF, 16)
warm(A, ['s1r', 'pg3', 's2r', 'm2a+pg4'])
SAVE = (dict(W1S), list(HC), list(WFC))
lfar, lback = out_of_line('s_cmp_ge_u32 s%d, 21' % sIDX)
A.opt_begin()
vPG, vGR, vZB, vWR = V.get(1), V.get(1), V.get(1), V.get(1)
B = Asm()
B('s_mul_i32 s%d, s%d, 1408' % (sT[1], sXCD))
B('s_lshl_b32 s%d, s%d, 6' % (sT[0], sIDX))
B('s_add_u32 s%d, s%d, s%d' % (sPG, sT[0], sT[1]))
B('s_lshl_b32 s%d, s%d, 6' % (sT[0], sW))
B('v_add_u32 %s, s%d, %s' % (v(vPG), sT[0], v(vQ)))
B('v_mul_u32_u24 %s, %d, %s' % (v(vPG), PBLK, v(vPG)))
B('v_lshl_add_u32 %s, %s, 4, %s' % (v(vPG), v(vC8), v(vPG)))
B('v_xor_b32 %s, %s, %s' % (v(vt), v(vC8), v(vG)))
B('s_lshl_b32 s%d, s%d, 12' % (sT[0], sW))
B('v_lshl_add_u32 %s, %s, 4, s%d' % (v(vZB), v(vt), sT[0]))
B('v_lshl_add_u32 %s, %s, 6, %s' % (v(vZB), v(vQ), v(vZB)))
B('v_lshrrev_b32 %s, 2, %s' % (v(vt), v(vN)))
B('v_xor_b32 %s, s%d, %s' % (v(vt), sW, v(vt)))
B('v_lshlrev_b32 %s, 4, %s' % (v(vt), v(vt)))
B('v_lshl_add_u32 %s, %s, 6, %s' % (v(vt), v(vN), v(vt)))
B('v_lshl_add_u32 %s, %s, 12, %s' % (v(vGR), v(vG), v(vt)))
g = Asm()
g('s_lshl_b32 s%d, s%d, 3' % (sT[1], sW))
g('s_cmp_eq_u32 s%d, 20' % sIDX)
g('s_cselect_b32 s%d, 30, s%d' % (sT[0], sT[1]))
grp(B, g)
B('v_lshl_add_u32 %s, %s, 6, %s' % (v(vWR), v(vG), v(vN)))
B('v_lshl_add_u32 %s, %s, 5, s%d' % (v(vWR), v(vWR), sT[0]))
vTW = V.get(4, 'mh', 1)
B('v_mov_b32 %s, s%d' % (v(vt), sT[1]))
tag_masks(B, vTW, sTAGZ)
trig(B, vA8i, True)
q_pub = W1S['iss']
A.l += interleave(B, jobs('A1'))


def p_gather(asm, d):
    for i in range(4):
        asm('s_add_u32 s%d, s%d, %d' % (sT[5], sPG, WS_P + i * 16 * PBLK))
        asm('buffer_load_dwordx4 %s, %s, %s, s%d offen sc1' % (v(d + 4 * i, 4), v(vPG), srd(sWS), sT[5]))


vPD, vWG, vWr, vWi = V.get(16), V.get(16), V.get(16), V.get(16)
WFEARLY = 'wf' not in CFG.get('A1', '') and ACK & 2
if ACK & 2:
    A.wait_tag(['pst', 'wf'] if WFEARLY else 'pst')
A('s_barrier')
stamp('s1_acked', lvl=9)
p_gather(A, vPD)
q_g = W1S['iss']
assert WFC[0] == 4
if not WFEARLY:
    A.wait_tag('wf')
    A('s_barrier')
for k in range(2):
    for i in range(4):
        A('ds_read_b64 %s, %s offset:%d' % (v(vWG + 8 * k + 2 * i, 2), v(vWR), L_GW + 8192 * k + 512 * i))
B = Asm()
for k, dst in enumerate((vWr, vWi)):
    for i in range(4):
        for p in range(2):
            B('v_lshlrev_b32 %s, 16, %s' % (v(dst + 8 * p + i), v(vWG + 8 * k + 2 * i + p)))
            B('v_and_b32 %s, s%d, %s' % (v(dst + 8 * p + 4 + i), sMASK, v(vWG + 8 * k + 2 * i + p)))
A.l += interleave(B, jobs('G1'))
w1_drain(A, q_g)
A.l += jobs('G1b')
stamp('s1_wait', lvl=8)
verify(A, lambda c: p_gather(c, vPD), lambda c: check_bits(c, range(vPD, vPD + 16), vTG, tmp), False, 's1r')
stamp('s1_ok', lvl=8)
for i in range(4):
    A('ds_write_b128 %s, %s offset:%d' % (v(vZB), v(vPD + 4 * i, 4), L_GP + 1024 * i))
barrier()
stamp('s1_done', lvl=9)
P = Asm()
for i in range(4):
    P('ds_read_b128 %s, %s offset:%d' % (v(vPD + 4 * i, 4), v(vGR), L_GP + 1024 * i))
X = Asm()
for i in range(4):
    for c in range(i + 1, 4):
        X('v_swap_b32 %s, %s' % (v(vPD + 4 * i + c), v(vPD + 4 * c + i)))
vD = [V.get(8) for _ in range(4)]
tts = [vWG, vWG + 8, V.get(8), V.get(8)]
TWc, TWs = K['TW2c'], K['TW2s']


def st(stage):
    m = Asm()
    for c in range(4):
        d, x = vD[c], v(vPD + 4 * c, 4)
        fr, fi = KA['Fre'], KA['Fim']
        ops = [((x, fr), (x, fi)), ((fr, x), (fi, x)), ((x, fi), (x, fr)), ((fi, x), (fr, x))][stage]
        for k in range(2):
            m('%s %s, %s, %s, 0' % (MF16, v(d + 4 * k, 4), ops[k][0], ops[k][1]))
    return m


P.l += X.l[:5] + under(st(0), X.l[5:])
vO = vWr
for stage in range(3):
    C = Asm()
    for c in range(4):
        d, tt = vD[c], tts[c]
        if stage == 0:
            cmul(P, d, d + 4, TWc, TWs, tt, tt + 4, -1)
        elif stage == 1:
            cmul(P, d, d + 4, vWr + 4 * c, vWi + 4 * c, tt, tt + 4, +1)
        else:
            cmul(P, d, d + 4, TWc, TWs, tt, tt + 4, +1)
        for i in range(4):
            lo, hi = (tt + i, tt + 4 + i) if stage == 0 else (tt + 4 + i, tt + i)
            C('v_cvt_pk_bf16_f32 %s, %s, %s' % (v(vPD + 4 * c + i), v(lo), v(hi)))
    if stage == 2:
        for c in range(4):
            for i in range(4):
                C('v_cvt_pk_bf16_f32 %s, %s, %s' % (v(vO + 4 * i + c), v(vD[c] + i), v(vD[c] + 4 + i)))
            for i in range(4):
                C('v_bfi_b32 %s, s%d, %s, %s' % (v(vO + 4 * i + c), sTM, v(vTW + c), v(vO + 4 * i + c)))
    P.l += C.l[:6] + under(st(stage + 1), C.l[6:])
for i in range(4):
    P('ds_write_b128 %s, %s offset:%d' % (v(vGR), v(vO + 4 * i, 4), L_GW + 1024 * i))
A.l += schedule(P, jobs('P2', True), 20, GAP, 'P2', True)
HEARLY = HC[0] == 6
if HEARLY:
    A.wait_tag('clrh')
barrier()
stamp('bd', lvl=8)
for i in range(4):
    A('ds_read_b128 %s, %s offset:%d' % (v(vPD + 4 * i, 4), v(vZB), L_GW + 1024 * i))
for i in range(4):
    A('s_add_u32 s%d, s%d, %d' % (sT[2 + i], sPG, WS_P + i * 16 * PBLK))
for i in range(4):
    A('buffer_store_dwordx4 %s, %s, %s, s%d offen sc1' % (v(vPD + 4 * i, 4), v(vPG), srd(sWS), sT[2 + i]), tag='zst')
stamp('p2_done', lvl=9)
w1_drain(A, max(W1S['drn'], W1S['iss'] - OPT.get('lag', 2)))
for x, n in [(x, 8) for x in vD + tts[2:]] + [(x, 16) for x in (vWG, vPD, vWr, vWi)] + [(vTW, 4)] + [(x, 1) for x in (vPG, vWR, vGR, vZB)]:
    V.put(x, n)
A.opt_end()
for n in TN[10:14]:
    if n in K:
        V.put(K[n], 4)
END = (dict(W1S), list(HC))
W1S.update(SAVE[0])
HC[:] = SAVE[1]
A.far_begin(lfar)
A.wait_tag('wf')
barrier()
x_, t, ad = V.get(4), V.get(4), V.get(4)
A('s_mul_i32 s%d, s%d, 320' % (sT[0], sW))
A('v_add_u32 %s, s%d, %s' % (v(ad + 1), sT[0], v(vL8)))
A('buffer_load_dwordx2 %s, %s, %s, 0 offen' % (v(t, 2), v(ad + 1), srd(sC)))
A('s_lshl_b32 s%d, s%d, 6' % (sT[2], sNU))
A('s_mul_i32 s%d, s%d, %d' % (sT[3], sW, 160 * 7680))
A('s_add_u32 s%d, s%d, s%d' % (sT[2], sT[2], sT[3]))
A('s_add_u32 s%d, s%d, 2560' % (sT[2], sT[2]))
A('v_mul_u32_u24 %s, 7680, %s' % (v(ad), v(vQ)))
A('v_lshl_add_u32 %s, %s, 4, %s' % (v(ad), v(vC8), v(ad)))
A('s_mul_i32 s%d, s%d, 10240' % (sT[3], sW))
for b in range(10):
    A('s_add_u32 m0, s%d, %d' % (sT[3], L_EX + 1024 * b))
    A('s_add_u32 s%d, s%d, %d' % (sT[4], sT[2], b * 16 * 7680))
    A('buffer_load_dwordx4 %s, %s, s%d offen lds' % (v(ad), srd(sWM), sT[4]), tag='wm2')
A('v_add_u32 %s, s%d, %s' % (v(ad), sT[3], v(vT64)))
A('s_add_u32 s%d, s%d, %d' % (sT[0], sT[0], L_SILU))
A('v_lshl_add_u32 %s, %s, 3, s%d' % (v(ad + 2), v(vG), sT[0]))
A('s_lshl_b32 s%d, s%d, 7' % (sT[0], sW))
A('v_lshl_add_u32 %s, %s, 4, s%d' % (v(ad + 3), v(vG), sT[0]))
A('s_mul_i32 s%d, s%d, 205' % (sT[1], sNU))
A('s_lshr_b32 s%d, s%d, 12' % (sT[1], sT[1]))
A('s_cmp_eq_u32 s%d, 2' % sT[1])
A('s_cselect_b32 s%d, 1.0, 0' % sCOL)
A('s_mul_i32 s%d, s%d, 20' % (sT[2], sT[1]))
A('s_sub_u32 s%d, s%d, s%d' % (sT[2], sNU, sT[2]))
A('s_lshl4_add_u32 s%d, s%d, s%d' % (sT[3], sT[1], sT[2]))
A('s_lshl2_add_u32 s%d, s%d, s%d' % (sT[4], sT[1], sT[2]))
A('s_add_u32 s%d, s%d, 48' % (sT[4], sT[4]))
A('s_cmp_lt_u32 s%d, 16' % sT[2])
A('s_cselect_b32 s%d, s%d, s%d' % (sT[3], sT[3], sT[4]))
A('s_add_u32 s%d, s%d, 80' % (sT[4], sXCD))
A('s_cmp_ge_u32 s%d, 22' % sIDX)
A('s_cselect_b32 s%d, s%d, s%d' % (sT[1], sT[3], sT[4]))
A('s_lshl_b32 s%d, s%d, 7' % (sT[1], sT[1]))
A('s_add_u32 s%d, s%d, %d' % (sPG, sT[1], WS_MOD2))
trig(A, vA8i, True)
w1_drain(A, W1S['iss'])


def ii_rest():
    j_hclr(A, END[1][0] - HC[0])
    if any('bias' in CFG.get(x, '') for x in ('A1', 'G1', 'G1b', 'P2')):
        j_bias(A)


if OPT.get('w2at', 1) == 1:
    if W1S['iss'] > 6:
        A('s_barrier')
    w2_reformat(L_RING + 2 * 12288, 'w2st', ii_rest)
    A.wait_lds()
else:
    ii_rest()
for p in range(2):
    A('v_lshlrev_b32 %s, 16, %s' % (v(x_ + 2 * p), v(t + p)))
    A('v_and_b32 %s, s%d, %s' % (v(x_ + 2 * p + 1), sMASK, v(t + p)))
silu(A, x_, t, 4)
for p in range(2):
    A('v_cvt_pk_bf16_f32 %s, %s, %s' % (v(x_ + p), v(x_ + 2 * p), v(x_ + 2 * p + 1)))
A('s_mov_b32 exec_hi, 0xff')
A('ds_write_b64 %s, %s offset:%d' % (v(ad + 1), v(x_, 2), L_SILU))
A('s_mov_b64 exec, -1')
f, sb, d = [V.get(8) for _ in range(5)], V.get(20), V.get(8)
for k in range(5):
    A('ds_read2_b64 %s, %s offset0:%d offset1:%d' % (v(sb + 4 * k, 4), v(ad + 2), 8 * k, 8 * k + 4))
A.wait_tag('wm2')
for k in range(5):
    for tt_ in range(2):
        for rd in range(2):
            A('ds_read_b64_tr_b16 %s, %s offset:%d' % (v(f[k] + 4 * tt_ + 2 * rd, 2), v(ad), L_EX + 2048 * k + 1024 * rd + 32 * tt_))
for k in range(5):
    for tt_ in range(2):
        A('%s %s, %s, %s, %s' % (MF16, v(d + 4 * tt_, 4), v(f[k] + 4 * tt_, 4), v(sb + 4 * k, 4), v(d + 4 * tt_, 4) if k else '0'))
for tt_ in range(2):
    A('ds_write_b128 %s, %s offset:%d' % (v(ad + 3), v(d + 4 * tt_, 4), L_RED + 64 * tt_))
A.wait_tag(['clrh', 'w2st'] if HEARLY else 'w2st')
barrier()
lb = opt('s_cmp_lg_u32 s%d, 0' % sW)
for i in range(4):
    A('ds_read_b128 %s, %s offset:%d' % (v(sb + 4 * i, 4), v(vL16), L_RED + 128 * i))
A('s_mov_b64 exec, 0xff')
for p in (0, 2):
    A('v_pk_add_f32 %s, %s, %s' % (v(sb + p, 2), v(sb + p, 2), v(sb + 4 + p, 2)))
    A('v_pk_add_f32 %s, %s, %s' % (v(sb + 8 + p, 2), v(sb + 8 + p, 2), v(sb + 12 + p, 2)))
    A('v_pk_add_f32 %s, %s, %s' % (v(sb + p, 2), v(sb + p, 2), v(sb + 8 + p, 2)))
    A('v_cvt_pk_bf16_f32 %s, %s, %s' % (v(sb + p), v(sb + p), v(sb + p + 1)))
    A('v_and_b32 %s, s%d, %s' % (v(sb + p + 1), sMASK, v(sb + p)))
    A('v_lshlrev_b32 %s, 16, %s' % (v(sb + p), v(sb + p)))
    A('v_add_f32 %s, s%d, %s' % (v(sb + p + 1), sCOL, v(sb + p + 1)))
    A('v_add_f32 %s, s%d, %s' % (v(sb + p), sCOL, v(sb + p)))
    A('v_cvt_pk_bf16_f32 %s, %s, %s' % (v(sb + p), v(sb + p), v(sb + p + 1)))
    A('v_mov_b32 %s, s%d' % (v(sb + p + 1), sNONCE))
A('buffer_store_dwordx4 %s, %s, %s, s%d offen sc1' % (v(sb, 4), v(vL16), srd(sWS), sPG), tag='zst')
A('s_mov_b64 exec, -1')
A('s_nop 1')
opt_end(lb)
stamp('p2_done', lvl=9, again=True)
j_w1(A, min(8, END[0]['iss'] - W1S['iss']))
if W1S['iss'] < END[0]['iss']:
    w1_drain(A, min(W1S['iss'], END[0]['drn']))
    j_w1(A, END[0]['iss'] - W1S['iss'])
w1_drain(A, END[0]['drn'])
assert W1S == END[0], (W1S, END[0])
for x, n in [(x_, 4), (t, 4), (ad, 4), (sb, 20), (d, 8)] + [(x, 8) for x in f]:
    V.put(x, n)
A.far_end(lback)
for x, n in ((vT64, 1), (vWD, 1), (vTch, 5), (vJunk, 3)):
    V.put(x, n)
vZ, vTZ = vP, vTG


def z_gather(asm, d):
    asm('s_add_u32 s%d, s%d, 2816' % (sT[5], sPB))
    for q in range(4):
        asm('buffer_load_dwordx4 %s, %s, %s, s%d offen offset:%d sc1' % (v(d + 4 * q, 4), v(vZ), srd(sWS), sT[5] if q > 1 else sPB, 1408 * (q & 1)))


def mod2_gather(asm):
    for i in range(11):
        if i % 4 == 0:
            asm('s_mov_b32 s%d, %d' % (sT[5], WS_MOD2 + 1024 * i))
        asm('buffer_load_dwordx4 %s, %s, %s, s%d offen offset:%d sc1' % (v(vMD[i], 4), v(vL16), srd(sWS), sT[5], 1024 * (i % 4)))


vD8 = [V.get(16) for _ in range(4)]
vZD = V.get(16)
vMD = [vD8[i // 4] + 4 * (i % 4) for i in range(11)]
vMA = vD8[3]
lfar, lback = out_of_line('s_cmp_eq_u32 s%d, 3' % sW)
A.far_begin(lfar)
pad(A, 'm2a')
mod2_gather(A)
A('v_lshlrev_b32 %s, 5, %s' % (v(vMA), v(vKD)))
A('v_lshl_add_u32 %s, %s, 2, %s' % (v(vMA), v(vH), v(vMA)))
for k, o in ((1, 16), (2, 8), (3, 24)):
    A('v_add_u32 %s, %d, %s' % (v(vMA + k), o, v(vMA)))
A('v_mul_u32_u24 %s, 2560, %s' % (v(vMA + 4), v(vH)))
A('v_lshl_add_u32 %s, %s, 3, %s' % (v(vMA + 4), v(vKD), v(vMA + 4)))
A('v_add_u32 %s, 4, %s' % (v(vMA + 5), v(vMA + 4)))
A.far_end(lback)
B = Asm()
vZ, vTZ = vP, vTG
B('v_lshlrev_b32 %s, 3, %s' % (v(vt), v(vC8)))
tag_masks(B, vTZ, sTAGZ)
g = Asm()
g('v_cmp_gt_u32 vcc, 84, %s' % v(vKW))
g('s_mul_i32 s%d, s%d, 2560' % (sT[0], sW))
g('s_add_u32 s%d, s%d, s%d' % (sYX, sPB, sT[0]))
g('v_cndmask_b32 %s, %s, %s, vcc' % (v(vZ), v(vOOB), v(vZ)))
for d in range(4):
    g('v_cndmask_b32 %s, 0, %s, vcc' % (v(vTZ + d), v(vTZ + d)))
grp(B, g)
V.put(vKW)
vU0, vU1 = [V.get(1, 'h'), V.get(1, 'h')], [V.get(1, 'h'), V.get(1, 'h')]
ex_addr(B, vU0, vU1, 20, 65)
V.put(vEXa)
V.put(vEXb)
sHS, sW2F = sPG, sZS
B('s_mul_i32 s%d, s%d, 196608' % (sT[0], sG1))
B('s_mul_i32 s%d, s%d, 6144' % (sT[1], sJ1))
B('s_add_u32 s%d, s%d, s%d' % (sHS, sT[0], sT[1]))
B('s_add_u32 s%d, s%d, %d' % (sHS, sHS, WS_H))
B('s_lshl2_add_u32 s%d, s%d, s%d' % (sT[0], sJ, sW))
B('s_mul_i32 s%d, s%d, 61440' % (sW2F, sT[0]))
B('s_add_u32 s%d, s%d, %d' % (sW2F, sW2F, WS_W2F))
sROT = [3, 6, 7, 50, 71, 72]
sHL = sTAU
B('s_lshl4_add_u32 s%d, s%d, s%d' % (sT[0], sG, sW))
B('s_mul_i32 s%d, s%d, 12288' % (sHL, sT[0]))
B('s_add_u32 s%d, s%d, %d' % (sHL, sHL, WS_H))
B('s_mul_i32 s%d, s%d, 5' % (sT[0], sHL))
B('s_sub_u32 s%d, s%d, s%d' % (sW2F, sW2F, sT[0]))
B('s_and_b32 s%d, s%d, %d' % (sT[0], sG, OPT.get('rot', 0)))
for k in range(6):
    g = Asm()
    if k:
        g('s_add_u32 s%d, s%d, 1' % (sT[0], sT[0]))
    g('s_cmp_ge_u32 s%d, 6' % sT[0])
    g('s_cselect_b32 s%d, 6, 0' % sT[1])
    g('s_sub_u32 s%d, s%d, s%d' % (sT[0], sT[0], sT[1]))
    g('s_lshl_b32 s%d, s%d, 11' % (sT[1], sT[0]))
    g('s_add_u32 s%d, s%d, s%d' % (sROT[k], sT[1], sHL))
    grp(B, g)
A.l += interleave(B, jobs('A2'))


if ACK & 4:
    A.wait_tag('zst')
if OPT.get('b2b', 1):
    barrier()
stamp('s2_acked', lvl=9)
lfar, lback = out_of_line('s_cmp_eq_u32 s%d, 3' % sW)
A.opt_begin()
z_gather(A, vZD)
A.opt_end()
A.far_begin(lfar)
verify(A, mod2_gather, lambda c: check_tags(c, [x + 3 for x in vMD], tmp))
for i in range(10):
    for k in range(2):
        b = vMD[i] + 2 * k
        A('v_and_b32 %s, s%d, %s' % (v(b + 1), sMASK, v(b)))
        A('v_lshlrev_b32 %s, 16, %s' % (v(b), v(b)))
    for k in range(2):
        b = vMD[i] + 2 * k
        ad_, o = (vMA + 2 * (i & 1) + k, 10 * (2 + i // 2)) if i < 8 else (vMA + 4 + k, 10 * (2 + 2 * (i - 8)) + 4)
        A('ds_write2st64_b32 %s, %s, %s offset0:%d offset1:%d' % (v(ad_), v(b), v(b + 1), L_MOD // 256 + o, L_MOD // 256 + o + 5))
A.far_end(lback)
q_g = W1S['iss']
A.l += jobs('G2')
assert W1S['iss'] <= 16
w1_addr(A, True)
w1_drain(A, q_g)
A.l += jobs('G2b')
warm(A, ['pg5', 'pg6', 's3r0', 'pr0' if OPT.get('probeh', 0) & 1 else 's3r1'])
stamp('s2_wait', lvl=8)
lb = opt('s_cmp_eq_u32 s%d, 3' % sW)
verify(A, lambda c: z_gather(c, vZD), lambda c: check_bits(c, range(vZD, vZD + 16), vTZ, tmp), False, 's2r')
stamp('s2_done', lvl=9)
P = Asm()
for i in range(4):
    for c in range(i + 1, 4):
        P('v_swap_b32 %s, %s' % (v(vZD + 4 * i + c), v(vZD + 4 * c + i)))
for c in range(4):
    P('%s %s, %s, %s, 0' % (MF32, v(vD8[c], 16), v(vA8i, 4), v(vZD + 4 * c, 4)))
for c in range(4):
    for q in range(4):
        P('v_cvt_pk_bf16_f32 %s, %s, %s' % (v(vZD + 4 * c + q), v(vD8[c] + 2 * q), v(vD8[c] + 2 * q + 1)))
    P('ds_write2st64_b32 %s, %s, %s offset0:%d offset1:%d' % (v(vEX8 + c), v(vZD + 4 * c), v(vZD + 4 * c + 1), EXO, EXO + 6))
    P('ds_write2st64_b32 %s, %s, %s offset0:%d offset1:%d' % (v(vEX8 + c), v(vZD + 4 * c + 2), v(vZD + 4 * c + 3), EXO + 12, EXO + 18))
A.l += schedule(P, verbose='P3a')
opt_end(lb)
barrier()
stamp('b3', lvl=8)
for x, n in [(x, 16) for x in vD8] + [(vA8i, 4), (vZ, 1), (vTZ, 4), (vZD, 16), (vEX8, 4)]:
    V.put(x, n)
W2V = 96
W2A = 144
V.take(W2V, 64)


def w2frag(k, t_, c=4, o=0):
    if k < 8:
        return v(W2V + 20 * k + 4 * t_ + o, c)
    return a(W2A + 20 * (k - 8) + 4 * t_ + o, c)


def w2_base(g, n, first):
    m = n % 10
    if m == 0 or first:
        g('s_mul_i32 s%d, s%d, 5' % (sBG[1], sROT[n // 10]))
        g('s_add_u32 s%d, s%d, s%d' % (sBG[1], sBG[1], sW2F))
        if m >= 4:
            g('s_add_u32 s%d, s%d, %d' % (sBG[1], sBG[1], 4096 * (m // 4)))
    elif m % 4 == 0:
        g('s_add_u32 s%d, s%d, 4096' % (sBG[1], sBG[1]))


def w2_loads(asm, n0, n1):
    if OPT.get('now2'):
        return
    for n in range(n0, n1):
        g = Asm()
        w2_base(g, n, n == n0)
        g('buffer_load_dwordx4 %s, %s, %s, s%d offen offset:%d sc1' % (w2frag(n // 5, n % 5), v(vL16), srd(sWS), sBG[1], 1024 * (n % 10 % 4)), tag='w2l')
        grp(asm, g)


P = Asm()
vUF = V.get(16, 'xl')
for r in range(2):
    P('ds_read2_b32 %s, %s offset0:0 offset1:5' % (v(vUF + 8 * r, 2), v(vU0[r])))
    P('ds_read2_b32 %s, %s offset0:10 offset1:15' % (v(vUF + 8 * r + 2, 2), v(vU0[r])))
    P('ds_read2_b32 %s, %s offset0:15 offset1:10' % (v(vUF + 8 * r + 4, 2), v(vU1[r])))
    P('ds_read2_b32 %s, %s offset0:5 offset1:0' % (v(vUF + 8 * r + 6, 2), v(vU1[r])))
vGA = V.get(10, 'lx')
read_mod(P, vGA, 2, vL16, vL4)
vD = [V.get(16, 'xl'), V.get(16, 'xl')]
for r in range(2):
    for u in range(2):
        for t_ in range(2):
            for ro in range(2):
                d = v(vD[r] + 8 * t_ + 4 * ro, 4)
                P('%s %s, %s, %s, %s' % (MF16, d, v(vUF + 8 * r + 4 * u, 4), KA['G%d%d%d' % (u, t_, ro)], d if u else '0'))
tts = [V.get(8, 'xl'), V.get(8, 'xl')]
vY = [V.get(12, 'xl'), V.get(12, 'xl')]
C, Mx = Asm(), Asm()
for r, t_ in RT:
    d, b, tt = vD[r] + 8 * t_, vUF + 8 * r + 4 * t_, tts[t_]
    cmul(P, d, d + 4, K['TW3c%d' % t_], K['TW3s%d' % t_], tt, tt + 4, +1, True)
    for i in range(4):
        C('v_cvt_pk_bf16_f32 %s, %s, %s' % (v(b + i), v(d + i), v(d + 4 + i)))
    Mx('%s %s, %s, %s, 0' % (MF16, v(vY[r] + 4 * t_, 4), KA['A3_0'], v(b, 4)))
    Mx('%s %s, %s, %s, %s' % (MF16, v(vY[r] + 8, 4), KA['A3_%d' % (1 + t_)], v(b, 4), v(vY[r] + 8, 4) if t_ else '0'))
vG2, vSb = vD
read_mod(C, vG2, 4, vL16, vL4)
read_mod(C, vSb, 3, vL16, vL4)
P.l += C.l[:6] + under(Mx, C.l[6:])
for x, n in [(x, 8) for x in tts] + [(x, 1) for x in vU0 + vU1]:
    V.put(x, n)
for n in TN[14:]:
    if n in K:
        V.put(K[n], 4)
PA, P = P, Asm()
for r in range(2):
    for p in range(5):
        P('v_pk_fma_f32 %s, %s, %s, %s' % (v(vXF[r] + 2 * p, 2), v(vY[r] + 2 * p, 2), v(vGA + 2 * p, 2), v(vXF[r] + 2 * p, 2)))
ln_stats(P, vXF)
ln_apply(P, vY, vXF)
for r in range(2):
    for p in range(5):
        P('v_pk_fma_f32 %s, %s, %s, %s' % (v(vY[r] + 2 * p, 2), v(vY[r] + 2 * p, 2), v(vG2 + 2 * p, 2), v(vSb + 2 * p, 2)))
ln_stats(P, vY, '0x37800000')
ln_apply(P, vY, vY)
vXP = vGA
for r in range(2):
    for j in range(5):
        lo, hi = (j, 4 + j) if j < 4 else (8, 9)
        P('v_cvt_pk_bf16_f32 %s, %s, %s' % (v(vXP + 5 * r + j), v(vXF[r] + lo), v(vXF[r] + hi)))
for r in range(2):
    o = vUF + 8 * r
    for j in range(5):
        lo, hi = (j, 4 + j) if j < 4 else (8, 9)
        P('v_cvt_pk_bf16_f32 %s, %s, %s' % (v(o + j), v(vY[r] + lo), v(vY[r] + hi)))
A.l += schedule(PA.l + schedule(P), jobs('P3', True), 20, GAP, 'P3b', True)
assert W2C[0] <= 16 and HC[0] == 6
A.wait_tag('clrh')
for r in range(2):
    o = vUF + 8 * r
    A('buffer_store_dwordx4 %s, %s, %s, s%d offen offset:%d sc1' % (v(o, 4), v(vL16), srd(sWS), sYX, 1280 * r), tag='yst')
    A('buffer_store_dword %s, %s, %s, s%d offen offset:%d sc1' % (v(o + 4), v(vL4), srd(sWS), sYX, 1280 * r + 1024), tag='yst')
stamp('p3_done', lvl=9)
A('s_nop 0')
for x, n in ((vD[0], 16), (vD[1], 16), (vXF[0], 10), (vXF[1], 10), (vY[0], 12), (vY[1], 12), (vUF, 16), (vFILL, 4)):
    V.put(x, n)
assert vXP < 96
V.take(W2V + 64, 96)


def j_x1(asm):
    g = Asm()
    g('s_lshl2_add_u32 s%d, s%d, s%d' % (sBG[0], sL, sW))
    g('s_mul_i32 s%d, s%d, 2560' % (sBG[0], sBG[0]))
    g('s_add_u32 s%d, s%d, %d' % (sBG[0], sBG[0], WS_X1))
    for k in range(10):
        g('buffer_store_dword %s, %s, %s, s%d offen offset:%d sc1' % (v(vXP + k), v(vL4), srd(sWS), sBG[0], 256 * k), tag='xst')
        grp(asm, g)
        g = Asm()


B = Asm()
vgb = V.get(8, 'l')
o = (L_MOD + 5 * 2560) // 256
B('s_and_b32 s%d, s%d, 1' % (sT[2], sJ))
B('s_lshl_b32 s%d, s%d, 9' % (sT[2], sT[2]))
B('s_lshr_b32 s%d, s%d, 1' % (sT[3], sJ))
B('s_lshl2_add_u32 s%d, s%d, s%d' % (sT[2], sT[3], sT[2]))
B('v_lshl_add_u32 %s, %s, 5, s%d' % (v(vt), v(vN), sT[2]))
B('v_add_u32 %s, 16, %s' % (v(vt + 1), v(vt)))
B('s_lshl_b32 s%d, s%d, 5' % (sT[3], sJ))
B('v_lshl_add_u32 %s, %s, 3, s%d' % (v(vt + 2), v(vC8), sT[3]))
B('v_add_u32 %s, 4, %s' % (v(vt + 3), v(vt + 2)))
for q in range(4):
    B('ds_read2st64_b32 %s, %s offset0:%d offset1:%d' % (v(vgb + 2 * q, 2), v(vt + q), o + 4 * (q >> 1), o + 5 + 4 * (q >> 1)))
vYG, vYW = V.get(1, 'l'), V.get(1, 'l')
sYL = sPB
B('v_lshrrev_b32 %s, 3, %s' % (v(vt), v(vLane)))
B('v_and_b32 %s, 7, %s' % (v(vt + 1), v(vLane)))
B('s_and_b32 s%d, s%d, 1' % (sT[2], sW))
B('s_lshr_b32 s%d, s%d, 1' % (sT[3], sW))
B('s_lshl_b32 s%d, s%d, 2' % (sT[4], sT[2]))
B('v_add_u32 %s, s%d, %s' % (v(vt + 2), sT[4], v(vG)))
B('v_xor_b32 %s, %s, %s' % (v(vt + 1), v(vt + 2), v(vt + 1)))
B('v_mul_u32_u24 %s, 1280, %s' % (v(vYG), v(vt)))
B('v_lshl_add_u32 %s, %s, 4, %s' % (v(vYG), v(vt + 1), v(vYG)))
B('s_lshl3_add_u32 s%d, s%d, s%d' % (sT[4], sG1, sT[2]))
B('s_mul_i32 s%d, s%d, %d' % (sT[4], sT[4], PBLK))
B('s_mul_i32 s%d, s%d, 640' % (sT[5], sT[3]))
B('s_add_u32 s%d, s%d, s%d' % (sT[4], sT[4], sT[5]))
B('v_add_u32 %s, s%d, %s' % (v(vYG), sT[4], v(vYG)))
B('s_mul_i32 s%d, s%d, 10240' % (sT[3], sT[3]))
B('s_lshl_b32 s%d, s%d, 10' % (sT[2], sT[2]))
B('s_add_u32 s%d, s%d, s%d' % (sYL, sT[2], sT[3]))
B('v_add_u32 %s, s%d, %s' % (v(vYW), sYL, v(vL16)))
q_pub = W1S['iss']
ja = jobs('A3')
assert W1S['iss'] == 20
w1_drain(B, max(14, q_pub - OPT.get('lag3', 2)))
A.l += interleave(B, ja)
A('s_or_b32 s%d, s%d, s%d' % (sT[0], sL, sW))
lfar, lback = out_of_line('s_cmp_eq_u32 s%d, 0' % sT[0])
A.far_begin(lfar)
A('v_mov_b32 %s, s%d' % (v(vt), sTAGZ))
A('s_mov_b64 exec, 1')
A('buffer_store_dword %s, %s, %s, 0 offen offset:%d sc1' % (v(vt), v(vL4), srd(sWS), WS_EPOCH), tag='ep')
A('s_mov_b64 exec, -1')
A.far_end(lback)
vCK = V.get(20, 'l')
CKB = [vCK, vCK, vCK, W2V + 140]


def y_dma(asm, rt, so=sT[5]):
    for u in range(5):
        g = Asm()
        if u == 0:
            g('s_mov_b32 s%d, %d' % (so, WS_P + 2 * PBLK * rt))
        g('s_add_u32 m0, s%d, %d' % (sYL, 20480 * rt + 1920 * u))
        g('buffer_load_dwordx4 %s, %s, s%d offen offset:%d sc1 lds' % (v(vYG), srd(sWS), so, 128 * u), tag='yg%d' % rt)
        grp(asm, g)


def y_back(asm, rt):
    for u in range(5):
        asm('ds_read_b128 %s, %s offset:%d' % (v(CKB[rt] + 4 * u, 4), v(vYW), 20480 * min(rt, 2) + 2048 * u))


def y_check1(asm, rt):
    if rt == 3:
        asm('v_add_u32 %s, %d, %s' % (v(vYW), 20480, v(vYW)))
    asm.wait_tag('yg%d' % rt)
    y_back(asm, rt)


def y_check2(asm, rt):
    def again(c):
        c('s_mov_b32 s%d, m0' % sVER)
        y_dma(c, rt)
        c('s_mov_b32 m0, s%d' % sVER)
        c('s_waitcnt vmcnt(0)')
        y_back(c, rt)
    verify(asm, again, lambda c: check_bits(c, range(CKB[rt], CKB[rt] + 20), None, tmp), name='s3r%d' % rt)


if ACK & 8:
    A.wait_tag('yst')
barrier()
stamp('s3_acked', lvl=9)
NY = OPT.get('ny', 3)
M = Asm()
y_dma(A, 0)
for rt in range(1, NY):
    y_dma(M, rt)
B = Asm()
w1_drain(B, 20)
V.put(vW1, 6)
V.put(vW1r)
for i in range(8):
    B('v_mul_f32 %s, 0x47800000, %s' % (v(vgb + i), v(vgb + i)))
for i in range(8):
    B('v_accvgpr_write_b32 %s, %s' % (a(240 + i), v(vgb + i)))
V.put(vgb, 8)
vYR = [V.get(1, 'l'), V.get(1, 'l')]
B('v_lshrrev_b32 %s, 1, %s' % (v(vt + 2), v(vN)))
B('v_xor_b32 %s, %s, %s' % (v(vt + 2), v(vt + 2), v(vG)))
B('v_lshlrev_b32 %s, 4, %s' % (v(vt + 2), v(vt + 2)))
B('v_lshl_add_u32 %s, %s, 7, %s' % (v(vYR[0]), v(vN), v(vt + 2)))
B('v_xor_b32 %s, 64, %s' % (v(vYR[1]), v(vYR[0])))
vBI = V.get(12, 'l')
for c in range(3):
    for p in range(2):
        B('v_lshlrev_b32 %s, 16, %s' % (v(vBI + 4 * c + 2 * p), v(vb1 + 2 * c + p)))
        B('v_and_b32 %s, s%d, %s' % (v(vBI + 4 * c + 2 * p + 1), sMASK, v(vb1 + 2 * c + p)))
for i in range(12):
    B('v_mul_f32 %s, 0x37800000, %s' % (v(vBI + i), v(vBI + i)))
for p in range(4):
    B('v_lshlrev_b32 %s, 16, %s' % (v(vt), v(vb2 + p)))
    B('v_and_b32 %s, s%d, %s' % (v(vt + 1), sMASK, v(vb2 + p)))
    B('v_mul_f32 %s, 0x37800000, %s' % (v(vt), v(vt)))
    B('v_mul_f32 %s, 0x37800000, %s' % (v(vt + 1), v(vt + 1)))
    B('v_accvgpr_write_b32 %s, %s' % (a(248 + 2 * p), v(vt)))
    B('v_accvgpr_write_b32 %s, %s' % (a(249 + 2 * p), v(vt + 1)))
A.l += interleave(B, M)
A.l += jobs('G3')
for x, n in ((vb1, 6), (vb2, 4), (vKD, 1), (vH, 1)):
    V.put(x, n)
stamp('s3_wait', lvl=8)
y_check1(A, 0)
y_check2(A, 0)
barrier()
stamp('s3_done', lvl=13)
T0 = Asm()
vHs4, vHs2 = V.get(1, 'l'), V.get(1, 'l')
T0('s_lshl_b32 s%d, s%d, 10' % (sT[0], sW))
T0('v_add_u32 %s, s%d, %s' % (v(vHs4), sT[0], v(vL16)))
T0('s_lshl_b32 s%d, s%d, 9' % (sT[0], sW))
T0('s_add_u32 s%d, s%d, 4096' % (sT[0], sT[0]))
T0('v_cmp_gt_u32 vcc, 32, %s' % v(vLane))
T0('v_add_u32 %s, s%d, %s' % (v(vHs2), sT[0], v(vL16)))
T0('v_cndmask_b32 %s, %s, %s, vcc' % (v(vHs2), v(vOOB), v(vHs2)))
sW2L = sRING
T0('s_mul_i32 s%d, s%d, 20480' % (sW2L, sW))
T0('s_add_u32 s%d, s%d, %d' % (sW2L, sW2L, L_W2))
GC0 = -2.302208198
GC1 = GC0 * 0.044715 * 2.0 ** 48
GC0 *= 2.0 ** 16
import struct
fhex = lambda x: '0x%08x' % struct.unpack('<I', struct.pack('<f', x))[0]
sGC1 = sADD
vGC0 = V.get(1, 'l')
T0('s_mov_b32 s%d, %s' % (sGC1, fhex(GC1)))
T0('v_mov_b32 %s, %s' % (v(vGC0), fhex(GC0)))
NB = OPT.get('nb', 4)
vAC = [V.get(12, 'l'), vCK]
vBFl = [V.get(4, 'l') for _ in range(NB)]
print('free low in GEMM1:', sorted(x for x in V.free))
vGT = vCK + 12
vHP = vXP


def h_store(asm, rt):
    g = Asm()
    g('s_add_u32 s%d, s%d, %d' % (sT[2], sHS, 49152 * rt))
    g('buffer_store_dwordx4 %s, %s, %s, s%d offen sc1' % (v(vHP, 4), v(vHs4), srd(sWS), sT[2]), tag='hst%d' % rt)
    grp(asm, g)


def gelu(rt):
    g = Asm()
    ac = vAC[rt & 1]
    for c in range(3):
        x = ac + 4 * c
        tb = vGT + 4 * (c & 1)
        for i in range(4):
            g('v_mul_f32 %s, %s, %s' % (v(tb + i), v(x + i), v(x + i)))
        for i in range(4):
            g('v_fma_f32 %s, %s, s%d, %s' % (v(tb + i), v(tb + i), sGC1, v(vGC0)))
        for i in range(4):
            g('v_mul_f32 %s, %s, %s' % (v(tb + i), v(tb + i), v(x + i)))
        for i in range(4):
            g('v_exp_f32 %s, %s' % (v(tb + i), v(tb + i)))
        for i in range(4):
            g('v_add_f32 %s, 1.0, %s' % (v(tb + i), v(tb + i)))
        for i in range(4):
            g('v_rcp_f32 %s, %s' % (v(tb + i), v(tb + i)))
        for i in range(4):
            g('v_mul_f32 %s, %s, %s' % (v(tb + i), v(tb + i), v(x + i)))
        for p in range(2):
            g('v_cvt_pk_bf16_f32 %s, %s, %s' % (v(vHP + 2 * c + p), v(tb + 2 * p), v(tb + 2 * p + 1)))
        if c == 1:
            h_store(g, rt)
    for p in range(2):
        g('v_permlane32_swap_b32 %s, %s' % (v(vHP + 4 + p), v(vHP + 6 + p)))
    g('buffer_store_dwordx4 %s, %s, %s, s%d offen sc1' % (v(vHP + 4, 4), v(vHs2), srd(sWS), sT[2]), tag='hst%d' % rt)
    return g


def yread(rt, q):
    base = 20480 * (rt & 1)
    return Ins('ds_read_b128 %s, %s offset:%d' % (v(vBFl[(20 * rt + q) % NB], 4), v(vYR[q & 1]), base + 2048 * (q >> 1)))


def g1_main(rt):
    out = []
    for q in range(20):
        for c in range(3):
            d = v(vAC[rt & 1] + 4 * c, 4)
            gr = [Ins('%s %s, %s, %s, %s' % (MF16, d, a((3 * q + c) * 4, 4), v(vBFl[(20 * rt + q) % NB], 4), d if q else v(vBI + 4 * c, 4)))]
            if c == 0:
                nq = q + NB - 1
                if nq < 20:
                    gr.append(yread(rt, nq))
                elif rt < 3:
                    if rt in (0, 2) and nq == 20:
                        gr.append(Ins('s_barrier'))
                    if rt == 1 and nq < 22:
                        gr.append(Ins('v_add_u32 %s, 40960, %s' % (v(vYR[nq & 1]), v(vYR[nq & 1]))))
                    gr.append(yread(rt + 1, nq - 20))
            out.append(gr)
    return out


HB = [0, 48, 96, 0]


def probe(asm, rt):
    g = Asm()
    g('s_add_u32 s%d, s%d, %d' % (sT[5], sHL, 49152 * rt + 4096))
    g('buffer_load_dword %s, %s, %s, s%d offen offset:448 sc1' % (v(tmp), v(vPB), srd(sWS), sT[5]))
    asm.l.append([Ins('; probe')] + g.l)


def h_loads(asm, rt, so=sBG[0], k0=0, k1=12):
    if k0 == 0 and asm is not COLD and not OPT.get('probeh', 0) >> rt & 1:
        asm.wait_tag('hst%d' % rt)
    if k0 == 0 and asm is not COLD and OPT.get('probeh', 0) >> rt & 1:
        g = Asm()
        verify(g, lambda c: probe(c, rt), lambda c: c('v_cmp_eq_u32 vcc, -1, %s' % v(tmp)), name='pr%d' % rt)
        grp(asm, g)
    for k in range(k0, k1):
        g = Asm()
        if k % 2 == 0:
            g('s_add_u32 s%d, s%d, %d' % (so, sROT[k // 2], 49152 * rt))
        g('buffer_load_dwordx4 %s, %s, %s, s%d offen offset:%d sc1' % (a(HB[rt] + 4 * k, 4), v(vL16), srd(sWS), so, 1024 * (k % 2)), tag='hld')
        grp(asm, g)


def w2_dma(asm, n0, n1):
    if OPT.get('now2'):
        return
    for n in range(n0, n1):
        g = Asm()
        w2_base(g, n, n == n0)
        if n % 10 % 4 == 0 or n == n0:
            g('s_add_u32 m0, s%d, %d' % (sW2L, 1024 * (n - 40 - n % 10 % 4)))
        g('buffer_load_dwordx4 %s, %s, s%d offen offset:%d sc1 lds' % (v(vL16), srd(sWS), sBG[1], 1024 * (n % 10 % 4)), tag='w2d')
        grp(asm, g)


for q in range(NB - 1):
    A.l.append(yread(0, q))


def emit(name, main, fixed=(), flex=()):
    out, est = weave(main, fixed, flex, range(2, 60, 3) if name[1] == '1' else range(4, 60, 5))
    A.l += out
    print(name, 'est cycles', est)
    stamp(name, lvl=4)


def flag_store(asm):
    asm('v_mov_b32 %s, s%d' % (v(vt + 1), sNONCE))
    asm.wait_tag('xst')
    g = Asm()
    g('s_lshl2_add_u32 s%d, s%d, s%d' % (sT[1], sL, sW))
    g('s_lshl_b32 s%d, s%d, 6' % (sT[1], sT[1]))
    g('s_add_u32 s%d, s%d, %d' % (sT[1], sT[1], WS_FLAG))
    g('; flag')
    g('s_mov_b64 exec, 0xffff')
    g('buffer_store_dword %s, %s, %s, s%d offen sc1' % (v(vt + 1), v(vL4), srd(sWS), sT[1]), tag='flag')
    g('s_mov_b64 exec, -1')
    grp(asm, g)


def flag_load(asm):
    g = Asm()
    g('s_lshl_b32 s%d, s%d, 11' % (sT[1], sG))
    g('s_add_u32 s%d, s%d, %d' % (sT[1], sT[1], WS_FLAG))
    g('buffer_load_dword %s, %s, %s, s%d offen sc1' % (v(vt), v(vL8), srd(sWS), sT[1]))
    grp(asm, g)


T0('v_lshlrev_b32 %s, 2, %s' % (v(vL8), v(vL8)))
vPB = V.get(1, 'l')
T0('v_and_b32 %s, 1, %s' % (v(vPB), v(vQ)))
T0('v_mul_u32_u24 %s, 6144, %s' % (v(vPB), v(vPB)))
T0('v_lshl_add_u32 %s, %s, 9, %s' % (v(vPB), v(vC8), v(vPB)))
X1T0 = not any('x1' in x for x in CFG.values())
W2SEQ = mk(w2_loads, W2C[0], 35).l + mk(w2_dma, 40, 60).l + mk(w2_loads, 35, 40).l
n0, n1, n2 = OPT.get('n0', 8), OPT.get('n1', 18), OPT.get('n2', 18)
assert n0 <= 35 - W2C[0]
fx = []
g0 = 0
for rt in range(NY, 4):
    fx.append((mk(y_dma, rt, sT[1]), g0, g0 + 18))
    g0 += 18
if X1T0:
    fx.append((mk(j_x1), g0, g0 + 20))
    g0 += 20
fx.append((W2SEQ[:n0], g0, 60))
Y3 = OPT.get('y3', 1)
ywin = [(1, 2), (2, 24)] + ([(3, 44)] if Y3 == 0 else [])
emit('g1_t0', g1_main(0), [(mk(y_check1, rt), g, g + 4) for rt, g in ywin] + fx,
     [(T0, 0, 12)] + [(mk(y_check2, rt), g + 11, min(60, g + 20)) for rt, g in ywin])
fx = [(W2SEQ[n0:n0 + n1], 0, 60), (mk(flag_store), 22, 25)]
ge = gelu(0).l
if Y3:
    fx = [(mk(y_check1, 3), 0, 4)] + fx
    ge = ge[:30] + mk(y_check2, 3).l + ge[30:]
emit('g1_t1', g1_main(1), fx, [(ge, 2, 60)])
HE, H0 = OPT.get('he', 50), OPT.get('h0', 1)
PG = OPT.get('pg', 38)
pr = lambda rt: (mk(probe, rt) if OPT.get('probeh', 0) >> rt & 1 else [], PG, PG + 3)
hl = lambda rt: (mk(h_loads, rt), H0, HE)
for rt in (2, 3):
    f = gelu(rt - 1)
    fx = [(W2SEQ[n0 + n1:n0 + n1 + n2], 0, 60), pr(0)] if rt == 2 else [hl(0), (W2SEQ[n0 + n1 + n2:], 0, 60), pr(1)]
    if rt == (3 if HEARLY or OPT.get('pair', 2) != 1 else 2):
        fx = [(mk(flag_load), 8, 11)] + fx
        verify(f, flag_load, lambda c: c('v_cmp_ne_u32 vcc, s%d, %s' % (sNONCE, v(vt))))
    emit('g1_t%d' % rt, g1_main(rt), fx, [(f, 2, 60)])
stamp('g1_done')
V.put(vAC[0], 12)
for x in vBFl:
    V.put(x, 4)
V.put(vBI, 12)
for x in [vYG, vYW] + vYR:
    V.put(x)
vA2 = [V.get(20, 'l'), vCK]
vPW = V.get(1, 'l')
vPR, vXO, vOO = [[V.get(1, 'l') for _ in range(2)] for _ in range(3)]
vX1 = V.get(10, 'l')
E = Asm()
E('v_bfe_u32 %s, %s, 1, 2' % (v(vt + 2), v(vN)))
E('v_xor_b32 %s, %s, %s' % (v(vt + 2), v(vt + 2), v(vG)))
E('s_mul_i32 s%d, s%d, 13312' % (sT[0], sW))
E('v_lshl_add_u32 %s, %s, 4, s%d' % (v(vPW), v(vt + 2), sT[0]))
E('v_lshl_add_u32 %s, %s, 6, %s' % (v(vPW), v(vN), v(vPW)))
E2 = Asm()
vRow = V.get(1, 'l')
E('s_lshl_b32 s%d, s%d, 2' % (sT[0], sW))
E('v_add_u32 %s, s%d, %s' % (v(vRow), sT[0], v(vG)))
for k in range(2):
    row = vRow if k == 0 else vQ
    if k == 0:
        E('s_lshl_b32 s%d, s%d, 7' % (sT[1], sJ))
        E('s_mul_i32 s%d, s%d, 81920' % (sT[0], sG))
    else:
        E('s_lshl_b32 s%d, s%d, 5' % (sT[1], sJ))
        E('s_add_u32 s%d, s%d, 1024' % (sT[1], sT[1]))
        E('s_lshl2_add_u32 s%d, s%d, s%d' % (sT[4], sG, sW))
        E('s_mul_i32 s%d, s%d, 20480' % (sT[0], sT[4]))
    E('v_lshl_add_u32 %s, %s, 3, s%d' % (v(vOO[k]), v(vN if k == 0 else vC8), sT[1]))
    E('v_mul_u32_u24 %s, 1280, %s' % (v(vt + 3), v(row)))
    E('v_add3_u32 %s, %s, %s, s%d' % (v(vXO[k]), v(vt + 3), v(vOO[k]), sT[0]))
    E2('v_bfe_u32 %s, %s, 1, 2' % (v(vt + 3), v(row)))
    E2('v_xor_b32 %s, %s, %s' % (v(vt + 3), v(vt + 3), v(vC8)))
    E2('v_lshlrev_b32 %s, 4, %s' % (v(vt + 3), v(vt + 3)))
    E2('v_lshl_add_u32 %s, %s, 6, %s' % (v(vPR[k]), v(row), v(vt + 3)))
    if k == 0:
        E2('v_lshrrev_b32 %s, 2, %s' % (v(vt + 3), v(vN)))
        E2('v_mul_u32_u24 %s, 1152, %s' % (v(vt + 3), v(vt + 3)))
        E2('v_add_u32 %s, %s, %s' % (v(vPR[k]), v(vt + 3), v(vPR[k])))
        E2('s_mul_i32 s%d, s%d, 10240' % (sT[4], sG))
    else:
        E2('s_lshl_b32 s%d, s%d, 10' % (sT[0], sW))
        E2('v_add_u32 %s, s%d, %s' % (v(vPR[k]), sT[0], v(vPR[k])))
        E2('s_lshl2_add_u32 s%d, s%d, s%d' % (sT[4], sG, sW))
        E2('s_mul_i32 s%d, s%d, 2560' % (sT[4], sT[4]))
    E2('v_and_b32 %s, 7, %s' % (v(vt + 3), v(row)))
    E2('v_lshrrev_b32 %s, 3, %s' % (v(vt + 2), v(row)))
    E2('v_lshl_add_u32 %s, %s, 8, %s' % (v(vt + 3), v(vt + 3), v(vt + 2)))
    E2('v_mul_u32_u24 %s, 1280, %s' % (v(vt + 3), v(vt + 3)))
    E2('v_add3_u32 %s, %s, %s, s%d' % (v(vOO[k]), v(vt + 3), v(vOO[k]), sT[4]))
    if k == 0:
        E2a, E2 = E2, Asm()
OUTF = ['', ' sc1', ' nt'][OPT.get('outf', 0)]


def x1_load(asm, rt):
    k = int(rt == 4)
    g = Asm()
    g('s_mov_b32 s%d, %d' % (sBG[1], WS_X1 + 20480 * (rt & 3)))
    g('buffer_load_dwordx2 %s, %s, %s, s%d offen sc1' % (v(vX1 + 2 * rt, 2), v(vXO[k]), srd(sWS), sBG[1]))
    grp(asm, g)


def part_write(asm, rt, tiles=range(5)):
    for t_ in tiles:
        off = 4608 * (rt & 1) + 1152 * t_ if t_ < 4 else 9216 + 1024 * rt
        asm('ds_write_b128 %s, %s offset:%d' % (v(vPW), v(vA2[rt & 1] + 4 * t_, 4), off))


def epi_read(asm, rt):
    s = vA2[rt & 1]
    for p in range(4):
        asm('ds_read_b128 %s, %s offset:%d' % (v(s + 4 * p, 4), v(vPR[int(rt == 4)]), 13312 * p + (4608 * (rt & 1) if rt < 4 else 9216)))


def epi_const(asm):
    for i in range(8):
        asm('v_accvgpr_read_b32 %s, %s' % (v(vGB[i]), a(240 + i)))
        asm('v_accvgpr_read_b32 %s, %s' % (v(vB2[i]), a(248 + i)))


def epi_pre(asm, rt):
    k = int(rt == 4)
    e = vER + 4 * k
    for p in range(2):
        asm('v_lshlrev_b32 %s, 16, %s' % (v(e + 2 * p), v(vX1 + 2 * rt + p)))
        asm('v_and_b32 %s, s%d, %s' % (v(e + 2 * p + 1), sMASK, v(vX1 + 2 * rt + p)))
    for i in range(4):
        asm('v_fmac_f32 %s, %s, %s' % (v(e + i), v(vGB[4 * k + i]), v(vB2[4 * k + i])))


def epilogue(asm, rt):
    k = int(rt == 4)
    s = vA2[rt & 1]
    e = vER + 4 * k
    for i in range(4):
        asm('v_add_f32 %s, %s, %s' % (v(s + i), v(s + i), v(s + 4 + i)))
    for i in range(4):
        asm('v_add_f32 %s, %s, %s' % (v(s + 8 + i), v(s + 8 + i), v(s + 12 + i)))
    for i in range(4):
        asm('v_add_f32 %s, %s, %s' % (v(s + i), v(s + i), v(s + 8 + i)))
    for i in range(4):
        asm('v_fmac_f32 %s, %s, %s' % (v(e + i), v(s + i), v(vGB[4 * k + i])))
    for p in range(2):
        asm('v_cvt_pk_bf16_f32 %s, %s, %s' % (v(s + 16 + p), v(e + 2 * p), v(e + 2 * p + 1)))
    g = Asm()
    g('s_mov_b32 s%d, %d' % (sT[3], 2560 * (rt & 3)))
    g('buffer_store_dwordx2 %s, %s, %s, s%d offen%s' % (v(s + 16, 2), v(vOO[k]), srd(sOUT), sT[3], OUTF), tag='out')
    grp(asm, g)


def g2_mfma(rt, k, t_):
    d = v(vA2[rt & 1] + 4 * t_, 4)
    return Ins('%s %s, %s, %s, %s' % (MF16, d, w2frag(k, t_), a(HB[rt] + 4 * k, 4), d if k else '0'))


KT = OPT.get('kt', 5)


def g2_main(rt):
    if rt == 3 and KT:
        return [g2_mfma(rt, k, t_) for k in range(12 - KT) for t_ in range(5)] + [g2_mfma(rt, k, t_) for t_ in range(5) for k in range(12 - KT, 12)]
    return [g2_mfma(rt, k, t_) for k in range(12) for t_ in range(5)]


def h_check(asm, rt):
    if OPT.get('now1') or OPT.get('now2'):
        return
    ls, lo, ll, lr = label('hslow'), label('hok'), label('hl'), label('hredo')
    g = Asm()
    g('v_cmp_u_f32 vcc, %s, %s' % (v(vA2[rt & 1]), v(vA2[rt & 1])))
    g('s_cbranch_vccnz %s' % ls)
    g('%s:' % lo)
    grp(asm, g)
    c = COLD
    c.cold_begin()
    c('%s:' % ls)
    c('s_add_u32 s%d, s%d, 1' % (sSPIN, sSPIN))
    c('s_cmp_gt_u32 s%d, %d' % (sSPIN, SPIN))
    c('s_cbranch_scc1 %s' % lr)
    h_loads(c, rt, sT[5])
    c('s_waitcnt vmcnt(0)')
    t2 = vA2[rt & 1]
    c('v_mov_b32 %s, 0' % v(t2))
    for i in range(0, 48, 2):
        c('v_accvgpr_read_b32 %s, %s' % (v(vt), a(HB[rt] + i)))
        c('v_accvgpr_read_b32 %s, %s' % (v(vt + 1), a(HB[rt] + i + 1)))
        c('v_max3_u32 %s, %s, %s, %s' % (v(t2), v(t2), v(vt), v(vt + 1)))
    c('v_cmp_eq_u32 vcc, -1, %s' % v(t2))
    c('s_cbranch_vccnz %s' % ls)
    c('%s:' % lr)
    if OPT.get('gecho'):
        c('s_add_u32 s85, s85, 25')
    c.l += g2_main(rt)
    c('s_nop 7')
    if rt == 3 and KT:
        part_write(c, 3, range(3))
    c('s_branch %s' % lo)


vW2r = vPR[0]
R = Asm()
R('v_add_u32 %s, s%d, %s' % (v(vW2r), sW2L, v(vL16)))
R.wait_tag('w2d')
for n in range(40, 60):
    R('ds_read_b128 %s, %s offset:%d' % (w2frag(n // 5, n % 5), v(vW2r), 1024 * (n - 40)))
g3 = gelu(3).l
NG = min(OPT.get('ng', 30), len(g3))
HS = OPT.get('hs', 0) if NG > 60 else 0
x1_load(E, 0)
if HS:
    A.l += interleave(g3[:NG], mk(h_loads, 1, sBG[0], 0, HS), NG - 16 * HS, NG)
else:
    A.l += g3[:NG]
stamp('g2_start', lvl=4)
emit('g2_t0', g2_main(0), [(R, 0, 30), (mk(h_loads, 1, sBG[0], HS, 12), 1 if HS else H0, HE - 4 * HS), pr(2)], [(g3[NG:] + E.l, 0, 60)])
V.put(vHP, 10)
V.put(vGC0)
for x in (vHs4, vHs2, vL4, vOOB, vLane):
    V.put(x)
vER = V.get(8, 'l')
vGB = [V.get(1, 'l') for _ in range(8)]
vB2 = [V.get(1, 'l') for _ in range(8)]
GB_, GR_, GW_ = OPT.get('gb', 27), OPT.get('gr', 28), OPT.get('gw', 40)
for rt in range(1, 4):
    f = Asm()
    if rt == 1:
        f('s_barrier')
    h_check(f, rt - 1)
    wl = Asm()
    wl.wait_lds()
    fx = [(f, 3, 4), (mk(part_write, rt - 1), 4, 14), (mk(barrier), GB_, GB_ + 1), (mk(epi_read, rt - 1), GR_, GR_ + 2), (wl, GW_, GW_ + 1)]
    if rt == 1:
        fx += [hl(2), pr(3), (mk(x1_load, 1), 15, 20)]
        epi_const(E2a)
        fl = [(E2a, 0, GB_), (mk(epi_pre, 0), GB_, GW_), (mk(epilogue, 0), GW_, 60)]
    elif rt == 2:
        fx += [hl(3), (mk(x1_load, 2).l + mk(x1_load, 4).l + mk(x1_load, 3).l, 15, 30)]
        fl = [(E2, 0, GB_), (mk(epi_pre, 1), GB_, GW_), (mk(epilogue, 1), GW_, 60)]
    else:
        fl = [(mk(epi_pre, 2).l + mk(epi_pre, 4).l, GB_, GW_), (mk(epilogue, 2).l + mk(epi_pre, 3).l, GW_, 60)]
        if KT:
            for t_ in range(3):
                g = 60 - KT * (4 - t_) + 4
                fx.append((mk(part_write, 3, [t_]), g, g + 1))
    emit('g2_t%d' % rt, g2_main(rt), fx, fl)
stamp('g2_done')
h_check(A, 3)
part_write(A, 3, range(3, 5) if KT else range(5))
barrier()
stamp('lastbar', lvl=4)
epi_read(A, 3)
epi_read(A, 4)
epilogue(A, 3)
epilogue(A, 4)
stamp('laststore', lvl=4)
if OPT['stamps']:
    A('s_waitcnt vmcnt(0)')
    stamp('end')
    A('s_memtime s[4:5]')
    A('s_sub_u32 s4, s4, s100')
    A('s_lshl_b32 s%d, s2, 2' % sT[0])
    A('s_add_u32 s%d, s%d, s%d' % (sT[0], sT[0], sW))
    A('s_lshl_b32 s%d, s%d, 7' % (sT[0], sT[0]))
    A('s_add_u32 s%d, s%d, %d' % (sT[0], sT[0], WS_STAMP))
    A('s_mov_b64 exec, 1')
    for i, s in [(i, sSTAMP + i) for i in range(nstamp[0])] + [(30, 4), (31, sSPIN)]:
        A('v_mov_b32 %s, s%d' % (v(vt), s))
        A('buffer_store_dword %s, %s, %s, s%d offen offset:%d' % (v(vt), v(vL16), srd(sWS), sT[0], 4 * i))
        A('s_waitcnt vmcnt(0)')
if OPT.get('gecho'):
    A('s_cmp_lg_u32 s%d, 0' % sW)
    A('s_cbranch_scc1 L_end')
    A('s_waitcnt vmcnt(0)')
    A('s_memrealtime s[92:93]')
    A('s_waitcnt lgkmcnt(0)')
    A('L_dly:')
    A('s_memrealtime s[86:87]')
    A('s_waitcnt lgkmcnt(0)')
    A('s_sub_u32 s94, s86, s88')
    A('s_cmp_lt_u32 s94, 4000')
    A('s_cbranch_scc1 L_dly')
    if OPT['gecho'] == 98:
        A('s_endpgm')
    A('s_mov_b32 s98, 256')
    A('s_mov_b32 s99, 0x20000')
    A('s_mov_b64 exec, 1')
    A('s_not_b32 s94, s88')
    for o, r in ((0, 94), (4, 90), (8, 92), (16, 88), (20, 85)):
        A('v_mov_b32 %s, s%d' % (v(vt), r))
        A('buffer_atomic_%s %s, off, s[96:99], 0 offset:%d' % ('add' if o == 20 else 'umax', v(vt), o))
        A('s_nop 1')
    A('s_waitcnt vmcnt(0)')
    A('v_mov_b32 %s, 1' % v(vt))
    A('buffer_atomic_add %s, off, s[96:99], 0 offset:12 sc0' % v(vt))
    A('s_waitcnt vmcnt(0)')
    A('v_readfirstlane_b32 s94, %s' % v(vt))
    A('s_cmp_lg_u32 s94, 255')
    A('s_cbranch_scc1 L_end')
    A('buffer_load_dwordx4 %s, off, s[96:99], 0 sc1' % v(vt, 4))
    A('buffer_load_dword %s, off, s[96:99], 0 offset:%d sc1' % (v(tmp), 20 if OPT['gecho'] == 99 else 16))
    A('s_waitcnt vmcnt(0)')
    A('v_readfirstlane_b32 s94, %s' % v(vt))
    A('v_readfirstlane_b32 s95, %s' % v({1: vt + 2, 2: tmp, 99: tmp}.get(OPT['gecho'], vt + 1)))
    if OPT['gecho'] == 99:
        A('s_mov_b32 s94, 0')
    A('s_add_u32 s94, s94, s95')
    A('s_add_u32 s94, s94, 1')
    A('s_mul_i32 s94, s94, %d' % OPT.get('gk', 4))
    A('s_min_u32 s94, s94, 50000')
    A('s_memrealtime s[92:93]')
    A('L_echo:')
    A('s_memrealtime s[90:91]')
    A('s_waitcnt lgkmcnt(0)')
    A('s_sub_u32 s95, s90, s92')
    A('s_cmp_lt_u32 s95, s94')
    A('s_cbranch_scc1 L_echo')
if OPT.get('probe'):
    pr = OPT['probe']
    A('s_or_b32 s%d, s%d, s%d' % (sT[0], sL, sW))
    A('s_cmp_lg_u32 s%d, 0' % sT[0])
    A('s_cbranch_scc1 L_end')
    A('s_waitcnt vmcnt(0)')
    sr = sWS if pr >= 2 else sPRB
    if pr >= 2:
        A('s_mov_b32 s%d, 0x10000000' % (sWS + 2))
    base = {1: 0, 2: 0x1a00000, 3: 0x8000000, 4: 0xfc00000}[pr]
    for i in range(40):
        A('s_mov_b32 s%d, %d' % (sT[0], base + i * (40960 + 128)))
        A('buffer_load_dword %s, off, %s, s%d' % (v(vt), srd(sr), sT[0]))
        A('s_waitcnt vmcnt(0)')
A('L_end:')
A('s_endpgm')
A.add(COLD)

body, ins = finalize(A)
far = ''
while '; FARBEGIN' in body:
    i = body.index('; FARBEGIN')
    j = body.index('; FAREND\n', i) + 9
    far += body[i + 11:j - 9]
    body = body[:i] + body[j:]
body = body.replace('L_end:\n  s_endpgm\n', 'L_end:\n  s_endpgm\n' + far)
import subprocess, re as _re
for n, r in PADS.items():
    body = body.replace('; PAD %s\n' % n, 'L_pad_%s:\n  s_cbranch_execz %s\n' % (n, r))
pages = sorted(int(n[2:]) for n in PADS if n.startswith('pg'))
if pages:
    trial = '.amdgcn_target "amdgcn-amd-amdhsa--gfx950"\n.text\n' + body + ''.join('L_pad_pg%d:\n' % p for p in pages) + 'L_tab:\n.fill 8192,4,0\nL_tabend:\n'
    tf = sys.argv[1] + '.trial'
    open(tf, 'w').write(trial)
    subprocess.run(['clang', '-x', 'assembler', '-target', 'amdgcn-amd-amdhsa', '-mcpu=gfx950', '-c', tf, '-o', tf + '.o'], check=True)
    dis = subprocess.run(['llvm-objdump', '-d', '--mcpu=gfx950', tf + '.o'], capture_output=True, text=True).stdout
    addr = [int(x, 16) for x in _re.findall(r'// ([0-9A-F]{12}):', dis)]
    import os
    os.remove(tf)
    os.remove(tf + '.o')
    lines = body.split('\n')
    il = [k for k, x in enumerate(lines) if x.startswith('  ')]
    ins_at = {}
    for cnt, p in enumerate(pages):
        cand = [n for n in range(1, len(il)) if 0 <= addr[n] + 4 * cnt - 4096 * p <= 56]
        best = [n for n in cand if 'v_mfma' in lines[il[n - 1]] and lines[il[n]].startswith('  v_')] or cand
        ins_at[il[best[0]]] = p
        print('page', p, 'pad before', lines[il[best[0]]])
    body = '\n'.join(('L_pad_pg%d:\n  s_cbranch_execz %s\n' % (ins_at[k], PADS['pg%d' % ins_at[k]]) if k in ins_at else '') + x for k, x in enumerate(lines))
ref = open('cdna_kernels/%s.s.ref' % NAME).read()
hdr = ref[:ref.index('; Override launch')]
src = hdr + '; @launch grid=(256,1,1) block=(256,1,1) lds=163840\n'
src += '.amdgcn_target "amdgcn-amd-amdhsa--gfx950"\n.text\n.p2align 12\n.fill 832, 4, 0xbf810000\n.globl %s_kernel\n.p2align 8\n.type %s_kernel,@function\n%s_kernel:\n' % (NAME, NAME, NAME)
src += body
src += '.p2align 7\n.type L_tab,@object\nL_tab:\n'
for n in TN:
    for row in T[n].reshape(-1, 8):
        src += '.long ' + ','.join('0x%x' % x for x in row) + '\n'
src += '.fill %d, 4, 0\nL_tabend:\n.size L_tab, L_tabend-L_tab\n' % ((32 - len(TN)) * 256)
src += '''.section .rodata,"a"
.p2align 6
.amdhsa_kernel %s_kernel
  .amdhsa_next_free_vgpr 512
  .amdhsa_next_free_sgpr 102
  .amdhsa_accum_offset 256
  .amdhsa_group_segment_fixed_size 0
  .amdhsa_kernarg_size 104
  .amdhsa_user_sgpr_count 2
  .amdhsa_user_sgpr_kernarg_segment_ptr 1
  .amdhsa_system_sgpr_workgroup_id_x 1
  .amdhsa_float_denorm_mode_32 3
.end_amdhsa_kernel
''' % NAME
open(sys.argv[1], 'w').write(src)
open(sys.argv[1] + '.stamps', 'w').write('\n'.join(stamp_names))
from collections import Counter
cnt = Counter(i.cls for i in ins)
print('instr', dict(cnt), 'nop states', sum(states(i) for i in ins if i.cls == 'nop'), 'src bytes', len(src))
```
